```python
import torch

def _softmax(x, axis=-1):
    return torch.softmax(x, dim=axis)

def _gelu(x):
    return torch.nn.functional.gelu(x, approximate='tanh')

def _silu(x):
    return torch.nn.functional.silu(x)

def _sigmoid(x):
    return torch.sigmoid(x)

def _layernorm(x, axis=-1, eps=1e-05):
    m = x.mean(dim=axis, keepdim=True)
    v = x.var(dim=axis, keepdim=True, unbiased=False)
    return (x - m) / torch.sqrt(v + eps)

def _scatter_add(tgt, idx, src, axis=0):
    return tgt.clone().index_add_(axis, idx, src)

def _segment_sum(src, seg, n):
    out = torch.zeros((n,) + src.shape[1:], dtype=src.dtype)
    return out.index_add_(0, seg, src)

def _pad(x, pw):
    flat = tuple((v for pair in reversed(pw) for v in pair))
    return torch.nn.functional.pad(x, flat)
kernel_name = 'adaLN_cond__ssm_conv_s4__glu_gated_geglu__prompt'

def setup_inputs():

    _w = lambda a: (lambda t: t.to(torch.bfloat16) if t.is_floating_point() else t)(torch.as_tensor(a))

    def _A_setup():
        B, L, D, N = (1, 2048, 640, 192)
        A_re = -(lambda _x: torch.exp(torch.as_tensor(_x)))((lambda *s: torch.randn(*s, dtype=torch.bfloat16) * 3.2)(D, N))
        A_im = torch.pi * (lambda *s: torch.randn(*s, dtype=torch.bfloat16) * 0.1)(D, N)
        B_re = (lambda *s: torch.randn(*s, dtype=torch.bfloat16) * 0.1)(D, N)
        B_im = (lambda *s: torch.randn(*s, dtype=torch.bfloat16) * 0.1)(D, N)
        C_re = (lambda *s: torch.randn(*s, dtype=torch.bfloat16) * 0.1)(D, N)
        C_im = (lambda *s: torch.randn(*s, dtype=torch.bfloat16) * 0.1)(D, N)
        log_dt = (lambda *s: torch.randn(*s, dtype=torch.bfloat16) * 0.1)(D) * 0.5 - 4.0
        Dskip = (lambda *s: torch.randn(*s, dtype=torch.bfloat16) * 0.1)(D)
        return {'u': _w((lambda *s: torch.randn(*s, dtype=torch.bfloat16) * 0.05)(B, L, D)), 'A_re': _w(A_re), 'A_im': _w(A_im), 'B_re': _w(B_re), 'B_im': _w(B_im), 'C_re': _w(C_re), 'C_im': _w(C_im), 'log_dt': _w(log_dt), 'Dskip': _w(Dskip)}
    _A_in = _A_setup()

    def _B_setup():
        B, S, Dm, Df = (1, 2048, 640, 1536)
        return {'x': _w((lambda *s: torch.randn(*s, dtype=torch.bfloat16) * 0.05)(B, S, Dm)), 'w_gate': _w((lambda *s: torch.randn(*s, dtype=torch.bfloat16) * 1.6)(Dm, Df) * Dm ** (-0.5)), 'w_up': _w((lambda *s: torch.randn(*s, dtype=torch.bfloat16) * 1.6)(Dm, Df) * Dm ** (-0.5)), 'w_down': _w((lambda *s: torch.randn(*s, dtype=torch.bfloat16) * 1.6)(Df, Dm) * Df ** (-0.5))}
    _B_in = _B_setup()
    return {'A_u': _A_in['u'], 'A_A_re': _A_in['A_re'], 'A_A_im': _A_in['A_im'], 'A_B_re': _A_in['B_re'], 'A_B_im': _A_in['B_im'], 'A_C_re': _A_in['C_re'], 'A_C_im': _A_in['C_im'], 'A_log_dt': _A_in['log_dt'], 'A_Dskip': _A_in['Dskip'], 'B_x': _B_in['x'], 'B_w_gate': _B_in['w_gate'], 'B_w_up': _B_in['w_up'], 'B_w_down': _B_in['w_down'], 'c': _w((lambda *s: torch.randn(*s, dtype=torch.bfloat16) * 0.1)(1, 640) * 8.0), 'w_mod': _w((lambda *s: torch.randn(*s, dtype=torch.bfloat16) * 0.1)(640, 6 * 640) * 640 ** (-0.5) * 8.0)}

def reference(A_u, A_A_re, A_A_im, A_B_re, A_B_im, A_C_re, A_C_im, A_log_dt, A_Dskip, B_x, B_w_gate, B_w_up, B_w_down, c, w_mod):

    def _A_ref(u, A_re, A_im, B_re, B_im, C_re, C_im, log_dt, Dskip):
        Bsz, L, D = u.shape
        dt = torch.exp(log_dt)[:, None]
        A = A_re + 1j * A_im
        Bc = B_re + 1j * B_im
        Cc = C_re + 1j * C_im
        logdA = dt * A
        dB = dt * Bc
        l = (lambda x, dt: x.to(dt))(torch.arange(L), A_re.dtype)
        P = torch.exp(logdA[:, :, None] * l[None, None, :])
        K = torch.einsum('dn,dnl,dn->dl', Cc, P, dB).real
        L2 = 2 * L
        Kp = _pad(K, ((0, 0), (0, L)))
        up = (lambda x, *d: x.permute(*d))(u, 0, 2, 1)
        up = _pad(up, ((0, 0), (0, 0), (0, L)))
        Kf = (lambda x, axes=(-2, -1): torch.fft.rfft2(x.float(), dim=axes))(Kp[:, None, :], axes=(-2, -1))
        Uf = (lambda x, axes=(-2, -1): torch.fft.rfft2(x.float(), dim=axes))(up[:, :, None, :], axes=(-2, -1))
        Yf = Uf * Kf[None, :, :, :]
        y = (lambda x, s, axes=(-2, -1): torch.fft.irfft2(x, s=s, dim=axes).to(torch.bfloat16))(Yf, (1, L2), axes=(-2, -1))[:, :, 0, :L]
        y = (lambda x, *d: x.permute(*d))(y, 0, 2, 1) + u * Dskip[None, None, :]
        return y

    def _B_ref(x, w_gate, w_up, w_down):
        g = torch.einsum('bsd,df->bsf', x, w_gate)
        u = torch.einsum('bsd,df->bsf', x, w_up)
        h = _gelu(g) * u
        return torch.einsum('bsf,fd->bsd', h, w_down)
    x = A_u
    mod = (_silu(c) @ w_mod).reshape(c.shape[0], 6, 1, -1)
    sa, ca, ga, sb, cb, gb = (mod[:, 0].clone(), mod[:, 1].clone(), mod[:, 2].clone(), mod[:, 3].clone(), mod[:, 4].clone(), mod[:, 5].clone())
    h = _layernorm(x, axis=-1) * (1 + ca) + sa
    x = x + ga * _A_ref(h, A_A_re, A_A_im, A_B_re, A_B_im, A_C_re, A_C_im, A_log_dt, A_Dskip)
    h = _layernorm(x, axis=-1) * (1 + cb) + sb
    x = x + gb * _B_ref(h, B_w_gate, B_w_up, B_w_down)
    return x
```

```python
def header(launches):
    s = []
    for (k, g, b, lds) in launches:
        s.append(f"; @launch kernel={k} grid=({g},1,1) block=({b},1,1) lds={lds}")
    s.append('.amdgcn_target "amdgcn-amd-amdhsa--gfx950"')
    s.append('.text')
    return "\n".join(s) + "\n"
def kstart(name):
    return f".globl {name}\n.p2align 8\n.type {name},@function\n{name}:\n"
def kdesc(name, vgpr=256, sgpr=102, accum=None):
    if accum is None: accum = min(256, (vgpr + 3) // 4 * 4)
    return f""".section .rodata,"a"
.p2align 6
.amdhsa_kernel {name}
  .amdhsa_next_free_vgpr {vgpr}
  .amdhsa_next_free_sgpr {sgpr}
  .amdhsa_accum_offset {accum}
  .amdhsa_group_segment_fixed_size 0
  .amdhsa_kernarg_size 144
  .amdhsa_user_sgpr_count 2
  .amdhsa_user_sgpr_kernarg_segment_ptr 1
  .amdhsa_system_sgpr_workgroup_id_x 1
  .amdhsa_float_denorm_mode_32 3
.end_amdhsa_kernel
.text
"""
```

```python
from gen_common import *
import sys
NEMPTY = int(sys.argv[1]) if len(sys.argv) > 1 else 0
OUT = sys.argv[2] if len(sys.argv) > 2 else "naive.s"
MOD=0; KT=1<<20; H=16<<20; X1=32<<20; H2=48<<20; HH=64<<20
def ld(reg, off): return f"  s_load_dwordx2 s[{reg}:{reg+1}], s[0:1], {off}\n"
def guard(n, name): return f"  s_cmp_ge_u32 s2, {n}\n  s_cbranch_scc1 {name}_end\n"
def end(name): return f"{name}_end:\n  s_endpgm\n" + kdesc(name, 64)
body = ""; L = []
n="empty_kernel"; body += kstart(n) + "  s_endpgm\n" + kdesc(n, 8)
for i in range(NEMPTY): L.append((n, 256, 256, 0))
n="n1_kernel"; s = kstart(n) + guard(15, n) + ld(4,104)+ld(6,112)+ld(8,136) + f"""
  s_lshl_b32 s3, s2, 8
  v_add_u32 v1, s3, v0
  v_lshlrev_b32 v2, 1, v1
  v_mov_b32 v3, 0
  v_mov_b32 v10, 0
  s_mov_b32 s10, 0
  s_waitcnt lgkmcnt(0)
{n}_l:
  global_load_ushort v4, v3, s[4:5]
  global_load_ushort v5, v2, s[6:7]
  s_waitcnt vmcnt(0)
  v_lshlrev_b32 v4, 16, v4
  v_lshlrev_b32 v5, 16, v5
  v_mul_f32 v6, 0xbfb8aa3b, v4
  v_exp_f32 v6, v6
  s_nop 0
  v_add_f32 v6, 1.0, v6
  v_rcp_f32 v6, v6
  s_nop 0
  v_mul_f32 v6, v6, v4
  v_fmac_f32 v10, v6, v5
  v_add_u32 v3, 2, v3
  v_add_u32 v2, 7680, v2
  s_add_u32 s10, s10, 1
  s_cmp_lt_u32 s10, 640
  s_cbranch_scc1 {n}_l
  v_lshlrev_b32 v1, 2, v1
  global_store_dword v1, v10, s[8:9]
""" + end(n); body += s; L.append((n, 15, 256, 0))
n="n2_kernel"; s = kstart(n) + guard(5120, n) + ld(4,8)+ld(6,16)+ld(8,24)+ld(10,32)+ld(12,40)+ld(14,48)+ld(16,56)+ld(18,136) + f"""
  s_lshr_b32 s20, s2, 3
  s_and_b32 s21, s2, 7
  s_lshl_b32 s21, s21, 8
  v_add_u32 v1, s21, v0
  v_cvt_f32_u32 v2, v1
  v_cvt_pk_bf16_f32 v2, v2, v2
  v_lshlrev_b32 v2, 16, v2
  s_lshl_b32 s22, s20, 1
  v_mov_b32 v3, s22
  s_mul_i32 s23, s20, 384
  v_mov_b32 v4, s23
  s_waitcnt lgkmcnt(0)
  global_load_ushort v5, v3, s[16:17]
  s_waitcnt vmcnt(0)
  v_lshlrev_b32 v5, 16, v5
  v_mul_f32 v5, 0x3fb8aa3b, v5
  v_exp_f32 v5, v5
  s_nop 0
  v_cvt_pk_bf16_f32 v5, v5, v5
  v_lshlrev_b32 v5, 16, v5
  v_mul_f32 v2, v2, v5
  v_mov_b32 v10, 0
  s_mov_b32 s24, 0
{n}_l:
  global_load_ushort v11, v4, s[4:5]
  global_load_ushort v12, v4, s[6:7]
  global_load_ushort v13, v4, s[8:9]
  global_load_ushort v14, v4, s[10:11]
  global_load_ushort v15, v4, s[12:13]
  global_load_ushort v16, v4, s[14:15]
  s_waitcnt vmcnt(0)
  v_lshlrev_b32 v11, 16, v11
  v_lshlrev_b32 v12, 16, v12
  v_lshlrev_b32 v13, 16, v13
  v_lshlrev_b32 v14, 16, v14
  v_lshlrev_b32 v15, 16, v15
  v_lshlrev_b32 v16, 16, v16
  v_mul_f32 v11, v11, v2
  v_mul_f32 v11, 0x3fb8aa3b, v11
  v_exp_f32 v11, v11
  v_mul_f32 v12, v12, v2
  v_mul_f32 v12, 0x3e22f983, v12
  v_fract_f32 v12, v12
  v_cos_f32 v17, v12
  v_sin_f32 v18, v12
  v_mul_f32 v19, v13, v15
  v_fma_f32 v19, -v14, v16, v19
  v_mul_f32 v20, v13, v16
  v_fma_f32 v20, v14, v15, v20
  v_mul_f32 v19, v19, v17
  v_fma_f32 v19, -v20, v18, v19
  v_fmac_f32 v10, v19, v11
  v_add_u32 v4, 2, v4
  s_add_u32 s24, s24, 1
  s_cmp_lt_u32 s24, 192
  s_cbranch_scc1 {n}_l
  v_mul_f32 v10, v10, v5
  v_mul_u32_u24 v1, 2560, v1
  s_lshl_b32 s22, s20, 2
  s_add_u32 s22, s22, {KT}
  v_add_u32 v1, s22, v1
  global_store_dword v1, v10, s[18:19]
""" + end(n); body += s; L.append((n, 5120, 256, 0))
def ln(n, src_bf16, srcoff, dst, sidx, cidx):
    s = kstart(n) + guard(2048, n) + ld(4,0)+ld(8,136) + "  s_waitcnt lgkmcnt(0)\n"
    s += f"  s_mul_i32 s3, s2, 640\n  v_add_u32 v1, s3, v0\n  v_lshlrev_b32 v2, {1 if src_bf16 else 2}, v1\n  v_lshlrev_b32 v3, 2, v0\n"
    if not src_bf16: s += f"  v_add_u32 v2, {srcoff}, v2\n"
    s += f"  v_add_u32 v4, {MOD+sidx*2560}, v3\n  v_add_u32 v5, {MOD+cidx*2560}, v3\n"
    for i in range(10):
        s += (f"  global_load_ushort v{10+i}, v2, s[4:5] offset:{128*i}\n" if src_bf16 else f"  global_load_dword v{10+i}, v2, s[8:9] offset:{256*i}\n")
        s += f"  global_load_dword v{20+i}, v4, s[8:9] offset:{256*i}\n  global_load_dword v{30+i}, v5, s[8:9] offset:{256*i}\n"
    s += "  s_waitcnt vmcnt(0)\n  v_mov_b32 v6, 0\n  v_mov_b32 v7, 0\n"
    for i in range(10):
        if src_bf16: s += f"  v_lshlrev_b32 v{10+i}, 16, v{10+i}\n"
        s += f"  v_add_f32 v6, v6, v{10+i}\n  v_fmac_f32 v7, v{10+i}, v{10+i}\n"
    for x in (1,2,4,8,16,32):
        s += f"  v_xor_b32 v8, {x}, v0\n  v_lshlrev_b32 v8, 2, v8\n  ds_bpermute_b32 v40, v8, v6\n  ds_bpermute_b32 v41, v8, v7\n  s_waitcnt lgkmcnt(0)\n  v_add_f32 v6, v6, v40\n  v_add_f32 v7, v7, v41\n"
    s += f"""  v_mul_f32 v6, 0x3acccccd, v6
  v_mul_f32 v7, 0x3acccccd, v7
  v_fma_f32 v7, -v6, v6, v7
  v_add_f32 v7, 0x3727c5ac, v7
  v_rsq_f32 v7, v7
  v_lshlrev_b32 v1, 2, v1
  v_add_u32 v1, {dst}, v1
"""
    for i in range(10):
        s += f"  v_sub_f32 v{10+i}, v{10+i}, v6\n  v_mul_f32 v{10+i}, v{10+i}, v7\n  v_add_f32 v{30+i}, 1.0, v{30+i}\n  v_fma_f32 v{10+i}, v{10+i}, v{30+i}, v{20+i}\n  global_store_dword v1, v{10+i}, s[8:9] offset:{256*i}\n"
    return s + end(n)
body += ln("n3_kernel", True, 0, H, 0, 1); L.append(("n3_kernel", 2048, 64, 0))
n="n4_kernel"; s = kstart(n) + guard(10240, n) + ld(4,0)+ld(6,64)+ld(8,136) + f"""
  s_and_b32 s20, s2, 2047
  s_lshr_b32 s21, s2, 11
  s_lshl_b32 s21, s21, 7
  v_add_u32 v1, s21, v0
  v_lshlrev_b32 v2, 2, v1
  v_add_u32 v3, {KT}, v2
  s_mul_i32 s22, s20, 2560
  v_add_u32 v9, s22, v2
  v_add_u32 v4, {H}, v9
  v_mov_b32 v10, 0
  s_mov_b32 s24, 0
  s_waitcnt lgkmcnt(0)
  global_load_dword v15, v4, s[8:9]
{n}_l:
  global_load_dword v11, v3, s[8:9]
  global_load_dword v12, v4, s[8:9]
  v_add_u32 v3, 2560, v3
  v_subrev_u32 v4, 2560, v4
  s_waitcnt vmcnt(0)
  v_fmac_f32 v10, v11, v12
  s_add_u32 s24, s24, 1
  s_cmp_le_u32 s24, s20
  s_cbranch_scc1 {n}_l
  v_lshlrev_b32 v5, 1, v1
  global_load_ushort v13, v5, s[6:7]
  v_lshrrev_b32 v6, 1, v9
  global_load_ushort v14, v6, s[4:5]
  v_add_u32 v7, {MOD+2*2560}, v2
  global_load_dword v16, v7, s[8:9]
  s_waitcnt vmcnt(0)
  v_lshlrev_b32 v13, 16, v13
  v_lshlrev_b32 v14, 16, v14
  v_fmac_f32 v10, v15, v13
  v_fmac_f32 v14, v10, v16
  v_add_u32 v9, {X1}, v9
  global_store_dword v9, v14, s[8:9]
""" + end(n); body += s; L.append((n, 10240, 128, 0))
body += ln("n5_kernel", False, X1, H2, 3, 4); L.append(("n5_kernel", 2048, 64, 0))
n="n6_kernel"; s = kstart(n) + guard(12288, n) + ld(4,80)+ld(6,88)+ld(8,136) + f"""
  s_and_b32 s20, s2, 2047
  s_lshr_b32 s21, s2, 11
  s_lshl_b32 s21, s21, 8
  v_add_u32 v1, s21, v0
  v_lshlrev_b32 v2, 1, v1
  s_mul_i32 s22, s20, 2560
  s_add_u32 s22, s22, {H2}
  v_mov_b32 v3, s22
  v_mov_b32 v10, 0
  v_mov_b32 v9, 0
  s_mov_b32 s24, 0
  s_waitcnt lgkmcnt(0)
{n}_l:
  global_load_ushort v11, v2, s[4:5]
  global_load_ushort v12, v2, s[6:7]
  global_load_dword v13, v3, s[8:9]
  v_add_u32 v2, 3072, v2
  v_add_u32 v3, 4, v3
  s_waitcnt vmcnt(0)
  v_lshlrev_b32 v11, 16, v11
  v_lshlrev_b32 v12, 16, v12
  v_fmac_f32 v10, v11, v13
  v_fmac_f32 v9, v12, v13
  s_add_u32 s24, s24, 1
  s_cmp_lt_u32 s24, 640
  s_cbranch_scc1 {n}_l
  v_mul_f32 v11, v10, v10
  v_mul_f32 v11, 0x3d372713, v11
  v_add_f32 v11, 1.0, v11
  v_mul_f32 v11, v11, v10
  v_mul_f32 v11, 0xc0135761, v11
  v_exp_f32 v11, v11
  s_nop 0
  v_add_f32 v11, 1.0, v11
  v_rcp_f32 v11, v11
  s_nop 0
  v_mul_f32 v11, v11, v10
  v_mul_f32 v11, v11, v9
  s_mul_i32 s22, s20, 6144
  s_add_u32 s22, s22, {HH}
  v_lshlrev_b32 v1, 2, v1
  v_add_u32 v1, s22, v1
  global_store_dword v1, v11, s[8:9]
""" + end(n); body += s; L.append((n, 12288, 256, 0))
n="n7_kernel"; s = kstart(n) + guard(10240, n) + ld(4,96)+ld(6,120)+ld(8,136) + f"""
  s_and_b32 s20, s2, 2047
  s_lshr_b32 s21, s2, 11
  s_lshl_b32 s21, s21, 7
  v_add_u32 v1, s21, v0
  v_lshlrev_b32 v2, 1, v1
  s_mul_i32 s22, s20, 6144
  s_add_u32 s22, s22, {HH}
  v_mov_b32 v3, s22
  v_mov_b32 v10, 0
  s_mov_b32 s24, 0
  s_waitcnt lgkmcnt(0)
{n}_l:
  global_load_ushort v11, v2, s[4:5]
  global_load_dword v13, v3, s[8:9]
  v_add_u32 v2, 1280, v2
  v_add_u32 v3, 4, v3
  s_waitcnt vmcnt(0)
  v_lshlrev_b32 v11, 16, v11
  v_fmac_f32 v10, v11, v13
  s_add_u32 s24, s24, 1
  s_cmp_lt_u32 s24, 1536
  s_cbranch_scc1 {n}_l
  v_lshlrev_b32 v2, 2, v1
  v_add_u32 v7, {MOD+5*2560}, v2
  global_load_dword v16, v7, s[8:9]
  s_mul_i32 s22, s20, 2560
  v_add_u32 v9, s22, v2
  v_add_u32 v4, {X1}, v9
  global_load_dword v14, v4, s[8:9]
  s_waitcnt vmcnt(0)
  v_fmac_f32 v14, v10, v16
  v_cvt_pk_bf16_f32 v14, v14, v14
  v_lshrrev_b32 v9, 1, v9
  global_store_short v9, v14, s[6:7]
""" + end(n); body += s; L.append((n, 10240, 128, 0))
open(OUT, "w").write(header(L) + body)
```

```python
import re, copy
TRANS = ('v_exp_f32','v_log_f32','v_rcp_f32','v_rsq_f32','v_sqrt_f32','v_sin_f32','v_cos_f32')
def regs_of(op):
    op = op.strip()
    op = re.sub(r'^-', '', op); op = re.sub(r'^abs\((.*)\)$', r'\1', op); op = op.strip('|')
    m = re.fullmatch(r'([vas])(\d+)', op)
    if m: return [(m.group(1), int(m.group(2)))]
    m = re.fullmatch(r'([vas])\[(\d+):(\d+)\]', op)
    if m: return [(m.group(1), i) for i in range(int(m.group(2)), int(m.group(3)) + 1)]
    if op == 'vcc': return [('s', 106), ('s', 107)]
    if op == 'vcc_lo': return [('s', 106)]
    if op == 'vcc_hi': return [('s', 107)]
    if op == 'm0': return [('s', 124)]
    if op == 'exec': return [('s', 126), ('s', 127)]
    return []
class I:
    def __init__(s, text):
        s.text = text
        t = text.split(';')[0].strip()
        s.label = None; s.mn = ''; s.ops = []; s.mods = ''
        if t.endswith(':'): s.label = t[:-1]; return
        if t.startswith('.'): s.mn = '.dir'; return
        p = t.split(None, 1); s.mn = p[0]
        rest = p[1] if len(p) > 1 else ''
        ops = []; depth = 0; cur = ''
        for ch in rest:
            if ch in '[(': depth += 1
            if ch in '])': depth -= 1
            if ch == ',' and depth == 0: ops.append(cur.strip()); cur = ''
            else: cur += ch
        if cur.strip():
            q = cur.strip().split(None, 1); ops.append(q[0]); s.mods = q[1] if len(q) > 1 else ''
        s.ops = ops
        mn = re.sub(r'_(e32|e64|dpp|sdwa)$', '', s.mn); s.base = mn
        R = [regs_of(o) for o in ops]
        flat = lambda l: [x for y in l for x in y]
        s.mfma = mn.startswith('v_mfma'); s.valu = mn.startswith('v_') and not s.mfma
        s.ds = mn.startswith('ds_'); s.vm = mn.startswith(('global_', 'buffer_')); s.smem = mn.startswith(('s_load', 's_memtime', 's_memrealtime', 's_buffer_load'))
        s.salu = mn.startswith('s_') and not s.smem
        s.trans = mn in TRANS; s.dot = mn.startswith('v_dot')
        s.dpp = any(k in s.mods for k in ('row_', 'quad_perm', 'wave_')) or s.mn.endswith('_dpp')
        s.perml = mn.startswith('v_permlane'); s.rdl = mn in ('v_readlane_b32', 'v_readfirstlane_b32')
        s.m0use = False; s.wide = []
        d, u = [], []
        if s.mfma:
            d = R[0]; u = flat(R[1:]); s.A = R[1]; s.B = R[2]; s.C = R[3]
            s.passes = 8 if '32x32' in mn else 4
        elif s.perml: d = flat(R); u = flat(R)
        elif s.valu:
            nd = 2 if mn in ('v_add_co_u32', 'v_addc_co_u32', 'v_sub_co_u32', 'v_mad_u64_u32') else 1
            d = flat(R[:nd]); u = flat(R[nd:])
            if mn in ('v_fmac_f32', 'v_dot2c_f32_bf16', 'v_writelane_b32') or s.dpp: u = u + R[0]
        elif s.ds:
            if mn.startswith(('ds_read', 'ds_bpermute', 'ds_permute', 'ds_swizzle')):
                d = R[0]; u = flat(R[1:])
                if 'd16' in mn: u = u + R[0]
            else: u = flat(R)
            s.m0use = 'addtid' in mn
        elif s.vm:
            if mn.startswith(('buffer_wbl2', 'buffer_inv')): pass
            elif '_load_lds' in mn or (mn.startswith('buffer_load') and re.search(r'\blds\b', s.mods)): u = flat(R); s.m0use = True
            elif '_load' in mn:
                d = R[0]; u = flat(R[1:])
                if 'd16' in mn: u = u + R[0]
            elif '_atomic' in mn and 'sc0' in s.mods: d = R[0]; u = flat(R[1:])
            else:
                u = flat(R)
                if mn.endswith(('x3', 'x4')): s.wide = R[1] if mn.startswith('global') else R[0]
        elif s.smem: d = R[0]; u = flat(R[1:])
        elif s.salu:
            if mn.startswith(('s_cmp', 's_cbranch', 's_branch', 's_waitcnt', 's_nop', 's_barrier', 's_endpgm', 's_sleep', 's_setprio', 's_bitcmp')): u = flat(R)
            else:
                d = R[0]; u = flat(R[1:])
                if 'saveexec' in mn: d = d + regs_of('exec')
        s.d = set(d); s.u = set(u)
class State:
    def __init__(s):
        s.vm = []; s.lg = []
        s.ev = {}
    def step(s, n):
        s.ev = {k: (a + n, i) for k, (a, i) in s.ev.items() if a + n < 24}
    def merge(s, o):
        for k, v in o.ev.items():
            if k not in s.ev or v[0] < s.ev[k][0]: s.ev[k] = v
        assert s.vm == o.vm or not any(x[0] for x in s.vm + o.vm), "merge with pending vm loads"
        assert s.lg == o.lg or not any(x[0] for x in s.lg + o.lg), "merge with pending lgkm loads"
        if len(o.vm) < len(s.vm): s.vm = o.vm[:]
        if len(o.lg) < len(s.lg): s.lg = o.lg[:]
class Asm:
    def __init__(s): s.ins = []
    def __call__(s, text):
        for l in text.split('\n'):
            if l.split(';')[0].strip(): s.ins.append(I(l.strip()))
    def need(s, st, i):
        n = 0
        def chk(kind, regs, dist):
            nonlocal n
            for r in regs:
                e = st.ev.get((kind, r))
                if e is not None:
                    dd = dist(e[1]) if callable(dist) else dist
                    n = max(n, dd - e[0])
        big = lambda inf: 12 if inf[0] == 8 else 8
        if i.mfma:
            chk('vw', i.u, 2); chk('dw', i.u | i.d, 3)
            chk('mw', set(i.A) | set(i.B), big)
            key = (i.passes, tuple(i.C))
            chk('mw', i.C, lambda inf: 0 if inf == key else (10 if inf[0] == 8 else 6))
            if not i.C or tuple(i.C) != tuple(sorted(i.d)): chk('mw', i.d, lambda inf: 10 if inf[0] == 8 else 6)
        if i.valu:
            chk('mw', i.u | i.d, big); chk('mc', i.d, lambda p: 7 if p == 8 else 3)
            if not i.trans: chk('tw', i.u, 1)
            if i.dot:
                ab = set(regs_of(i.ops[1])) | set(regs_of(i.ops[2]))
                chk('dw', ab, 3); chk('dw', (i.u | i.d) - ab, lambda op: 0 if op == i.base else 3)
            else: chk('dw', i.u | i.d, 3)
            if i.rdl: chk('vw', i.u, 1)
            if i.perml or i.dpp: chk('vw', i.u, 2)
            chk('sw', i.u, 2)
            if i.base in ('v_readlane_b32', 'v_writelane_b32'): chk('sw', regs_of(i.ops[2]), 4)
            chk('st', i.d, 2)
        if i.ds or i.vm:
            chk('mw', i.u | i.d, big); chk('dw', i.u | i.d, 3); chk('tw', i.u, 1)
            chk('st', i.d, 1)
            if i.vm: chk('sw', i.u, 5)
            if i.m0use: chk('m0', [('s', 124)], 1)
        if i.salu or i.smem: chk('sw', i.u, 1)
        return n
    def record(s, st, i):
        st.step(1)
        for r in i.d:
            for k in ('vw', 'tw', 'dw', 'mw'): st.ev.pop((k, r), None)
        if i.mfma:
            for r in i.d: st.ev[('mw', r)] = (0, (i.passes, tuple(sorted(i.d))))
            for r in i.C: st.ev[('mc', r)] = (0, i.passes)
        elif i.valu:
            for r in i.d:
                if r[0] == 's': st.ev[('sw', r)] = (0, None)
                else:
                    st.ev[('vw', r)] = (0, None)
                    if i.trans: st.ev[('tw', r)] = (0, None)
                    if i.dot: st.ev[('dw', r)] = (0, i.base)
        elif i.salu and ('s', 124) in i.d: st.ev[('m0', ('s', 124))] = (0, None)
        for r in i.wide: st.ev[('st', r)] = (0, None)
        if i.vm:
            m = re.search(r'tag=(\w+)', i.text); st.vm.append((set(i.d), m.group(1) if m else 'v'))
        if i.ds: st.lg.append((set(i.d), 'l'))
        if i.smem: st.lg.append((set(i.d), 's'))
    def final(s):
        snaps = {}
        for it in range(3):
            out = []; st = State(); live = True; new = {}; s.nnop = 0; s.nwait = 0
            for i in s.ins:
                if i.label:
                    srcs = [x for x in (new.get(i.label), snaps.get(i.label)) if x is not None]
                    if not live:
                        st = copy.deepcopy(srcs[0]) if srcs else State(); srcs = srcs[1:]
                    for x in srcs: st.merge(x)
                    live = True; out.append(i.text); continue
                if i.mn == '.dir': out.append(i.text); continue
                if i.mn == 'WAITVM':
                    idx = [k for k, x in enumerate(st.vm) if x[1] == i.ops[0]]
                    if idx:
                        n = min(len(st.vm) - 1 - max(idx), 63); st.vm = st.vm[len(st.vm) - n:] if n else []
                        out.append(f'  s_waitcnt vmcnt({n})'); st.step(1)
                    continue
                if i.mn == 's_waitcnt':
                    t = i.text.split(';')[0]
                    m = re.search(r'vmcnt\((\d+)\)', t)
                    if m: k = int(m.group(1)); st.vm = st.vm[len(st.vm) - k:] if k < len(st.vm) else st.vm; st.vm = st.vm if k else []
                    m = re.search(r'lgkmcnt\((\d+)\)', t)
                    if m:
                        k = int(m.group(1))
                        if k == 0: st.lg = []
                        elif not any(x[1] == 's' for x in st.lg) and k < len(st.lg): st.lg = st.lg[len(st.lg) - k:]
                    out.append('  ' + i.text); st.step(1); continue
                touch = i.d | i.u
                w = []
                idx = [k for k, x in enumerate(st.vm) if x[0] & touch]
                if idx:
                    n = min(len(st.vm) - 1 - max(idx), 63); w.append(f'vmcnt({n})'); st.vm = st.vm[len(st.vm) - n:] if n else []
                idx = [k for k, x in enumerate(st.lg) if x[0] & touch]
                if idx:
                    n = 0 if any(x[1] == 's' for x in st.lg) else min(len(st.lg) - 1 - max(idx), 15)
                    w.append(f'lgkmcnt({n})'); st.lg = st.lg[len(st.lg) - n:] if n else []
                if w: out.append('  s_waitcnt ' + ' '.join(w)); st.step(1); s.nwait += 1
                n = s.need(st, i)
                while n > 0:
                    k = min(n, 16); out.append(f'  s_nop {k-1}'); st.step(k); n -= k; s.nnop += k
                out.append('  ' + i.text)
                if i.mn == 's_nop': st.step(int(i.ops[0]) + 1); continue
                s.record(st, i)
                if i.mn.startswith(('s_cbranch', 's_branch')):
                    tg = i.ops[0]
                    if tg in new: new[tg].merge(st)
                    else: new[tg] = copy.deepcopy(st)
                    if i.mn == 's_branch': live = False
                if i.mn == 's_endpgm': live = False
            snaps = new
        return '\n'.join(out) + '\n'
def interleave(main, fill, ratio=None, start=0, end=None):
    end = len(main) if end is None else end
    n = end - start; out = list(main[:start]); k = 0
    for j in range(n):
        out.append(main[start + j])
        tgt = (len(fill) * (j + 1) + n - 1) // n if ratio is None else min(len(fill), ratio * (j + 1))
        while k < tgt: out.append(fill[k]); k += 1
    out += fill[k:]; out += main[end:]
    return out
```

```python
import numpy as np
L=2048
def rne_bf16(j):
    j=int(j)
    if j<=256: return j
    s = 1<<(j.bit_length()-8)
    q,r = divmod(j,s)
    if r*2>s or (r*2==s and q&1): q+=1
    return q*s
CH_E = 67
CH_O = 69 + 67
CH_T2 = 137
CH_T3 = CH_T2 + 32
NCH = CH_T3 + 20
def build_table(Kf, ds):
    tab = np.full(192*8, np.nan)
    for Ln in range(64):
        j, half = Ln & 31, Ln >> 5
        a = list(range(9)) if half==0 else [256,256,258,260,260,260,262,264,264]
        V = [Kf(x+8*j) for x in a]
        if Ln==0: V[0] += ds
        tab[(CH_E-Ln)*8:(CH_E-Ln)*8+8] = V[8:0:-1]
        tab[(CH_O-Ln)*8:(CH_O-Ln)*8+8] = V[7::-1]
        v9, v10 = (Kf(516+8*j), Kf(520+8*j)) if half==0 else (Kf(772+8*j), Kf(776+8*j))
        p = CH_T2*8 + (320-(130+2*Ln)); tab[p]=v10; tab[p+1]=v9
        tab[CH_T3*8 + 256-(129+Ln)] = Kf(1032+256*half+8*j)
        tab[CH_T3*8 + 256-(193+Ln)] = Kf(1032+512+256*half+8*j)
    special = list(range(0,4)) + list(range(68,73)) + list(range(137,145)) + list(range(161,169)) + list(range(185,192))
    assert len(special)==32
    for c in special:
        assert np.all(np.isnan(tab[c*8:c*8+8])), c
        tab[c*8:c*8+8]=0
    K0 = Kf(0)+ds; K512=Kf(512)
    tab[(CH_E+1)*8] = K0
    tab[(CH_E-64)*8+6:(CH_E-64)*8+8] = K512
    tab[(CH_O-64)*8+5:(CH_O-64)*8+8] = K512
    assert not np.any(np.isnan(tab))
    return tab
lane = np.arange(64); c16 = lane & 15; g = lane >> 4
def frag(arr, start): return arr[start[:,None] + np.arange(8)[None,:]]
def mat(fr):
    m = np.zeros((16,32));
    for l in range(64): m[l&15, 8*(l>>4):8*(l>>4)+8] = fr[l]
    return m
def mfma(A,B):
    D = mat(A) @ mat(B).T
    return np.stack([D[4*g+r, c16] for r in range(4)], 1)
def td_start(q):
    P = 32*q + 16 + c16 - 8*g
    return np.where(P%2==0, CH_E*8+8-P, CH_O*8+7-P)
def t2_start(D,h): return CH_T2*8 + 320 - (64*D + 4*c16 + 4 - 16*g - 8*h)
def t3_start(D): return CH_T3*8 + 256 - (32*D + 2*c16 + 2 - 8*g)
PAD=256
def h_start(n, sig, sh=16): return PAD + 16*(16*n + c16 - 2*sig) + 8*g - sh
def band(center_off, w, sh):
    k = 8*g[:,None] + np.arange(8)[None,:]
    return (np.abs(k - sh - (c16[:,None]+center_off)) <= w).astype(float)
BANDS = {'r2q0':(-16,2,24),'r2q1':(-12,1,16),'r2q2':(-8,2,16),'r2q3':(-4,1,16),'r3e':(-16,4,24),'r3o':(-8,3,16)}
def conv(tab, h):
    H = np.concatenate([np.zeros(PAD), h])
    acc = np.zeros((8,64,4)); nm=0
    for sig in range(8):
        for n in range(8):
            B = frag(H, h_start(n,sig))
            for j in ([0,1,2] if sig==0 else [0,1]):
                if n+j<8: acc[n+j] += mfma(frag(tab, td_start(sig+8*j)), B); nm+=1
    lag = 32*32 + 16 + c16[:,None] - 8*g[:,None] - np.arange(8)[None,:]
    K1024 = tab[CH_T2*8 + 320-256]
    SP = np.where((lag==1027)|(lag==1028), K1024, 0.)
    for n in range(4): acc[n+4] += mfma(SP, frag(H,h_start(n,0))); nm+=1
    S = lambda n,key: mfma(frag(H,h_start(n,0,BANDS[key][2])), band(*BANDS[key]))
    for n in range(4):
        De, Do = S(n,'r3e'), S(n,'r3o'); nm+=2
        Z = np.stack([De,Do],2).reshape(64,8)
        for D in range(4,8):
            if n+D<8: acc[n+D] += mfma(Z, frag(tab,t3_start(D))); nm+=1
    for n in range(6):
        Dq = np.stack([S(n,f'r2q{q}') for q in range(4)],2); nm+=4
        for hh in range(2):
            Z = Dq[:,2*hh:2*hh+2,:].reshape(64,8)
            for D in range(2,5):
                if n+D<8: acc[n+D] += mfma(Z, frag(tab,t2_start(D,hh))); nm+=1
    y = np.zeros(L)
    for n in range(8):
        for r in range(4): y[256*n + 16*c16 + 4*g + r] = acc[n][:,r]
    return y, nm
if __name__ == '__main__':
    rng = np.random.default_rng(0)
    Kv = rng.standard_normal(4096); h = rng.standard_normal(L); ds=0.7
    tab = build_table(lambda l: Kv[l], ds)
    y, nm = conv(tab, h)
    Kfull = np.array([Kv[rne_bf16(j)] for j in range(L)])
    ref = np.convolve(Kfull, h)[:L] + ds*h
    print('max err', np.abs(y-ref).max(), 'mfmas', nm)
    for q in (0,1,16):
        st = td_start(q); assert np.all(st%2==0) and st.min()>=0
        for half in range(2):
            dw = np.unique(st[32*half:32*half+32]//2); print('td',q,half,'max bank mult', np.bincount(dw%32).max())
    for D in range(2,5):
        for hh in range(2):
            st=t2_start(D,hh); assert np.all(st%4==0) and st.min()>=CH_T2*8 and st.max()+8<=CH_T3*8
    for D in range(4,8):
        st=t3_start(D); assert np.all(st%2==0) and st.min()>=CH_T3*8 and st.max()+8<=NCH*8
```

```python
from asmlib import *
from layout import *
import conv_model as cm
LOG2E = 0x3fb8aa3b; INV2PI = 0x3e22f983
N_KG, N_MOD, N_ST, N_WD = 160, 240, 128, 96
K1_GRID = N_KG + N_MOD + N_ST + N_WD
K1_LDS = 4 * 32 * 272
def ldp(a, reg, name): a(f"s_load_dwordx2 s[{reg}:{reg+1}], s[0:1], {KARG[name]}")
def P(r): return f"v[{r}:{r+1}]"
def cmul(d, z, w, t):
    return [f"v_pk_mul_f32 {P(t)}, {P(z)}, {P(w)} op_sel:[0,0] op_sel_hi:[0,1]",
            f"v_pk_fma_f32 {P(d)}, {P(z)}, {P(w)}, {P(t)} op_sel:[1,1,0] op_sel_hi:[1,0,1] neg_lo:[1,0,0]"]
AROWS = list(range(9)) + [256, 258, 260, 262, 264, 516, 520, 772, 776, 1032, 1288, 1544, 1800]
def arow_map():
    h0 = list(range(9)) + [516, 520, 1032, 1544, 0, 0, 0]
    h1 = [256, 256, 258, 260, 260, 260, 262, 264, 264, 772, 776, 1288, 1800, 0, 0, 0]
    m = []
    for rho in range(32):
        v = 4 * (rho >> 3) + (rho & 3); half = (rho >> 2) & 1
        m.append(AROWS.index((h1 if half else h0)[v]))
    return m
def kgen(a, pre):
    for i, n in enumerate(('are', 'aim', 'bre', 'bim', 'cre', 'cim', 'ldt', 'dsk')): ldp(a, 4 + 2 * i, n)
    ldp(a, 22, 'ws')
    a(f"""
    s_lshl_b32 s24, s21, 2
    s_add_u32 s24, s24, s20            ; channel
    s_mul_i32 s25, s24, 384
    v_and_b32 v1, 63, v0               ; lane
    v_lshl_add_u32 v2, v1, 2, s25
    v_lshl_add_u32 v3, v1, 1, s25
    s_lshr_b32 s26, s24, 1
    s_lshl_b32 s26, s26, 2
    s_waitcnt lgkmcnt(0)
    """)
    RAW = 4
    for i in range(6): a(f"global_load_dword v{RAW+i}, v2, s[{4+2*i}:{5+2*i}]")
    a("s_load_dword s27, s[16:17], s26\ns_load_dword s28, s[18:19], s26")
    for i in range(6): a(f"global_load_ushort v{RAW+6+i}, v3, s[{4+2*i}:{5+2*i}] offset:256")
    a(f"s_mul_i32 s29, s20, {32*272}\ns_mov_b32 m0, s29")
    VB, VA, VSP = 16, 17, 18
    a(f"v_and_b32 v{VB}, 31, v1\nv_mul_u32_u24 v{VB}, 272, v{VB}\nv_lshrrev_b32 v19, 5, v1\nv_lshl_add_u32 v19, v19, 4, s29\nv_add_u32 v{VB}, v{VB}, v19")
    m = arow_map()
    a(f"v_mov_b32 v{VA}, 0")
    for l in range(64):
        if m[l & 31]: a(f"v_writelane_b32 v{VA}, {m[l & 31]}, {l}")
    a(f"v_mul_u32_u24 v{VA}, 272, v{VA}\nv_add_u32 v{VA}, v{VA}, v19")
    pre(a)
    DT = 20
    a(f"""
    s_waitcnt lgkmcnt(0)
    s_and_b32 s30, s24, 1
    s_lshl_b32 s30, s30, 4
    s_lshr_b32 s27, s27, s30
    s_lshl_b32 s27, s27, 16
    s_lshr_b32 s28, s28, s30
    s_lshl_b32 s28, s28, 16
    v_mov_b32 v{DT}, {LOG2E}
    v_mul_f32 v{DT}, s27, v{DT}
    v_exp_f32 v{DT}, v{DT}
    v_cvt_pk_bf16_f32 v{DT}, v{DT}, v{DT}
    v_and_b32 v{DT}, 0xffff0000, v{DT}
    v_mov_b32 v21, 0x3f80
    s_mov_b32 s34, {LOG2E}
    s_mov_b32 s35, {INV2PI}
    """)
    ONE = 21
    KR = 22
    BB, CC = 24, 26
    E1, G, H = 28, 30, 32
    F = 34
    Z = 50
    ZT = 60; T0, T1 = 62, 64; X = 66
    PB = 72
    FB, FA, ACC = 88, 120, 152
    PK = FA
    pend = []
    for rd in range(3):
        s = []
        for i, d in enumerate((KR, KR + 1, BB, BB + 1, CC, CC + 1)):
            if rd == 0: s.append(f"v_lshlrev_b32 v{d}, 16, v{RAW+i}")
            elif rd == 1: s.append(f"v_and_b32 v{d}, 0xffff0000, v{RAW+i}")
            else: s.append(f"v_lshlrev_b32 v{d}, 16, v{RAW+6+i}")
        s.append(f"v_pk_mul_f32 {P(KR)}, {P(KR)}, {P(DT)} op_sel_hi:[1,0]")
        s.append(f"v_pk_mul_f32 {P(BB)}, {P(BB)}, {P(DT)} op_sel_hi:[1,0]")
        s.append(f"v_pk_mul_f32 {P(KR)}, {P(KR)}, s[34:35]")
        s += cmul(Z, CC, BB, T0)
        def direct(d, mult, conj, x):
            r = []
            if mult != 1:
                import struct
                lit = hex(struct.unpack('<I', struct.pack('<f', float(mult)))[0])
                r += [f"v_mul_f32 v{x}, {lit}, v{KR}", f"v_mul_f32 v{x+1}, {lit}, v{KR+1}", f"v_exp_f32 v{x}, v{x}", f"v_fract_f32 v{x+1}, v{x+1}"]
            else: r += [f"v_exp_f32 v{x}, v{KR}", f"v_fract_f32 v{x+1}, v{KR+1}"]
            r += [f"v_cos_f32 v{d}, v{x+1}", f"v_sin_f32 v{d+1}, v{x+1}"]
            fin = f"v_pk_mul_f32 {P(d)}, {P(d)}, {P(x)} op_sel_hi:[1,0]" + (" neg_hi:[1,0]" if conj else "")
            return r, fin
        d0, f0 = direct(F + 2, 8, True, X); d1, f1 = direct(E1, 1, False, X + 2); d2, f2 = direct(G, 64, True, X + 4)
        d3, f3 = direct(H, 256, False, T1)
        s += d0 + d1 + [f0] + d2 + [f1] + d3 + [f2, "s_nop 0", f3]
        pb = [0]
        def bout(j, z):
            r = PB + pb[0] % 4; pb[0] += 1
            return [f"v_cvt_pk_bf16_f32 v{r}, v{z}, v{z+1}", f"ds_write_addtid_b32 v{r} offset:{272*j}"]
        Bi = [[f"ds_write_addtid_b32 v{ONE} offset:0"], bout(1, F + 2)]
        for j in range(2, 8): Bi.append(cmul(F + 2 * j, F + 2 * (j - 1), F + 2, T0) + bout(j, F + 2 * j))
        Bi.append(bout(8, G))
        for j in range(9, 32):
            if j == 16: Bi.append(cmul(F, G, G, T0) + bout(j, F))
            else: Bi.append(cmul(F + 2 * (j & 7), F + 2 * (j & 7), G, T0) + bout(j, F + 2 * (j & 7)))
        order = []
        def aout(l, z):
            order.append(l); return [f"v_cvt_pk_bf16_f32 v{PK + len(order) - 1}, v{z}, v{z+1}"]
        Ai = [aout(0, Z)]
        for k in range(1, 9):
            src = Z + (k - 1) if k % 2 else ZT; dst = ZT if k % 2 else Z + k
            Ai.append(cmul(dst, src, E1, T1) + aout(k, dst))
        for z, l in ((Z + 8, 264), (Z + 4, 260), (Z + 8, 520), (Z, 256), (Z + 8, 776), (Z + 4, 516), (Z + 8, 1032), (Z + 2, 258),
                     (Z + 8, 1288), (Z + 4, 772), (Z + 8, 1544), (Z + 6, 262), (Z + 8, 1800)):
            Ai.append(cmul(z, z, H, T1) + aout(l, z))
        body = []
        for k in range(len(Bi)):
            b = Bi[k]; x = Ai[k] if k < len(Ai) else []
            if pend and k in (0, 1, 3, 5, 7, 9, 11, 13): body.append(pend.pop(0))
            for q in range(4):
                if q < len(b): body.append(b[q])
                if q < len(x): body.append(x[q])
        for l in s + body: a(l)
        for ks in range(8): a(f"ds_read_b128 v[{FB+4*ks}:{FB+4*ks+3}], v{VB} offset:{32*ks}")
        for r in range(22): a(f"ds_write_addtid_b32 v{PK+r} offset:{272*AROWS.index(order[r])}")
        for ks in range(8): a(f"ds_read_b128 v[{FA+4*ks}:{FA+4*ks+3}], v{VA} offset:{32*ks}")
        pend = [f"v_mfma_f32_32x32x16_bf16 v[{ACC}:{ACC+15}], v[{FA+4*ks}:{FA+4*ks+3}], v[{FB+4*ks}:{FB+4*ks+3}], " + ("0" if rd == 0 and ks == 0 else f"v[{ACC}:{ACC+15}]") for ks in range(8)]
    for l in pend: a(l)
    return ACC
SPECIAL = list(range(0, 4)) + list(range(68, 73)) + list(range(137, 145)) + list(range(161, 169)) + list(range(185, 192))
def role_kgen(a):
    a("""
    s_and_b32 s21, s2, 7
    s_mul_i32 s21, s21, 20
    s_lshr_b32 s3, s2, 3
    s_add_u32 s21, s21, s3
    """)
    TB, TS, T2A, T3A, DSK = 76, 77, 78, 79, 80
    def pre(a):
        a(f"s_mul_i32 s31, s24, {KTS}\ns_add_u32 s31, s31, {KT}")
        a(f"v_lshlrev_b32 v19, 4, v1\nv_sub_u32 v{TB}, s31, v19")
        a(f"v_lshlrev_b32 v19, 2, v1\nv_sub_u32 v{T2A}, s31, v19\nv_lshlrev_b32 v19, 1, v1\nv_sub_u32 v{T3A}, s31, v19")
        a(f"v_and_b32 v{TS}, 31, v1\nv_mov_b32 v19, v{TS}")
        prev = 0
        for k in range(1, 32):
            step = SPECIAL[k] - k
            if step != prev:
                a(f"v_cmp_le_u32 vcc, {k}, v19\nv_mov_b32 v{DSK}, {step-prev}\nv_cndmask_b32 v{DSK}, 0, v{DSK}, vcc\nv_add_u32 v{TS}, v{TS}, v{DSK}"); prev = step
        a(f"v_lshl_add_u32 v{TS}, v{TS}, 4, s31")
        for r in range(4): a(f"v_mov_b32 v{84+r}, 0")
        a(f"v_mov_b32 v{DSK}, 0")
    V = kgen(a, pre)
    a(f"v_writelane_b32 v{DSK}, s28, 0")
    a(f"v_add_f32 v{V}, v{V}, v{DSK}")
    E, O = 36, 40
    for k in range(4):
        a(f"v_cvt_pk_bf16_f32 v{E+k}, v{V+8-2*k}, v{V+7-2*k}")
        a(f"v_cvt_pk_bf16_f32 v{O+k}, v{V+7-2*k}, v{V+6-2*k}")
    a(f"v_cvt_pk_bf16_f32 v44, v{V+10}, v{V+9}\nv_cvt_pk_bf16_f32 v45, v{V+11}, v{V+12}")
    a(f"global_store_dwordx4 v{TB}, v[{E}:{E+3}], s[22:23] offset:{cm.CH_E*16}")
    a(f"v_readlane_b32 s36, v{O+3}, 0\nv_readlane_b32 s37, v{E}, 63")
    a(f"global_store_dwordx4 v{TB}, v[{O}:{O+3}], s[22:23] offset:{cm.CH_O*16}")
    a(f"global_store_dword v{T2A}, v44, s[22:23] offset:{cm.CH_T2*16 + 2*(320-130)}")
    a(f"global_store_short v{T3A}, v45, s[22:23] offset:{cm.CH_T3*16 + 2*(256-129)}")
    a(f"global_store_short_d16_hi v{T3A}, v45, s[22:23] offset:{cm.CH_T3*16 + 2*(256-193)}")
    a(f"s_lshr_b32 s36, s36, 16\ns_lshl_b32 s38, s37, 16")
    a(f"v_writelane_b32 v84, s36, {SPECIAL.index(cm.CH_E+1)}")
    a(f"v_writelane_b32 v87, s37, {SPECIAL.index(cm.CH_E-64)}")
    a(f"v_writelane_b32 v86, s38, {SPECIAL.index(cm.CH_O-64)}")
    a(f"v_writelane_b32 v87, s37, {SPECIAL.index(cm.CH_O-64)}")
    a(f"s_mov_b64 exec, 0xffffffff\nglobal_store_dwordx4 v{TS}, v[84:87], s[22:23]")
def role_mod(a):
    ldp(a, 4, 'c'); ldp(a, 6, 'wmod'); ldp(a, 8, 'ws')
    a(f"""
    s_mul_i32 s10, s3, 1093
    s_lshr_b32 s10, s10, 16            ; ks
    s_mul_i32 s11, s10, 60
    s_sub_u32 s11, s3, s11             ; slab
    s_mul_i32 s12, s10, 160
    v_lshrrev_b32 v1, 3, v0
    v_add_u32 v1, s12, v1              ; row
    v_lshlrev_b32 v2, 1, v1
    v_mul_u32_u24 v3, 7680, v1
    v_and_b32 v4, 7, v0
    s_lshl_b32 s13, s11, 7
    v_lshl_add_u32 v5, v4, 4, s13
    v_add_u32 v3, v3, v5
    s_waitcnt lgkmcnt(0)
    """)
    for j in range(5): a(f"global_load_ushort v{8+j}, v2, s[4:5] offset:{64*j}")
    for j in range(5):
        a(f"global_load_dwordx4 v[{20+4*j}:{23+4*j}], v3, s[6:7]")
        if j < 4: a(f"v_add_u32 v3, {32*7680}, v3")
    for j in range(5): a(f"v_lshlrev_b32 v{8+j}, 16, v{8+j}\nv_mul_f32 v{14+j}, 0xbfb8aa3b, v{8+j}\nv_exp_f32 v{14+j}, v{14+j}")
    for j in range(5): a(f"v_add_f32 v{14+j}, 1.0, v{14+j}\nv_rcp_f32 v{14+j}, v{14+j}")
    for j in range(5): a(f"v_mul_f32 v{8+j}, v{8+j}, v{14+j}")
    for j in range(5): a(f"v_cvt_pk_bf16_f32 v{8+j}, v{8+j}, 0\nv_lshlrev_b32 v{14+j}, 16, v{8+j}")
    a("""
    v_and_b32 v6, 63, v0
    v_lshrrev_b32 v6, 4, v6
    v_lshlrev_b32 v6, 3, v6
    v_lshl_add_u32 v6, v4, 5, v6
    v_lshrrev_b32 v7, 6, v0
    v_lshl_add_u32 v6, v7, 8, v6
    """)
    A = 40
    for j in range(5):
        for e in range(8): a(f"v_dot2_f32_bf16 v{A+e}, v{20+4*j+e//2}, v{(14 if e&1 else 8)+j}, " + ("0" if j == 0 else f"v{A+e}"))
    for i in range(4): a(f"v_permlane32_swap_b32 v{A+i}, v{A+4+i}")
    for i in range(4): a(f"v_add_f32 v{A+i}, v{A+i}, v{A+4+i}")
    for i in range(2): a(f"v_permlane16_swap_b32 v{A+i}, v{A+2+i}")
    for i in range(2): a(f"v_add_f32 v{A+i}, v{A+i}, v{A+2+i}")
    for i in range(2): a(f"v_add_f32_dpp v{A+i}, v{A+i}, v{A+i} row_ror:8 row_mask:0xf bank_mask:0xf")
    a(f"""
    ds_write_b64 v6, v[{A}:{A+1}]
    v_lshlrev_b32 v1, 2, v0
    s_mul_i32 s12, s10, {3840*4}
    s_lshl_b32 s13, s11, 8
    s_add_u32 s12, s12, s13
    s_add_u32 s12, s12, {MODP}
    v_add_u32 v2, s12, v1
    s_waitcnt lgkmcnt(0)
    s_barrier
    s_cmp_lg_u32 s20, 0
    s_cbranch_scc1 k1_end
    ds_read2st64_b32 v[8:9], v1 offset0:0 offset1:1
    ds_read2st64_b32 v[10:11], v1 offset0:2 offset1:3
    v_add_f32 v8, v8, v9
    v_add_f32 v10, v10, v11
    v_add_f32 v8, v8, v10
    global_store_dword v2, v8, s[8:9]
    """)
def role_stat(a):
    ldp(a, 4, 'x'); ldp(a, 8, 'ws')
    a(f"""
    s_lshl_b32 s10, s3, 4
    s_lshl_b32 s11, s20, 2
    s_add_u32 s10, s10, s11
    v_and_b32 v1, 3, v0
    v_add_u32 v1, s10, v1              ; row
    v_bfe_u32 v2, v0, 2, 4             ; chunk
    v_mul_u32_u24 v3, 1280, v1
    v_lshl_add_u32 v3, v2, 4, v3
    s_waitcnt lgkmcnt(0)
    """)
    for j in range(5): a(f"global_load_dwordx4 v[{8+4*j}:{11+4*j}], v3, s[4:5] offset:{256*j}")
    a(f"""
    v_mul_u32_u24 v4, {2*XRS}, v2
    v_lshl_add_u32 v4, v1, 3, v4
    v_add_u32 v4, {XR}, v4
    v_lshlrev_b32 v5, 3, v1
    v_add_u32 v5, {STAT}, v5
    s_mov_b32 s12, 0x3f803f80
    """)
    for j in range(5):
        a(f"global_store_dwordx2 v4, v[{8+4*j}:{9+4*j}], s[8:9]\nv_add_u32 v6, {XRS}, v4")
        a(f"global_store_dwordx2 v6, v[{10+4*j}:{11+4*j}], s[8:9]")
        if j < 4: a(f"v_add_u32 v4, {32*XRS}, v4")
        for k in range(4):
            r = 8 + 4 * j + k; f = j == 0 and k < 2
            a(f"v_dot2_f32_bf16 v{30+(k&1)}, v{r}, s12, " + ("0" if f else f"v{30+(k&1)}"))
            a(f"v_dot2_f32_bf16 v{32+(k&1)}, v{r}, v{r}, " + ("0" if f else f"v{32+(k&1)}"))
    a(f"""
    v_add_f32 v30, v30, v31
    v_add_f32 v32, v32, v33
    v_permlane32_swap_b32 v30, v32
    v_add_f32 v30, v30, v32
    v_mov_b32 v31, v30
    v_permlane16_swap_b32 v30, v31
    v_add_f32 v30, v30, v31
    v_add_f32_dpp v30, v30, v30 row_ror:8 row_mask:0xf bank_mask:0xf
    v_add_f32_dpp v30, v30, v30 row_ror:4 row_mask:0xf bank_mask:0xf
    v_mul_f32 v30, 0x3acccccd, v30
    v_mov_b32 v31, v30
    v_permlane32_swap_b32 v30, v31
    v_fma_f32 v31, -v30, v30, v31
    v_max_f32 v31, 0, v31
    v_add_f32 v31, 0x3727c5ac, v31
    v_rsq_f32 v32, v31
    v_mul_f32 v33, v30, v32
    v_sub_f32 v33, 0, v33
    s_mov_b64 exec, 0xf
    global_store_dwordx2 v5, v[32:33], s[8:9]
    """)
def role_wd(a):
    ldp(a, 4, 'wd'); ldp(a, 8, 'ws')
    a(f"""
    s_lshr_b32 s10, s3, 1
    s_and_b32 s11, s3, 1
    s_lshl_b32 s11, s11, 2
    s_add_u32 s11, s11, s20            ; db
    s_mul_i32 s12, s10, {32*1280}
    s_mul_i32 s13, s11, 160
    s_add_u32 s12, s12, s13
    s_mul_i32 s14, s20, 5120
    v_and_b32 v1, 63, v0
    s_mov_b32 s15, 6554
    """)
    for i in range(5):
        a(f"v_add_u32 v2, {64*i}, v1\nv_mul_lo_u32 v3, s15, v2\nv_lshrrev_b32 v3, 16, v3\nv_mul_u32_u24 v3, {1280-160}, v3\nv_lshl_add_u32 v3, v2, 4, v3\nv_add_u32 v{8+i}, s12, v3")
    a("s_waitcnt lgkmcnt(0)")
    for i in range(5): a(f"s_add_u32 m0, s14, {1024*i}\nglobal_load_lds_dwordx4 v{8+i}, s[4:5]")
    a(f"""
    v_lshrrev_b32 v2, 4, v1
    v_bfe_u32 v3, v1, 2, 2
    v_lshl_add_u32 v2, v2, 3, v3
    v_mul_u32_u24 v2, 160, v2
    v_and_b32 v3, 3, v1
    v_lshl_add_u32 v2, v3, 3, v2
    v_add_u32 v2, s14, v2
    s_mul_i32 s12, s11, {48*5120}
    s_mul_i32 s13, s10, 5120
    s_add_u32 s12, s12, s13
    s_add_u32 s12, s12, {WD + 2048}
    v_lshl_add_u32 v4, v1, 4, s12
    s_waitcnt vmcnt(0)
    """)
    for jj in range(5):
        for hh in range(2): a(f"ds_read_b64_tr_b16 v[{16+4*jj+2*hh}:{17+4*jj+2*hh}], v2 offset:{32*jj + 640*hh}")
    for jj in range(5): a(f"global_store_dwordx4 v4, v[{16+4*jj}:{19+4*jj}], s[8:9] offset:{1024*jj-2048}")
def k1(stamp=None):
    a = Asm()
    a(f"""
    v_lshrrev_b32 v1, 6, v0
    s_cmp_ge_u32 s2, {K1_GRID}
    s_cbranch_scc1 k1_end
    v_readfirstlane_b32 s20, v1
    """)
    if stamp: stamp(a, 0)
    a(f"""
    s_cmp_lt_u32 s2, {N_KG}
    s_cbranch_scc1 k1_kgen
    s_sub_u32 s3, s2, {N_KG}
    s_cmp_lt_u32 s3, {N_MOD}
    s_cbranch_scc1 k1_mod
    s_sub_u32 s3, s3, {N_MOD}
    s_cmp_lt_u32 s3, {N_ST}
    s_cbranch_scc1 k1_stat
    s_sub_u32 s3, s3, {N_ST}
    """)
    fin = (lambda: (stamp(a, 'end'), a("s_endpgm"))) if stamp else (lambda: a("s_endpgm"))
    role_wd(a); fin()
    a("k1_stat:"); role_stat(a); fin()
    a("k1_mod:"); role_mod(a); fin()
    a("k1_kgen:"); role_kgen(a); fin()
    a("k1_end:\ns_endpgm")
    return a
```

```python
from asmlib import *
from layout import *
import conv_model as cm
from gen_k1 import ldp, P
HST, XST = 4608, 4160
L_H, L_XT, L_TAB = 0, 4*HST, 4*HST + 4*XST
K2_LDS = L_TAB + 4*3072
K2_ACC = 256; K2_VGPR = 256 + 196
def V4(r): return f"v[{r}:{r+3}]"
def A4(r): return f"a[{r}:{r+3}]"
def mf(d, A, B, c=None): return f"v_mfma_f32_16x16x32_bf16 {V4(d)}, {A}, {B}, " + (V4(d) if c is None else c)
def round_pair(a, r, t):
    a(f"v_cvt_pk_bf16_f32 v{t}, v{r}, v{r+1}\nv_lshlrev_b32 v{r}, 16, v{t}\nv_and_b32 v{r+1}, 0xffff0000, v{t}")
def role_conv(a, stamp):
    ldp(a, 22, 'ws')
    X, S, SA, CA, BND, SP, U, HP = 8, 24, 40, 44, 48, 72, 76, 84
    a(f"""
    s_and_b32 s21, s2, 7
    s_mul_i32 s21, s21, 20
    s_lshr_b32 s3, s2, 3
    s_add_u32 s21, s21, s3             ; cg
    s_mul_i32 s4, s21, {XRS}
    s_add_u32 s4, s4, {XR}
    v_lshl_add_u32 v2, v0, 6, s4
    v_lshlrev_b32 v3, 6, v0
    v_add_u32 v3, {STAT}, v3
    s_lshl_b32 s5, s21, 2
    s_add_u32 s5, s5, s20              ; channel
    s_mul_i32 s6, s5, {KTS}
    s_add_u32 s6, s6, {KT}
    v_and_b32 v1, 63, v0
    v_lshl_add_u32 v4, v1, 4, s6
    s_mul_i32 s7, s20, 3072
    s_add_u32 s7, s7, {L_TAB}
    s_mov_b32 m0, s7
    s_lshl_b32 s8, s21, 4
    s_lshl_b32 s9, s5, 2
    s_waitcnt lgkmcnt(0)
    s_add_u32 s24, s22, s8
    s_addc_u32 s25, s23, 0
    s_add_u32 s26, s22, s9
    s_addc_u32 s27, s23, 0
    """)
    for j in range(4):
        a(f"global_load_dwordx4 {V4(X+4*j)}, v2, s[22:23] offset:{16*j}\nglobal_load_dwordx4 {V4(S+4*j)}, v3, s[22:23] offset:{16*j}")
        a(f"s_load_dwordx4 s[{28+4*j}:{31+4*j}], s[24:25], {MODP + 15360*j}\ns_load_dwordx4 s[{44+4*j}:{47+4*j}], s[24:25], {MODP + 15360*j + 2560}")
    for j in range(3): a(f"global_load_lds_dwordx4 v4, s[22:23] offset:{1024*j}")
    for j in range(4): a(f"s_load_dword s{60+j}, s[26:27], {MODP + 15360*j + 5120}")
    a("v_and_b32 v5, 15, v1\nv_lshrrev_b32 v6, 4, v1\nv_lshlrev_b32 v7, 3, v6")
    keys = ['r2q0', 'r2q1', 'r2q2', 'r2q3', 'r3e', 'r3o']
    for k, key in enumerate(keys + ['sp']):
        if key == 'sp': m = 3 << 12
        else: co, w, sh = cm.BANDS[key]; m = ((1 << (2*w+1)) - 1) << (co + sh - w)
        a(f"v_mov_b32 v{U}, {m}\nv_lshlrev_b32 v{U}, v5, v{U}\nv_lshrrev_b32 v{U}, v7, v{U}")
        for w in range(4):
            d = BND + 4*k + w
            a(f"v_bfe_u32 v{d}, v{U}, {2*w}, 2\nv_mul_u32_u24 v{d}, 0x8001, v{d}\nv_and_b32 v{d}, 0x10001, v{d}")
            if key != 'sp': a(f"v_mul_u32_u24 v{d}, 0x3f80, v{d}")
    VH, VTD, VT2, VT3, VXD, VW, VTR, VO, GA = 100, 101, 102, 103, 104, 105, 106, 107, 108
    a(f"""
    s_mul_i32 s10, s20, {HST}
    v_lshlrev_b32 v{VH}, 5, v5
    v_lshl_add_u32 v{VH}, v6, 4, v{VH}
    v_add_u32 v{VH}, s10, v{VH}
    v_lshl_add_u32 v{U}, v1, 3, s10
    v_mov_b32 v{U+2}, 0
    v_mov_b32 v{U+3}, 0
    ds_write_b64 v{U}, {P(U+2)}
    v_and_b32 v{U}, 1, v5
    v_mul_u32_u24 v{U}, {2*((cm.CH_O*8+7) - (cm.CH_E*8+8))}, v{U}
    v_sub_u32 v{VTD}, v7, v5
    v_lshl_add_u32 v{VTD}, v{VTD}, 1, v{U}
    v_add_u32 v{VTD}, {2*(cm.CH_E*8+8-16-32*16)}, v{VTD}
    v_add_u32 v{VTD}, s7, v{VTD}
    v_lshlrev_b32 v{U}, 2, v6
    v_sub_u32 v{U}, v{U}, v5                    ; 4g - col
    v_lshl_add_u32 v{VT2}, v{U}, 3, s7
    v_lshl_add_u32 v{VT3}, v{U}, 2, s7
    v_add_u32 v{VT3}, {2*(cm.CH_T3*8+256-2-32*7)}, v{VT3}
    s_mul_i32 s11, s20, {XST}
    s_add_u32 s11, s11, {L_XT}
    v_lshlrev_b32 v{VXD}, 5, v5
    v_add3_u32 v{VXD}, v{VXD}, v7, s11
    v_lshlrev_b32 v{VW}, 4, v0
    v_bfe_u32 v{U}, v1, 2, 2
    v_mul_u32_u24 v{VTR}, {XST}, v{U}
    v_and_b32 v{U}, 3, v1
    v_lshl_add_u32 v{VTR}, v{U}, 3, v{VTR}
    v_lshl_add_u32 v{VTR}, v6, 5, v{VTR}
    s_lshl_b32 s12, s20, 10
    s_add_u32 s12, s12, {L_XT}
    v_add_u32 v{VTR}, s12, v{VTR}
    s_mul_i32 s12, s20, {4*163840}
    s_lshr_b32 s13, s21, 1
    s_lshl_b32 s13, s13, 11
    s_add_u32 s12, s12, s13
    s_and_b32 s13, s21, 1
    s_lshl_b32 s13, s13, 3
    s_add_u32 s12, s12, s13
    s_add_u32 s12, s12, {X1}
    v_lshl_add_u32 v{VO}, v1, 4, s12
    s_mov_b32 s14, 0x05040100
    s_mov_b32 s15, 0x07060302
    s_waitcnt lgkmcnt(0)
    """)
    if stamp: stamp(a, 1)
    for base, d in ((44, CA), (28, SA)):
        for j in range(4):
            for h in range(2): a(f"v_pk_add_f32 {P(d+2*h)}, s[{base+4*j+2*h}:{base+4*j+2*h+1}], " + ("0" if j == 0 else P(d+2*h)))
    for h in range(2): round_pair(a, CA+2*h, U+h)
    for h in range(2): round_pair(a, SA+2*h, U+h)
    for h in range(2): a(f"v_pk_add_f32 {P(CA+2*h)}, {P(CA+2*h)}, 1.0 op_sel_hi:[1,0]")
    for h in range(2): round_pair(a, CA+2*h, U+h)
    for tp in range(4):
        for k in range(4): a(f"v_lshlrev_b32 v{U+2*k}, 16, v{X+4*tp+k}\nv_and_b32 v{U+2*k+1}, 0xffff0000, v{X+4*tp+k}")
        for k in range(4):
            st = P(S + 4*tp + 2*(k >> 1))
            a(f"v_pk_fma_f32 {P(U+2*k)}, {P(U+2*k)}, {st}, {st} op_sel:[0,0,1] op_sel_hi:[1,0,1]")
        for k in range(4): a(f"v_pk_fma_f32 {P(U+2*k)}, {P(U+2*k)}, {P(CA+2*(k&1))}, {P(SA+2*(k&1))}")
        for c in range(4): a(f"v_cvt_pk_bf16_f32 v{HP+4*c+tp}, v{U+c}, v{U+4+c}")
    for c in range(4): a(f"ds_write_b128 v{VW}, {V4(HP+4*c)} offset:{L_H + HST*c + 512}")
    a("s_waitcnt vmcnt(0)")
    T2, T3, TD, HB, HS = 0, 24, 40, 108, 172
    def rd_td(q): return [f"ds_read2_b32 a[{TD+4*q+2*h}:{TD+4*q+2*h+1}], v{VTD} offset0:{16*(16-q)+2*h} offset1:{16*(16-q)+2*h+1}" if 16*(16-q)+3 < 256 else
                          f"ds_read2_b32 a[{TD+4*q+2*h}:{TD+4*q+2*h+1}], v{U+7} offset0:{2*h} offset1:{2*h+1}" for h in range(2)]
    def rd_h(sig, n): return f"ds_read_b128 {A4(HB+32*(sig&1)+4*n)}, v{VH} offset:{512 + 512*n - 64*sig - 32}"
    def rd_hs(n): return f"ds_read_b128 {A4(HS+4*n)}, v{VH} offset:{512 + 512*n - 48}"
    a(f"v_add_u32 v{U+7}, 1024, v{VTD}\nv_mov_b32 v{U+6}, s7")
    for q in (0, 8, 16):
        for l in rd_td(q): a(l)
    a(f"ds_read_u16 v{U+6}, v{U+6} offset:{2*(cm.CH_T2*8+64)}")
    a("s_waitcnt lgkmcnt(7)\ns_barrier")
    if stamp: stamp(a, 2)
    for n in range(3): a(rd_h(0, n)); a(rd_hs(n))
    for c in range(4):
        for tp in range(4): a(f"v_perm_b32 v{HP+4*c+tp}, v{X+4*tp+2+(c>>1)}, v{X+4*tp+(c>>1)}, s{14+(c&1)}")
    for w in range(4): a(f"v_mul_u32_u24 v{SP+w}, v{U+6}, v{SP+w}")
    ACC, Z3, Z2, SD, XD, XU = 112, 144, 160, 208, 8, 24
    first = set()
    def acc(n, A, B):
        c = None
        if n not in first: first.add(n); c = "0"
        return mf(ACC+4*n, A, B, c)
    misc = [f"ds_write_b128 v{VW}, {V4(HP+4*c)} offset:{L_XT + XST*c}" for c in range(4)]
    misc += [rd_h(1, n) for n in range(8)] + rd_td(1) + rd_td(9)
    for D in range(2, 5):
        for hh in range(2):
            off = 2*(cm.CH_T2*8 + 320 - 64*D - 4 + 8*hh)
            misc += [f"ds_read_b64 a[{T2+8*(D-2)+4*hh+2*h}:{T2+8*(D-2)+4*hh+2*h+1}], v{VT2} offset:{off+8*h}" for h in range(2)]
    for D in range(4, 8):
        misc += [f"ds_read2_b32 a[{T3+4*(D-4)+2*h}:{T3+4*(D-4)+2*h+1}], v{VT3} offset0:{16*(7-D)+2*h} offset1:{16*(7-D)+2*h+1}" for h in range(2)]
    take = [3, 3, 3, 3, 5, 5, 6, 8]
    cv = []
    for n in range(8):
        h, hs, sd = A4(HB+4*n), A4(HS+4*n), SD + 24*(n & 1)
        m = []
        if n < 6: m += [mf(sd+4*q, hs if q == 0 else h, V4(BND+4*q), "0") for q in (1, 2, 3, 0)]
        if n < 4: m += [mf(sd+20, h, V4(BND+20), "0"), mf(sd+16, hs, V4(BND+16), "0")]
        for j in range(3):
            if n + j < 8: m.append(acc(n+j, A4(TD+32*j), h))
        if n < 4: m.append(acc(n+4, V4(SP), h))
        f = []
        if n + 3 < 8: f.append(rd_h(0, n+3))
        if n + 3 < 6: f.append(rd_hs(n+3))
        f += cv + misc[:take[n]]; misc = misc[take[n]:]
        for l in interleave(m, f): a(l)
        cv = []
        if n < 6:
            for hh in range(2):
                for w in range(4): cv.append(f"v_cvt_pk_bf16_f32 v{Z2+8*n+4*hh+w}, v{sd + 4*(2*(w&1)) + 2*hh + (w>>1)}, v{sd + 4*(2*(w&1)+1) + 2*hh + (w>>1)}")
        if n < 4: cv += [f"v_cvt_pk_bf16_f32 v{Z3+4*n+r}, v{sd+16+r}, v{sd+20+r}" for r in range(4)]
    assert not misc and not cv
    far = []
    for n in range(6):
        for hh in range(2):
            for D in range(2, 5):
                if n + D < 8: far.append((n+D, V4(Z2+8*n+4*hh), A4(T2+8*(D-2)+4*hh)))
        if n < 4:
            for D in range(4, 8):
                if n + D < 8: far.append((n+D, V4(Z3+4*n), A4(T3+4*(D-4))))
    assert len(far) == 40
    def epi(n):
        r = ACC + 4*n
        return [f"v_pk_fma_f32 {P(r+2*h)}, {P(r+2*h)}, {P(GA)}, {P(XU+4*n+2*h)} op_sel_hi:[1,0,1]" for h in range(2)] + \
               [f"v_cvt_pk_bf16_f32 v{r+h}, v{r+2*h}, v{r+2*h+1}" for h in range(2)] + [f"ds_write_b64 v{VXD}, {P(r)} offset:{512*n}"]
    for sig in range(1, 8):
        hb = HB + 32*(sig & 1)
        m = []
        for n in range(8):
            if n: m.append(acc(n, A4(TD+4*(sig+8)), A4(hb+4*(n-1))))
            m.append(acc(n, A4(TD+4*sig), A4(hb+4*n)))
        if sig < 7:
            k = 7 if sig < 5 else 6
            m = [acc(*x) for x in far[:k]] + m; far = far[k:]
            f = rd_td(sig+1) + rd_td(sig+9) + [rd_h(sig+1, n) for n in range(8)]
            if sig == 2:
                a("s_barrier")
                f += [f"v_mov_b32 v{GA}, s60", f"v_add_f32 v{GA}, s61, v{GA}", f"v_add_f32 v{GA}, s62, v{GA}", f"v_add_f32 v{GA}, s63, v{GA}",
                      f"v_cvt_pk_bf16_f32 v{GA}, v{GA}, v{GA}", f"v_and_b32 v{GA}, 0xffff0000, v{GA}"]
            if sig == 3: f += [f"ds_read_b64 {P(XD+2*n)}, v{VXD} offset:{512*n}" for n in range(8)]
            if sig in (4, 5):
                for k in range(8*(sig-4), 8*(sig-3)): f += [f"v_lshlrev_b32 v{XU+2*k}, 16, v{XD+k}", f"v_and_b32 v{XU+2*k+1}, 0xffff0000, v{XD+k}"]
            for l in interleave(m, f): a(l)
        else:
            f = []
            for n in range(6): f += epi(n)
            for l in interleave(m, f, start=4): a(l)
            for l in epi(6) + epi(7): a(l)
    assert not far
    if stamp: stamp(a, 3)
    a("s_waitcnt lgkmcnt(0)\ns_barrier")
    for j in range(8): a(f"ds_read_b64_tr_b16 {P(8+2*j)}, v{VTR} offset:{128*j}")
    for j in range(8):
        a(f"global_store_dwordx2 v{VO}, {P(8+2*j)}, s[22:23] offset:{1024*(j&1)}")
        if j & 1 and j < 7: a(f"v_add_u32 v{VO}, 163840, v{VO}")
def role_prep(a, stamp):
    ldp(a, 22, 'ws'); ldp(a, 4, 'wg'); ldp(a, 6, 'wu')
    L_CV = 40960
    a(f"""
    s_sub_u32 s3, s2, 160
    s_and_b32 s8, s3, 7
    s_lshr_b32 s9, s3, 3
    s_cmp_ge_u32 s9, 6
    s_cselect_b32 s10, 1, 0
    s_cselect_b32 s11, 6, 0
    s_sub_u32 s9, s9, s11
    s_and_b32 s11, s8, 3
    s_mul_i32 s11, s11, 6
    s_add_u32 s12, s11, s9             ; G
    s_lshr_b32 s8, s8, 2
    s_lshl_b32 s8, s8, 1
    s_add_u32 s13, s8, s10             ; kq
    v_and_b32 v1, 63, v0
    s_lshr_b32 s14, s20, 1             ; mat
    s_and_b32 s15, s20, 1
    v_lshrrev_b32 v2, 3, v1
    v_bfe_u32 v3, v1, 4, 1
    s_lshl_b32 s16, s20, 1
    v_or_b32 v3, s16, v3
    v_and_b32 v4, 7, v1
    v_xor_b32 v3, v3, v4
    v_mul_u32_u24 v2, 3072, v2
    v_lshl_add_u32 v2, v3, 4, v2
    s_mul_i32 s16, s13, 160
    s_lshl_b32 s17, s15, 3
    s_add_u32 s17, s17, s16
    s_mul_i32 s17, s17, 3072
    s_lshl_b32 s18, s12, 7
    s_add_u32 s17, s17, s18
    v_add_u32 v2, s17, v2
    s_mul_i32 s18, s14, 20480
    s_lshl_b32 s19, s15, 10
    s_add_u32 s18, s18, s19
    v_min_u32 v5, 159, v0
    v_add_u32 v6, s16, v5
    v_lshlrev_b32 v6, 2, v6
    v_add_u32 v6, {MODP + 3*2560}, v6
    s_waitcnt lgkmcnt(0)
    s_cmp_eq_u32 s14, 0
    s_cselect_b32 s4, s4, s6
    s_cselect_b32 s5, s5, s7
    """)
    for j in range(4):
        a(f"global_load_dword v{8+j}, v6, s[22:23]\nglobal_load_dword v{12+j}, v6, s[22:23] offset:2560")
        if j < 3: a(f"v_add_u32 v6, 15360, v6")
    for i in range(10):
        a(f"s_add_u32 m0, s18, {2048*i}\nglobal_load_lds_dwordx4 v2, s[4:5]")
        if i < 9: a(f"v_add_u32 v2, {16*3072}, v2")
    VT, VC, VS0, VS1, VU = 16, 18, 19, 20, 21
    a(f"""
    v_lshrrev_b32 v6, 4, v1            ; g
    v_bfe_u32 v7, v1, 2, 2             ; r
    v_lshl_add_u32 v2, v6, 3, v7
    v_lshlrev_b32 v2, 7, v2            ; (8g + r) * 128
    v_bfe_u32 v3, v1, 1, 1             ; mat
    v_mul_u32_u24 v4, 20480, v3
    v_add_u32 v2, v2, v4
    v_and_b32 v4, 1, v1
    v_lshl_add_u32 v2, v4, 3, v2
    v_lshrrev_b32 v7, 1, v7
    v_and_b32 v4, 1, v6
    v_lshl_add_u32 v7, v4, 1, v7
    v_lshl_add_u32 v7, v3, 2, v7       ; swizzle
    s_lshl_b32 s16, s20, 1
    v_xor_b32 v7, s16, v7
    v_lshl_add_u32 v{VT}, v7, 4, v2
    v_xor_b32 v7, 1, v7
    v_lshl_add_u32 v{VT+1}, v7, 4, v2
    v_lshlrev_b32 v{VC}, 4, v6
    v_bfe_u32 v2, v1, 1, 2
    v_lshlrev_b32 v2, 2, v2
    v_lshl_add_u32 v2, v6, 4, v2
    v_bfe_u32 v3, v1, 3, 1
    v_lshl_add_u32 v2, v3, 1, v2
    v_and_b32 v3, 1, v1
    v_add_u32 v2, v2, v3
    s_lshl_b32 s24, s12, 3
    s_add_u32 s24, s24, s16
    """)
    for tl in range(2):
        a(f"""
        s_add_u32 s25, s24, {tl}
        s_mul_i32 s26, s25, 21846
        s_lshr_b32 s26, s26, 16            ; T/3
        s_mul_i32 s27, s26, 3
        s_sub_u32 s27, s25, s27
        s_mul_i32 s26, s26, 60
        s_add_u32 s26, s26, s27
        s_mul_i32 s27, s13, 15
        s_add_u32 s26, s26, s27
        s_lshl_b32 s26, s26, 10
        s_add_u32 s26, s26, {WP}
        v_lshl_add_u32 v{VS0+tl}, v2, 4, s26
        """)
    a(f"""
    s_mul_i32 s26, s13, 192
    s_add_u32 s26, s26, s24
    s_lshl_b32 s26, s26, 7
    s_add_u32 s26, s26, {U12}
    v_and_b32 v2, 1, v6
    v_lshlrev_b32 v2, 5, v2
    v_lshrrev_b32 v3, 1, v6
    v_lshl_add_u32 v2, v3, 3, v2
    v_add_u32 v{VU}, s26, v2
    v_lshlrev_b32 v5, 1, v5
    """)
    ONES = 24
    for w in range(4): a(f"v_mov_b32 v{ONES+w}, 0x3f803f80")
    for b in (8, 12): a(f"v_add_f32 v{b}, v{b}, v{b+1}\nv_add_f32 v{b+2}, v{b+2}, v{b+3}\nv_add_f32 v{b}, v{b}, v{b+2}")
    a(f"""
    v_cvt_pk_bf16_f32 v8, v8, v12
    v_and_b32 v12, 0xffff0000, v8
    v_add_f32 v12, 1.0, v12
    v_cvt_pk_bf16_f32 v12, v12, v12
    ds_write_b16 v5, v8 offset:{L_CV + 320}
    ds_write_b16 v5, v12 offset:{L_CV}
    s_waitcnt vmcnt(0) lgkmcnt(0)
    s_barrier
    """)
    if stamp: stamp(a, 2)
    UU, CV, SV, ML, LO, OUT, D = 32, 72, 92, 112, 120, 136, 176
    for s in range(5):
        a(f"ds_read_b128 {V4(CV+4*s)}, v{VC} offset:{L_CV + 64*s}")
        for tl in range(2):
            for hh in range(2): a(f"ds_read_b64_tr_b16 {P(UU+8*s+4*tl+2*hh)}, v{VT+tl} offset:{4096*s + 512*hh}")
        a(f"ds_read_b128 {V4(SV+4*s)}, v{VC} offset:{L_CV + 320 + 64*s}")
    for s in range(5):
        for w in range(4): a(f"v_and_b32 v{ML+2*w}, 0xffff, v{CV+4*s+w}\nv_and_b32 v{ML+2*w+1}, 0xffff0000, v{CV+4*s+w}")
        for tl in range(2):
            for w in range(4):
                for h in range(2): a(f"v_dot2_f32_bf16 v{LO+8*tl+2*w+h}, v{UU+8*s+4*tl+w}, v{ML+2*w+h}, 0")
        for tl in range(2): a(mf(D+8*tl+4, V4(UU+8*s+4*tl), V4(SV+4*s), "0" if s == 0 else None))
        for tl in range(2):
            o = OUT + 8*s + 4*tl
            for w in range(4): a(f"v_cvt_pk_bf16_f32 v{o+w}, v{LO+8*tl+2*w}, v{LO+8*tl+2*w+1}")
            a(f"global_store_dwordx4 v{VS0+tl}, {V4(o)}, s[22:23]" + WP_SC)
            if s < 4: a(f"v_add_u32 v{VS0+tl}, 3072, v{VS0+tl}")
        for tl in range(2): a(mf(D+8*tl, V4(OUT+8*s+4*tl), V4(ONES), "0" if s == 0 else None))
    a("s_mov_b32 s26, 0x00010001\ns_mov_b32 s27, 0x00010001\ns_nop 7\ns_mov_b64 exec, s[26:27]")
    for tl in range(2):
        for wh in range(2):
            for h in range(2): a(f"global_store_dwordx2 v{VU}, {P(D+8*tl+4*wh+2*h)}, s[22:23] offset:{128*tl + 64*wh + 16*h}")
WP_SC = ""
def k2(stamp=None):
    a = Asm()
    a(f"""
    v_lshrrev_b32 v1, 6, v0
    s_cmp_ge_u32 s2, 256
    s_cbranch_scc1 k2_end
    v_readfirstlane_b32 s20, v1
    """)
    if stamp: stamp(a, 0)
    a("s_cmp_ge_u32 s2, 160\ns_cbranch_scc1 k2_prep")
    fin = (lambda: (stamp(a, 'end'), a("s_endpgm"))) if stamp else (lambda: a("s_endpgm"))
    role_conv(a, stamp); fin()
    a("k2_prep:"); role_prep(a, stamp); fin()
    a("k2_end:\ns_endpgm")
    return a
```

```python
from asmlib import *
from layout import *
from gen_k1 import ldp, P
from gen_k2 import V4, A4, mf
import struct, math
K3_LDS = 163840; K3_ACC = 256; K3_VGPR = 256 + 240
DEPTH = 4
HH_SC = ""
def f2u(x): return hex(struct.unpack('<I', struct.pack('<f', x))[0])
def k3(stamp=None):
    a = Asm()
    a(f"""
    v_lshrrev_b32 v1, 6, v0
    s_cmp_ge_u32 s2, 256
    s_cbranch_scc1 k3_end
    v_readfirstlane_b32 s20, v1
    """)
    ldp(a, 22, 'ws')
    if stamp: stamp(a, 0)
    VX, VW, VU, VO, VB, VS, VSW = 2, 3, 4, 5, 8, 12, 16
    a(f"""
    s_and_b32 s4, s2, 7
    s_lshr_b32 s5, s2, 3
    s_and_b32 s6, s4, 3
    s_lshl_b32 s6, s6, 2
    s_and_b32 s7, s5, 3
    s_add_u32 s6, s6, s7               ; cb
    s_lshr_b32 s4, s4, 2
    s_lshl_b32 s4, s4, 3
    s_lshr_b32 s5, s5, 2
    s_add_u32 s7, s4, s5               ; rb
    v_and_b32 v1, 63, v0
    s_mul_i32 s8, s7, 163840
    s_lshl_b32 s9, s20, 11
    s_add_u32 s8, s8, s9
    s_add_u32 s8, s8, {X1}
    v_lshl_add_u32 v{VX}, v1, 4, s8
    s_lshl_b32 s10, s6, 2
    s_add_u32 s10, s10, s20            ; 4cb + w
    s_mul_i32 s11, s10, 61440
    s_add_u32 s11, s11, {WP}
    v_lshl_add_u32 v{VW}, v1, 4, s11
    s_mov_b32 m0, s9
    s_waitcnt lgkmcnt(0)
    """)
    def dma(s):
        r = [f"global_load_lds_dwordx4 v{VX}, s[22:23]", f"global_load_lds_dwordx4 v{VX}, s[22:23] offset:1024 ; tag=x{s}"]
        if s < 19: r += [f"s_add_u32 m0, s9, {8192*(s+1)}", f"v_add_u32 v{VX}, 8192, v{VX}"]
        return r
    def wld(s):
        r = [f"global_load_dwordx4 {A4(12*s+4*j)}, v{VW}, s[22:23] offset:{1024*j}" for j in range(3)]
        if s < 19: r.append(f"v_add_u32 v{VW}, 3072, v{VW}")
        return r
    def group(g): return (dma(g+1) if g + 1 < 20 else []) + (wld(g) if g < 20 else [])
    for l in dma(0): a(l)
    for g in range(DEPTH):
        for l in group(g): a(l)
    a(f"""
    v_and_b32 v6, 15, v1
    v_lshrrev_b32 v7, 4, v1
    v_lshlrev_b32 v17, 11, v7
    v_lshl_add_u32 v17, v6, 4, v17
    """)
    for i in range(4):
        a(f"s_xor_b32 s12, s20, {i}\ns_lshl_b32 s13, s12, 9\nv_add_u32 v{VB+i}, s13, v17\ns_lshl_b32 s13, s12, 8\nv_lshl_add_u32 v{VS+i}, v6, 3, s13")
    a(f"""
    v_lshrrev_b32 v17, 5, v1
    v_lshl_add_u32 v{VSW}, v17, 7, v{VS}
    v_and_b32 v17, 3, v1
    v_mul_u32_u24 v17, {192*128}, v17
    v_lshl_add_u32 v17, v7, 4, v17
    s_mul_i32 s12, s10, 384
    s_add_u32 s12, s12, {U12}
    v_add_u32 v{VU}, s12, v17
    s_lshr_b32 s12, s20, 1
    s_lshl_b32 s13, s7, 1
    s_add_u32 s13, s13, s12
    s_mul_i32 s13, s13, 196608
    s_mul_i32 s14, s10, 3072
    s_add_u32 s13, s13, s14
    s_add_u32 s13, s13, {HH}
    s_and_b32 s14, s20, 1
    s_lshl_b32 s14, s14, 5
    v_xor_b32 v17, s14, v1
    v_lshl_add_u32 v{VO}, v17, 4, s13
    s_cmp_eq_u32 s12, 0
    s_mov_b32 s15, 196608
    s_cselect_b32 s15, s15, {(-196608) & 0xffffffff}
    s_mov_b32 s16, 0x3f803f80
    """)
    c0 = -2*math.sqrt(2/math.pi)*math.log2(math.e)
    C0 = 18
    a(f"s_mov_b32 s18, {f2u(c0*0.044715)}\ns_mov_b32 s19, s18\nv_mov_b32 v{C0}, {f2u(c0)}\nv_mov_b32 v{C0+1}, {f2u(c0)}")
    ACC, BF, U, ST, SQ, T = 32, 128, 192, 216, 20, 232
    def rdb(s): return [f"ds_read_b128 {V4(BF+32*(s&1)+4*t)}, v{VB+(t>>1)} offset:{8192*(s&7) + 256*(t&1)}" for t in range(8)]
    a("WAITVM x0\ns_barrier")
    if stamp: stamp(a, 1)
    for l in rdb(0): a(l)
    ured = []
    for pm in ("[1,0,3,2]", "[2,3,0,1]"):
        ured += [f"v_add_f32_dpp v{U+k}, v{U+k}, v{U+k} quad_perm:{pm} row_mask:0xf bank_mask:0xf" for k in range(24)]
    for s in range(20):
        bf = BF + 32*(s & 1)
        m = [mf(ACC+12*t+4*j, A4(12*s+4*j), V4(bf+4*t), "0" if s == 0 else None) for t in range(8) for j in range(3)]
        dots = []
        for w in range(4):
            for t in range(2):
                f = s == 0 and w == 0
                dots += [f"v_dot2_f32_bf16 v{SQ+t}, v{bf+4*t+w}, s16, " + ("0" if f else f"v{SQ+t}"),
                         f"v_dot2_f32_bf16 v{SQ+2+t}, v{bf+4*t+w}, v{bf+4*t+w}, " + ("0" if f else f"v{SQ+2+t}")]
        f = []
        if s < 19:
            if (s + 1) % 8 == 0: f += [f"v_add_u32 v{VB+i}, 65536, v{VB+i}" for i in range(4)]
            f += [f"WAITVM x{s+1}", "s_barrier"] + rdb(s+1)
            ld = group(s + DEPTH)
            if s == 8: ld += [f"global_load_dwordx4 {V4(U+8*j+4*wh)}, v{VU}, s[22:23] offset:{128*j+64*wh}" for j in range(3) for wh in range(2)]
            if s >= 16: dots += ured[16*(s-16):16*(s-15)]
            f += interleave(dots, ld)
        else:
            f = dots + [f"v_permlane32_swap_b32 v{SQ}, v{SQ+1}", f"v_permlane32_swap_b32 v{SQ+2}, v{SQ+3}",
                 f"v_add_f32 v{SQ}, v{SQ}, v{SQ+1}", f"v_add_f32 v{SQ+2}, v{SQ+2}, v{SQ+3}",
                 f"v_permlane16_swap_b32 v{SQ}, v{SQ+2}", f"v_add_f32 v{SQ}, v{SQ}, v{SQ+2}", f"v_mul_f32 v{SQ}, 0x3acccccd, v{SQ}",
                 f"v_mov_b32 v{SQ+1}, v{SQ}", f"v_permlane16_swap_b32 v{SQ}, v{SQ+1}",
                 f"v_fma_f32 v{SQ+1}, -v{SQ}, v{SQ}, v{SQ+1}", f"v_max_f32 v{SQ+1}, 0, v{SQ+1}", f"v_add_f32 v{SQ+1}, 0x3727c5ac, v{SQ+1}",
                 f"v_rsq_f32 v{SQ+2}, v{SQ+1}", f"v_mul_f32 v{SQ+3}, -v{SQ}, v{SQ+2}",
                 f"ds_write_b64 v{VSW}, {P(SQ+2)}", "s_waitcnt lgkmcnt(0)", "s_barrier"]
            f += [f"ds_read_b64 {P(ST+2*t)}, v{VS+(t>>1)} offset:{128*(t&1)}" for t in range(8)]
        for l in interleave(m, f): a(l)
    if stamp: stamp(a, 2)
    R = BF
    for hb in range(2):
        for j in range(3):
            r = R + 4*(3*hb + j)
            ts = range(4*hb, 4*hb+4)
            g = lambda t: ACC + 12*t + 4*j
            tm = lambda t, k: T + 6*(t & 3) + 2*k
            st = lambda t: P(ST + 2*t)
            for h in range(2):
                for t in ts: a(f"v_pk_fma_f32 {P(tm(t,h))}, {P(U+8*j+2*h)}, {st(t)}, {P(U+8*j+4+2*h)} op_sel:[0,1,0] op_sel_hi:[1,1,1]")
            for h in range(2):
                for t in ts: a(f"v_pk_fma_f32 {P(g(t)+2*h)}, {P(g(t)+2*h)}, {st(t)}, {P(tm(t,h))} op_sel_hi:[1,0,1]")
            for t in ts: a(f"v_pk_mul_f32 {P(tm(t,0))}, {P(g(t))}, {P(g(t))}")
            for t in ts: a(f"v_pk_fma_f32 {P(tm(t,0))}, {P(tm(t,0))}, s[18:19], {P(C0)}")
            for t in ts: a(f"v_pk_mul_f32 {P(tm(t,0))}, {P(tm(t,0))}, {P(g(t))}")
            for t in ts: a(f"v_exp_f32 v{tm(t,0)}, v{tm(t,0)}\nv_exp_f32 v{tm(t,0)+1}, v{tm(t,0)+1}\nv_pk_mul_f32 {P(g(t))}, {P(g(t))}, {P(g(t)+2)}")
            for t in ts: a(f"v_pk_add_f32 {P(tm(t,0))}, {P(tm(t,0))}, 1.0 op_sel_hi:[1,0]")
            for t in ts: a(f"v_rcp_f32 v{tm(t,0)}, v{tm(t,0)}\nv_rcp_f32 v{tm(t,0)+1}, v{tm(t,0)+1}")
            for t in ts: a(f"v_pk_mul_f32 {P(g(t))}, {P(g(t))}, {P(tm(t,0))}")
            for t in ts: a(f"v_cvt_pk_bf16_f32 v{r+(t&3)}, v{g(t)}, v{g(t)+1}")
            a(f"v_permlane32_swap_b32 v{r}, v{r+2}\nv_permlane32_swap_b32 v{r+1}, v{r+3}\nv_permlane16_swap_b32 v{r}, v{r+1}\nv_permlane16_swap_b32 v{r+2}, v{r+3}")
            a(f"global_store_dwordx4 v{VO}, {V4(r)}, s[22:23] offset:{1024*j}" + HH_SC)
        if hb == 0: a(f"v_add_u32 v{VO}, s15, v{VO}")
    if stamp: stamp(a, 3); stamp(a, 'end')
    a("k3_end:\ns_endpgm")
    return a
```

```python
from asmlib import *
from layout import *
from gen_k1 import ldp, P
from gen_k2 import V4, A4, mf, round_pair
K4_LDS = 4*3*5*1024 + 4*16*176; K4_ACC = 256; K4_VGPR = 256 + 240
WIN = 21
def k4(stamp=None):
    a = Asm()
    a(f"""
    v_lshrrev_b32 v1, 6, v0
    s_cmp_ge_u32 s2, 256
    s_cbranch_scc1 k4_end
    v_readfirstlane_b32 s20, v1
    """)
    ldp(a, 22, 'ws'); ldp(a, 24, 'out')
    if stamp: stamp(a, 0)
    VW, VH, VR, VG = 2, 8, 3, 4
    a(f"""
    s_and_b32 s4, s2, 7
    s_lshr_b32 s5, s2, 3
    s_and_b32 s6, s5, 7                ; db
    s_lshl_b32 s4, s4, 2
    s_lshr_b32 s5, s5, 3
    s_add_u32 s7, s4, s5               ; tb
    v_and_b32 v1, 63, v0
    s_lshl_b32 s8, s6, 2
    s_add_u32 s8, s8, s20
    s_mul_i32 s8, s8, 61440
    s_add_u32 s8, s8, {WD + 2048}
    v_lshl_add_u32 v{VW}, v1, 4, s8
    v_and_b32 v6, 15, v1
    v_lshrrev_b32 v7, 4, v1
    v_lshlrev_b32 v5, 10, v7
    v_lshl_add_u32 v5, v6, 4, v5
    s_mul_i32 s9, s7, 196608
    s_mul_i32 s10, s20, 49152
    s_add_u32 s9, s9, s10
    s_add_u32 s9, s9, {HH}
    """)
    for t in range(4): a(f"s_xor_b32 s10, s20, {t}\ns_lshl_b32 s10, s10, 8\ns_add_u32 s10, s10, s9\nv_add_u32 v{VH+t}, s10, v5")
    a("s_waitcnt lgkmcnt(0)")
    ACC, HB, NHB = 32, 112, 30
    seq = []
    slot = [0]
    first = set()
    def hld(t, sl):
        r = HB + 4*(slot[0] % NHB); slot[0] += 1
        ins = [f"global_load_dwordx4 {V4(r)}, v{VH+t}, s[22:23]"]
        if sl < 11: ins.append(f"v_add_u32 v{VH+t}, 4096, v{VH+t}")
        mm = [mf(ACC+20*t+4*jj, A4(20*sl+4*jj), V4(r), "0" if sl == 0 else None) for jj in range(5)]
        return (ins, mm)
    for sl in range(12):
        for jj in range(5):
            ins = [f"global_load_dwordx4 {A4(20*sl+4*jj)}, v{VW}, s[22:23] offset:{1024*jj-2048}"]
            if jj == 4 and sl < 11: ins.append(f"v_add_u32 v{VW}, 5120, v{VW}")
            seq.append((ins, []))
        seq.append(hld(3, sl)); seq.append(hld(2, sl))
    RES, GB, GP = 12, 232, 232
    extra = [([f"global_load_dwordx2 {P(RES+2*jj)}, v{VR}, s[22:23]"] + ([f"v_add_u32 v{VR}, 4096, v{VR}"] if jj < 4 else []), []) for jj in range(5)]
    extra += [([f"global_load_dwordx4 {V4(GP+4*jj)}, v{VG}, s[22:23] offset:{64*jj}"], []) for jj in range(5)]
    seq += extra
    for t in (1, 0):
        for sl in range(12): seq.append(hld(t, sl))
    for ins, _ in seq[:WIN]:
        for l in ins: a(l)
    VXW, VXR, VST, VSR, VOUT = 22, 25, 26, 27, 28
    L_ST = 4*3*5*1024
    a(f"""
    s_lshr_b32 s10, s7, 1
    s_mul_i32 s10, s10, 163840
    s_mul_i32 s11, s6, 20480
    s_add_u32 s10, s10, s11
    s_and_b32 s11, s7, 1
    s_lshl_b32 s11, s11, 2
    s_add_u32 s11, s11, s20
    s_lshl_b32 s11, s11, 8
    s_add_u32 s10, s10, s11
    s_add_u32 s10, s10, {X1}
    v_lshrrev_b32 v5, 1, v7
    v_lshlrev_b32 v5, 11, v5
    v_lshl_add_u32 v5, v6, 4, v5
    v_and_b32 v31, 1, v7
    v_lshl_add_u32 v5, v31, 3, v5
    v_add_u32 v{VR}, s10, v5
    v_and_b32 v5, 3, v1
    v_mul_u32_u24 v5, 15360, v5
    v_lshl_add_u32 v5, v7, 4, v5
    s_mul_i32 s10, s6, 320
    s_add_u32 s10, s10, {MODP + 5*2560}
    v_add_u32 v{VG}, s10, v5
    s_mul_i32 s10, s20, 15360
    v_lshl_add_u32 v{VXR}, v1, 4, s10
    """)
    for t in (1, 2, 3): a(f"s_xor_b32 s10, s20, {t}\ns_mul_i32 s10, s10, 15360\ns_add_u32 s10, s10, {5120*(t-1)}\nv_lshl_add_u32 v{VXW+t-1}, v1, 4, s10")
    a(f"""
    s_mul_i32 s10, s20, {16*176}
    s_add_u32 s10, s10, {L_ST}
    v_mul_u32_u24 v5, 176, v6
    v_lshl_add_u32 v5, v7, 3, v5
    v_add_u32 v{VST}, s10, v5
    s_lshl_b32 s11, s7, 2
    s_add_u32 s11, s11, s20
    s_mul_i32 s11, s11, {16*1280}
    s_mul_i32 s12, s6, 160
    s_add_u32 s11, s11, s12
    s_mov_b32 s13, 6554
    """)
    SRD = 252
    for i in range(3):
        a(f"v_add_u32 v5, {64*i}, v1\nv_min_u32 v5, 159, v5\nv_mul_lo_u32 v31, s13, v5\nv_lshrrev_b32 v31, 16, v31")
        a(f"v_add_u32 v{SRD+i}, v5, v31\nv_lshl_add_u32 v{SRD+i}, v{SRD+i}, 4, s10")
        a(f"v_mul_u32_u24 v31, {1280-160}, v31\nv_lshl_add_u32 v31, v5, 4, v31\nv_add_u32 v{VOUT+i}, s11, v31")
    if stamp: stamp(a, 1)
    nxt = WIN
    def wr(t): return [f"ds_write_b128 v{VXW+t-1}, {V4(ACC+20*t+4*jj)} offset:{1024*jj}" for jj in range(5)]
    gb = []
    for pm in ("[1,0,3,2]", "[2,3,0,1]"):
        gb += [f"v_add_f32_dpp v{GB+k}, v{GB+k}, v{GB+k} quad_perm:{pm} row_mask:0xf bank_mask:0xf" for k in range(20)]
    for k in range(10): gb += [f"v_cvt_pk_bf16_f32 v31, v{GB+2*k}, v{GB+2*k+1}", f"v_lshlrev_b32 v{GB+2*k}, 16, v31", f"v_and_b32 v{GB+2*k+1}, 0xffff0000, v31"]
    n1 = len(seq) - 24
    fill = {n1 + 2: wr(3) + wr(2) + gb, n1 + 14: wr(1)}
    pending = []
    for i, (ins, mm) in enumerate(seq):
        pending += fill.get(i, [])
        if not mm: continue
        f = []
        while nxt < len(seq) and nxt <= i + WIN: f += seq[nxt][0]; nxt += 1
        k = min(len(pending), 8); f += pending[:k]; pending = pending[k:]
        for l in interleave(mm, f): a(l)
    assert not pending
    if stamp: stamp(a, 2)
    a("s_waitcnt lgkmcnt(0)\ns_barrier")
    RD = HB
    for jj in range(5):
        for p in range(3): a(f"ds_read_b128 {V4(RD+12*jj+4*p)}, v{VXR} offset:{5120*p + 1024*jj}")
    XU = 52
    for k in range(10): a(f"v_lshlrev_b32 v{XU+2*k}, 16, v{RES+k}\nv_and_b32 v{XU+2*k+1}, 0xffff0000, v{RES+k}")
    for jj in range(5):
        r = RD + 12*jj; c = ACC + 4*jj
        for h in range(2): a(f"v_pk_add_f32 {P(c+2*h)}, {P(c+2*h)}, {P(r+2*h)}")
        for h in range(2): a(f"v_pk_add_f32 {P(r+4+2*h)}, {P(r+4+2*h)}, {P(r+8+2*h)}")
        for h in range(2): a(f"v_pk_add_f32 {P(c+2*h)}, {P(c+2*h)}, {P(r+4+2*h)}")
        for h in range(2): a(f"v_pk_fma_f32 {P(c+2*h)}, {P(c+2*h)}, {P(GB+4*jj+2*h)}, {P(XU+4*jj+2*h)}")
        for h in range(2): a(f"v_cvt_pk_bf16_f32 v{c+h}, v{c+2*h}, v{c+2*h+1}")
        a(f"ds_write_b64 v{VST}, {P(c)} offset:{32*jj}")
    for i in range(3): a(f"ds_read_b128 {V4(RD+4*i)}, v{SRD+i}")
    for i in range(3):
        if i == 2: a(f"s_waitcnt lgkmcnt(0)\ns_mov_b64 exec, 0xffffffff")
        a(f"global_store_dwordx4 v{VOUT+i}, {V4(RD+4*i)}, s[24:25]")
    if stamp: stamp(a, 3); stamp(a, 'end')
    a("k4_end:\ns_endpgm")
    return a
```

```python
KARG = dict(x=0, are=8, aim=16, bre=24, bim=32, cre=40, cim=48, ldt=56, dsk=64, bx=72, wg=80, wu=88, wd=96, c=104, wmod=112, out=120, dbg=128, ws=136)
MODP = 0
STAT = 0x10000
U12  = 0x20000
XRS  = 16384 + 256
XR   = 0x100000
KTS  = 3072
KT   = 0x400000
WD   = 0x600000
WP   = 0x800000
X1   = 0xC00000
HH   = 0x1000000
STAMP = 0x8000000
```

```python
import sys
from asmlib import *
from layout import *
from gen_common import kstart, kdesc
import gen_k1
REF = 'adaLN_cond__ssm_conv_s4__glu_gated_geglu__prompt.s.ref'
def mkstamp(kidx):
    used = []
    def stamp(a, k):
        if k != 'end':
            a(f"s_memrealtime s[{70+2*k}:{71+2*k}]\ns_memtime s[{84+2*k}:{85+2*k}]"); return
        a(f"s_waitcnt vmcnt(0)\ns_memrealtime s[98:99]\ns_memtime s[96:97]\ns_load_dwordx2 s[68:69], s[0:1], {KARG['ws']}\ns_mov_b64 exec, -1")
        a(f"s_lshl_b32 s66, s2, 9\ns_lshl_b32 s67, s20, 6\ns_add_u32 s66, s66, s67\ns_add_u32 s66, s66, {STAMP + kidx*(1<<20)}\nv_mov_b32 v1, s66\ns_waitcnt lgkmcnt(0)")
        for q in range(4):
            for r in range(4):
                i = 4*q + r
                a(f"v_mov_b32 v{4+r}, s{70+2*i}" if i < 15 else f"s_getreg_b32 s66, hwreg(HW_REG_HW_ID)\nv_mov_b32 v{4+r}, s66")
            a(f"global_store_dwordx4 v1, v[4:7], s[68:69] offset:{16*q}")
    return stamp
def build(parts, path, stamps=False, pre=""):
    hdr = [l for l in open(REF).read().split('\n') if l.startswith(';') and '@launch' not in l and 'Override' not in l and 'grid=ceil' not in l]
    s = '\n'.join(hdr) + '\n'
    for (name, fn, grid, block, lds, vgpr, accum) in parts:
        s += f"; @launch kernel={name} grid=({grid},1,1) block=({block},1,1) lds={lds}\n"
    s += '.amdgcn_target "amdgcn-amd-amdhsa--gfx950"\n.text\n'
    done = set()
    for k, (name, fn, grid, block, lds, vgpr, accum) in enumerate(parts):
        if name in done: continue
        done.add(name)
        a = fn(mkstamp(k) if stamps else None)
        body = a.final() if isinstance(a, Asm) else a
        if isinstance(a, Asm): print(name, 'instr', len(body.split('\n')), 'auto nop states', a.nnop, 'auto waits', a.nwait, file=sys.stderr)
        s += kstart(name) + body + kdesc(name, vgpr, 102, accum)
    s += 'code_end:\n'
    open(path, 'w').write(s)
def parts():
    p = [("k1_kernel", gen_k1.k1, gen_k1.K1_GRID, 256, gen_k1.K1_LDS, 168, 168)]
    try:
        import gen_k2; p.append(("k2_kernel", gen_k2.k2, 256, 256, gen_k2.K2_LDS, gen_k2.K2_VGPR, gen_k2.K2_ACC))
        import gen_k3; p.append(("k3_kernel", gen_k3.k3, 256, 256, gen_k3.K3_LDS, gen_k3.K3_VGPR, gen_k3.K3_ACC))
        import gen_k4; p.append(("k4_kernel", gen_k4.k4, 256, 256, gen_k4.K4_LDS, gen_k4.K4_VGPR, gen_k4.K4_ACC))
    except ImportError as e: print(e, file=sys.stderr)
    return p
if __name__ == '__main__':
    build(parts(), 'full.s')
    build(parts(), 'full_st.s', stamps=True)
```

```python
from asmlib import *
from layout import *
import conv_model as cm
LOG2E = 0x3fb8aa3b; INV2PI = 0x3e22f983
N_KG, N_MOD, N_ST, N_WD = 160, 240, 128, 96
N_PF = 8
K1_GRID = N_PF + N_KG + N_MOD + N_ST + N_WD
K1_LDS = 4 * 32 * 272
def ldp(a, reg, name): a(f"s_load_dwordx2 s[{reg}:{reg+1}], s[0:1], {KARG[name]}")
def P(r): return f"v[{r}:{r+1}]"
def cmul(d, z, w, t):
    return [f"v_pk_mul_f32 {P(t)}, {P(z)}, {P(w)} op_sel:[0,0] op_sel_hi:[0,1]",
            f"v_pk_fma_f32 {P(d)}, {P(z)}, {P(w)}, {P(t)} op_sel:[1,1,0] op_sel_hi:[1,0,1] neg_lo:[1,0,0]"]
AROWS = list(range(9)) + [256, 258, 260, 262, 264, 516, 520, 772, 776, 1032, 1288, 1544, 1800]
def arow_map():
    h0 = list(range(9)) + [516, 520, 1032, 1544, 0, 0, 0]
    h1 = [256, 256, 258, 260, 260, 260, 262, 264, 264, 772, 776, 1288, 1800, 0, 0, 0]
    m = []
    for rho in range(32):
        v = 4 * (rho >> 3) + (rho & 3); half = (rho >> 2) & 1
        m.append(AROWS.index((h1 if half else h0)[v]))
    return m
def kgen(a, pre):
    for i, n in enumerate(('are', 'aim', 'bre', 'bim', 'cre', 'cim', 'ldt', 'dsk')): ldp(a, 4 + 2 * i, n)
    ldp(a, 22, 'ws')
    a(f"""
    s_lshl_b32 s24, s21, 2
    s_add_u32 s24, s24, s20            ; channel
    s_mul_i32 s25, s24, 384
    v_and_b32 v1, 63, v0               ; lane
    v_lshl_add_u32 v2, v1, 2, s25
    v_lshl_add_u32 v3, v1, 1, s25
    s_lshr_b32 s26, s24, 1
    s_lshl_b32 s26, s26, 2
    s_waitcnt lgkmcnt(0)
    """)
    RAW = 4
    for i in range(6): a(f"global_load_dword v{RAW+i}, v2, s[{4+2*i}:{5+2*i}]")
    a("s_load_dword s27, s[16:17], s26\ns_load_dword s28, s[18:19], s26")
    for i in range(6): a(f"global_load_ushort v{RAW+6+i}, v3, s[{4+2*i}:{5+2*i}] offset:256")
    a(f"s_mul_i32 s29, s20, {32*272}\ns_mov_b32 m0, s29")
    VB, VA, VSP = 16, 17, 18
    a(f"v_and_b32 v{VB}, 31, v1\nv_mul_u32_u24 v{VB}, 272, v{VB}\nv_lshrrev_b32 v19, 5, v1\nv_lshl_add_u32 v19, v19, 4, s29\nv_add_u32 v{VB}, v{VB}, v19")
    m = arow_map()
    a(f"v_mov_b32 v{VA}, 0")
    for l in range(64):
        if m[l & 31]: a(f"v_writelane_b32 v{VA}, {m[l & 31]}, {l}")
    a(f"v_mul_u32_u24 v{VA}, 272, v{VA}\nv_add_u32 v{VA}, v{VA}, v19")
    pre(a)
    DT = 20
    a(f"""
    s_waitcnt lgkmcnt(0)
    s_and_b32 s30, s24, 1
    s_lshl_b32 s30, s30, 4
    s_lshr_b32 s27, s27, s30
    s_lshl_b32 s27, s27, 16
    s_lshr_b32 s28, s28, s30
    s_lshl_b32 s28, s28, 16
    v_mov_b32 v{DT}, {LOG2E}
    v_mul_f32 v{DT}, s27, v{DT}
    v_exp_f32 v{DT}, v{DT}
    v_cvt_pk_bf16_f32 v{DT}, v{DT}, v{DT}
    v_and_b32 v{DT}, 0xffff0000, v{DT}
    v_mov_b32 v21, 0x3f80
    s_mov_b32 s34, {LOG2E}
    s_mov_b32 s35, {INV2PI}
    """)
    ONE = 21
    KR = 22
    BB, CC = 24, 26
    E1, G, H = 28, 30, 32
    F = 34
    Z = 50
    ZT = 60; T0, T1 = 62, 64; X = 66
    PB = 72
    FB, FA, ACC = 88, 120, 152
    PK = FA
    pend = []
    for rd in range(3):
        s = []
        for i, d in enumerate((KR, KR + 1, BB, BB + 1, CC, CC + 1)):
            if rd == 0: s.append(f"v_lshlrev_b32 v{d}, 16, v{RAW+i}")
            elif rd == 1: s.append(f"v_and_b32 v{d}, 0xffff0000, v{RAW+i}")
            else: s.append(f"v_lshlrev_b32 v{d}, 16, v{RAW+6+i}")
        s.append(f"v_pk_mul_f32 {P(KR)}, {P(KR)}, {P(DT)} op_sel_hi:[1,0]")
        s.append(f"v_pk_mul_f32 {P(BB)}, {P(BB)}, {P(DT)} op_sel_hi:[1,0]")
        s.append(f"v_pk_mul_f32 {P(KR)}, {P(KR)}, s[34:35]")
        s += cmul(Z, CC, BB, T0)
        def direct(d, mult, conj, x):
            r = []
            if mult != 1:
                import struct
                lit = hex(struct.unpack('<I', struct.pack('<f', float(mult)))[0])
                r += [f"v_mul_f32 v{x}, {lit}, v{KR}", f"v_mul_f32 v{x+1}, {lit}, v{KR+1}", f"v_exp_f32 v{x}, v{x}", f"v_fract_f32 v{x+1}, v{x+1}"]
            else: r += [f"v_exp_f32 v{x}, v{KR}", f"v_fract_f32 v{x+1}, v{KR+1}"]
            r += [f"v_cos_f32 v{d}, v{x+1}", f"v_sin_f32 v{d+1}, v{x+1}"]
            fin = f"v_pk_mul_f32 {P(d)}, {P(d)}, {P(x)} op_sel_hi:[1,0]" + (" neg_hi:[1,0]" if conj else "")
            return r, fin
        d0, f0 = direct(F + 2, 8, True, X); d1, f1 = direct(E1, 1, False, X + 2); d2, f2 = direct(G, 64, True, X + 4)
        d3, f3 = direct(H, 256, False, T1)
        s += d0 + d1 + [f0] + d2 + [f1] + d3 + [f2, "s_nop 0", f3]
        pb = [0]
        def bout(j, z):
            r = PB + pb[0] % 4; pb[0] += 1
            return [f"v_cvt_pk_bf16_f32 v{r}, v{z}, v{z+1}", f"ds_write_addtid_b32 v{r} offset:{272*j}"]
        Bi = [[f"ds_write_addtid_b32 v{ONE} offset:0"], bout(1, F + 2)]
        for j in range(2, 8): Bi.append(cmul(F + 2 * j, F + 2 * (j - 1), F + 2, T0) + bout(j, F + 2 * j))
        Bi.append(bout(8, G))
        for j in range(9, 32):
            if j == 16: Bi.append(cmul(F, G, G, T0) + bout(j, F))
            else: Bi.append(cmul(F + 2 * (j & 7), F + 2 * (j & 7), G, T0) + bout(j, F + 2 * (j & 7)))
        order = []
        def aout(l, z):
            order.append(l); return [f"v_cvt_pk_bf16_f32 v{PK + len(order) - 1}, v{z}, v{z+1}"]
        Ai = [aout(0, Z)]
        for k in range(1, 9):
            src = Z + (k - 1) if k % 2 else ZT; dst = ZT if k % 2 else Z + k
            Ai.append(cmul(dst, src, E1, T1) + aout(k, dst))
        for z, l in ((Z + 8, 264), (Z + 4, 260), (Z + 8, 520), (Z, 256), (Z + 8, 776), (Z + 4, 516), (Z + 8, 1032), (Z + 2, 258),
                     (Z + 8, 1288), (Z + 4, 772), (Z + 8, 1544), (Z + 6, 262), (Z + 8, 1800)):
            Ai.append(cmul(z, z, H, T1) + aout(l, z))
        body = []
        for k in range(len(Bi)):
            b = Bi[k]; x = Ai[k] if k < len(Ai) else []
            if pend and k in (0, 1, 3, 5, 7, 9, 11, 13): body.append(pend.pop(0))
            for q in range(4):
                if q < len(b): body.append(b[q])
                if q < len(x): body.append(x[q])
        for l in s + body: a(l)
        for ks in range(8): a(f"ds_read_b128 v[{FB+4*ks}:{FB+4*ks+3}], v{VB} offset:{32*ks}")
        for r in range(22): a(f"ds_write_addtid_b32 v{PK+r} offset:{272*AROWS.index(order[r])}")
        for ks in range(8): a(f"ds_read_b128 v[{FA+4*ks}:{FA+4*ks+3}], v{VA} offset:{32*ks}")
        pend = [f"v_mfma_f32_32x32x16_bf16 v[{ACC}:{ACC+15}], v[{FA+4*ks}:{FA+4*ks+3}], v[{FB+4*ks}:{FB+4*ks+3}], " + ("0" if rd == 0 and ks == 0 else f"v[{ACC}:{ACC+15}]") for ks in range(8)]
    for l in pend: a(l)
    return ACC
SPECIAL = list(range(0, 4)) + list(range(68, 73)) + list(range(137, 145)) + list(range(161, 169)) + list(range(185, 192))
def role_kgen(a):
    a("""
    s_and_b32 s21, s3, 7
    s_mul_i32 s21, s21, 20
    s_lshr_b32 s3, s3, 3
    s_add_u32 s21, s21, s3
    """)
    TB, TS, T2A, T3A, DSK = 76, 77, 78, 79, 80
    def pre(a):
        a(f"s_mul_i32 s31, s24, {KTS}\ns_add_u32 s31, s31, {KT}")
        a(f"v_lshlrev_b32 v19, 4, v1\nv_sub_u32 v{TB}, s31, v19")
        a(f"v_lshlrev_b32 v19, 2, v1\nv_sub_u32 v{T2A}, s31, v19\nv_lshlrev_b32 v19, 1, v1\nv_sub_u32 v{T3A}, s31, v19")
        a(f"v_and_b32 v{TS}, 31, v1\nv_mov_b32 v19, v{TS}")
        prev = 0
        for k in range(1, 32):
            step = SPECIAL[k] - k
            if step != prev:
                a(f"v_cmp_le_u32 vcc, {k}, v19\nv_mov_b32 v{DSK}, {step-prev}\nv_cndmask_b32 v{DSK}, 0, v{DSK}, vcc\nv_add_u32 v{TS}, v{TS}, v{DSK}"); prev = step
        a(f"v_lshl_add_u32 v{TS}, v{TS}, 4, s31")
        for r in range(4): a(f"v_mov_b32 v{84+r}, 0")
        a(f"v_mov_b32 v{DSK}, 0")
    V = kgen(a, pre)
    a(f"v_writelane_b32 v{DSK}, s28, 0")
    a(f"v_add_f32 v{V}, v{V}, v{DSK}")
    E, O = 36, 40
    for k in range(4):
        a(f"v_cvt_pk_bf16_f32 v{E+k}, v{V+8-2*k}, v{V+7-2*k}")
        a(f"v_cvt_pk_bf16_f32 v{O+k}, v{V+7-2*k}, v{V+6-2*k}")
    a(f"v_cvt_pk_bf16_f32 v44, v{V+10}, v{V+9}\nv_cvt_pk_bf16_f32 v45, v{V+11}, v{V+12}")
    a(f"global_store_dwordx4 v{TB}, v[{E}:{E+3}], s[22:23] offset:{cm.CH_E*16}")
    a(f"v_readlane_b32 s36, v{O+3}, 0\nv_readlane_b32 s37, v{E}, 63")
    a(f"global_store_dwordx4 v{TB}, v[{O}:{O+3}], s[22:23] offset:{cm.CH_O*16}")
    a(f"global_store_dword v{T2A}, v44, s[22:23] offset:{cm.CH_T2*16 + 2*(320-130)}")
    a(f"global_store_short v{T3A}, v45, s[22:23] offset:{cm.CH_T3*16 + 2*(256-129)}")
    a(f"global_store_short_d16_hi v{T3A}, v45, s[22:23] offset:{cm.CH_T3*16 + 2*(256-193)}")
    a(f"s_lshr_b32 s36, s36, 16\ns_lshl_b32 s38, s37, 16")
    a(f"v_writelane_b32 v84, s36, {SPECIAL.index(cm.CH_E+1)}")
    a(f"v_writelane_b32 v87, s37, {SPECIAL.index(cm.CH_E-64)}")
    a(f"v_writelane_b32 v86, s38, {SPECIAL.index(cm.CH_O-64)}")
    a(f"v_writelane_b32 v87, s37, {SPECIAL.index(cm.CH_O-64)}")
    a(f"s_mov_b64 exec, 0xffffffff\nglobal_store_dwordx4 v{TS}, v[84:87], s[22:23]")
def role_mod(a):
    ldp(a, 4, 'c'); ldp(a, 6, 'wmod'); ldp(a, 8, 'ws')
    a(f"""
    s_mul_i32 s10, s3, 1093
    s_lshr_b32 s10, s10, 16            ; ks
    s_mul_i32 s11, s10, 60
    s_sub_u32 s11, s3, s11             ; slab
    s_mul_i32 s12, s10, 160
    v_lshrrev_b32 v1, 3, v0
    v_add_u32 v1, s12, v1              ; row
    v_lshlrev_b32 v2, 1, v1
    v_mul_u32_u24 v3, 7680, v1
    v_and_b32 v4, 7, v0
    s_lshl_b32 s13, s11, 7
    v_lshl_add_u32 v5, v4, 4, s13
    v_add_u32 v3, v3, v5
    s_waitcnt lgkmcnt(0)
    """)
    for j in range(5): a(f"global_load_ushort v{8+j}, v2, s[4:5] offset:{64*j}")
    for j in range(5):
        a(f"global_load_dwordx4 v[{20+4*j}:{23+4*j}], v3, s[6:7]")
        if j < 4: a(f"v_add_u32 v3, {32*7680}, v3")
    for j in range(5): a(f"v_lshlrev_b32 v{8+j}, 16, v{8+j}\nv_mul_f32 v{14+j}, 0xbfb8aa3b, v{8+j}\nv_exp_f32 v{14+j}, v{14+j}")
    for j in range(5): a(f"v_add_f32 v{14+j}, 1.0, v{14+j}\nv_rcp_f32 v{14+j}, v{14+j}")
    for j in range(5): a(f"v_mul_f32 v{8+j}, v{8+j}, v{14+j}")
    for j in range(5): a(f"v_cvt_pk_bf16_f32 v{8+j}, v{8+j}, 0\nv_lshlrev_b32 v{14+j}, 16, v{8+j}")
    a("""
    v_and_b32 v6, 63, v0
    v_lshrrev_b32 v6, 4, v6
    v_lshlrev_b32 v6, 3, v6
    v_lshl_add_u32 v6, v4, 5, v6
    v_lshrrev_b32 v7, 6, v0
    v_lshl_add_u32 v6, v7, 8, v6
    """)
    A = 40
    for j in range(5):
        for e in range(8): a(f"v_dot2_f32_bf16 v{A+e}, v{20+4*j+e//2}, v{(14 if e&1 else 8)+j}, " + ("0" if j == 0 else f"v{A+e}"))
    for i in range(4): a(f"v_permlane32_swap_b32 v{A+i}, v{A+4+i}")
    for i in range(4): a(f"v_add_f32 v{A+i}, v{A+i}, v{A+4+i}")
    for i in range(2): a(f"v_permlane16_swap_b32 v{A+i}, v{A+2+i}")
    for i in range(2): a(f"v_add_f32 v{A+i}, v{A+i}, v{A+2+i}")
    for i in range(2): a(f"v_add_f32_dpp v{A+i}, v{A+i}, v{A+i} row_ror:8 row_mask:0xf bank_mask:0xf")
    a(f"""
    ds_write_b64 v6, v[{A}:{A+1}]
    v_lshlrev_b32 v1, 2, v0
    s_mul_i32 s12, s10, {3840*4}
    s_lshl_b32 s13, s11, 8
    s_add_u32 s12, s12, s13
    s_add_u32 s12, s12, {MODP}
    v_add_u32 v2, s12, v1
    s_waitcnt lgkmcnt(0)
    s_barrier
    s_cmp_lg_u32 s20, 0
    s_cbranch_scc1 k1_end
    ds_read2st64_b32 v[8:9], v1 offset0:0 offset1:1
    ds_read2st64_b32 v[10:11], v1 offset0:2 offset1:3
    v_add_f32 v8, v8, v9
    v_add_f32 v10, v10, v11
    v_add_f32 v8, v8, v10
    global_store_dword v2, v8, s[8:9]
    """)
def role_stat(a):
    ldp(a, 4, 'x'); ldp(a, 8, 'ws')
    a(f"""
    s_lshl_b32 s10, s3, 4
    s_lshl_b32 s11, s20, 2
    s_add_u32 s10, s10, s11
    v_and_b32 v1, 3, v0
    v_add_u32 v1, s10, v1              ; row
    v_bfe_u32 v2, v0, 2, 4             ; chunk
    v_mul_u32_u24 v3, 1280, v1
    v_lshl_add_u32 v3, v2, 4, v3
    s_waitcnt lgkmcnt(0)
    """)
    for j in range(5): a(f"global_load_dwordx4 v[{8+4*j}:{11+4*j}], v3, s[4:5] offset:{256*j}")
    a(f"""
    v_mul_u32_u24 v4, {2*XRS}, v2
    v_lshl_add_u32 v4, v1, 3, v4
    v_add_u32 v4, {XR}, v4
    v_lshlrev_b32 v5, 3, v1
    v_add_u32 v5, {STAT}, v5
    s_mov_b32 s12, 0x3f803f80
    """)
    for j in range(5):
        a(f"global_store_dwordx2 v4, v[{8+4*j}:{9+4*j}], s[8:9]\nv_add_u32 v6, {XRS}, v4")
        a(f"global_store_dwordx2 v6, v[{10+4*j}:{11+4*j}], s[8:9]")
        if j < 4: a(f"v_add_u32 v4, {32*XRS}, v4")
        for k in range(4):
            r = 8 + 4 * j + k; f = j == 0 and k < 2
            a(f"v_dot2_f32_bf16 v{30+(k&1)}, v{r}, s12, " + ("0" if f else f"v{30+(k&1)}"))
            a(f"v_dot2_f32_bf16 v{32+(k&1)}, v{r}, v{r}, " + ("0" if f else f"v{32+(k&1)}"))
    a(f"""
    v_add_f32 v30, v30, v31
    v_add_f32 v32, v32, v33
    v_permlane32_swap_b32 v30, v32
    v_add_f32 v30, v30, v32
    v_mov_b32 v31, v30
    v_permlane16_swap_b32 v30, v31
    v_add_f32 v30, v30, v31
    v_add_f32_dpp v30, v30, v30 row_ror:8 row_mask:0xf bank_mask:0xf
    v_add_f32_dpp v30, v30, v30 row_ror:4 row_mask:0xf bank_mask:0xf
    v_mul_f32 v30, 0x3acccccd, v30
    v_mov_b32 v31, v30
    v_permlane32_swap_b32 v30, v31
    v_fma_f32 v31, -v30, v30, v31
    v_max_f32 v31, 0, v31
    v_add_f32 v31, 0x3727c5ac, v31
    v_rsq_f32 v32, v31
    v_mul_f32 v33, v30, v32
    v_sub_f32 v33, 0, v33
    s_mov_b64 exec, 0xf
    global_store_dwordx2 v5, v[32:33], s[8:9]
    """)
def role_wd(a):
    ldp(a, 4, 'wd'); ldp(a, 8, 'ws')
    a(f"""
    s_lshr_b32 s10, s3, 1
    s_and_b32 s11, s3, 1
    s_lshl_b32 s11, s11, 2
    s_add_u32 s11, s11, s20            ; db
    s_mul_i32 s12, s10, {32*1280}
    s_mul_i32 s13, s11, 160
    s_add_u32 s12, s12, s13
    s_mul_i32 s14, s20, 5120
    v_and_b32 v1, 63, v0
    s_mov_b32 s15, 6554
    """)
    for i in range(5):
        a(f"v_add_u32 v2, {64*i}, v1\nv_mul_lo_u32 v3, s15, v2\nv_lshrrev_b32 v3, 16, v3\nv_mul_u32_u24 v3, {1280-160}, v3\nv_lshl_add_u32 v3, v2, 4, v3\nv_add_u32 v{8+i}, s12, v3")
    a("s_waitcnt lgkmcnt(0)")
    for i in range(5): a(f"s_add_u32 m0, s14, {1024*i}\nglobal_load_lds_dwordx4 v{8+i}, s[4:5]")
    a(f"""
    v_lshrrev_b32 v2, 4, v1
    v_bfe_u32 v3, v1, 2, 2
    v_lshl_add_u32 v2, v2, 3, v3
    v_mul_u32_u24 v2, 160, v2
    v_and_b32 v3, 3, v1
    v_lshl_add_u32 v2, v3, 3, v2
    v_add_u32 v2, s14, v2
    s_mul_i32 s12, s11, {48*5120}
    s_mul_i32 s13, s10, 5120
    s_add_u32 s12, s12, s13
    s_add_u32 s12, s12, {WD + 2048}
    v_lshl_add_u32 v4, v1, 4, s12
    s_waitcnt vmcnt(0)
    """)
    for jj in range(5):
        for hh in range(2): a(f"ds_read_b64_tr_b16 v[{16+4*jj+2*hh}:{17+4*jj+2*hh}], v2 offset:{32*jj + 640*hh}")
    for jj in range(5): a(f"global_store_dwordx4 v4, v[{16+4*jj}:{19+4*jj}], s[8:9] offset:{1024*jj-2048}")
def k1(stamp=None):
    a = Asm()
    a(f"""
    v_lshrrev_b32 v1, 6, v0
    s_cmp_ge_u32 s2, {K1_GRID}
    s_cbranch_scc1 k1_end
    v_readfirstlane_b32 s20, v1
    """)
    if stamp: stamp(a, 0)
    a(f"""
    s_cmp_ge_u32 s2, {N_PF}
    s_cbranch_scc1 k1_work
    s_getpc_b64 s[4:5]
k1_pc:
    v_lshlrev_b32 v1, 7, v0
    v_mov_b32 v3, s5
    v_mov_b32 v5, s5
    v_min_u32 v2, code_end-k1_pc-4, v1
    v_add_u32 v1, 0x8000, v1
    v_min_u32 v4, code_end-k1_pc-4, v1
    v_add_co_u32 v2, vcc, s4, v2
    v_addc_co_u32 v3, vcc, 0, v3, vcc
    v_add_co_u32 v4, vcc, s4, v4
    v_addc_co_u32 v5, vcc, 0, v5, vcc
    global_load_dword v6, v[2:3], off
    global_load_dword v7, v[4:5], off
    s_endpgm
k1_work:
    s_sub_u32 s3, s2, {N_PF}
    s_cmp_lt_u32 s3, {N_KG}
    s_cbranch_scc1 k1_kgen
    s_sub_u32 s3, s3, {N_KG}
    s_cmp_lt_u32 s3, {N_MOD}
    s_cbranch_scc1 k1_mod
    s_sub_u32 s3, s3, {N_MOD}
    s_cmp_lt_u32 s3, {N_ST}
    s_cbranch_scc1 k1_stat
    s_sub_u32 s3, s3, {N_ST}
    """)
    fin = (lambda: (stamp(a, 'end'), a("s_endpgm"))) if stamp else (lambda: a("s_endpgm"))
    role_wd(a); fin()
    a("k1_stat:"); role_stat(a); fin()
    a("k1_mod:"); role_mod(a); fin()
    a("k1_kgen:"); role_kgen(a); fin()
    a("k1_end:\ns_endpgm")
    return a
```

```python
import sys, re
from gen import *
import gen_k1, gen_k2, gen_k3, gen_k4
NAME = "adaLN_cond__ssm_conv_s4__glu_gated_geglu__prompt_kernel"
def bar(k):
    return f"""
  s_mov_b64 exec, -1
  s_waitcnt vmcnt(0) lgkmcnt(0)
  s_barrier
  s_cmp_lg_u32 s20, 0
  s_cbranch_scc1 bar{k}_w
  s_load_dwordx2 s[4:5], s[0:1], 128
  buffer_wbl2 sc1
  s_waitcnt vmcnt(0) lgkmcnt(0)
  v_mov_b32 v1, {64*k}
  v_mov_b32 v2, 1
  s_mov_b64 exec, 1
  global_atomic_add v1, v2, s[4:5] sc1
  s_mov_b32 s6, 0
bar{k}_p:
  s_sleep 4
  global_load_dword v3, v1, s[4:5] sc0 sc1
  s_waitcnt vmcnt(0)
  v_readfirstlane_b32 s7, v3
  s_add_u32 s6, s6, 1
  s_cmp_ge_u32 s6, 100000
  s_cbranch_scc1 bar{k}_x
  s_cmp_lt_u32 s7, 256
  s_cbranch_scc1 bar{k}_p
bar{k}_x:
  s_mov_b64 exec, -1
  buffer_inv sc1
  s_waitcnt vmcnt(0)
bar{k}_w:
  s_barrier
  s_nop 7
"""
def make(amp, aslist, path):
    b = f"  s_cmp_ge_u32 s2, 256\n  s_cbranch_scc1 all_end\n  s_mov_b32 s100, s2\n  s_memrealtime s[96:97]\n  s_waitcnt lgkmcnt(0)\n  v_lshrrev_b32 v1, 6, v0\n  s_nop 1\n  v_readfirstlane_b32 s20, v1\nk1_again:\n"
    t = gen_k1.k1().final().replace("s_endpgm", "s_branch k1_done")
    b += t + f"k1_done:\n  s_mov_b64 exec, -1\n  s_waitcnt vmcnt(0) lgkmcnt(0)\n  s_barrier\n  s_add_u32 s2, s2, 256\n  s_cmp_lt_u32 s2, {gen_k1.K1_GRID}\n  s_cbranch_scc1 k1_again\n  s_mov_b32 s2, s100\n" + bar(0)
    b += gen_k2.k2().final().replace("s_endpgm", "s_branch k2_done") + "k2_done:\n" + bar(1)
    b += gen_k3.k3().final().replace("s_endpgm", "s_branch k3_done") + "k3_done:\n" + bar(2)
    b += gen_k4.k4().final().replace("s_endpgm", "s_branch k4_done") + f"""k4_done:
  s_waitcnt vmcnt(0)
  s_memrealtime s[10:11]
  s_waitcnt lgkmcnt(0)
  s_sub_u32 s12, s10, s96
  s_min_u32 s12, s12, 20000
  s_mul_i32 s12, s12, {amp}
amp_l:
  s_memrealtime s[14:15]
  s_waitcnt lgkmcnt(0)
  s_sub_u32 s14, s14, s10
  s_cmp_lt_u32 s14, s12
  s_cbranch_scc1 amp_l
all_end:
  s_endpgm
"""
    build([(NAME, lambda st: b, 256, 256, 163840, 496, 256)], path)
    if not aslist:
        s = open(path).read().replace(f"; @launch kernel={NAME} grid", "; @launch grid")
        open(path, 'w').write(s)
make(0, False, 'crude0.s'); make(10, False, 'crude1.s'); make(0, True, 'crude2.s'); make(10, True, 'crude3.s')
```

```python
import re, copy
TRANS = ('v_exp_f32','v_log_f32','v_rcp_f32','v_rsq_f32','v_sqrt_f32','v_sin_f32','v_cos_f32')
def regs_of(op):
    op = op.strip()
    op = re.sub(r'^-', '', op); op = re.sub(r'^abs\((.*)\)$', r'\1', op); op = op.strip('|')
    m = re.fullmatch(r'([vas])(\d+)', op)
    if m: return [(m.group(1), int(m.group(2)))]
    m = re.fullmatch(r'([vas])\[(\d+):(\d+)\]', op)
    if m: return [(m.group(1), i) for i in range(int(m.group(2)), int(m.group(3)) + 1)]
    if op == 'vcc': return [('s', 106), ('s', 107)]
    if op == 'vcc_lo': return [('s', 106)]
    if op == 'vcc_hi': return [('s', 107)]
    if op == 'm0': return [('s', 124)]
    if op == 'exec': return [('s', 126), ('s', 127)]
    return []
class I:
    def __init__(s, text):
        s.text = text
        t = text.split(';')[0].strip()
        s.label = None; s.mn = ''; s.ops = []; s.mods = ''
        if t.endswith(':'): s.label = t[:-1]; return
        if t.startswith('.'): s.mn = '.dir'; return
        p = t.split(None, 1); s.mn = p[0]
        rest = p[1] if len(p) > 1 else ''
        ops = []; depth = 0; cur = ''
        for ch in rest:
            if ch in '[(': depth += 1
            if ch in '])': depth -= 1
            if ch == ',' and depth == 0: ops.append(cur.strip()); cur = ''
            else: cur += ch
        if cur.strip():
            q = cur.strip().split(None, 1); ops.append(q[0]); s.mods = q[1] if len(q) > 1 else ''
        s.ops = ops
        mn = re.sub(r'_(e32|e64|dpp|sdwa)$', '', s.mn); s.base = mn
        R = [regs_of(o) for o in ops]
        flat = lambda l: [x for y in l for x in y]
        s.mfma = mn.startswith('v_mfma'); s.valu = mn.startswith('v_') and not s.mfma
        s.ds = mn.startswith('ds_'); s.vm = mn.startswith(('global_', 'buffer_')); s.smem = mn.startswith(('s_load', 's_memtime', 's_memrealtime', 's_buffer_load'))
        s.salu = mn.startswith('s_') and not s.smem
        s.trans = mn in TRANS; s.dot = mn.startswith('v_dot')
        s.dpp = any(k in s.mods for k in ('row_', 'quad_perm', 'wave_')) or s.mn.endswith('_dpp')
        s.perml = mn.startswith('v_permlane'); s.rdl = mn in ('v_readlane_b32', 'v_readfirstlane_b32')
        s.m0use = False; s.wide = []
        d, u = [], []
        if s.mfma:
            d = R[0]; u = flat(R[1:]); s.A = R[1]; s.B = R[2]; s.C = R[3]
            s.passes = 8 if '32x32' in mn else 4
        elif s.perml: d = flat(R); u = flat(R)
        elif s.valu:
            nd = 2 if mn in ('v_add_co_u32', 'v_addc_co_u32', 'v_sub_co_u32', 'v_mad_u64_u32') else 1
            d = flat(R[:nd]); u = flat(R[nd:])
            if mn in ('v_fmac_f32', 'v_dot2c_f32_bf16', 'v_writelane_b32') or s.dpp: u = u + R[0]
        elif s.ds:
            if mn.startswith(('ds_read', 'ds_bpermute', 'ds_permute', 'ds_swizzle')):
                d = R[0]; u = flat(R[1:])
                if 'd16' in mn: u = u + R[0]
            else: u = flat(R)
            s.m0use = 'addtid' in mn
        elif s.vm:
            if mn.startswith(('buffer_wbl2', 'buffer_inv')): pass
            elif '_load_lds' in mn or (mn.startswith('buffer_load') and re.search(r'\blds\b', s.mods)): u = flat(R); s.m0use = True
            elif '_load' in mn:
                d = R[0]; u = flat(R[1:])
                if 'd16' in mn: u = u + R[0]
            elif '_atomic' in mn and 'sc0' in s.mods: d = R[0]; u = flat(R[1:])
            else:
                u = flat(R)
                if mn.endswith(('x3', 'x4')): s.wide = R[1] if mn.startswith('global') else R[0]
        elif s.smem: d = R[0]; u = flat(R[1:])
        elif s.salu:
            if mn.startswith(('s_cmp', 's_cbranch', 's_branch', 's_waitcnt', 's_nop', 's_barrier', 's_endpgm', 's_sleep', 's_setprio', 's_bitcmp')): u = flat(R)
            else:
                d = R[0]; u = flat(R[1:])
                if 'saveexec' in mn: d = d + regs_of('exec')
        s.d = set(d); s.u = set(u)
class State:
    def __init__(s):
        s.vm = []; s.lg = []
        s.ev = {}
    def step(s, n):
        s.ev = {k: (a + n, i) for k, (a, i) in s.ev.items() if a + n < 24}
    def merge(s, o):
        for k, v in o.ev.items():
            if k not in s.ev or v[0] < s.ev[k][0]: s.ev[k] = v
        def mq(x, y, what):
            if x == y or not y: return x
            if not x: return y[:]
            assert not any(e[0] for e in x + y), f"merge with pending {what} loads"
            return x if len(x) <= len(y) else y[:]
        s.vm = mq(s.vm, o.vm, 'vm'); s.lg = mq(s.lg, o.lg, 'lgkm')
class Asm:
    def __init__(s): s.ins = []
    def __call__(s, text):
        for l in text.split('\n'):
            if l.split(';')[0].strip(): s.ins.append(I(l.strip()))
    def need(s, st, i):
        n = 0
        def chk(kind, regs, dist):
            nonlocal n
            for r in regs:
                e = st.ev.get((kind, r))
                if e is not None:
                    dd = dist(e[1]) if callable(dist) else dist
                    n = max(n, dd - e[0])
        big = lambda inf: 12 if inf[0] == 8 else 8
        if i.mfma:
            chk('vw', i.u, 2); chk('dw', i.u | i.d, 3)
            chk('mw', set(i.A) | set(i.B), big)
            key = (i.passes, tuple(i.C))
            chk('mw', i.C, lambda inf: 0 if inf == key else (10 if inf[0] == 8 else 6))
            if not i.C or tuple(i.C) != tuple(sorted(i.d)): chk('mw', i.d, lambda inf: 10 if inf[0] == 8 else 6)
        if i.valu:
            chk('mw', i.u | i.d, big); chk('mc', i.d, lambda p: 7 if p == 8 else 3)
            if not i.trans: chk('tw', i.u, 1)
            if i.dot:
                ab = set(regs_of(i.ops[1])) | set(regs_of(i.ops[2]))
                chk('dw', ab, 3); chk('dw', (i.u | i.d) - ab, lambda op: 0 if op == i.base else 3)
            else: chk('dw', i.u | i.d, 3)
            if i.rdl: chk('vw', i.u, 1)
            if i.perml or i.dpp: chk('vw', i.u, 2)
            chk('sw', i.u, 2)
            if i.base in ('v_readlane_b32', 'v_writelane_b32'): chk('sw', regs_of(i.ops[2]), 4)
            chk('st', i.d, 2)
        if i.ds or i.vm:
            chk('mw', i.u | i.d, big); chk('dw', i.u | i.d, 3); chk('tw', i.u, 1)
            chk('st', i.d, 1)
            if i.vm: chk('sw', i.u, 5)
            if i.m0use: chk('m0', [('s', 124)], 1)
        if i.salu or i.smem: chk('sw', i.u, 1)
        return n
    def record(s, st, i):
        st.step(1)
        for r in i.d:
            for k in ('vw', 'tw', 'dw', 'mw'): st.ev.pop((k, r), None)
        if i.mfma:
            for r in i.d: st.ev[('mw', r)] = (0, (i.passes, tuple(sorted(i.d))))
            for r in i.C: st.ev[('mc', r)] = (0, i.passes)
        elif i.valu:
            for r in i.d:
                if r[0] == 's': st.ev[('sw', r)] = (0, None)
                else:
                    st.ev[('vw', r)] = (0, None)
                    if i.trans: st.ev[('tw', r)] = (0, None)
                    if i.dot: st.ev[('dw', r)] = (0, i.base)
        elif i.salu and ('s', 124) in i.d: st.ev[('m0', ('s', 124))] = (0, None)
        for r in i.wide: st.ev[('st', r)] = (0, None)
        if i.vm:
            m = re.search(r'tag=(\w+)', i.text); st.vm.append((set(i.d), m.group(1) if m else 'v'))
        if i.ds: st.lg.append((set(i.d), 'l'))
        if i.smem: st.lg.append((set(i.d), 's'))
    def final(s):
        snaps = {}
        for it in range(3):
            out = []; st = State(); live = True; new = {}; s.nnop = 0; s.nwait = 0
            for i in s.ins:
                if i.label:
                    srcs = [x for x in (new.get(i.label), snaps.get(i.label)) if x is not None]
                    if not live:
                        st = copy.deepcopy(srcs[0]) if srcs else State(); srcs = srcs[1:]
                    for x in srcs: st.merge(x)
                    live = True; out.append(i.text); continue
                if i.mn == '.dir': out.append(i.text); continue
                if i.mn == 'WAITVM':
                    idx = [k for k, x in enumerate(st.vm) if x[1] == i.ops[0]]
                    if idx:
                        n = min(len(st.vm) - 1 - max(idx), 63); st.vm = st.vm[len(st.vm) - n:] if n else []
                        out.append(f'  s_waitcnt vmcnt({n})'); st.step(1)
                    continue
                if i.mn == 's_waitcnt':
                    t = i.text.split(';')[0]
                    m = re.search(r'vmcnt\((\d+)\)', t)
                    if m: k = int(m.group(1)); st.vm = st.vm[len(st.vm) - k:] if k < len(st.vm) else st.vm; st.vm = st.vm if k else []
                    m = re.search(r'lgkmcnt\((\d+)\)', t)
                    if m:
                        k = int(m.group(1))
                        if k == 0: st.lg = []
                        elif not any(x[1] == 's' for x in st.lg) and k < len(st.lg): st.lg = st.lg[len(st.lg) - k:]
                    out.append('  ' + i.text); st.step(1); continue
                touch = i.d | i.u
                w = []
                idx = [k for k, x in enumerate(st.vm) if x[0] & touch]
                if idx:
                    n = min(len(st.vm) - 1 - max(idx), 63); w.append(f'vmcnt({n})'); st.vm = st.vm[len(st.vm) - n:] if n else []
                idx = [k for k, x in enumerate(st.lg) if x[0] & touch]
                if idx:
                    n = 0 if any(x[1] == 's' for x in st.lg) else min(len(st.lg) - 1 - max(idx), 15)
                    w.append(f'lgkmcnt({n})'); st.lg = st.lg[len(st.lg) - n:] if n else []
                if w: out.append('  s_waitcnt ' + ' '.join(w)); st.step(1); s.nwait += 1
                n = s.need(st, i)
                while n > 0:
                    k = min(n, 16); out.append(f'  s_nop {k-1}'); st.step(k); n -= k; s.nnop += k
                out.append('  ' + i.text)
                if i.mn == 's_nop': st.step(int(i.ops[0]) + 1); continue
                s.record(st, i)
                if i.mn.startswith(('s_cbranch', 's_branch')):
                    tg = i.ops[0]
                    if tg in new: new[tg].merge(st)
                    else: new[tg] = copy.deepcopy(st)
                    if i.mn == 's_branch': live = False
                if i.mn == 's_endpgm': live = False
            snaps = new
        return '\n'.join(out) + '\n'
def interleave(main, fill, ratio=None, start=0, end=None):
    end = len(main) if end is None else end
    n = end - start; out = list(main[:start]); k = 0
    for j in range(n):
        out.append(main[start + j])
        tgt = (len(fill) * (j + 1) + n - 1) // n if ratio is None else min(len(fill), ratio * (j + 1))
        while k < tgt: out.append(fill[k]); k += 1
    out += fill[k:]; out += main[end:]
    return out
```

```python
import sys
from asmlib import *
from layout import *
from gen_common import kstart, kdesc
import gen_k1
REF = 'adaLN_cond__ssm_conv_s4__glu_gated_geglu__prompt.s.ref'
def mkstamp(kidx):
    used = []
    def stamp(a, k):
        if k != 'end':
            a(f"s_memrealtime s[{70+2*k}:{71+2*k}]\ns_memtime s[{84+2*k}:{85+2*k}]"); return
        a(f"s_waitcnt vmcnt(0)\ns_memrealtime s[98:99]\ns_memtime s[96:97]\ns_load_dwordx2 s[68:69], s[0:1], {KARG['ws']}\ns_mov_b64 exec, -1")
        a(f"s_lshl_b32 s66, s2, 9\ns_lshl_b32 s67, s20, 6\ns_add_u32 s66, s66, s67\ns_add_u32 s66, s66, {STAMP + kidx*(1<<20)}\nv_mov_b32 v1, s66\ns_waitcnt lgkmcnt(0)")
        for q in range(4):
            for r in range(4):
                i = 4*q + r
                a(f"v_mov_b32 v{4+r}, s{70+2*i}" if i < 15 else f"s_getreg_b32 s66, hwreg(HW_REG_HW_ID)\nv_mov_b32 v{4+r}, s66")
            a(f"global_store_dwordx4 v1, v[4:7], s[68:69] offset:{16*q}")
    return stamp
def build(parts, path, stamps=False, pre=""):
    hdr = [l for l in open(REF).read().split('\n') if l.startswith(';') and '@launch' not in l and 'Override' not in l and 'grid=ceil' not in l]
    s = '\n'.join(hdr) + '\n'
    for (name, fn, grid, block, lds, vgpr, accum) in parts:
        s += f"; @launch kernel={name} grid=({grid},1,1) block=({block},1,1) lds={lds}\n"
    s += '.amdgcn_target "amdgcn-amd-amdhsa--gfx950"\n.text\n'
    done = set()
    for k, (name, fn, grid, block, lds, vgpr, accum) in enumerate(parts):
        if name in done: continue
        done.add(name)
        a = fn(mkstamp(k) if stamps else None)
        body = a.final() if isinstance(a, Asm) else a
        if isinstance(a, Asm): print(name, 'instr', len(body.split('\n')), 'auto nop states', a.nnop, 'auto waits', a.nwait, file=sys.stderr)
        s += kstart(name) + body + kdesc(name, vgpr, 102, accum)
    s += 'code_end:\n'
    open(path, 'w').write(s)
def parts():
    import gen_f
    return [("k1_kernel", gen_k1.k1, gen_k1.K1_GRID, 256, gen_k1.K1_LDS, 168, 168),
            ("kf_kernel", gen_f.kf, 256, 256, gen_f.F_LDS, gen_f.F_VGPR, gen_f.F_ACC)]
if __name__ == '__main__':
    build(parts(), 'full.s')
    build(parts(), 'full_st.s', stamps=True)
```

```python
from asmlib import *
from layout import *
import conv_model as cm
from gen_k1 import ldp, P
from gen_k2 import V4, A4, mf, round_pair
import struct, math
F_LDS = 163840; F_ACC = 256; F_VGPR = 512
HST, XST = 4608, 4160
L_H, L_XT, L_TAB = 0, 4*HST, 4*HST + 4*XST
OPT = dict(N0=6, N1=24, N2=6, xd=3, M0=4, M1=60, win=9, rbx=4, gissue=11, gcheck=13, wdrate=3)
SC = " sc1"
def f2u(x): return hex(struct.unpack('<I', struct.pack('<f', x))[0])
VWF = 250
def ids(a):
    rbx = OPT['rbx']; cbx = 32 // rbx; gx = 16 // cbx
    a(f"""
    s_and_b32 s4, s2, 7
    s_lshr_b32 s5, s2, 3
    s_and_b32 s60, s4, {gx-1}
    s_mul_i32 s60, s60, {cbx}
    s_and_b32 s6, s5, {cbx-1}
    s_add_u32 s60, s60, s6
    s_lshr_b32 s61, s4, {gx.bit_length()-1}
    s_mul_i32 s61, s61, {rbx}
    s_lshr_b32 s6, s5, {cbx.bit_length()-1}
    s_add_u32 s61, s61, s6
    s_lshl_b32 s62, s60, 2
    s_add_u32 s62, s62, s20
    s_mul_i32 s6, s62, 3
    v_bfe_u32 v{VWF}, v1, 2, 2
    v_min_u32 v{VWF}, 2, v{VWF}
    v_add_u32 v{VWF}, s6, v{VWF}                 ; tile T
    v_bfe_u32 v{VWF+1}, v{VWF}, 1, 2
    v_lshrrev_b32 v{VWF}, 3, v{VWF}              ; G
    v_lshlrev_b32 v{VWF}, 8, v{VWF}
    v_lshl_add_u32 v{VWF}, v{VWF+1}, 2, v{VWF}
    v_and_b32 v{VWF+1}, 3, v1
    v_lshl_add_u32 v{VWF}, v{VWF+1}, 6, v{VWF}
    v_add_u32 v{VWF}, {FLG_W}, v{VWF}
    """)
def spin(a, late, name, loads, chk, back):
    late.append(f"{name}:\ns_mov_b32 s64, 0\n{name}_l:\ns_waitcnt vmcnt(0)\ns_sleep 2\n" + "\n".join(loads) + "\ns_waitcnt vmcnt(0)\n" + "\n".join(chk) +
                f"\ns_add_u32 s64, s64, 1\ns_cmp_ge_u32 s64, 0x40000\ns_cbranch_scc1 {back}\ns_cbranch_vccnz {name}_l\ns_branch {back}")
def role_conv(a, stamp, late):
    X, S, SA, CA, BND, SP, U, HP = 8, 24, 40, 44, 48, 72, 76, 84
    a(f"""
    s_and_b32 s21, s2, 7
    s_mul_i32 s21, s21, 20
    s_lshr_b32 s3, s2, 3
    s_add_u32 s21, s21, s3             ; cg
    s_lshl_b32 s5, s20, 12
    s_mul_i32 s4, s21, {XRS}
    s_add_u32 s4, s4, {XR}
    v_lshl_add_u32 v3, v1, 4, s5
    v_add_u32 v2, s4, v3
    v_add_u32 v3, {STAT}, v3
    s_lshl_b32 s16, s21, 2
    s_add_u32 s16, s16, s20            ; channel
    s_mul_i32 s6, s16, {KTS}
    s_add_u32 s6, s6, {KT}
    v_lshl_add_u32 v4, v1, 4, s6
    s_mul_i32 s7, s20, 3072
    s_add_u32 s7, s7, {L_TAB}
    s_mov_b32 m0, s7
    s_lshl_b32 s8, s21, 4
    s_lshl_b32 s9, s16, 2
    v_and_b32 v5, 15, v1
    v_lshrrev_b32 v6, 4, v1
    v_lshlrev_b32 v7, 3, v6
    """)
    keys = ['r2q0', 'r2q1', 'r2q2', 'r2q3', 'r3e', 'r3o']
    def band(k):
        key = (keys + ['sp'])[k]
        if key == 'sp': m = 3 << 12
        else: co, w, sh = cm.BANDS[key]; m = ((1 << (2*w+1)) - 1) << (co + sh - w)
        a(f"v_mov_b32 v{U}, {m}\nv_lshlrev_b32 v{U}, v5, v{U}\nv_lshrrev_b32 v{U}, v7, v{U}")
        for w in range(4):
            d = BND + 4*k + w
            a(f"v_bfe_u32 v{d}, v{U}, {2*w}, 2\nv_mul_u32_u24 v{d}, 0x8001, v{d}\nv_and_b32 v{d}, 0x10001, v{d}")
            if key != 'sp': a(f"v_mul_u32_u24 v{d}, 0x3f80, v{d}")
    for k in range(3): band(k)
    a("""
    s_waitcnt lgkmcnt(0)
    s_add_u32 s24, s22, s8
    s_addc_u32 s25, s23, 0
    s_add_u32 s26, s22, s9
    s_addc_u32 s27, s23, 0
    """)
    for j in range(4):
        a(f"s_load_dwordx4 s[{28+4*j}:{31+4*j}], s[24:25], {MODP + 15360*j}\ns_load_dwordx4 s[{44+4*j}:{47+4*j}], s[24:25], {MODP + 15360*j + 2560}")
    for j in range(4):
        a(f"global_load_dwordx4 {V4(X+4*j)}, v2, s[22:23] offset:{1024*j}\nglobal_load_dwordx4 {V4(S+4*j)}, v3, s[22:23] offset:{1024*j}")
    for j in range(3): a(f"global_load_lds_dwordx4 v4, s[22:23] offset:{1024*j}")
    for j in range(4): a(f"s_load_dword s{10+j}, s[26:27], {MODP + 15360*j + 5120}")
    for k in range(3, 7): band(k)
    VH, VTD, VT2, VT3, VXD, VW, VO, GA, VTD0 = 100, 101, 102, 103, 104, 105, 107, 108, 109
    a(f"""
    s_mul_i32 s17, s20, {HST}
    v_lshlrev_b32 v{VH}, 5, v5
    v_lshl_add_u32 v{VH}, v6, 4, v{VH}
    v_add_u32 v{VH}, s17, v{VH}
    v_lshl_add_u32 v{U}, v1, 3, s17
    v_mov_b32 v{U+2}, 0
    v_mov_b32 v{U+3}, 0
    ds_write_b64 v{U}, {P(U+2)}
    v_and_b32 v{U}, 1, v5
    v_mul_u32_u24 v{U}, {2*((cm.CH_O*8+7) - (cm.CH_E*8+8))}, v{U}
    v_sub_u32 v{VTD}, v7, v5
    v_lshl_add_u32 v{VTD}, v{VTD}, 1, v{U}
    v_add_u32 v{VTD}, {2*(cm.CH_E*8+8-16-32*16)}, v{VTD}
    v_add_u32 v{VTD}, s7, v{VTD}
    v_add_u32 v{VTD0}, 1024, v{VTD}
    v_mov_b32 v106, s7
    v_lshlrev_b32 v{U}, 2, v6
    v_sub_u32 v{U}, v{U}, v5                    ; 4g - col
    v_lshl_add_u32 v{VT2}, v{U}, 3, s7
    v_lshl_add_u32 v{VT3}, v{U}, 2, s7
    v_add_u32 v{VT3}, {2*(cm.CH_T3*8+256-2-32*7)}, v{VT3}
    s_mul_i32 s17, s20, {XST}
    s_add_u32 s17, s17, {L_XT}
    v_lshlrev_b32 v{VXD}, 5, v5
    v_add3_u32 v{VXD}, v{VXD}, v7, s17
    v_lshlrev_b32 v{VW}, 4, v0
    s_mov_b32 s14, 0x05040100
    s_mov_b32 s15, 0x07060302
    s_waitcnt lgkmcnt(0)
    """)
    if stamp: stamp(a, 1)
    for base, d in ((44, CA), (28, SA)):
        for j in range(4):
            for h in range(2): a(f"v_pk_add_f32 {P(d+2*h)}, s[{base+4*j+2*h}:{base+4*j+2*h+1}], " + ("0" if j == 0 else P(d+2*h)))
    for h in range(2): round_pair(a, CA+2*h, U+h)
    for h in range(2): round_pair(a, SA+2*h, U+h)
    for h in range(2): a(f"v_pk_add_f32 {P(CA+2*h)}, {P(CA+2*h)}, 1.0 op_sel_hi:[1,0]")
    for h in range(2): round_pair(a, CA+2*h, U+h)
    T2, T3, TD, HB, HS = 0, 24, 40, 108, 172
    def rd_td(q): return [f"ds_read2_b32 a[{TD+4*q+2*h}:{TD+4*q+2*h+1}], v{VTD} offset0:{16*(16-q)+2*h} offset1:{16*(16-q)+2*h+1}" if q else
                          f"ds_read2_b32 a[{TD+4*q+2*h}:{TD+4*q+2*h+1}], v{VTD0} offset0:{2*h} offset1:{2*h+1}" for h in range(2)]
    def rd_h(sig, n): return f"ds_read_b128 {A4(HB+32*(sig&1)+4*n)}, v{VH} offset:{512 + 512*n - 64*sig - 32}"
    def rd_hs(n): return f"ds_read_b128 {A4(HS+4*n)}, v{VH} offset:{512 + 512*n - 48}"
    tabs = [f"ds_read_u16 v106, v106 offset:{2*(cm.CH_T2*8+64)}"] + rd_td(0) + rd_td(8) + rd_td(16) + rd_td(1) + rd_td(9)
    for D in range(2, 5):
        for hh in range(2):
            off = 2*(cm.CH_T2*8 + 320 - 64*D - 4 + 8*hh)
            tabs += [f"ds_read_b64 a[{T2+8*(D-2)+4*hh+2*h}:{T2+8*(D-2)+4*hh+2*h+1}], v{VT2} offset:{off+8*h}" for h in range(2)]
    for D in range(4, 8):
        tabs += [f"ds_read2_b32 a[{T3+4*(D-4)+2*h}:{T3+4*(D-4)+2*h+1}], v{VT3} offset0:{16*(7-D)+2*h} offset1:{16*(7-D)+2*h+1}" for h in range(2)]
    for tp in range(4):
        for k in range(4): a(f"v_lshlrev_b32 v{U+2*k}, 16, v{X+4*tp+k}\nv_and_b32 v{U+2*k+1}, 0xffff0000, v{X+4*tp+k}")
        for k in range(4):
            st = P(S + 4*tp + 2*(k >> 1))
            a(f"v_pk_fma_f32 {P(U+2*k)}, {P(U+2*k)}, {st}, {st} op_sel:[0,0,1] op_sel_hi:[1,0,1]")
        for k in range(4): a(f"v_pk_fma_f32 {P(U+2*k)}, {P(U+2*k)}, {P(CA+2*(k&1))}, {P(SA+2*(k&1))}")
        for c in range(4): a(f"v_cvt_pk_bf16_f32 v{HP+4*c+tp}, v{U+c}, v{U+4+c}")
    for c in range(4): a(f"ds_write_b128 v{VW}, {V4(HP+4*c)} offset:{L_H + HST*c + 512}")
    a("s_waitcnt vmcnt(0)")
    for l in tabs[:11]: a(l)
    a("s_waitcnt lgkmcnt(11)\ns_barrier")
    if stamp: stamp(a, 2)
    for n in range(3): a(rd_h(0, n)); a(rd_hs(n))
    XP = S
    for c in range(4):
        for tp in range(4): a(f"v_perm_b32 v{XP+4*c+tp}, v{X+4*tp+2+(c>>1)}, v{X+4*tp+(c>>1)}, s{14+(c&1)}")
    for w in range(4): a(f"v_mul_u32_u24 v{SP+w}, v106, v{SP+w}")
    ACC, Z3, Z2, SD, XD, XU = 112, 144, 160, 208, 8, 40
    first = set()
    def acc(n, A, B):
        c = None
        if n not in first: first.add(n); c = "0"
        return mf(ACC+4*n, A, B, c)
    misc = [rd_h(1, n) for n in range(8)] + tabs[11:23]
    take = [6, 3, 3, 2, 0, 2, 2, 2]
    cv = []
    for n in range(8):
        h, hs, sd = A4(HB+4*n), A4(HS+4*n), SD + 24*(n & 1)
        m = []
        if n < 6: m += [mf(sd+4*q, hs if q == 0 else h, V4(BND+4*q), "0") for q in (1, 2, 3, 0)]
        if n < 4: m += [mf(sd+20, h, V4(BND+20), "0"), mf(sd+16, hs, V4(BND+16), "0")]
        for j in range(3):
            if n + j < 8: m.append(acc(n+j, A4(TD+32*j), h))
        if n < 4: m.append(acc(n+4, V4(SP), h))
        f = []
        if n + 3 < 8: f.append(rd_h(0, n+3))
        if n + 3 < 6: f.append(rd_hs(n+3))
        if n < 6: f += cv; cv = []
        f += misc[:take[n]]; misc = misc[take[n]:]
        for l in interleave(m, f): a(l)
        if n < 6:
            for hh in range(2):
                for w in range(4): cv.append(f"v_cvt_pk_bf16_f32 v{Z2+8*n+4*hh+w}, v{sd + 4*(2*(w&1)) + 2*hh + (w>>1)}, v{sd + 4*(2*(w&1)+1) + 2*hh + (w>>1)}")
        if n < 4: cv += [f"v_cvt_pk_bf16_f32 v{Z3+4*n+r}, v{sd+16+r}, v{sd+20+r}" for r in range(4)]
    assert not misc
    far2, far3 = [], []
    for n in range(6):
        for hh in range(2):
            for D in range(2, 5):
                if n + D < 8: far2.append((n+D, V4(Z2+8*n+4*hh), A4(T2+8*(D-2)+4*hh)))
        if n < 4:
            for D in range(4, 8):
                if n + D < 8: far3.append((n+D, V4(Z3+4*n), A4(T3+4*(D-4))))
    far = far2 + far3
    OUTR = SD
    def epi(n):
        r = ACC + 4*n; o = OUTR + 2*n
        e = [f"v_fma_f32 v{r+k}, v{r+k}, v{GA}, v{XU+4*n+k}" for k in range(4)] + [f"v_cvt_pk_bf16_f32 v{o+h}, v{r+2*h}, v{r+2*h+1}" for h in range(2)]
        if n & 1:
            o -= 2
            e += [f"v_permlane16_swap_b32 v{o}, v{o+2}", f"v_permlane16_swap_b32 v{o+1}, v{o+3}", f"global_store_dwordx4 v{VO}, {V4(o)}, s[22:23]" + SC]
            if n < 7: e.append(f"v_add_u32 v{VO}, {8*81920}, v{VO}")
        return e
    addr = Asm(); ids(addr)
    addr(f"""
    s_lshr_b32 s4, s16, 1
    s_and_b32 s4, s4, 1
    s_lshr_b32 s5, s16, 2
    s_and_b32 s5, s5, 2
    s_or_b32 s4, s4, s5
    v_and_b32 v{VO}, 3, v5
    v_xor_b32 v{VO}, s4, v{VO}
    v_lshrrev_b32 v{U}, 1, v6
    v_lshl_add_u32 v{VO}, v{U}, 2, v{VO}
    v_and_b32 v{U}, 1, v6
    v_lshrrev_b32 v{U+1}, 2, v5
    v_lshl_add_u32 v{U}, v{U}, 2, v{U+1}
    v_mul_u32_u24 v{U}, 81920, v{U}
    v_lshl_add_u32 v{VO}, v{VO}, 4, v{U}
    s_lshl_b32 s4, s16, 7
    s_add_u32 s4, s4, {XT1}
    v_add_u32 v{VO}, s4, v{VO}
    s_lshl_b32 s63, s21, 6
    s_add_u32 s63, s63, {FLG_B}
    """)
    addr = [i.text for i in addr.ins]
    wfl = f"global_load_dword v{VWF+1}, v{VWF}, s[22:23] sc1"
    for sig in range(1, 8):
        hb = HB + 32*(sig & 1)
        m = []
        for n in range(8):
            if n: m.append(acc(n, A4(TD+4*(sig+8)), A4(hb+4*(n-1))))
            m.append(acc(n, A4(TD+4*sig), A4(hb+4*n)))
        a("s_waitcnt lgkmcnt(0)")
        if sig < 7:
            k = 7 if sig < 5 else 6
            m = m + [acc(*x) for x in far[:k]]; far = far[k:]
            f = rd_td(sig+1) + rd_td(sig+9) + [rd_h(sig+1, n) for n in range(8)]
            if sig == 1: f = cv + f + tabs[23:] + [f"ds_write_b128 v{VW}, {V4(XP+4*c)} offset:{L_XT + XST*c}" for c in range(4)]
            if sig == 2:
                f += [f"v_mov_b32 v{GA}, s10", f"v_add_f32 v{GA}, s11, v{GA}", f"v_add_f32 v{GA}, s12, v{GA}", f"v_add_f32 v{GA}, s13, v{GA}",
                      f"v_cvt_pk_bf16_f32 v{GA}, v{GA}, v{GA}", f"v_and_b32 v{GA}, 0xffff0000, v{GA}"] + addr[:20]
            if sig == 3: f += ["s_barrier"] + [f"ds_read_b64 {P(XD+2*n)}, v{VXD} offset:{512*n}" for n in range(8)] + addr[20:32]
            if sig in (4, 5):
                for k in range(8*(sig-4), 8*(sig-3)): f += [f"v_lshlrev_b32 v{XU+2*k}, 16, v{XD+k}", f"v_and_b32 v{XU+2*k+1}, 0xffff0000, v{XD+k}"]
            if sig == 4: f += addr[32:]
            if sig == 5: f.append(wfl)
            for l in interleave(m, f, ratio=2): a(l)
        else:
            f = []
            for n in range(8): f += epi(n)
            for l in interleave(m, f, start=3, ratio=3): a(l)
    assert not far
    if stamp: stamp(a, 3)
    chk = [f"v_cmp_ne_u32 vcc, 1, v{VWF+1}"]
    a(chk[0] + "\ns_cbranch_vccnz f_spinw1\nf_okw1:")
    spin(a, late, "f_spinw1", [wfl], chk, "f_okw1")
def role_prep(a, stamp, late):
    ldp(a, 4, 'wg'); ldp(a, 6, 'wu')
    L_CV = 40960
    a(f"""
    s_sub_u32 s3, s2, 160
    s_lshr_b32 s12, s3, 2              ; G
    s_and_b32 s13, s3, 3               ; kq
    s_lshr_b32 s14, s20, 1             ; mat
    s_and_b32 s15, s20, 1
    v_lshrrev_b32 v2, 3, v1
    v_bfe_u32 v3, v1, 4, 1
    s_lshl_b32 s16, s20, 1
    v_or_b32 v3, s16, v3
    v_and_b32 v4, 7, v1
    v_xor_b32 v3, v3, v4
    v_mul_u32_u24 v2, 3072, v2
    v_lshl_add_u32 v2, v3, 4, v2
    s_mul_i32 s16, s13, 160
    s_lshl_b32 s17, s15, 3
    s_add_u32 s17, s17, s16
    s_mul_i32 s17, s17, 3072
    s_lshl_b32 s18, s12, 7
    s_add_u32 s17, s17, s18
    v_add_u32 v2, s17, v2
    s_mul_i32 s18, s14, 20480
    s_lshl_b32 s19, s15, 10
    s_add_u32 s18, s18, s19
    v_min_u32 v5, 159, v0
    v_add_u32 v6, s16, v5
    v_lshlrev_b32 v6, 2, v6
    v_add_u32 v6, {MODP + 3*2560}, v6
    s_waitcnt lgkmcnt(0)
    s_cmp_eq_u32 s14, 0
    s_cselect_b32 s8, s4, s6
    s_cselect_b32 s9, s5, s7
    """)
    for j in range(4):
        a(f"global_load_dword v{8+j}, v6, s[22:23]\nglobal_load_dword v{12+j}, v6, s[22:23] offset:2560")
        if j < 3: a(f"v_add_u32 v6, 15360, v6")
    for i in range(10):
        a(f"s_add_u32 m0, s18, {2048*i}\nglobal_load_lds_dwordx4 v2, s[8:9]")
        if i < 9: a(f"v_add_u32 v2, {16*3072}, v2")
    VT, VC, VS0, VU = 16, 18, 19, 21
    a(f"""
    v_lshrrev_b32 v6, 4, v1            ; g
    v_bfe_u32 v7, v1, 2, 2             ; r
    v_lshl_add_u32 v2, v6, 3, v7
    v_lshlrev_b32 v2, 7, v2            ; (8g + r) * 128
    v_bfe_u32 v3, v1, 1, 1             ; mat
    v_mul_u32_u24 v4, 20480, v3
    v_add_u32 v2, v2, v4
    v_and_b32 v4, 1, v1
    v_lshl_add_u32 v2, v4, 3, v2
    v_lshrrev_b32 v7, 1, v7
    v_and_b32 v4, 1, v6
    v_lshl_add_u32 v7, v4, 1, v7
    v_lshl_add_u32 v7, v3, 2, v7       ; swizzle
    s_lshl_b32 s16, s20, 1
    v_xor_b32 v7, s16, v7
    v_lshl_add_u32 v{VT}, v7, 4, v2
    v_xor_b32 v7, 1, v7
    v_lshl_add_u32 v{VT+1}, v7, 4, v2
    v_lshlrev_b32 v{VC}, 4, v6
    v_bfe_u32 v2, v1, 1, 2
    v_lshlrev_b32 v2, 2, v2
    v_lshl_add_u32 v2, v6, 4, v2
    v_bfe_u32 v3, v1, 3, 1
    v_lshl_add_u32 v2, v3, 1, v2
    v_and_b32 v3, 1, v1
    v_add_u32 v2, v2, v3
    s_lshl_b32 s24, s12, 3
    s_add_u32 s24, s24, s16
    """)
    for tl in range(2):
        a(f"""
        s_add_u32 s25, s24, {tl}
        s_mul_i32 s26, s25, 21846
        s_lshr_b32 s26, s26, 16            ; T/3
        s_mul_i32 s26, s26, 60
        s_add_u32 s26, s26, s25            ; 63*(T/3) + T%3
        s_lshl_b32 s26, s26, 10
        s_add_u32 s26, s26, {WP2}
        s_mul_i32 s27, s13, {15*1024}
        s_add_u32 s27, s27, s26
        v_lshl_add_u32 v{VS0+tl}, v2, 4, s27
        s_lshl_b32 s27, s13, 8
        s_add_u32 s27, s27, s26
        s_add_u32 s27, s27, {60*1024}
        v_lshl_add_u32 v{VU+tl}, v2, 4, s27
        """)
    a("v_lshlrev_b32 v5, 1, v5")
    ids(a)
    a(f"s_lshl_b32 s4, s3, 6\ns_lshl_b32 s5, s20, 2\ns_add_u32 s4, s4, s5\ns_add_u32 s4, s4, {FLG_W}\nv_mov_b32 v23, s4\ns_lshl_b32 s63, s3, 6\ns_add_u32 s63, s63, {FLG_D}")
    ONES = 24
    for w in range(4): a(f"v_mov_b32 v{ONES+w}, 0x3f803f80")
    for b in (8, 12): a(f"v_add_f32 v{b}, v{b}, v{b+1}\nv_add_f32 v{b+2}, v{b+2}, v{b+3}\nv_add_f32 v{b}, v{b}, v{b+2}")
    a(f"""
    v_cvt_pk_bf16_f32 v8, v8, v12
    v_and_b32 v12, 0xffff0000, v8
    v_add_f32 v12, 1.0, v12
    v_cvt_pk_bf16_f32 v12, v12, v12
    ds_write_b16 v5, v8 offset:{L_CV + 320}
    ds_write_b16 v5, v12 offset:{L_CV}
    s_waitcnt vmcnt(0) lgkmcnt(0)
    s_barrier
    """)
    if stamp: stamp(a, 2)
    UU, CV, SV, ML, LO, OUT, D = 32, 72, 92, 112, 120, 136, 176
    for s in range(5):
        a(f"ds_read_b128 {V4(CV+4*s)}, v{VC} offset:{L_CV + 64*s}")
        for tl in range(2):
            for hh in range(2): a(f"ds_read_b64_tr_b16 {P(UU+8*s+4*tl+2*hh)}, v{VT+tl} offset:{4096*s + 512*hh}")
        a(f"ds_read_b128 {V4(SV+4*s)}, v{VC} offset:{L_CV + 320 + 64*s}")
    for s in range(5):
        for w in range(4): a(f"v_and_b32 v{ML+2*w}, 0xffff, v{CV+4*s+w}\nv_and_b32 v{ML+2*w+1}, 0xffff0000, v{CV+4*s+w}")
        for tl in range(2):
            for w in range(4):
                for h in range(2): a(f"v_dot2_f32_bf16 v{LO+8*tl+2*w+h}, v{UU+8*s+4*tl+w}, v{ML+2*w+h}, 0")
        for tl in range(2): a(mf(D+8*tl+4, V4(SV+4*s), V4(UU+8*s+4*tl), "0" if s == 0 else None))
        for tl in range(2):
            o = OUT + 8*s + 4*tl
            for w in range(4): a(f"v_cvt_pk_bf16_f32 v{o+w}, v{LO+8*tl+2*w}, v{LO+8*tl+2*w+1}")
            a(f"global_store_dwordx4 v{VS0+tl}, {V4(o)}, s[22:23]" + SC)
            if s < 4: a(f"v_add_u32 v{VS0+tl}, 3072, v{VS0+tl}")
        for tl in range(2): a(mf(D+8*tl, V4(ONES), V4(OUT+8*s+4*tl), "0" if s == 0 else None))
    E = 192
    for k in (1, 3, 0, 2):
        u = D + 4*k; e = E + 2*k
        a(f"v_cvt_pk_bf16_f32 v{e}, v{u}, v{u}\nv_and_b32 v{u+1}, 0xffff0000, v{e}\nv_sub_f32 v{u}, v{u}, v{u+1}\nv_cvt_pk_bf16_f32 v{e+1}, v{u}, v{u}")
    a("s_mov_b64 exec, 0xffff")
    for tl in range(2): a(f"global_store_dwordx4 v{VU+tl}, {V4(E+4*tl)}, s[22:23]" + SC)
    a(f"s_mov_b64 exec, 1\nv_mov_b32 v24, 1\ns_waitcnt vmcnt(0)\nglobal_store_dword v23, v24, s[22:23] sc1\ns_mov_b64 exec, -1")
    if stamp: stamp(a, 3)
    wfl = f"global_load_dword v{VWF+1}, v{VWF}, s[22:23] sc1"
    chk = [f"v_cmp_ne_u32 vcc, 1, v{VWF+1}"]
    a("s_sleep 8\n" + wfl + "\n" + chk[0] + "\ns_cbranch_vccnz f_spinw2\nf_okw2:")
    spin(a, late, "f_spinw2", [wfl], chk, "f_okw2")

def gemm(a, stamp, late):
    O = OPT
    VX, VW, VO, VP, VB, VSL, VSS, VG, VRW, VRR, VF = 2, 3, 4, 5, 8, 12, 14, 15, 16, 17, 18
    a(f"""
    s_mul_i32 s4, s62, {WPS}
    s_add_u32 s4, s4, {WP2 + 4096}
    v_lshl_add_u32 v{VW}, v1, 4, s4
    """)
    def wld(q):
        r = [f"global_load_dwordx4 {A4(4*q)}, v{VW}, s[22:23] offset:{1024*(q&7)-4096}" + SC]
        if q & 7 == 7: r.append(f"v_add_u32 v{VW}, 8192, v{VW}")
        return r
    wq = [0]
    def wnext(n):
        r = []
        for _ in range(n):
            if wq[0] < 63: r += wld(wq[0]); wq[0] += 1
        return r
    for l in wnext(O['N0']): a(l)
    a(f"""
    s_lshl_b32 s4, s20, 2
    s_add_u32 s4, s4, s63
    v_mov_b32 v{VF}, s4
    v_mov_b32 v{VF+1}, 1
    s_mov_b64 exec, 1
    s_waitcnt vmcnt({O['N0']})
    global_store_dword v{VF}, v{VF+1}, s[22:23] sc1
    s_mov_b64 exec, -1
    s_barrier
    """)
    if stamp: stamp(a, 4)
    c0 = -2*math.sqrt(2/math.pi)*math.log2(math.e)
    ad = Asm()
    ad(f"""
    v_and_b32 v6, 15, v1
    v_lshrrev_b32 v7, 4, v1
    v_min_u32 v20, 39, v1
    v_lshrrev_b32 v21, 2, v20
    v_and_b32 v20, 3, v20
    v_lshl_add_u32 v20, v21, 4, v20
    s_lshl_b32 s4, s20, 8
    s_add_u32 s4, s4, {FLG_B}
    v_lshl_add_u32 v{VP}, v20, 6, s4
    s_mul_i32 s4, s61, 163840
    s_lshl_b32 s30, s20, 11
    s_add_u32 s5, s4, s30
    s_add_u32 s5, s5, {XT1}
    v_lshl_add_u32 v{VX}, v1, 4, s5
    s_mov_b32 m0, s30
    v_bfe_u32 v20, v1, 2, 2            ; r
    v_lshl_add_u32 v21, v7, 3, v20
    v_lshlrev_b32 v21, 7, v21
    v_bfe_u32 v22, v1, 1, 1
    v_lshl_add_u32 v21, v22, 6, v21
    v_and_b32 v22, 1, v1
    v_lshl_add_u32 v21, v22, 3, v21
    v_lshrrev_b32 v20, 1, v20
    v_and_b32 v22, 1, v7
    v_lshl_add_u32 v20, v22, 1, v20    ; swizzle
    """)
    for t in range(4): ad(f"v_xor_b32 v22, {t}, v20\nv_lshl_add_u32 v{VB+t}, v22, 4, v21")
    ad(f"""
    s_lshr_b32 s5, s20, 1
    s_mul_i32 s5, s5, 81920
    s_add_u32 s5, s5, s4
    s_mul_i32 s6, s60, {40*128}
    s_add_u32 s5, s5, s6
    s_and_b32 s6, s20, 1
    s_lshl_b32 s6, s6, 6
    s_add_u32 s5, s5, s6
    s_add_u32 s5, s5, {XT1 + 2048}
    v_lshrrev_b32 v20, 3, v1
    v_lshl_add_u32 v20, v20, 7, s5
    v_and_b32 v21, 1, v1
    v_lshl_add_u32 v20, v21, 3, v20
    v_bfe_u32 v21, v1, 1, 2
    v_bfe_u32 v22, v1, 4, 1
    v_xor_b32 v21, v21, v22
    s_and_b32 s6, s60, 1
    s_lshl_b32 s6, s6, 1
    v_xor_b32 v21, s6, v21
    v_lshl_add_u32 v{VSL}, v21, 4, v20
    v_xor_b32 v21, 2, v21
    v_lshl_add_u32 v{VSL+1}, v21, 4, v20
    s_lshl_b32 s5, s61, 14
    s_add_u32 s5, s5, {PST}
    s_lshl_b32 s6, s60, 10
    s_add_u32 s6, s6, s5
    s_lshr_b32 s7, s20, 1
    s_lshl_b32 s7, s7, 9
    s_add_u32 s6, s6, s7
    s_and_b32 s7, s20, 1
    s_lshl_b32 s7, s7, 6
    s_add_u32 s6, s6, s7
    v_bfe_u32 v20, v1, 1, 2
    v_and_b32 v21, 1, v1
    v_lshlrev_b32 v20, 4, v20
    v_lshl_add_u32 v20, v21, 2, v20
    v_add_u32 v20, v20, v7
    v_lshl_add_u32 v{VSS}, v20, 3, s6
    s_lshl_b32 s6, s20, 8
    s_add_u32 s5, s5, s6
    v_lshlrev_b32 v20, 12, v7
    v_lshl_add_u32 v20, v6, 4, v20
    v_add_u32 v{VG}, s5, v20
    v_lshrrev_b32 v20, 5, v1
    v_lshl_add_u32 v20, v6, 1, v20
    s_lshl_b32 s6, s20, 10
    v_lshl_add_u32 v{VRW}, v20, 5, s6
    v_lshlrev_b32 v{VRR}, 5, v6
    s_mul_i32 s5, s61, {2*196608}
    s_mul_i32 s6, s62, 3072
    s_add_u32 s5, s5, s6
    s_add_u32 s5, s5, {HH}
    v_lshl_add_u32 v{VO}, v1, 4, s5
    s_lshl_b32 s5, s61, 4
    s_add_u32 s5, s5, s60
    s_lshl_b32 s5, s5, 6
    s_lshl_b32 s6, s20, 2
    s_add_u32 s5, s5, s6
    s_add_u32 s5, s5, {FLG_C}
    v_mov_b32 v{VF}, s5
    s_and_b32 s4, s2, 7
    s_lshr_b32 s5, s2, 3
    s_and_b32 s32, s5, 7
    s_lshl_b32 s4, s4, 2
    s_lshr_b32 s5, s5, 3
    s_add_u32 s33, s4, s5
    s_lshl_b32 s34, s32, 2
    s_add_u32 s34, s34, s20
    s_mul_i32 s34, s34, 61440
    s_add_u32 s34, s34, {WD + 4096}
    """)
    ad = [i.text for i in ad.ins]
    for l in interleave(wnext(O['N1'] - O['N0']), ad): a(l)
    PL = 24
    poll = [f"global_load_dwordx4 {V4(PL)}, v{VP}, s[22:23] sc1"]
    chk = [f"v_and_b32 v{PL}, v{PL}, v{PL+1}", f"v_and_b32 v{PL+2}, v{PL+2}, v{PL+3}", f"v_and_b32 v{PL}, v{PL}, v{PL+2}", f"v_cmp_ne_u32 vcc, 1, v{PL}"]
    a(poll[0])
    for l in wnext(O['N2']): a(l)
    for l in chk: a(l)
    a("s_cbranch_vccnz f_spinb\nf_okb:")
    spin(a, late, "f_spinb", poll, chk, "f_okb")
    if stamp: stamp(a, 5)
    def dma(G):
        if G >= 20: return []
        r = [f"global_load_lds_dwordx4 v{VX}, s[22:23]" + SC, f"global_load_lds_dwordx4 v{VX}, s[22:23] offset:1024" + SC + f" ; tag=x{G}"]
        if G < 19: r += [f"s_add_u32 m0, s30, {8192*(G+1)}", f"v_add_u32 v{VX}, 8192, v{VX}"]
        return r
    for G in range(O['xd']):
        for l in dma(G): a(l)
    ACC, BF, SL, SQ, GL, T, EX = 32, 128, 192, 204, 212, 228, 192
    def rdb(G): return [f"ds_read_b64_tr_b16 {P(BF+32*(G&1)+16*sl+4*t+2*hh)}, v{VB+t} offset:{8192*(G&7) + 4096*sl + 512*hh}" for sl in range(2) for t in range(4) for hh in range(2)]
    a("WAITVM x0\ns_barrier")
    for l in rdb(0): a(l)
    st = []
    for i in range(5):
        for k in range(2):
            st += [f"v_lshlrev_b32 v{T+2*k}, 16, v{SL+2*i+k}", f"v_and_b32 v{T+2*k+1}, 0xffff0000, v{SL+2*i+k}"]
        for e in range(4):
            if i == 0: st += [f"v_mov_b32 v{SQ+2*e}, v{T+e}", f"v_mul_f32 v{SQ+2*e+1}, v{T+e}, v{T+e}"]
            else: st += [f"v_add_f32 v{SQ+2*e}, v{SQ+2*e}, v{T+e}", f"v_fmac_f32 v{SQ+2*e+1}, v{T+e}, v{T+e}"]
    st += [f"v_permlane32_swap_b32 v{SQ+k}, v{SQ+4+k}" for k in range(4)] + [f"v_add_f32 v{SQ+k}, v{SQ+k}, v{SQ+4+k}" for k in range(4)]
    st += [f"v_permlane16_swap_b32 v{SQ+k}, v{SQ+2+k}" for k in range(2)] + [f"v_add_f32 v{SQ+k}, v{SQ+k}, v{SQ+2+k}" for k in range(2)]
    st += [f"v_add_f32_dpp v{SQ+k}, v{SQ+k}, v{SQ+k} row_ror:8 row_mask:0xf bank_mask:0xf" for k in range(2)]
    st += [f"global_store_dwordx2 v{VSS}, {P(SQ)}, s[22:23] sc1"]
    gat = [f"global_load_dwordx4 {V4(GL+4*i)}, v{VG}, s[22:23] offset:{1024*i} sc1" for i in range(4)]
    gchk = [f"v_min3_f32 v{T}, v{GL+1}, v{GL+3}, v{GL+5}", f"v_min3_f32 v{T+1}, v{GL+7}, v{GL+9}, v{GL+11}", f"v_min3_f32 v{T}, v{T}, v{GL+13}, v{GL+15}",
            f"v_min_f32 v{T}, v{T}, v{T+1}", f"v_cmp_gt_f32 vcc, 0, v{T}"]
    R = SQ
    fin = [f"v_add_f32 v{GL+k}, v{GL+k}, v{GL+8+k}" for k in range(8)] + [f"v_add_f32 v{GL+k}, v{GL+k}, v{GL+4+k}" for k in range(4)]
    fin += [f"v_permlane32_swap_b32 v{GL+k}, v{GL+2+k}" for k in range(2)] + [f"v_add_f32 v{GL+k}, v{GL+k}, v{GL+2+k}" for k in range(2)]
    fin += [f"v_mov_b32 v{GL+2+k}, v{GL+k}" for k in range(2)] + [f"v_permlane16_swap_b32 v{GL+k}, v{GL+2+k}" for k in range(2)]
    fin += [f"v_add_f32 v{GL+k}, v{GL+k}, v{GL+2+k}" for k in range(2)]
    fin += [f"v_mul_f32 v{GL}, 0xbacccccd, v{GL}", f"v_mul_f32 v{GL+1}, 0x3acccccd, v{GL+1}",
            f"v_fma_f32 v{GL+1}, -v{GL}, v{GL}, v{GL+1}", f"v_cvt_pk_bf16_f32 v{GL+2}, v{GL}, v{GL}", f"v_max_f32 v{GL+1}, 0, v{GL+1}",
            f"v_and_b32 v{GL+2}, 0xffff0000, v{GL+2}", f"v_add_f32 v{R+6}, 0x3727c5ac, v{GL+1}", f"v_sub_f32 v{GL+3}, v{GL}, v{GL+2}",
            f"v_rsq_f32 v{GL+4}, v{R+6}", f"v_sqrt_f32 v{GL+5}, v{R+6}", f"v_cvt_pk_bf16_f32 v{R}, v{GL+2}, v{GL+3}",
            f"v_mul_f32 v{R+5}, {f2u(c0)}, v{GL+4}", f"v_cvt_pk_bf16_f32 v{GL+6}, v{GL+5}, v{GL+5}", f"v_mul_f32 v{GL+4}, v{GL+4}, v{GL+4}",
            f"v_and_b32 v{GL+6}, 0xffff0000, v{GL+6}", f"v_mul_f32 v{GL+4}, {f2u(0.044715)}, v{GL+4}", f"v_sub_f32 v{GL+7}, v{GL+5}, v{GL+6}",
            f"v_mul_f32 v{R+4}, v{GL+4}, v{R+5}", f"v_cvt_pk_bf16_f32 v{R+2}, v{GL+6}, v{GL+7}", f"v_mov_b32 v{R+1}, v{R}", f"v_mov_b32 v{R+3}, v{R+2}",
            f"v_mov_b32 v{R+7}, v{R+6}", f"ds_write_b128 v{VRW}, {V4(R)}", f"ds_write_b128 v{VRW}, {V4(R+4)} offset:16"]
    dq = [0]
    def dnext(n, lim=60):
        r = []
        for _ in range(n):
            q = dq[0]
            if q >= min(lim, 60): break
            if q == 0: r.append(f"v_lshl_add_u32 v{VW}, v1, 4, s34")
            r.append(f"global_load_dwordx4 {A4(4*q)}, v{VW}, s[22:23] offset:{1024*(q&7)-4096}")
            if q & 7 == 7: r.append(f"v_add_u32 v{VW}, 8192, v{VW}")
            dq[0] += 1
        return r
    valu = []
    wrate = -(-(63 - wq[0]) // 8)
    for G in range(20):
        h, Gl = divmod(G, 10); bf = BF + 32*(G & 1)
        m = [mf(ACC+48*h+12*t+4*j, A4(12*(2*Gl+sl)+4*j), V4(bf+16*sl+4*t), "0" if Gl == 0 and sl == 0 else None) for sl in range(2) for t in range(4) for j in range(3)]
        if G == O['gcheck']:
            for l in gchk: a(l)
            a("s_cbranch_vccnz f_sping\nf_okg:")
            spin(a, late, "f_sping", gat, gchk, "f_okg")
            valu += fin
        a("s_waitcnt lgkmcnt(0)")
        f = []
        if G < 19:
            if (G + 1) % 8 == 0: f += [f"v_add_u32 v{VB+i}, 65536, v{VB+i}" for i in range(4)]
            f += [f"WAITVM x{G+1}", "s_barrier"] + rdb(G+1)
        else:
            f += ["s_barrier"] + [f"ds_read_b128 {V4(EX+8*t+4*k)}, v{VRR} offset:{512*t+16*k}" for k in range(2) for t in range(8)]
        ld = []
        if G == 0: ld += [f"global_load_dwordx2 {P(SL+2*i)}, v{VSL+(i&1)}, s[22:23] offset:{1024*i-2048} sc1" for i in range(5)]
        ld += dma(G + O['xd']) + wnext(wrate)
        if G == O['gissue']: ld += gat
        if G > 10: ld += dnext(O['wdrate'], 6*Gl)
        if G == 2: valu += st
        room = max(0, 46 - len(f) - len(ld))
        v = valu[:room]; valu = valu[room:]
        if G == 18: assert not valu
        f += interleave(v, ld) if len(v) > len(ld) else ld + v
        for l in interleave(m, f): a(l)
    assert wq[0] == 63
    if stamp: stamp(a, 1)
    m = [mf(ACC+12*t+4*j, A4(240+4*j), V4(EX+8*t)) for t in range(8) for j in range(3)]
    for l in interleave(m, dnext(4)): a(l)
    RR, TM = BF, BF + 24
    for hb in range(2):
        for j in range(3):
            r = RR + 4*(3*hb + j)
            ts = range(4*hb, 4*hb+4)
            g = lambda t: ACC + 12*t + 4*j
            tm = lambda t: TM + 2*(t & 3)
            e = []
            for t in ts: e.append(f"v_pk_mul_f32 {P(tm(t))}, {P(g(t))}, {P(g(t))}")
            for t in ts: e.append(f"v_pk_fma_f32 {P(tm(t))}, {P(tm(t))}, {P(EX+8*t+4)}, {P(EX+8*t+4)} op_sel:[0,0,1] op_sel_hi:[1,0,1]")
            for t in ts: e.append(f"v_pk_mul_f32 {P(tm(t))}, {P(tm(t))}, {P(g(t))}")
            for t in ts: e += [f"v_exp_f32 v{tm(t)}, v{tm(t)}", f"v_exp_f32 v{tm(t)+1}, v{tm(t)+1}", f"v_pk_mul_f32 {P(g(t))}, {P(g(t))}, {P(g(t)+2)}"]
            for t in ts: e.append(f"v_pk_fma_f32 {P(tm(t))}, {P(tm(t))}, {P(EX+8*t+6)}, {P(EX+8*t+6)}")
            for t in ts: e += [f"v_rcp_f32 v{tm(t)}, v{tm(t)}", f"v_rcp_f32 v{tm(t)+1}, v{tm(t)+1}"]
            for t in ts: e.append(f"v_pk_mul_f32 {P(g(t))}, {P(g(t))}, {P(tm(t))}")
            for t in (ts[0], ts[2], ts[1], ts[3]): e.append(f"v_cvt_pk_bf16_f32 v{r+(t&3)}, v{g(t)}, v{g(t)+1}")
            for l in interleave(e, dnext(3)): a(l)
            a(f"v_permlane32_swap_b32 v{r}, v{r+2}\nv_permlane32_swap_b32 v{r+1}, v{r+3}\nv_permlane16_swap_b32 v{r}, v{r+1}\nv_permlane16_swap_b32 v{r+2}, v{r+3}")
            a(f"global_store_dwordx4 v{VO}, {V4(r)}, s[22:23] offset:{1024*j}" + SC + " ; tag=hh")
        if hb == 0: a(f"v_add_u32 v{VO}, 196608, v{VO}")
    if stamp: stamp(a, 2)
    ldp(a, 24, 'out')
    VH, VR, VGB, VXW, VXR, VST, VOUT, SRD, VTR = 8, 12, 13, 20, 23, 14, 28, 252, 15
    L_ST = 4*3*5*1024; L_RES = L_ST + 4*16*176
    for l in dnext(O['M0']): a(l)
    a(f"s_mov_b64 exec, 1\nWAITVM hh\nglobal_store_dword v{VF}, v{VF+1}, s[22:23] sc1\ns_mov_b64 exec, -1\ns_barrier")
    ad = Asm()
    ad(f"""
    s_lshr_b32 s4, s33, 1
    s_lshl_b32 s4, s4, 4
    s_lshl_b32 s5, s20, 2
    s_add_u32 s4, s4, s5
    s_lshl_b32 s4, s4, 6
    s_add_u32 s4, s4, {FLG_C}
    v_and_b32 v31, 3, v1
    v_lshl_add_u32 v{VP}, v31, 6, s4
    v_lshlrev_b32 v2, 10, v7
    v_lshl_add_u32 v2, v6, 4, v2
    s_mul_i32 s9, s33, 196608
    s_mul_i32 s10, s20, 49152
    s_add_u32 s9, s9, s10
    s_add_u32 s9, s9, {HH}
    """)
    for t in range(4): ad(f"s_xor_b32 s10, s20, {t}\ns_lshl_b32 s10, s10, 8\ns_add_u32 s10, s10, s9\nv_add_u32 v{VH+t}, s10, v2")
    ad(f"""
    s_mul_i32 s10, s33, 81920
    s_mul_i32 s11, s32, 10240
    s_add_u32 s10, s10, s11
    s_min_u32 s12, s20, 2
    s_cmp_eq_u32 s20, 3
    s_cselect_b32 s13, 1024, 0
    s_mul_i32 s12, s12, 3072
    s_add_u32 s12, s12, s13
    s_add_u32 s10, s10, s12
    s_add_u32 s10, s10, {XT1}
    v_lshl_add_u32 v{VR}, v1, 4, s10
    s_add_u32 m0, s12, {L_RES}
    v_mul_u32_u24 v2, 15360, v31
    v_lshl_add_u32 v2, v7, 4, v2
    s_mul_i32 s10, s32, 320
    s_add_u32 s10, s10, {MODP + 5*2560}
    v_add_u32 v{VGB}, s10, v2
    s_mul_i32 s10, s20, 15360
    v_lshl_add_u32 v{VXR}, v1, 4, s10
    v_bfe_u32 v2, v1, 3, 1
    v_lshrrev_b32 v31, 5, v1
    v_lshl_add_u32 v2, v31, 1, v2
    v_xor_b32 v2, s20, v2
    v_bfe_u32 v31, v1, 1, 1
    v_lshl_add_u32 v2, v31, 2, v2
    v_lshlrev_b32 v2, 4, v2
    v_and_b32 v31, 1, v1
    v_lshl_add_u32 v2, v31, 3, v2
    v_lshrrev_b32 v31, 2, v1
    v_lshl_add_u32 v2, v31, 7, v2
    v_add_u32 v{VTR}, {L_RES}, v2
    """)
    for t in (1, 2, 3): ad(f"s_xor_b32 s10, s20, {t}\ns_mul_i32 s10, s10, 15360\ns_add_u32 s10, s10, {5120*(t-1)}\nv_lshl_add_u32 v{VXW+t-1}, v1, 4, s10")
    ad(f"""
    s_mul_i32 s10, s20, {16*176}
    s_add_u32 s10, s10, {L_ST}
    v_mul_u32_u24 v2, 176, v6
    v_lshl_add_u32 v2, v7, 3, v2
    v_add_u32 v{VST}, s10, v2
    s_lshl_b32 s11, s33, 2
    s_add_u32 s11, s11, s20
    s_mul_i32 s11, s11, {16*1280}
    s_mul_i32 s12, s32, 160
    s_add_u32 s11, s11, s12
    s_mov_b32 s13, 6554
    """)
    for i in range(3):
        ad(f"v_add_u32 v2, {64*i}, v1\nv_min_u32 v2, 159, v2\nv_mul_lo_u32 v31, s13, v2\nv_lshrrev_b32 v31, 16, v31")
        ad(f"v_add_u32 v{SRD+i}, v2, v31\nv_lshl_add_u32 v{SRD+i}, v{SRD+i}, 4, s10")
        ad(f"v_mul_u32_u24 v31, {1280-160}, v31\nv_lshl_add_u32 v31, v2, 4, v31\nv_add_u32 v{VOUT+i}, s11, v31")
    ad = [i.text for i in ad.ins]
    rest = dnext(60)
    for l in (interleave(rest, ad) if rest else ad): a(l)
    GB = 232
    for k in range(3): a(f"global_load_lds_dwordx4 v{VR}, s[22:23] offset:{1024*k} sc1")
    for jj in range(5): a(f"global_load_dwordx4 {V4(GB+4*jj)}, v{VGB}, s[22:23] offset:{64*jj}")
    a(poll[0])
    for l in chk: a(l)
    a("s_cbranch_vccnz f_spinc\nf_okc:")
    spin(a, late, "f_spinc", poll, chk, "f_okc")
    if stamp: stamp(a, 3)
    ACC, HB, NHB, RD, RES, XU = 32, 112, 14, 168, 16, 52
    seq = []
    for k, (t, sl) in enumerate((t, sl) for t in (3, 2, 1, 0) for sl in range(12)):
        r = HB + 4*(k % NHB)
        ins = [f"global_load_dwordx4 {V4(r)}, v{VH+t}, s[22:23]" + SC]
        if sl < 11: ins.append(f"v_add_u32 v{VH+t}, 4096, v{VH+t}")
        seq.append((ins, [mf(ACC+20*t+4*jj, A4(20*sl+4*jj), V4(r), "0" if sl == 0 else None) for jj in range(5)]))
    W = O['win']; assert W < NHB
    for ins, _ in seq[:W]:
        for l in ins: a(l)
    def wr(t): return [f"ds_write_b128 v{VXW+t-1}, {V4(ACC+20*t+4*jj)} offset:{1024*jj}" for jj in range(5)]
    gb = []
    for pm in ("[1,0,3,2]", "[2,3,0,1]"):
        gb += [f"v_add_f32_dpp v{GB+k}, v{GB+k}, v{GB+k} quad_perm:{pm} row_mask:0xf bank_mask:0xf" for k in range(20)]
    for k in range(10): gb += [f"v_cvt_pk_bf16_f32 v31, v{GB+2*k}, v{GB+2*k+1}", f"v_lshlrev_b32 v{GB+2*k}, 16, v31", f"v_and_b32 v{GB+2*k+1}, 0xffff0000, v31"]
    for l in gb: a(l)
    RT = 92
    tail = ["s_waitcnt lgkmcnt(0)", "s_barrier"] + [f"ds_read_b128 {V4(RD+12*jj+4*p)}, v{VXR} offset:{5120*p + 1024*jj}" for jj in range(5) for p in range(3)]
    tail += [f"ds_read_b64_tr_b16 {P(RT+2*jj)}, v{VTR} offset:{2048*jj}" for jj in range(5)]
    for jj in range(5):
        r = RD + 12*jj
        tail += [f"v_add_f32 v{r+k}, v{r+k}, v{r+4+k}" for k in range(4)] + [f"v_add_f32 v{r+k}, v{r+k}, v{r+8+k}" for k in range(4)]
    for k in range(10): tail += [f"v_lshlrev_b32 v{XU+2*k}, 16, v{RT+k}", f"v_and_b32 v{XU+2*k+1}, 0xffff0000, v{RT+k}"]
    fill = {14: wr(3), 26: wr(2), 37: wr(1), 39: tail}
    pending = []
    for i, (ins, mm) in enumerate(seq):
        pending += fill.get(i, [])
        f = list(seq[i + W][0]) if i + W < len(seq) else []
        k = min(len(pending), 3 if i < 39 else 10); f += pending[:k]; pending = pending[k:]
        for l in interleave(mm, f): a(l)
    for l in pending: a(l)
    for jj in range(5):
        r = RD + 12*jj; c = ACC + 4*jj
        for h in range(2): a(f"v_pk_add_f32 {P(c+2*h)}, {P(c+2*h)}, {P(r+2*h)}")
        for h in range(2): a(f"v_pk_fma_f32 {P(c+2*h)}, {P(c+2*h)}, {P(GB+4*jj+2*h)}, {P(XU+4*jj+2*h)}")
        for h in range(2): a(f"v_cvt_pk_bf16_f32 v{c+h}, v{c+2*h}, v{c+2*h+1}")
        a(f"ds_write_b64 v{VST}, {P(c)} offset:{32*jj}")
    for i in range(3): a(f"ds_read_b128 {V4(HB+4*i)}, v{SRD+i}")
    for i in range(3):
        if i == 2: a(f"s_waitcnt lgkmcnt(0)\ns_mov_b64 exec, 0xffffffff")
        a(f"global_store_dwordx4 v{VOUT+i}, {V4(HB+4*i)}, s[24:25]")
def kf(stamp=None):
    a = Asm(); late = []
    a(f"""
    v_lshrrev_b32 v1, 6, v0
    s_cmp_ge_u32 s2, 256
    s_cbranch_scc1 f_end
    v_readfirstlane_b32 s20, v1
    """)
    ldp(a, 22, 'ws')
    st1 = stamp if OPT.get('stamps', 1) == 1 else None
    st2 = stamp if OPT.get('stamps', 1) == 2 else None
    both = (lambda a, k: stamp(a, k) if (k >= 4 or st2) else None) if stamp else None
    if stamp: stamp(a, 0)
    a("v_and_b32 v1, 63, v0\ns_cmp_lt_u32 s2, 160\ns_cbranch_scc1 f_conv")
    role_prep(a, st1, late)
    a("s_branch f_join\nf_conv:")
    role_conv(a, st1, late)
    a("f_join:")
    gemm(a, both, late)
    if stamp: stamp(a, 'end')
    a("f_end:\ns_endpgm")
    for l in late: a(l)
    return a
```

```python
from asmlib import *
from layout import *
import conv_model as cm
LOG2E = 0x3fb8aa3b; INV2PI = 0x3e22f983
N_KG, N_MOD, N_ST, N_WD = 160, 240, 128, 96
N_PF = 8
K1_GRID = N_PF + N_KG + N_MOD + N_ST + N_WD
K1_LDS = 4 * 32 * 272
def ldp(a, reg, name): a(f"s_load_dwordx2 s[{reg}:{reg+1}], s[0:1], {KARG[name]}")
def P(r): return f"v[{r}:{r+1}]"
def cmul(d, z, w, t):
    return [f"v_pk_mul_f32 {P(t)}, {P(z)}, {P(w)} op_sel:[0,0] op_sel_hi:[0,1]",
            f"v_pk_fma_f32 {P(d)}, {P(z)}, {P(w)}, {P(t)} op_sel:[1,1,0] op_sel_hi:[1,0,1] neg_lo:[1,0,0]"]
AROWS = list(range(9)) + [256, 258, 260, 262, 264, 516, 520, 772, 776, 1032, 1288, 1544, 1800]
def arow_map():
    h0 = list(range(9)) + [516, 520, 1032, 1544, 0, 0, 0]
    h1 = [256, 256, 258, 260, 260, 260, 262, 264, 264, 772, 776, 1288, 1800, 0, 0, 0]
    m = []
    for rho in range(32):
        v = 4 * (rho >> 3) + (rho & 3); half = (rho >> 2) & 1
        m.append(AROWS.index((h1 if half else h0)[v]))
    return m
def kgen(a, pre):
    for i, n in enumerate(('are', 'aim', 'bre', 'bim', 'cre', 'cim', 'ldt', 'dsk')): ldp(a, 4 + 2 * i, n)
    ldp(a, 22, 'ws')
    a(f"""
    s_lshl_b32 s24, s21, 2
    s_add_u32 s24, s24, s20            ; channel
    s_mul_i32 s25, s24, 384
    v_and_b32 v1, 63, v0               ; lane
    v_lshl_add_u32 v2, v1, 2, s25
    v_lshl_add_u32 v3, v1, 1, s25
    s_lshr_b32 s26, s24, 1
    s_lshl_b32 s26, s26, 2
    s_waitcnt lgkmcnt(0)
    """)
    RAW = 4
    for i in range(6): a(f"global_load_dword v{RAW+i}, v2, s[{4+2*i}:{5+2*i}]")
    a("s_load_dword s27, s[16:17], s26\ns_load_dword s28, s[18:19], s26")
    for i in range(6): a(f"global_load_ushort v{RAW+6+i}, v3, s[{4+2*i}:{5+2*i}] offset:256")
    a(f"s_mul_i32 s29, s20, {32*272}\ns_mov_b32 m0, s29")
    VB, VA, VSP = 16, 17, 18
    a(f"v_and_b32 v{VB}, 31, v1\nv_mul_u32_u24 v{VB}, 272, v{VB}\nv_lshrrev_b32 v19, 5, v1\nv_lshl_add_u32 v19, v19, 4, s29\nv_add_u32 v{VB}, v{VB}, v19")
    m = arow_map()
    a(f"v_mov_b32 v{VA}, 0")
    for l in range(64):
        if m[l & 31]: a(f"v_writelane_b32 v{VA}, {m[l & 31]}, {l}")
    a(f"v_mul_u32_u24 v{VA}, 272, v{VA}\nv_add_u32 v{VA}, v{VA}, v19")
    pre(a)
    DT = 20
    a(f"""
    s_waitcnt lgkmcnt(0)
    s_and_b32 s30, s24, 1
    s_lshl_b32 s30, s30, 4
    s_lshr_b32 s27, s27, s30
    s_lshl_b32 s27, s27, 16
    s_lshr_b32 s28, s28, s30
    s_lshl_b32 s28, s28, 16
    v_mov_b32 v{DT}, {LOG2E}
    v_mul_f32 v{DT}, s27, v{DT}
    v_exp_f32 v{DT}, v{DT}
    v_cvt_pk_bf16_f32 v{DT}, v{DT}, v{DT}
    v_and_b32 v{DT}, 0xffff0000, v{DT}
    v_mov_b32 v21, 0x3f80
    s_mov_b32 s34, {LOG2E}
    s_mov_b32 s35, {INV2PI}
    """)
    ONE = 21
    KR = 22
    BB, CC = 24, 26
    E1, G, H = 28, 30, 32
    F = 34
    Z = 50
    ZT = 60; T0, T1 = 62, 64; X = 66
    PB = 72
    FB, FA, ACC = 88, 120, 152
    PK = FA
    pend = []
    for rd in range(3):
        s = []
        for i, d in enumerate((KR, KR + 1, BB, BB + 1, CC, CC + 1)):
            if rd == 0: s.append(f"v_lshlrev_b32 v{d}, 16, v{RAW+i}")
            elif rd == 1: s.append(f"v_and_b32 v{d}, 0xffff0000, v{RAW+i}")
            else: s.append(f"v_lshlrev_b32 v{d}, 16, v{RAW+6+i}")
        s.append(f"v_pk_mul_f32 {P(KR)}, {P(KR)}, {P(DT)} op_sel_hi:[1,0]")
        s.append(f"v_pk_mul_f32 {P(BB)}, {P(BB)}, {P(DT)} op_sel_hi:[1,0]")
        s.append(f"v_pk_mul_f32 {P(KR)}, {P(KR)}, s[34:35]")
        s += cmul(Z, CC, BB, T0)
        def direct(d, mult, conj, x):
            r = []
            if mult != 1:
                import struct
                lit = hex(struct.unpack('<I', struct.pack('<f', float(mult)))[0])
                r += [f"v_mul_f32 v{x}, {lit}, v{KR}", f"v_mul_f32 v{x+1}, {lit}, v{KR+1}", f"v_exp_f32 v{x}, v{x}", f"v_fract_f32 v{x+1}, v{x+1}"]
            else: r += [f"v_exp_f32 v{x}, v{KR}", f"v_fract_f32 v{x+1}, v{KR+1}"]
            r += [f"v_cos_f32 v{d}, v{x+1}", f"v_sin_f32 v{d+1}, v{x+1}"]
            fin = f"v_pk_mul_f32 {P(d)}, {P(d)}, {P(x)} op_sel_hi:[1,0]" + (" neg_hi:[1,0]" if conj else "")
            return r, fin
        d0, f0 = direct(F + 2, 8, True, X); d1, f1 = direct(E1, 1, False, X + 2); d2, f2 = direct(G, 64, True, X + 4)
        d3, f3 = direct(H, 256, False, T1)
        s += d0 + d1 + [f0] + d2 + [f1] + d3 + [f2, "s_nop 0", f3]
        pb = [0]
        def bout(j, z):
            r = PB + pb[0] % 4; pb[0] += 1
            return [f"v_cvt_pk_bf16_f32 v{r}, v{z}, v{z+1}", f"ds_write_addtid_b32 v{r} offset:{272*j}"]
        Bi = [[f"ds_write_addtid_b32 v{ONE} offset:0"], bout(1, F + 2)]
        for j in range(2, 8): Bi.append(cmul(F + 2 * j, F + 2 * (j - 1), F + 2, T0) + bout(j, F + 2 * j))
        Bi.append(bout(8, G))
        for j in range(9, 32):
            if j == 16: Bi.append(cmul(F, G, G, T0) + bout(j, F))
            else: Bi.append(cmul(F + 2 * (j & 7), F + 2 * (j & 7), G, T0) + bout(j, F + 2 * (j & 7)))
        order = []
        def aout(l, z):
            order.append(l); return [f"v_cvt_pk_bf16_f32 v{PK + len(order) - 1}, v{z}, v{z+1}"]
        Ai = [aout(0, Z)]
        for k in range(1, 9):
            src = Z + (k - 1) if k % 2 else ZT; dst = ZT if k % 2 else Z + k
            Ai.append(cmul(dst, src, E1, T1) + aout(k, dst))
        for z, l in ((Z + 8, 264), (Z + 4, 260), (Z + 8, 520), (Z, 256), (Z + 8, 776), (Z + 4, 516), (Z + 8, 1032), (Z + 2, 258),
                     (Z + 8, 1288), (Z + 4, 772), (Z + 8, 1544), (Z + 6, 262), (Z + 8, 1800)):
            Ai.append(cmul(z, z, H, T1) + aout(l, z))
        body = []
        for k in range(len(Bi)):
            b = Bi[k]; x = Ai[k] if k < len(Ai) else []
            if pend and k in (0, 1, 3, 5, 7, 9, 11, 13): body.append(pend.pop(0))
            for q in range(4):
                if q < len(b): body.append(b[q])
                if q < len(x): body.append(x[q])
        for l in s + body: a(l)
        for ks in range(8): a(f"ds_read_b128 v[{FB+4*ks}:{FB+4*ks+3}], v{VB} offset:{32*ks}")
        for r in range(22): a(f"ds_write_addtid_b32 v{PK+r} offset:{272*AROWS.index(order[r])}")
        for ks in range(8): a(f"ds_read_b128 v[{FA+4*ks}:{FA+4*ks+3}], v{VA} offset:{32*ks}")
        pend = [f"v_mfma_f32_32x32x16_bf16 v[{ACC}:{ACC+15}], v[{FA+4*ks}:{FA+4*ks+3}], v[{FB+4*ks}:{FB+4*ks+3}], " + ("0" if rd == 0 and ks == 0 else f"v[{ACC}:{ACC+15}]") for ks in range(8)]
    for l in pend: a(l)
    return ACC
SPECIAL = list(range(0, 4)) + list(range(68, 73)) + list(range(137, 145)) + list(range(161, 169)) + list(range(185, 192))
def role_kgen(a):
    a("""
    s_and_b32 s21, s3, 7
    s_mul_i32 s21, s21, 20
    s_lshr_b32 s3, s3, 3
    s_add_u32 s21, s21, s3
    """)
    TB, TS, T2A, T3A, DSK = 76, 77, 78, 79, 80
    def pre(a):
        a(f"s_mul_i32 s31, s24, {KTS}\ns_add_u32 s31, s31, {KT}")
        a(f"v_lshlrev_b32 v19, 4, v1\nv_sub_u32 v{TB}, s31, v19")
        a(f"v_lshlrev_b32 v19, 2, v1\nv_sub_u32 v{T2A}, s31, v19\nv_lshlrev_b32 v19, 1, v1\nv_sub_u32 v{T3A}, s31, v19")
        a(f"v_and_b32 v{TS}, 31, v1\nv_mov_b32 v19, v{TS}")
        prev = 0
        for k in range(1, 32):
            step = SPECIAL[k] - k
            if step != prev:
                a(f"v_cmp_le_u32 vcc, {k}, v19\nv_mov_b32 v{DSK}, {step-prev}\nv_cndmask_b32 v{DSK}, 0, v{DSK}, vcc\nv_add_u32 v{TS}, v{TS}, v{DSK}"); prev = step
        a(f"v_lshl_add_u32 v{TS}, v{TS}, 4, s31")
        for r in range(4): a(f"v_mov_b32 v{84+r}, 0")
        a(f"v_mov_b32 v{DSK}, 0")
    V = kgen(a, pre)
    a(f"v_writelane_b32 v{DSK}, s28, 0")
    a(f"v_add_f32 v{V}, v{V}, v{DSK}")
    E, O = 36, 40
    for k in range(4):
        a(f"v_cvt_pk_bf16_f32 v{E+k}, v{V+8-2*k}, v{V+7-2*k}")
        a(f"v_cvt_pk_bf16_f32 v{O+k}, v{V+7-2*k}, v{V+6-2*k}")
    a(f"v_cvt_pk_bf16_f32 v44, v{V+10}, v{V+9}\nv_cvt_pk_bf16_f32 v45, v{V+11}, v{V+12}")
    a(f"global_store_dwordx4 v{TB}, v[{E}:{E+3}], s[22:23] offset:{cm.CH_E*16}")
    a(f"v_readlane_b32 s36, v{O+3}, 0\nv_readlane_b32 s37, v{E}, 63")
    a(f"global_store_dwordx4 v{TB}, v[{O}:{O+3}], s[22:23] offset:{cm.CH_O*16}")
    a(f"global_store_dword v{T2A}, v44, s[22:23] offset:{cm.CH_T2*16 + 2*(320-130)}")
    a(f"global_store_short v{T3A}, v45, s[22:23] offset:{cm.CH_T3*16 + 2*(256-129)}")
    a(f"global_store_short_d16_hi v{T3A}, v45, s[22:23] offset:{cm.CH_T3*16 + 2*(256-193)}")
    a(f"s_lshr_b32 s36, s36, 16\ns_lshl_b32 s38, s37, 16")
    a(f"v_writelane_b32 v84, s36, {SPECIAL.index(cm.CH_E+1)}")
    a(f"v_writelane_b32 v87, s37, {SPECIAL.index(cm.CH_E-64)}")
    a(f"v_writelane_b32 v86, s38, {SPECIAL.index(cm.CH_O-64)}")
    a(f"v_writelane_b32 v87, s37, {SPECIAL.index(cm.CH_O-64)}")
    a(f"s_mov_b64 exec, 0xffffffff\nglobal_store_dwordx4 v{TS}, v[84:87], s[22:23]")
def role_mod(a):
    ldp(a, 4, 'c'); ldp(a, 6, 'wmod'); ldp(a, 8, 'ws')
    a(f"""
    s_mul_i32 s10, s3, 1093
    s_lshr_b32 s10, s10, 16            ; ks
    s_mul_i32 s11, s10, 60
    s_sub_u32 s11, s3, s11             ; slab
    s_mul_i32 s12, s10, 160
    v_lshrrev_b32 v1, 3, v0
    v_add_u32 v1, s12, v1              ; row
    v_lshlrev_b32 v2, 1, v1
    v_mul_u32_u24 v3, 7680, v1
    v_and_b32 v4, 7, v0
    s_lshl_b32 s13, s11, 7
    v_lshl_add_u32 v5, v4, 4, s13
    v_add_u32 v3, v3, v5
    s_waitcnt lgkmcnt(0)
    """)
    for j in range(5): a(f"global_load_ushort v{8+j}, v2, s[4:5] offset:{64*j}")
    for j in range(5):
        a(f"global_load_dwordx4 v[{20+4*j}:{23+4*j}], v3, s[6:7]")
        if j < 4: a(f"v_add_u32 v3, {32*7680}, v3")
    for j in range(5): a(f"v_lshlrev_b32 v{8+j}, 16, v{8+j}\nv_mul_f32 v{14+j}, 0xbfb8aa3b, v{8+j}\nv_exp_f32 v{14+j}, v{14+j}")
    for j in range(5): a(f"v_add_f32 v{14+j}, 1.0, v{14+j}\nv_rcp_f32 v{14+j}, v{14+j}")
    for j in range(5): a(f"v_mul_f32 v{8+j}, v{8+j}, v{14+j}")
    for j in range(5): a(f"v_cvt_pk_bf16_f32 v{8+j}, v{8+j}, 0\nv_lshlrev_b32 v{14+j}, 16, v{8+j}")
    a("""
    v_and_b32 v6, 63, v0
    v_lshrrev_b32 v6, 4, v6
    v_lshlrev_b32 v6, 3, v6
    v_lshl_add_u32 v6, v4, 5, v6
    v_lshrrev_b32 v7, 6, v0
    v_lshl_add_u32 v6, v7, 8, v6
    """)
    A = 40
    for j in range(5):
        for e in range(8): a(f"v_dot2_f32_bf16 v{A+e}, v{20+4*j+e//2}, v{(14 if e&1 else 8)+j}, " + ("0" if j == 0 else f"v{A+e}"))
    for i in range(4): a(f"v_permlane32_swap_b32 v{A+i}, v{A+4+i}")
    for i in range(4): a(f"v_add_f32 v{A+i}, v{A+i}, v{A+4+i}")
    for i in range(2): a(f"v_permlane16_swap_b32 v{A+i}, v{A+2+i}")
    for i in range(2): a(f"v_add_f32 v{A+i}, v{A+i}, v{A+2+i}")
    for i in range(2): a(f"v_add_f32_dpp v{A+i}, v{A+i}, v{A+i} row_ror:8 row_mask:0xf bank_mask:0xf")
    a(f"""
    ds_write_b64 v6, v[{A}:{A+1}]
    v_lshlrev_b32 v1, 2, v0
    s_mul_i32 s12, s10, {3840*4}
    s_lshl_b32 s13, s11, 8
    s_add_u32 s12, s12, s13
    s_add_u32 s12, s12, {MODP}
    v_add_u32 v2, s12, v1
    s_waitcnt lgkmcnt(0)
    s_barrier
    s_cmp_lg_u32 s20, 0
    s_cbranch_scc1 k1_end
    ds_read2st64_b32 v[8:9], v1 offset0:0 offset1:1
    ds_read2st64_b32 v[10:11], v1 offset0:2 offset1:3
    v_add_f32 v8, v8, v9
    v_add_f32 v10, v10, v11
    v_add_f32 v8, v8, v10
    global_store_dword v2, v8, s[8:9]
    """)
def role_stat(a):
    ldp(a, 4, 'x'); ldp(a, 8, 'ws')
    a(f"""
    s_lshr_b32 s10, s3, 2
    s_and_b32 s11, s3, 3
    s_lshl_b32 s12, s10, 6
    s_lshl_b32 s13, s20, 4
    s_add_u32 s12, s12, s13
    s_lshl_b32 s13, s11, 1
    s_add_u32 s12, s12, s13
    v_bfe_u32 v1, v0, 1, 1
    v_and_b32 v2, 1, v0
    v_lshl_add_u32 v1, v1, 3, v2
    v_add_u32 v1, s12, v1              ; row
    v_bfe_u32 v2, v0, 2, 4             ; chunk
    v_mul_u32_u24 v3, 1280, v1
    v_lshl_add_u32 v3, v2, 4, v3
    s_waitcnt lgkmcnt(0)
    """)
    for j in range(5): a(f"global_load_dwordx4 v[{8+4*j}:{11+4*j}], v3, s[4:5] offset:{256*j}")
    a(f"""
    s_lshr_b32 s12, s10, 3
    s_lshl_b32 s12, s12, 12
    s_lshl_b32 s13, s11, 10
    s_add_u32 s12, s12, s13
    s_and_b32 s13, s10, 7
    s_lshl_b32 s13, s13, 7
    s_add_u32 s12, s12, s13
    s_lshl_b32 s13, s20, 5
    s_add_u32 s12, s12, s13
    v_and_b32 v1, 3, v0
    v_lshl_add_u32 v5, v1, 3, s12
    v_mul_u32_u24 v4, {2*XRS}, v2
    v_add_u32 v4, v4, v5
    v_add_u32 v4, {XR}, v4
    v_add_u32 v5, {STAT}, v5
    s_lshl_b32 s12, s3, 11
    s_add_u32 s12, s12, {PST}
    v_lshl_add_u32 v6, v0, 3, s12
    v_mov_b32 v34, -1.0
    v_mov_b32 v35, -1.0
    global_store_dwordx2 v6, v[34:35], s[8:9]
    s_mul_i32 s12, s3, {FLG_BYTES//128}
    s_add_u32 s12, s12, {FLG}
    v_min_u32 v6, {FLG_BYTES//128//4 - 1}, v0
    v_lshl_add_u32 v6, v6, 2, s12
    v_mov_b32 v7, 0
    global_store_dword v6, v7, s[8:9]
    s_mov_b32 s12, 0x3f803f80
    """)
    for j in range(5):
        a(f"global_store_dwordx2 v4, v[{8+4*j}:{9+4*j}], s[8:9]\nv_add_u32 v6, {XRS}, v4")
        a(f"global_store_dwordx2 v6, v[{10+4*j}:{11+4*j}], s[8:9]")
        if j < 4: a(f"v_add_u32 v4, {32*XRS}, v4")
        for k in range(4):
            r = 8 + 4 * j + k; f = j == 0 and k < 2
            a(f"v_dot2_f32_bf16 v{30+(k&1)}, v{r}, s12, " + ("0" if f else f"v{30+(k&1)}"))
            a(f"v_dot2_f32_bf16 v{32+(k&1)}, v{r}, v{r}, " + ("0" if f else f"v{32+(k&1)}"))
    a(f"""
    v_add_f32 v30, v30, v31
    v_add_f32 v32, v32, v33
    v_permlane32_swap_b32 v30, v32
    v_add_f32 v30, v30, v32
    v_mov_b32 v31, v30
    v_permlane16_swap_b32 v30, v31
    v_add_f32 v30, v30, v31
    v_add_f32_dpp v30, v30, v30 row_ror:8 row_mask:0xf bank_mask:0xf
    v_add_f32_dpp v30, v30, v30 row_ror:4 row_mask:0xf bank_mask:0xf
    v_mul_f32 v30, 0x3acccccd, v30
    v_mov_b32 v31, v30
    v_permlane32_swap_b32 v30, v31
    v_fma_f32 v31, -v30, v30, v31
    v_max_f32 v31, 0, v31
    v_add_f32 v31, 0x3727c5ac, v31
    v_rsq_f32 v32, v31
    v_mul_f32 v33, v30, v32
    v_sub_f32 v33, 0, v33
    s_mov_b64 exec, 0xf
    global_store_dwordx2 v5, v[32:33], s[8:9]
    """)
def role_wd(a):
    ldp(a, 4, 'wd'); ldp(a, 8, 'ws')
    a(f"""
    s_lshr_b32 s10, s3, 1
    s_and_b32 s11, s3, 1
    s_lshl_b32 s11, s11, 2
    s_add_u32 s11, s11, s20            ; db
    s_mul_i32 s12, s10, {32*1280}
    s_mul_i32 s13, s11, 160
    s_add_u32 s12, s12, s13
    s_mul_i32 s14, s20, 5120
    v_and_b32 v1, 63, v0
    s_mov_b32 s15, 6554
    """)
    for i in range(5):
        a(f"v_add_u32 v2, {64*i}, v1\nv_mul_lo_u32 v3, s15, v2\nv_lshrrev_b32 v3, 16, v3\nv_mul_u32_u24 v3, {1280-160}, v3\nv_lshl_add_u32 v3, v2, 4, v3\nv_add_u32 v{8+i}, s12, v3")
    a("s_waitcnt lgkmcnt(0)")
    for i in range(5): a(f"s_add_u32 m0, s14, {1024*i}\nglobal_load_lds_dwordx4 v{8+i}, s[4:5]")
    a(f"""
    v_lshrrev_b32 v2, 4, v1
    v_bfe_u32 v3, v1, 2, 2
    v_lshl_add_u32 v2, v2, 3, v3
    v_mul_u32_u24 v2, 160, v2
    v_and_b32 v3, 3, v1
    v_lshl_add_u32 v2, v3, 3, v2
    v_add_u32 v2, s14, v2
    s_mul_i32 s12, s11, {48*5120}
    s_mul_i32 s13, s10, 5120
    s_add_u32 s12, s12, s13
    s_add_u32 s12, s12, {WD + 2048}
    v_lshl_add_u32 v4, v1, 4, s12
    s_waitcnt vmcnt(0)
    """)
    for jj in range(5):
        for hh in range(2): a(f"ds_read_b64_tr_b16 v[{16+4*jj+2*hh}:{17+4*jj+2*hh}], v2 offset:{32*jj + 640*hh}")
    for jj in range(5): a(f"global_store_dwordx4 v4, v[{16+4*jj}:{19+4*jj}], s[8:9] offset:{1024*jj-2048}")
def k1(stamp=None):
    a = Asm()
    a(f"""
    v_lshrrev_b32 v1, 6, v0
    s_cmp_ge_u32 s2, {K1_GRID}
    s_cbranch_scc1 k1_end
    v_readfirstlane_b32 s20, v1
    """)
    if stamp: stamp(a, 0)
    a(f"""
    s_cmp_ge_u32 s2, {N_PF}
    s_cbranch_scc1 k1_work
    s_getpc_b64 s[4:5]
k1_pc:
    v_lshlrev_b32 v1, 7, v0
    v_mov_b32 v3, s5
    v_mov_b32 v5, s5
    v_min_u32 v2, code_end-k1_pc-4, v1
    v_add_u32 v1, 0x8000, v1
    v_min_u32 v4, code_end-k1_pc-4, v1
    v_add_co_u32 v2, vcc, s4, v2
    v_addc_co_u32 v3, vcc, 0, v3, vcc
    v_add_co_u32 v4, vcc, s4, v4
    v_addc_co_u32 v5, vcc, 0, v5, vcc
    global_load_dword v6, v[2:3], off
    global_load_dword v7, v[4:5], off
    s_endpgm
k1_work:
    s_sub_u32 s3, s2, {N_PF}
    s_cmp_lt_u32 s3, {N_KG}
    s_cbranch_scc1 k1_kgen
    s_sub_u32 s3, s3, {N_KG}
    s_cmp_lt_u32 s3, {N_MOD}
    s_cbranch_scc1 k1_mod
    s_sub_u32 s3, s3, {N_MOD}
    s_cmp_lt_u32 s3, {N_ST}
    s_cbranch_scc1 k1_stat
    s_sub_u32 s3, s3, {N_ST}
    """)
    fin = (lambda: (stamp(a, 'end'), a("s_endpgm"))) if stamp else (lambda: a("s_endpgm"))
    role_wd(a); fin()
    a("k1_stat:"); role_stat(a); fin()
    a("k1_mod:"); role_mod(a); fin()
    a("k1_kgen:"); role_kgen(a); fin()
    a("k1_end:\ns_endpgm")
    return a
```

```python
KARG = dict(x=0, are=8, aim=16, bre=24, bim=32, cre=40, cim=48, ldt=56, dsk=64, bx=72, wg=80, wu=88, wd=96, c=104, wmod=112, out=120, dbg=128, ws=136)
MODP = 0
STAT = 0x10000
U12  = 0x20000
XRS  = 16384 + 256
XR   = 0x100000
KTS  = 3072
KT   = 0x400000
WD   = 0x600000
WP   = 0x800000
X1   = 0xC00000
HH   = 0x1000000
STAMP = 0x8000000

XT1  = 0xC00000
WPS  = 63*1024
WP2  = 0x1800000
PST  = 0x40000
FLG  = 0x80000
FLG_B, FLG_W, FLG_D, FLG_C = FLG, FLG + 160*64, FLG + 256*64, FLG + 512*64
FLG_BYTES = 768*64
```

```python
import sys, importlib
from gen import *
import gen_k1, gen_f
for spec in sys.argv[1:]:
    name, _, sets = spec.partition(':')
    for m in (gen_k1, gen_f): importlib.reload(m)
    for kv in filter(None, sets.split(',')):
        k, v = kv.split('='); p = k.split('.')
        v = eval(v)
        if len(p) == 1: gen_f.OPT[k] = v
        else:
            m = sys.modules['gen_' + p[0]]
            if len(p) == 3: getattr(m, p[1])[p[2]] = v
            else: setattr(m, p[1], v)
    pp = parts()
    build(pp, f'v_{name}.s', stamps=True); build(pp, f'n_{name}.s')
```

```python
import re, copy
TRANS = ('v_exp_f32','v_log_f32','v_rcp_f32','v_rsq_f32','v_sqrt_f32','v_sin_f32','v_cos_f32')
def regs_of(op):
    op = op.strip()
    op = re.sub(r'^-', '', op); op = re.sub(r'^abs\((.*)\)$', r'\1', op); op = op.strip('|')
    m = re.fullmatch(r'([vas])(\d+)', op)
    if m: return [(m.group(1), int(m.group(2)))]
    m = re.fullmatch(r'([vas])\[(\d+):(\d+)\]', op)
    if m: return [(m.group(1), i) for i in range(int(m.group(2)), int(m.group(3)) + 1)]
    if op == 'vcc': return [('s', 106), ('s', 107)]
    if op == 'vcc_lo': return [('s', 106)]
    if op == 'vcc_hi': return [('s', 107)]
    if op == 'm0': return [('s', 124)]
    if op == 'exec': return [('s', 126), ('s', 127)]
    return []
class I:
    def __init__(s, text):
        s.text = text
        t = text.split(';')[0].strip()
        s.label = None; s.mn = ''; s.ops = []; s.mods = ''
        if t.endswith(':'): s.label = t[:-1]; return
        if t.startswith('.'): s.mn = '.dir'; return
        if t.startswith('TRACK'): s.mn = 'TRACK'; return
        p = t.split(None, 1); s.mn = p[0]
        rest = p[1] if len(p) > 1 else ''
        ops = []; depth = 0; cur = ''
        for ch in rest:
            if ch in '[(': depth += 1
            if ch in '])': depth -= 1
            if ch == ',' and depth == 0: ops.append(cur.strip()); cur = ''
            else: cur += ch
        if cur.strip():
            q = cur.strip().split(None, 1); ops.append(q[0]); s.mods = q[1] if len(q) > 1 else ''
        s.ops = ops
        mn = re.sub(r'_(e32|e64|dpp|sdwa)$', '', s.mn); s.base = mn
        R = [regs_of(o) for o in ops]
        flat = lambda l: [x for y in l for x in y]
        s.mfma = mn.startswith('v_mfma'); s.valu = mn.startswith('v_') and not s.mfma
        s.ds = mn.startswith('ds_'); s.vm = mn.startswith(('global_', 'buffer_')); s.smem = mn.startswith(('s_load', 's_memtime', 's_memrealtime', 's_buffer_load'))
        s.salu = mn.startswith('s_') and not s.smem
        s.trans = mn in TRANS; s.dot = mn.startswith('v_dot')
        s.dpp = any(k in s.mods for k in ('row_', 'quad_perm', 'wave_')) or s.mn.endswith('_dpp')
        s.perml = mn.startswith('v_permlane'); s.rdl = mn in ('v_readlane_b32', 'v_readfirstlane_b32')
        s.m0use = False; s.wide = []
        d, u = [], []
        if s.mfma:
            d = R[0]; u = flat(R[1:]); s.A = R[1]; s.B = R[2]; s.C = R[3]
            s.passes = 8 if '32x32' in mn else 4
        elif s.perml: d = flat(R); u = flat(R)
        elif s.valu:
            nd = 2 if mn in ('v_add_co_u32', 'v_addc_co_u32', 'v_sub_co_u32', 'v_mad_u64_u32') else 1
            d = flat(R[:nd]); u = flat(R[nd:])
            if mn in ('v_fmac_f32', 'v_dot2c_f32_bf16', 'v_writelane_b32') or s.dpp: u = u + R[0]
        elif s.ds:
            if mn.startswith(('ds_read', 'ds_bpermute', 'ds_permute', 'ds_swizzle')):
                d = R[0]; u = flat(R[1:])
                if 'd16' in mn: u = u + R[0]
            else: u = flat(R)
            s.m0use = 'addtid' in mn
        elif s.vm:
            if mn.startswith(('buffer_wbl2', 'buffer_inv')): pass
            elif '_load_lds' in mn or (mn.startswith('buffer_load') and re.search(r'\blds\b', s.mods)): u = flat(R); s.m0use = True
            elif '_load' in mn:
                d = R[0]; u = flat(R[1:])
                if 'd16' in mn: u = u + R[0]
            elif '_atomic' in mn and 'sc0' in s.mods: d = R[0]; u = flat(R[1:])
            else:
                u = flat(R)
                if mn.endswith(('x3', 'x4')): s.wide = R[1] if mn.startswith('global') else R[0]
        elif s.smem: d = R[0]; u = flat(R[1:])
        elif s.salu:
            if mn.startswith(('s_cmp', 's_cbranch', 's_branch', 's_waitcnt', 's_nop', 's_barrier', 's_endpgm', 's_sleep', 's_setprio', 's_bitcmp')): u = flat(R)
            else:
                d = R[0]; u = flat(R[1:])
                if 'saveexec' in mn: d = d + regs_of('exec')
        s.d = set(d); s.u = set(u)
class State:
    def __init__(s):
        s.vm = []; s.lg = []
        s.ev = {}; s.t = 0
    def step(s, n): s.t += n
    def snap(s):
        c = State(); c.vm = s.vm[:]; c.lg = s.lg[:]; c.t = s.t
        c.ev = {k: v for k, v in s.ev.items() if s.t - v[0] < 24}
        return c
    def merge(s, o):
        for k, v in o.ev.items():
            tt = s.t - (o.t - v[0])
            if k not in s.ev or tt > s.ev[k][0]: s.ev[k] = (tt, v[1])
        def mq(x, y, what):
            if x == y or not y: return x
            if not x: return y[:]
            assert not any(e[0] for e in x + y), f"merge with pending {what} loads"
            r = (x if len(x) <= len(y) else y)[:]
            if any(e[1] == 's' for e in x + y) and not any(e[1] == 's' for e in r): r = [(set(), 's')] + r
            return r
        s.vm = mq(s.vm, o.vm, 'vm'); s.lg = mq(s.lg, o.lg, 'lgkm')
class Asm:
    AGE = 150
    def __init__(s): s.ins = []; s.lgt = {}; s.clock = 0; s.nvm = 0; s.marks = {}
    def __call__(s, text):
        for l in text.split('\n'):
            if l.split(';')[0].strip(): s.ins.append(I(l.strip()))
    def need(s, st, i):
        n = 0
        def chk(kind, regs, dist):
            nonlocal n
            for r in regs:
                e = st.ev.get((kind, r))
                if e is not None:
                    dd = dist(e[1]) if callable(dist) else dist
                    n = max(n, dd - (st.t - e[0]))
        big = lambda inf: 12 if inf[0] == 8 else 8
        if i.mfma:
            chk('vw', i.u, 2); chk('dw', i.u | i.d, 3)
            chk('mw', set(i.A) | set(i.B), big)
            key = (i.passes, tuple(i.C))
            chk('mw', i.C, lambda inf: 0 if inf == key else (10 if inf[0] == 8 else 6))
            if not i.C or tuple(i.C) != tuple(sorted(i.d)): chk('mw', i.d, lambda inf: 10 if inf[0] == 8 else 6)
        if i.valu:
            chk('mw', i.u | i.d, big); chk('mc', i.d, lambda p: 7 if p == 8 else 3)
            if not i.trans: chk('tw', i.u, 1)
            if i.dot:
                ab = set(regs_of(i.ops[1])) | set(regs_of(i.ops[2]))
                chk('dw', ab, 3); chk('dw', (i.u | i.d) - ab, lambda op: 0 if op == i.base else 3)
            else: chk('dw', i.u | i.d, 3)
            if i.rdl: chk('vw', i.u, 1)
            if i.perml or i.dpp: chk('vw', i.u, 2)
            chk('sw', i.u, 2)
            if i.base in ('v_readlane_b32', 'v_writelane_b32'): chk('sw', regs_of(i.ops[2]), 4)
            chk('st', i.d, 2)
        if i.ds or i.vm:
            chk('mw', i.u | i.d, big); chk('dw', i.u | i.d, 3); chk('tw', i.u, 1)
            chk('st', i.d, 1)
            if i.vm: chk('sw', i.u, 5)
            if i.m0use: chk('m0', [('s', 124)], 1)
        if i.salu or i.smem: chk('sw', i.u, 1)
        return n
    def record(s, st, i):
        st.step(1); s.clock += (4*i.passes if i.mfma else 2)
        for r in i.d:
            for k in ('vw', 'tw', 'dw', 'mw'): st.ev.pop((k, r), None)
        if i.mfma:
            for r in i.d: st.ev[('mw', r)] = (st.t, (i.passes, tuple(sorted(i.d))))
            for r in i.C: st.ev[('mc', r)] = (st.t, i.passes)
        elif i.valu:
            for r in i.d:
                if r[0] == 's': st.ev[('sw', r)] = (st.t, None)
                else:
                    st.ev[('vw', r)] = (st.t, None)
                    if i.trans: st.ev[('tw', r)] = (st.t, None)
                    if i.dot: st.ev[('dw', r)] = (st.t, i.base)
        elif i.salu and ('s', 124) in i.d: st.ev[('m0', ('s', 124))] = (st.t, None)
        for r in i.wide: st.ev[('st', r)] = (st.t, None)
        if i.vm and 'untracked' not in i.text:
            s.nvm += 1
            m = re.search(r'tag=(\w+)', i.text); st.vm.append((set(i.d), m.group(1) if m else 'v'))
        if i.ds: st.lg.append((set(i.d), 'l')); s.lgt[id(st.lg[-1][0])] = s.clock
        if i.smem: st.lg.append((set() if 'time' in i.mn else set(i.d), 's'))
    def final(s):
        snaps = {}
        for it in range(3):
            out = []; st = State(); live = True; new = {}; s.nnop = 0; s.nwait = 0
            for i in s.ins:
                if i.label:
                    srcs = [x for x in (new.get(i.label), snaps.get(i.label)) if x is not None]
                    if not live:
                        st = srcs[0].snap() if srcs else State(); srcs = srcs[1:]
                    for x in srcs: st.merge(x)
                    live = True; out.append(i.text); continue
                if i.mn == '.dir': out.append(i.text); continue
                if i.mn == 'TRACK':
                    j = I(i.text.split(None, 1)[1]); m = re.search(r'tag=(\w+)', j.text); st.vm.append((set(j.d), m.group(1) if m else 'v')); s.nvm += 1; continue
                if i.mn == 'VMMARK': s.marks[i.ops[0]] = s.nvm; continue
                if i.mn == 'WAITMARK':
                    out.append(f'  s_waitcnt vmcnt({min(63, s.nvm - s.marks[i.ops[0]])})'); st.step(1); continue
                if i.mn == 'CLEARVM':
                    st.vm = []; continue
                if i.mn == 'WAITVM':
                    idx = [k for k, x in enumerate(st.vm) if x[1] == i.ops[0]]
                    if idx:
                        n = min(len(st.vm) - 1 - max(idx), 63); st.vm = st.vm[len(st.vm) - n:] if n else []
                        out.append(f'  s_waitcnt vmcnt({n})'); st.step(1)
                    continue
                if i.mn == 's_waitcnt' and 'untracked' in i.text:
                    out.append('  ' + i.text); st.step(1); continue
                if i.mn == 's_waitcnt':
                    t = i.text.split(';')[0]
                    m = re.search(r'vmcnt\((\d+)\)', t)
                    if m: k = int(m.group(1)); st.vm = st.vm[len(st.vm) - k:] if k < len(st.vm) else st.vm; st.vm = st.vm if k else []
                    m = re.search(r'lgkmcnt\((\d+)\)', t)
                    if m:
                        k = int(m.group(1))
                        if k == 0: st.lg = []
                        elif not any(x[1] == 's' for x in st.lg) and k < len(st.lg): st.lg = st.lg[len(st.lg) - k:]
                    out.append('  ' + i.text); st.step(1); continue
                touch = i.d | i.u
                w = []
                idx = [k for k, x in enumerate(st.vm) if x[0] & touch]
                if idx:
                    n = min(len(st.vm) - 1 - max(idx), 63); w.append(f'vmcnt({n})'); st.vm = st.vm[len(st.vm) - n:] if n else []
                idx = [k for k, x in enumerate(st.lg) if x[0] & touch]
                if idx:
                    idx += [k for k, x in enumerate(st.lg) if s.clock - s.lgt.get(id(x[0]), s.clock) >= s.AGE]
                    n = 0 if any(x[1] == 's' for x in st.lg) else min(len(st.lg) - 1 - max(idx), 15)
                    w.append(f'lgkmcnt({n})'); st.lg = st.lg[len(st.lg) - n:] if n else []
                if w: out.append('  s_waitcnt ' + ' '.join(w)); st.step(1); s.nwait += 1
                n = s.need(st, i)
                while n > 0:
                    k = min(n, 16); out.append(f'  s_nop {k-1}'); st.step(k); n -= k; s.nnop += k
                out.append('  ' + i.text)
                if i.mn == 's_nop': st.step(int(i.ops[0]) + 1); continue
                s.record(st, i)
                if i.mn.startswith(('s_cbranch', 's_branch')):
                    tg = i.ops[0]
                    if 'nosnap' in i.text: pass
                    elif tg in new: new[tg].merge(st)
                    else: new[tg] = st.snap()
                    if i.mn == 's_branch': live = False
                if i.mn == 's_endpgm': live = False
            snaps = new
        return '\n'.join(out) + '\n'
def interleave(main, fill, ratio=None, start=0, end=None):
    end = len(main) if end is None else end
    n = end - start; out = list(main[:start]); k = 0
    for j in range(n):
        out.append(main[start + j])
        tgt = (len(fill) * (j + 1) + n - 1) // n if ratio is None else min(len(fill), ratio * (j + 1))
        while k < tgt: out.append(fill[k]); k += 1
    out += fill[k:]; out += main[end:]
    return out

def cost(l):
    if '\n' in l: return sum(cost(x) for x in l.split('\n'))
    mn = l.split()[0]
    if mn in TRANS or mn.startswith('v_permlane'): return 2
    if mn == 'VMMARK' or l.endswith(':'): return 0
    return 1
def slots(mf, head, lds, vm, valu, vm_cost=1, cap=2, tailroom=1, spread=True):
    n = len(mf); gap = [[] for _ in range(n)]; used = [0]*n
    used[n-1] += tailroom
    gap[0] += head; used[0] += len(head)
    g0 = 1 if head else 0
    for k, l in enumerate(lds):
        g = g0 + k if g0 + k < n else n - 1
        gap[g].append(l); used[g] += 1
    free = [g for g in range(g0 + len(lds), n)]
    if len(vm) <= len(free) and not spread: pos = [free[(k*len(free))//len(vm)] for k in range(len(vm))] if vm else []
    else: pos = [min(n - 1, g0 + ((2*k+1)*(n - g0))//(2*len(vm))) for k in range(len(vm))]
    for g, grp in zip(pos, vm):
        gap[g] += grp; used[g] += sum(cost(x) for x in grp) - 1 + vm_cost
    k = 0
    for g in range(n):
        while k < len(valu) and used[g] + cost(valu[k]) <= max(cap, cost(valu[k]) if used[g] <= 1 and cost(valu[k]) == 2 and False else cap):
            gap[g].append(valu[k]); used[g] += cost(valu[k]); k += 1
        if k < len(valu) and cost(valu[k]) > 2 and used[g] <= 1:
            gap[g].append(valu[k]); used[g] += cost(valu[k]); k += 1
        if k < len(valu) and cost(valu[k]) == 2 and used[g] == 1 and g + 1 < n and used[g+1] >= 1:
            gap[g].append(valu[k]); used[g] += 2; k += 1
    out = []
    for g in range(n): out += [mf[g]] + gap[g]
    return out, valu[k:]
def vmgroups(ins):
    r = []
    for l in ins:
        if 'global_' in l and (not r or any('global_' in x for x in r[-1])): r.append([l])
        elif r: r[-1].append(l)
        else: r.append([l])
    return r

import subprocess, os, tempfile
def sizes(body):
    src = '.amdgcn_target "amdgcn-amd-amdhsa--gfx950"\n.text\n' + body + '\ncode_end:\n'
    d = tempfile.mkdtemp(); open(d + '/a.s', 'w').write(src)
    r = subprocess.run(['clang', '-x', 'assembler', '-target', 'amdgcn-amd-amdhsa', '-mcpu=gfx950', '-c', d + '/a.s', '-o', d + '/a.o'], capture_output=True, text=True)
    assert r.returncode == 0, r.stderr
    o = subprocess.run(['llvm-objdump', '-d', '--mcpu=gfx950', d + '/a.o'], capture_output=True, text=True).stdout
    return [4*len(m.group(1).split()) for m in re.finditer(r'// [0-9A-F]+: ([0-9A-F ]+)', o)]
NOPROMO = ('v_readfirstlane', 'v_permlane', 'v_accvgpr', 'v_nop', 'v_dot2c', 'v_fmamk', 'v_fmaak', 'v_cmp', 'v_cndmask', 'v_add_co', 'v_addc_co')
def align_pass(body, minrun=5):
    lines = body.rstrip('\n').split('\n')
    idx = [k for k, l in enumerate(lines) if not l.split(';')[0].strip().endswith(':') and not l.strip().startswith('.')]
    sz = sizes(body); assert len(sz) == len(idx), (len(sz), len(idx))
    off = 0; lastfix = -1; k = 0; nprom = nnop = 0
    mn = [lines[i].split()[0] for i in idx]
    while k < len(idx):
        if sz[k] == 8 and (k == 0 or sz[k-1] != 8):
            e = k
            while e < len(idx) and sz[e] == 8: e += 1
            dense = best = 0
            for q in range(k, e):
                dense = dense + 1 if mn[q].startswith('v_') and not mn[q].startswith('v_mfma') else 0; best = max(best, dense)
            if best >= minrun:
                if off % 8:
                    c = [q for q in range(lastfix + 1, k) if sz[q] == 4 and mn[q].startswith('v_') and not mn[q].startswith(NOPROMO)]
                    if c: q = c[-1]; lines[idx[q]] = lines[idx[q]].replace(mn[q], mn[q] + '_e64', 1); nprom += 1
                    else: lines[idx[k]] = '  s_nop 0\n' + lines[idx[k]]; nnop += 1
                    off += 4
                lastfix = e - 1
        off += sz[k]; k += 1
    return '\n'.join(lines) + '\n', nprom, nnop

def listsched(mf, chains, cap=2, vmgap=0, reserve=None, flush=True):
    pos = [0]*len(chains); out = []; ldsfree = -99; vmlast = -99
    for c in chains:
        for k in range(len(c) - 2, -1, -1):
            if c[k][2] > c[k+1][2]: c[k] = (c[k][0], c[k][1], c[k+1][2])
    for g in range(-1, len(mf)):
        if g >= 0: out.append(mf[g])
        used = reserve(g) if reserve else 0
        while True:
            best = None
            for ci, c in enumerate(chains):
                if pos[ci] >= len(c): continue
                t, lo, hi = c[pos[ci]]
                if lo > g and (g < len(mf) - 1 or not flush): continue
                tl = [t] if isinstance(t, str) else t
                forced = hi <= g or (g == len(mf) - 1 and flush)
                if not forced:
                    if g < 0 or used + min(cap, sum(cost(x) for x in tl)) > cap: continue
                    if tl[0].startswith('ds_') and ldsfree > g: continue
                    if tl[0].startswith('global') and g - vmlast < vmgap: continue
                if best is None or hi < best[0]: best = (hi, ci, tl)
            if best is None: break
            hi, ci, tl = best
            out += tl; pos[ci] += 1; used += sum(cost(x) for x in tl)
            if tl[0].startswith('global'): vmlast = g
            if tl[0].startswith('ds_'): ldsfree = max(ldsfree, g) + (3 if tl[0].startswith('ds_write_b128') else 1)
    if not flush: return out, [c[p:] for c, p in zip(chains, pos)]
    return out
```

```python
from asmlib import *
from layout import *
import conv_model as cm
LOG2E = 0x3fb8aa3b; INV2PI = 0x3e22f983
N_KG, N_MOD, N_ST, N_WD = 160, 240, 128, 96
N_PF = 8
K1_GRID = N_PF + N_KG + N_MOD + N_ST + N_WD
K1_LDS = 4 * 32 * 272
def ldp(a, reg, name): a(f"s_load_dwordx2 s[{reg}:{reg+1}], s[0:1], {KARG[name]}")
def P(r): return f"v[{r}:{r+1}]"
def cmul(d, z, w, t):
    return [f"v_pk_mul_f32 {P(t)}, {P(z)}, {P(w)} op_sel:[0,0] op_sel_hi:[0,1]",
            f"v_pk_fma_f32 {P(d)}, {P(z)}, {P(w)}, {P(t)} op_sel:[1,1,0] op_sel_hi:[1,0,1] neg_lo:[1,0,0]"]
AROWS = list(range(9)) + [256, 258, 260, 262, 264, 516, 520, 772, 776, 1032, 1288, 1544, 1800]
def arow_map():
    h0 = list(range(9)) + [516, 520, 1032, 1544, 0, 0, 0]
    h1 = [256, 256, 258, 260, 260, 260, 262, 264, 264, 772, 776, 1288, 1800, 0, 0, 0]
    m = []
    for rho in range(32):
        v = 4 * (rho >> 3) + (rho & 3); half = (rho >> 2) & 1
        m.append(AROWS.index((h1 if half else h0)[v]))
    return m
def kgen(a, pre, stamp=None):
    for i, n in enumerate(('are', 'aim', 'bre', 'bim', 'cre', 'cim', 'ldt', 'dsk')): ldp(a, 4 + 2 * i, n)
    ldp(a, 22, 'ws')
    a(f"""
    s_lshl_b32 s24, s21, 2
    s_add_u32 s24, s24, s20            ; channel
    s_mul_i32 s25, s24, 384
    v_and_b32 v1, 63, v0               ; lane
    v_lshl_add_u32 v2, v1, 2, s25
    v_lshl_add_u32 v3, v1, 1, s25
    s_lshr_b32 s26, s24, 1
    s_lshl_b32 s26, s26, 2
    s_waitcnt lgkmcnt(0)
    """)
    RAW = 4
    for i in range(6): a(f"global_load_dword v{RAW+i}, v2, s[{4+2*i}:{5+2*i}]")
    a("s_load_dword s27, s[16:17], s26\ns_load_dword s28, s[18:19], s26")
    for i in range(6): a(f"global_load_ushort v{RAW+6+i}, v3, s[{4+2*i}:{5+2*i}] offset:256")
    a(f"s_mul_i32 s29, s20, {32*272}\ns_mov_b32 m0, s29")
    VB, VA, VSP = 16, 17, 18
    a(f"v_and_b32 v{VB}, 31, v1\nv_mul_u32_u24 v{VB}, 272, v{VB}\nv_lshrrev_b32 v19, 5, v1\nv_lshl_add_u32 v19, v19, 4, s29\nv_add_u32 v{VB}, v{VB}, v19")
    m = arow_map()
    a(f"v_mov_b32 v{VA}, 0")
    for l in range(64):
        if m[l & 31]: a(f"v_writelane_b32 v{VA}, {m[l & 31]}, {l}")
    a(f"v_mul_u32_u24 v{VA}, 272, v{VA}\nv_add_u32 v{VA}, v{VA}, v19")
    pre(a)
    DT = 20
    a(f"""
    s_waitcnt lgkmcnt(0)
    s_and_b32 s30, s24, 1
    s_lshl_b32 s30, s30, 4
    s_lshr_b32 s27, s27, s30
    s_lshl_b32 s27, s27, 16
    s_lshr_b32 s28, s28, s30
    s_lshl_b32 s28, s28, 16
    v_mov_b32 v{DT}, {LOG2E}
    v_mul_f32 v{DT}, s27, v{DT}
    v_exp_f32 v{DT}, v{DT}
    v_cvt_pk_bf16_f32 v{DT}, v{DT}, v{DT}
    v_and_b32 v{DT}, 0xffff0000, v{DT}
    v_mov_b32 v21, 0x3f80
    s_mov_b32 s34, {LOG2E}
    s_mov_b32 s35, {INV2PI}
    """)
    ONE = 21
    KR = 22
    BB, CC = 24, 26
    E1, G, H = 28, 30, 32
    F = 34
    Z = 50
    ZT = 60; T0, T1 = 62, 64; X = 66
    PB = 72
    FB, FA, ACC = 88, 120, 152
    PK = FA
    pend = []
    for rd in range(3):
        s = []
        for i, d in enumerate((KR, KR + 1, BB, BB + 1, CC, CC + 1)):
            if rd == 0: s.append(f"v_lshlrev_b32 v{d}, 16, v{RAW+i}")
            elif rd == 1: s.append(f"v_and_b32 v{d}, 0xffff0000, v{RAW+i}")
            else: s.append(f"v_lshlrev_b32 v{d}, 16, v{RAW+6+i}")
        s.append(f"v_pk_mul_f32 {P(KR)}, {P(KR)}, {P(DT)} op_sel_hi:[1,0]")
        s.append(f"v_pk_mul_f32 {P(BB)}, {P(BB)}, {P(DT)} op_sel_hi:[1,0]")
        s.append(f"v_pk_mul_f32 {P(KR)}, {P(KR)}, s[34:35]")
        s += cmul(Z, CC, BB, T0)
        def direct(d, mult, conj, x):
            r = []
            if mult != 1:
                import struct
                lit = hex(struct.unpack('<I', struct.pack('<f', float(mult)))[0])
                r += [f"v_mul_f32 v{x}, {lit}, v{KR}", f"v_mul_f32 v{x+1}, {lit}, v{KR+1}", f"v_exp_f32 v{x}, v{x}", f"v_fract_f32 v{x+1}, v{x+1}"]
            else: r += [f"v_exp_f32 v{x}, v{KR}", f"v_fract_f32 v{x+1}, v{KR+1}"]
            r += [f"v_cos_f32 v{d}, v{x+1}", f"v_sin_f32 v{d+1}, v{x+1}"]
            fin = f"v_pk_mul_f32 {P(d)}, {P(d)}, {P(x)} op_sel_hi:[1,0]" + (" neg_hi:[1,0]" if conj else "")
            return r, fin
        d0, f0 = direct(F + 2, 8, True, X); d1, f1 = direct(E1, 1, False, X + 2); d2, f2 = direct(G, 64, True, X + 4)
        d3, f3 = direct(H, 256, False, T1)
        s += d0 + d1 + [f0] + d2 + [f1] + d3 + [f2, "s_nop 0", f3]
        pb = [0]
        def bout(j, z):
            r = PB + pb[0] % 4; pb[0] += 1
            return [f"v_cvt_pk_bf16_f32 v{r}, v{z}, v{z+1}", f"ds_write_addtid_b32 v{r} offset:{272*j}"]
        Bi = [[f"ds_write_addtid_b32 v{ONE} offset:0"], bout(1, F + 2)]
        for j in range(2, 8): Bi.append(cmul(F + 2 * j, F + 2 * (j - 1), F + 2, T0) + bout(j, F + 2 * j))
        Bi.append(bout(8, G))
        for j in range(9, 32):
            if j == 16: Bi.append(cmul(F, G, G, T0) + bout(j, F))
            else: Bi.append(cmul(F + 2 * (j & 7), F + 2 * (j & 7), G, T0) + bout(j, F + 2 * (j & 7)))
        order = []
        def aout(l, z):
            order.append(l); return [f"v_cvt_pk_bf16_f32 v{PK + len(order) - 1}, v{z}, v{z+1}"]
        Ai = [aout(0, Z)]
        for k in range(1, 9):
            src = Z + (k - 1) if k % 2 else ZT; dst = ZT if k % 2 else Z + k
            Ai.append(cmul(dst, src, E1, T1) + aout(k, dst))
        for z, l in ((Z + 8, 264), (Z + 4, 260), (Z + 8, 520), (Z, 256), (Z + 8, 776), (Z + 4, 516), (Z + 8, 1032), (Z + 2, 258),
                     (Z + 8, 1288), (Z + 4, 772), (Z + 8, 1544), (Z + 6, 262), (Z + 8, 1800)):
            Ai.append(cmul(z, z, H, T1) + aout(l, z))
        body = []
        for k in range(len(Bi)):
            b = Bi[k]; x = Ai[k] if k < len(Ai) else []
            if pend and k in (0, 1, 3, 5, 7, 9, 11, 13): body.append(pend.pop(0))
            for q in range(4):
                if q < len(b): body.append(b[q])
                if q < len(x): body.append(x[q])
        for k, l in enumerate(s + body):
            if stamp and k == 7: stamp(a, f'r{rd}')
            a(l)
        for ks in range(8): a(f"ds_read_b128 v[{FB+4*ks}:{FB+4*ks+3}], v{VB} offset:{32*ks}")
        for r in range(22): a(f"ds_write_addtid_b32 v{PK+r} offset:{272*AROWS.index(order[r])}")
        for ks in range(8): a(f"ds_read_b128 v[{FA+4*ks}:{FA+4*ks+3}], v{VA} offset:{32*ks}")
        pend = [f"v_mfma_f32_32x32x16_bf16 v[{ACC}:{ACC+15}], v[{FA+4*ks}:{FA+4*ks+3}], v[{FB+4*ks}:{FB+4*ks+3}], " + ("0" if rd == 0 and ks == 0 else f"v[{ACC}:{ACC+15}]") for ks in range(8)]
    if stamp: stamp(a, 'r3')
    for l in pend: a(l)
    return ACC
SPECIAL = list(range(0, 4)) + list(range(68, 73)) + list(range(137, 145)) + list(range(161, 169)) + list(range(185, 192))
def role_kgen(a, stamp=None):
    a("""
    s_and_b32 s21, s3, 7
    s_mul_i32 s21, s21, 20
    s_lshr_b32 s3, s3, 3
    s_add_u32 s21, s21, s3
    """)
    TB, TS, T2A, T3A, DSK = 76, 77, 78, 79, 80
    def pre(a):
        a(f"s_mul_i32 s31, s24, {KTS}\ns_add_u32 s31, s31, {KT}")
        a(f"v_lshlrev_b32 v19, 4, v1\nv_sub_u32 v{TB}, s31, v19")
        a(f"v_lshlrev_b32 v19, 2, v1\nv_sub_u32 v{T2A}, s31, v19\nv_lshlrev_b32 v19, 1, v1\nv_sub_u32 v{T3A}, s31, v19")
        a(f"v_and_b32 v{TS}, 31, v1\nv_mov_b32 v19, v{TS}")
        prev = 0
        for k in range(1, 32):
            step = SPECIAL[k] - k
            if step != prev:
                a(f"v_cmp_le_u32 vcc, {k}, v19\nv_mov_b32 v{DSK}, {step-prev}\nv_cndmask_b32 v{DSK}, 0, v{DSK}, vcc\nv_add_u32 v{TS}, v{TS}, v{DSK}"); prev = step
        a(f"v_lshl_add_u32 v{TS}, v{TS}, 4, s31")
        for r in range(4): a(f"v_mov_b32 v{84+r}, 0")
        a(f"v_mov_b32 v{DSK}, 0")
    V = kgen(a, pre, stamp)
    a(f"v_writelane_b32 v{DSK}, s28, 0")
    a(f"v_add_f32 v{V}, v{V}, v{DSK}")
    E, O = 36, 40
    for k in range(4):
        a(f"v_cvt_pk_bf16_f32 v{E+k}, v{V+8-2*k}, v{V+7-2*k}")
        a(f"v_cvt_pk_bf16_f32 v{O+k}, v{V+7-2*k}, v{V+6-2*k}")
    a(f"v_cvt_pk_bf16_f32 v44, v{V+10}, v{V+9}\nv_cvt_pk_bf16_f32 v45, v{V+11}, v{V+12}")
    a(f"global_store_dwordx4 v{TB}, v[{E}:{E+3}], s[22:23] offset:{cm.CH_E*16}")
    a(f"v_readlane_b32 s36, v{O+3}, 0\nv_readlane_b32 s37, v{E}, 63")
    a(f"global_store_dwordx4 v{TB}, v[{O}:{O+3}], s[22:23] offset:{cm.CH_O*16}")
    a(f"global_store_dword v{T2A}, v44, s[22:23] offset:{cm.CH_T2*16 + 2*(320-130)}")
    a(f"global_store_short v{T3A}, v45, s[22:23] offset:{cm.CH_T3*16 + 2*(256-129)}")
    a(f"global_store_short_d16_hi v{T3A}, v45, s[22:23] offset:{cm.CH_T3*16 + 2*(256-193)}")
    a(f"s_lshr_b32 s36, s36, 16\ns_lshl_b32 s38, s37, 16")
    a(f"v_writelane_b32 v84, s36, {SPECIAL.index(cm.CH_E+1)}")
    a(f"v_writelane_b32 v87, s37, {SPECIAL.index(cm.CH_E-64)}")
    a(f"v_writelane_b32 v86, s38, {SPECIAL.index(cm.CH_O-64)}")
    a(f"v_writelane_b32 v87, s37, {SPECIAL.index(cm.CH_O-64)}")
    a(f"s_mov_b64 exec, 0xffffffff\nglobal_store_dwordx4 v{TS}, v[84:87], s[22:23]")
def role_mod(a):
    ldp(a, 4, 'c'); ldp(a, 6, 'wmod'); ldp(a, 8, 'ws')
    a(f"""
    s_mul_i32 s10, s3, 1093
    s_lshr_b32 s10, s10, 16            ; ks
    s_mul_i32 s11, s10, 60
    s_sub_u32 s11, s3, s11             ; slab
    s_mul_i32 s12, s10, 160
    v_lshrrev_b32 v1, 3, v0
    v_add_u32 v1, s12, v1              ; row
    v_lshlrev_b32 v2, 1, v1
    v_mul_u32_u24 v3, 7680, v1
    v_and_b32 v4, 7, v0
    s_lshl_b32 s13, s11, 7
    v_lshl_add_u32 v5, v4, 4, s13
    v_add_u32 v3, v3, v5
    s_waitcnt lgkmcnt(0)
    """)
    for j in range(5): a(f"global_load_ushort v{8+j}, v2, s[4:5] offset:{64*j}")
    for j in range(5):
        a(f"global_load_dwordx4 v[{20+4*j}:{23+4*j}], v3, s[6:7]")
        if j < 4: a(f"v_add_u32 v3, {32*7680}, v3")
    for j in range(5): a(f"v_lshlrev_b32 v{8+j}, 16, v{8+j}\nv_mul_f32 v{14+j}, 0xbfb8aa3b, v{8+j}\nv_exp_f32 v{14+j}, v{14+j}")
    for j in range(5): a(f"v_add_f32 v{14+j}, 1.0, v{14+j}\nv_rcp_f32 v{14+j}, v{14+j}")
    for j in range(5): a(f"v_mul_f32 v{8+j}, v{8+j}, v{14+j}")
    for j in range(5): a(f"v_cvt_pk_bf16_f32 v{8+j}, v{8+j}, 0\nv_lshlrev_b32 v{14+j}, 16, v{8+j}")
    a("""
    v_and_b32 v6, 63, v0
    v_lshrrev_b32 v6, 4, v6
    v_lshlrev_b32 v6, 3, v6
    v_lshl_add_u32 v6, v4, 5, v6
    v_lshrrev_b32 v7, 6, v0
    v_lshl_add_u32 v6, v7, 8, v6
    """)
    A = 40
    for j in range(5):
        for e in range(8): a(f"v_dot2_f32_bf16 v{A+e}, v{20+4*j+e//2}, v{(14 if e&1 else 8)+j}, " + ("0" if j == 0 else f"v{A+e}"))
    for i in range(4): a(f"v_permlane32_swap_b32 v{A+i}, v{A+4+i}")
    for i in range(4): a(f"v_add_f32 v{A+i}, v{A+i}, v{A+4+i}")
    for i in range(2): a(f"v_permlane16_swap_b32 v{A+i}, v{A+2+i}")
    for i in range(2): a(f"v_add_f32 v{A+i}, v{A+i}, v{A+2+i}")
    for i in range(2): a(f"v_add_f32_dpp v{A+i}, v{A+i}, v{A+i} row_ror:8 row_mask:0xf bank_mask:0xf")
    a(f"""
    ds_write_b64 v6, v[{A}:{A+1}]
    v_lshlrev_b32 v1, 2, v0
    s_mul_i32 s12, s10, {3840*4}
    s_lshl_b32 s13, s11, 8
    s_add_u32 s12, s12, s13
    s_add_u32 s12, s12, {MODP}
    v_add_u32 v2, s12, v1
    s_waitcnt lgkmcnt(0)
    s_barrier
    s_cmp_lg_u32 s20, 0
    s_cbranch_scc1 k1_end
    ds_read2st64_b32 v[8:9], v1 offset0:0 offset1:1
    ds_read2st64_b32 v[10:11], v1 offset0:2 offset1:3
    v_add_f32 v8, v8, v9
    v_add_f32 v10, v10, v11
    v_add_f32 v8, v8, v10
    global_store_dword v2, v8, s[8:9]
    """)
def role_stat(a):
    ldp(a, 4, 'x'); ldp(a, 8, 'ws')
    a(f"""
    s_lshr_b32 s10, s3, 2
    s_and_b32 s11, s3, 3
    s_lshl_b32 s12, s10, 6
    s_lshl_b32 s13, s20, 4
    s_add_u32 s12, s12, s13
    s_lshl_b32 s13, s11, 1
    s_add_u32 s12, s12, s13
    v_bfe_u32 v1, v0, 1, 1
    v_and_b32 v2, 1, v0
    v_lshl_add_u32 v1, v1, 3, v2
    v_add_u32 v1, s12, v1              ; row
    v_bfe_u32 v2, v0, 2, 4             ; chunk
    v_mul_u32_u24 v3, 1280, v1
    v_lshl_add_u32 v3, v2, 4, v3
    s_waitcnt lgkmcnt(0)
    """)
    for j in range(5): a(f"global_load_dwordx4 v[{8+4*j}:{11+4*j}], v3, s[4:5] offset:{256*j}")
    a(f"""
    s_lshr_b32 s12, s10, 3
    s_lshl_b32 s12, s12, 12
    s_lshl_b32 s13, s11, 10
    s_add_u32 s12, s12, s13
    s_and_b32 s13, s10, 7
    s_lshl_b32 s13, s13, 7
    s_add_u32 s12, s12, s13
    s_lshl_b32 s13, s20, 5
    s_add_u32 s12, s12, s13
    v_and_b32 v1, 3, v0
    v_lshl_add_u32 v5, v1, 3, s12
    v_mul_u32_u24 v4, {2*XRS}, v2
    v_add_u32 v4, v4, v5
    v_add_u32 v4, {XR}, v4
    v_add_u32 v5, {STAT}, v5
    s_lshl_b32 s12, s3, 11
    s_add_u32 s12, s12, {PST}
    v_lshl_add_u32 v6, v0, 3, s12
    v_mov_b32 v34, -1.0
    v_mov_b32 v35, -1.0
    global_store_dwordx2 v6, v[34:35], s[8:9]
    s_mul_i32 s12, s3, {FLG_BYTES//128}
    s_add_u32 s12, s12, {FLG}
    v_min_u32 v6, {FLG_BYTES//128//4 - 1}, v0
    v_lshl_add_u32 v6, v6, 2, s12
    v_mov_b32 v7, 0
    global_store_dword v6, v7, s[8:9]
    s_mov_b32 s12, 0x3f803f80
    """)
    for j in range(5):
        a(f"global_store_dwordx2 v4, v[{8+4*j}:{9+4*j}], s[8:9]\nv_add_u32 v6, {XRS}, v4")
        a(f"global_store_dwordx2 v6, v[{10+4*j}:{11+4*j}], s[8:9]")
        if j < 4: a(f"v_add_u32 v4, {32*XRS}, v4")
        for k in range(4):
            r = 8 + 4 * j + k; f = j == 0 and k < 2
            a(f"v_dot2_f32_bf16 v{30+(k&1)}, v{r}, s12, " + ("0" if f else f"v{30+(k&1)}"))
            a(f"v_dot2_f32_bf16 v{32+(k&1)}, v{r}, v{r}, " + ("0" if f else f"v{32+(k&1)}"))
    a(f"""
    v_add_f32 v30, v30, v31
    v_add_f32 v32, v32, v33
    v_permlane32_swap_b32 v30, v32
    v_add_f32 v30, v30, v32
    v_mov_b32 v31, v30
    v_permlane16_swap_b32 v30, v31
    v_add_f32 v30, v30, v31
    v_add_f32_dpp v30, v30, v30 row_ror:8 row_mask:0xf bank_mask:0xf
    v_add_f32_dpp v30, v30, v30 row_ror:4 row_mask:0xf bank_mask:0xf
    v_mul_f32 v30, 0x3acccccd, v30
    v_mov_b32 v31, v30
    v_permlane32_swap_b32 v30, v31
    v_fma_f32 v31, -v30, v30, v31
    v_max_f32 v31, 0, v31
    v_add_f32 v31, 0x3727c5ac, v31
    v_rsq_f32 v32, v31
    v_mul_f32 v33, v30, v32
    v_sub_f32 v33, 0, v33
    s_mov_b64 exec, 0xf
    global_store_dwordx2 v5, v[32:33], s[8:9]
    """)
def role_wd(a):
    ldp(a, 4, 'wd'); ldp(a, 8, 'ws')
    a(f"""
    s_lshr_b32 s10, s3, 1
    s_and_b32 s11, s3, 1
    s_lshl_b32 s11, s11, 2
    s_add_u32 s11, s11, s20            ; db
    s_mul_i32 s12, s10, {32*1280}
    s_mul_i32 s13, s11, 160
    s_add_u32 s12, s12, s13
    s_mul_i32 s14, s20, 5120
    v_and_b32 v1, 63, v0
    s_mov_b32 s15, 6554
    """)
    for i in range(5):
        a(f"v_add_u32 v2, {64*i}, v1\nv_mul_lo_u32 v3, s15, v2\nv_lshrrev_b32 v3, 16, v3\nv_mul_u32_u24 v3, {1280-160}, v3\nv_lshl_add_u32 v3, v2, 4, v3\nv_add_u32 v{8+i}, s12, v3")
    a("s_waitcnt lgkmcnt(0)")
    for i in range(5): a(f"s_add_u32 m0, s14, {1024*i}\nglobal_load_lds_dwordx4 v{8+i}, s[4:5]")
    a(f"""
    v_lshrrev_b32 v2, 4, v1
    v_bfe_u32 v3, v1, 2, 2
    v_lshl_add_u32 v2, v2, 3, v3
    v_mul_u32_u24 v2, 160, v2
    v_and_b32 v3, 3, v1
    v_lshl_add_u32 v2, v3, 3, v2
    v_add_u32 v2, s14, v2
    s_mul_i32 s12, s11, {48*5120}
    s_mul_i32 s13, s10, 5120
    s_add_u32 s12, s12, s13
    s_add_u32 s12, s12, {WD + 2048}
    v_lshl_add_u32 v4, v1, 4, s12
    s_waitcnt vmcnt(0)
    """)
    for jj in range(5):
        for hh in range(2): a(f"ds_read_b64_tr_b16 v[{16+4*jj+2*hh}:{17+4*jj+2*hh}], v2 offset:{32*jj + 640*hh}")
    for jj in range(5): a(f"global_store_dwordx4 v4, v[{16+4*jj}:{19+4*jj}], s[8:9] offset:{1024*jj-2048}")
def k1(stamp=None):
    a = Asm()
    a(f"""
    v_lshrrev_b32 v1, 6, v0
    s_cmp_ge_u32 s2, {K1_GRID}
    s_cbranch_scc1 k1_end
    v_readfirstlane_b32 s20, v1
    """)
    if stamp: stamp(a, 0)
    a(f"""
    s_cmp_ge_u32 s2, {N_PF}
    s_cbranch_scc1 k1_work
    s_getpc_b64 s[4:5]
k1_pc:
    v_lshlrev_b32 v1, 7, v0
    v_mov_b32 v3, s5
    v_mov_b32 v5, s5
    v_min_u32 v2, code_end-k1_pc-4, v1
    v_add_u32 v1, 0x8000, v1
    v_min_u32 v4, code_end-k1_pc-4, v1
    v_add_co_u32 v2, vcc, s4, v2
    v_addc_co_u32 v3, vcc, 0, v3, vcc
    v_add_co_u32 v4, vcc, s4, v4
    v_addc_co_u32 v5, vcc, 0, v5, vcc
    global_load_dword v6, v[2:3], off
    global_load_dword v7, v[4:5], off
    s_endpgm
k1_work:
    s_sub_u32 s3, s2, {N_PF}
    s_cmp_lt_u32 s3, {N_KG}
    s_cbranch_scc1 k1_kgen
    s_sub_u32 s3, s3, {N_KG}
    s_cmp_lt_u32 s3, {N_MOD}
    s_cbranch_scc1 k1_mod
    s_sub_u32 s3, s3, {N_MOD}
    s_cmp_lt_u32 s3, {N_ST}
    s_cbranch_scc1 k1_stat
    s_sub_u32 s3, s3, {N_ST}
    """)
    fin = (lambda: (stamp(a, 'end'), a("s_endpgm"))) if stamp else (lambda: a("s_endpgm"))
    role_wd(a); fin()
    a("k1_stat:"); role_stat(a); fin()
    a("k1_mod:"); role_mod(a); fin()
    a("k1_kgen:"); role_kgen(a, stamp); fin()
    a("k1_end:\ns_endpgm")
    return a
```

```python
from asmlib import *
from layout import *
import conv_model as cm
from gen_k1 import ldp, P, cmul, AROWS, arow_map, SPECIAL, LOG2E, INV2PI
from gen_k2 import V4, A4, mf, round_pair
import struct, math
F_LDS = 163840; F_ACC = 256; F_VGPR = 512
HST, XST = 4608, 4160
KGS = 54*272
L_KG = 0; L_H = 81920; L_XT = L_H + 4*HST; L_TAB = L_XT + 4*XST; L_XS = L_TAB + 4*3072
OPT = dict(her=0, wl=36, sbq=6, gather=1, htouch=(0, 4), hstat=(1, 2), hgat=((1,0),(1,4),(1,8),(1,12),(2,2),(2,6),(2,10),(3,0)), hsl2=(2, 12), dst=3, b1f=2, short=0, dense=2, pair=0, win0=9, dlim=60, late=0, pb=2, gbp=50, ba1=44, ba2=40, b1i=3, b1c=5, sat1=6, cc0=17, hrate=2, hsl=10, b2=24, b3=84, sat=1, xtl=3, vg=4, NX=0, pq=2, hwd=((0, 6), (0, 12), (1, 4)), hwd2=(1, 13), wfirst=0, nh=10, far1=8, lead=8, xbar=56, w0=170, NE=0, TA=1, TB=16, g2=8, GM=11, cf0=2, cp0=15, fC1=8, pI=14, pc=19, edr=4, NA=3, w1early=0, N0b=4, aw0=0, aw1=5, morder=0x532104, pf=1, gopos=2, hrow1=(0, 4), hrow2=(0, 5), nd1=12, hgo=(1, 0), hgo2=(1, 7), hpoll=(2, 0), hchk=((2, 7), (3, 0)), ntab=23, npre=70, nmid1=40, nmid2=90, cpf=0, hpf=(0, 0), spread=1, wspan=8, xrate=[1,1,1,1,1,1,2,2,2,2], xlag=2, xall=12, vmc=1, gstat=(0, 10), N0=6, N1=10, N2=6, xd=3, M0=2, M1=60, win=11, rbx=8, gissue=(5, 14), gcheck=(7, 16), wdrate=6)
OPT.update(N1=8,b1i=5,b1c=7,sat1=8,cp0=18,cc0=20,NE=16,w0=120,fC1=8,pI=16,pc=21,gstat=(0,10),xrate=[2,2,1,1,1,1,2,2,2,2,2],ba2=25,vg=3,gissue=(6,15),gcheck=(8,16),GM=12,win=9,xtl=4,xd=4)
OPT.update(cf0=3,b1i=5,b1c=7,sat1=7,gstat=(0,9),gissue=(6,13),gcheck=(8,16),GM=12,hpoll=(2,7),hchk=((3,0),),cp0=17,cc0=19,xrate=[2,1,1,1,1,1,2,2,1,1,1,1],NA=4,dense=3,lead=6,vg=4,hgo=(0,12),hgo2=(1,4),hrate=1,win=9,ntab=31)
OPT.update(xfirst=0, nmid=130, hrow=(0, 10), hgo=(1, 8), hpoll=(2, 7), hchk=((3, 0),))
OPT.update(cp0=18,cc0=20,aw0=0,aw1=7,cf0=2,hpoll=(2,5),gissue=(6,14),gcheck=(8,16))
SPINS = []; DIAG = [0]; DEFER = []
SC = " sc1"
def f2u(x): return hex(struct.unpack('<I', struct.pack('<f', x))[0])
VWV = 106
VWF = 110
def wld(q):
    r = [f"global_load_dwordx4 {A4(4*q)}, v3, s[22:23] offset:{1024*(q&7)-4096}" + SC]
    if q & 7 == 7: r.append(f"v_add_u32 v3, 8192, v3")
    return r
def ids(a, VWF=VWF, VWV=VWV):
    rbx = OPT['rbx']; cbx = 32 // rbx; gx = 16 // cbx
    a(f"""
    s_and_b32 s4, s2, 7
    s_lshr_b32 s5, s2, 3
    s_and_b32 s60, s4, {gx-1}
    s_mul_i32 s60, s60, {cbx}
    s_and_b32 s6, s5, {cbx-1}
    s_add_u32 s60, s60, s6
    s_lshr_b32 s61, s4, {gx.bit_length()-1}
    s_mul_i32 s61, s61, {rbx}
    s_lshr_b32 s6, s5, {cbx.bit_length()-1}
    s_add_u32 s61, s61, s6
    s_lshl_b32 s62, s60, 2
    s_add_u32 s62, s62, s20
    s_mul_i32 s6, s62, 3
    v_bfe_u32 v{VWF}, v1, 2, 2
    v_min_u32 v{VWF}, 2, v{VWF}
    v_add_u32 v{VWF}, s6, v{VWF}                 ; tile T
    v_lshrrev_b32 v{VWF}, 3, v{VWF}              ; G
    v_lshlrev_b32 v{VWF}, 9, v{VWF}
    v_and_b32 v{VWV}, 3, v1
    v_lshl_add_u32 v{VWF}, v{VWV}, 7, v{VWF}
    s_add_u32 s6, s100, {32*128}
    v_add_u32 v{VWF}, s6, v{VWF}
    """)
def spin(a, late, name, loads, chk, back):
    SPINS.append(name)
    late.append(f"{name}:\n" + (f"s_or_b32 s101, s101, {1 << (len(SPINS)-1)}\n" if DIAG[0] else "") + f"s_mov_b32 s64, 0\n{name}_l:\ns_waitcnt vmcnt(0)\ns_sleep 2\n" + "\n".join(loads) + "\ns_waitcnt vmcnt(0)\n" + "\n".join(chk) +
                f"\ns_add_u32 s64, s64, 1\ns_cmp_ge_u32 s64, 0x40000\ns_cbranch_scc1 {back}\ns_cbranch_vccnz {name}_l\ns_branch {back}")
ONE_V = 248
def chk4(r, n=4):
    c = [f"v_xor_b32 v{r+k}, s65, v{r+k}" for k in range(n)]
    c += [f"v_or3_b32 v{r}, v{r}, v{r+1}, v{r+2}", f"v_or_b32 v{r}, v{r}, v{r+3}"] if n == 4 else []
    return c + [f"v_cmp_ne_u32 vcc, 0, v{r}"]
def M(mask, ins): return f"s_mov_b64 exec, {mask}\n{ins}\ns_mov_b64 exec, -1"
def tagchk(r, mask): return f"v_cmp_ne_u32 vcc, s65, v{r}\ns_and_b64 vcc, vcc, {mask}"
def U_(l): return "\n".join(x + " ; untracked" if x.startswith('global') else x for x in l.split("\n"))
def nonce(a):
    a(f"v_readfirstlane_b32 s65, v{ONE_V}\ns_mul_i32 s65, s65, 0x9e3779b5\ns_add_u32 s65, s65, 0x7f4a7c15\nv_mov_b32 v{ONE_V}, s65")
EPOLD = M(1, f"global_load_dword v{ONE_V}, v247, s[22:23] sc1")
def publish(a, name, old, n, vaddr, vval):
    a(f"v_readfirstlane_b32 s4, v{old}\ns_cmp_lg_u32 s4, {n-1}\ns_cbranch_scc1 {name}\nglobal_store_dwordx4 v{vaddr}, {V4(vval)}, s[22:23] sc1 ; untracked")
def rep_addr(r, sb):
    return [f"v_lshrrev_b32 v{r}, 3, v1", f"v_mul_u32_u24 v{r}, {GOS - 128}, v{r}", f"v_lshl_add_u32 v{r}, v1, 4, v{r}", f"v_add_u32 v{r}, s{sb}, v{r}"]
def flag_addr(line0, r, val, dense=False):
    if dense:
        return ["s_bfe_u32 s4, s63, 0x20002", "s_lshl_b32 s4, s4, 4", "s_lshr_b32 s5, s63, 4", "s_add_u32 s4, s4, s5", "s_lshl_b32 s4, s4, 2", "s_and_b32 s5, s63, 3",
                "s_add_u32 s4, s4, s5", "s_lshl_b32 s4, s4, 4", f"s_add_u32 s4, s4, {GOB + 128*line0}", f"v_mul_u32_u24 v{r}, {GOS}, v1", f"v_add_u32 v{r}, s4, v{r}", f"v_mov_b32 v{val}, s65"]
    return ["s_lshl_b32 s4, s63, 7", f"s_add_u32 s4, s4, {GOB + 128*line0}"] + rep_addr(r, 4) + [f"v_mov_b32 v{val}, s65"]
def flag_set(tag, r, val, single=False, off=0, dense=False):
    st = [M("0xffffffff", f"global_store_dword v{r}, v{val}, s[22:23] offset:{off} sc1 ; untracked")] if single else [f"global_store_dwordx4 v{r}, {V4(val)}, s[22:23] sc1 ; untracked"]
    if dense: st = [M("0xff", st[0])]
    return ["s_cmp_lg_u32 s20, 0", f"s_cbranch_scc1 f_na{tag}"] + st + [f"f_na{tag}:"]
def rows_addr(a):
    a(f"""
    s_and_b32 s40, s2, 3               ; j
    s_bfe_u32 s41, s2, 0x50002         ; uo
    s_lshl_b32 s42, s41, 5
    s_lshl_b32 s43, s20, 3
    s_add_u32 s42, s42, s43
    s_add_u32 s42, s42, s40
    s_mul_i32 s42, s42, 2560
    v_lshrrev_b32 v3, 1, v6
    v_and_b32 v4, 1, v6
    v_lshl_add_u32 v2, v3, 3, v4
    v_mul_u32_u24 v2, 1280, v2
    v_lshl_add_u32 v2, v5, 4, v2
    v_add_u32 v2, s42, v2
    """)
def rows_issue(a):
    for i in range(5): a(f"global_load_dwordx4 {V4(8+4*i)}, v2, s[36:37] offset:{256*i}")
def rows_addr2(a):
    a(f"""
    s_lshl_b32 s42, s20, 5
    s_add_u32 s43, s42, {L_XS}
    v_mul_u32_u24 v28, 144, v5
    v_add3_u32 v28, v28, v7, s43
    s_lshr_b32 s43, s41, 3
    s_lshl_b32 s43, s43, 12
    s_lshl_b32 s44, s40, 10
    s_add_u32 s43, s43, s44
    s_and_b32 s44, s41, 7
    s_lshl_b32 s44, s44, 7
    s_add_u32 s43, s43, s44
    s_add_u32 s44, s43, s42
    s_add_u32 s44, s44, {STAT}
    v_add_u32 v31, s44, v7
    s_and_b32 s44, s20, 1
    s_mul_i32 s44, s44, 40
    v_lshrrev_b32 v3, 3, v1
    v_add_u32 v3, s44, v3              ; chunk
    v_and_b32 v4, 7, v1
    v_lshlrev_b32 v4, 4, v4
    v_mul_u32_u24 v29, 144, v3
    s_lshr_b32 s44, s20, 1
    s_mul_i32 s42, s44, {80*144}
    s_add_u32 s42, s42, {L_XS}
    v_add3_u32 v29, v29, v4, s42
    v_mul_u32_u24 v30, {2*XRS}, v3
    s_mul_i32 s44, s44, {XRS}
    s_add_u32 s43, s43, s44
    s_add_u32 s43, s43, {XR}
    v_add3_u32 v30, v30, v4, s43
    s_lshl_b32 s44, s2, 4
    s_add_u32 s44, s44, {GOB}
    v_mul_u32_u24 v246, {GOS}, v1
    v_add_u32 v246, s44, v246
    s_mov_b32 s45, 0x3f803f80
    s_mov_b32 s46, 0x00010001
    s_mov_b32 s47, 0x00010001
    """)
def rows_process(a, stamp, RB):
    for i in range(5):
        for h in range(2): a(f"ds_write_b64 v28, {P(8+4*i+2*h)} offset:{16*144*i + 80*144*h}")
    d = []
    for k in range(20):
        d += [f"v_dot2_f32_bf16 v{32+(k&1)}, v{8+k}, s45, " + ("0" if k < 2 else f"v{32+(k&1)}"),
              f"v_dot2_f32_bf16 v{34+(k&1)}, v{8+k}, v{8+k}, " + ("0" if k < 2 else f"v{34+(k&1)}")]
    nd = OPT['nd1']
    for l in d[:nd]: a(l)
    a("s_waitcnt lgkmcnt(0)\ns_barrier")
    for k in range(5): a(f"ds_read_b128 {V4(RB[k])}, v29 offset:{8*144*k}")
    for l in d[nd:nd+16]: a(l)
    f = d[nd+16:] + ["s_nop 1", "v_add_f32 v32, v32, v33", "v_add_f32 v33, v34, v35"]
    for r in (8, 4, 2, 1): f += [f"v_add_f32_dpp v{32+k}, v{32+k}, v{32+k} row_ror:{r} row_mask:0xf bank_mask:0xf" for k in range(2)]
    st = []
    for k in range(5): st += [f"global_store_dwordx4 v30, {V4(RB[k])}, s[22:23] sc1"] + ([f"v_add_u32 v30, {16*XRS}, v30"] if k < 4 else [])
    for l in interleave(st, f): a(l)
    a(f"""
    v_mul_f32 v32, 0x3acccccd, v32
    v_mul_f32 v33, 0x3acccccd, v33
    v_fma_f32 v33, -v32, v32, v33
    v_max_f32 v33, 0, v33
    v_add_f32 v33, 0x3727c5ac, v33
    v_rsq_f32 v34, v33
    s_mov_b64 exec, s[46:47]
    v_mul_f32 v35, -v32, v34
    global_store_dwordx2 v31, v[34:35], s[22:23] sc1
    s_mov_b64 exec, -1
    """)
def role_conv(a, stamp, late):
    O = OPT
    X, S, SA, CA, BND, SP, U, HP = 8, 24, 40, 44, 48, 72, 76, 84
    a(f"s_load_dwordx16 s[4:19], s[0:1], {KARG['are']}")
    B = 112
    RAW, VB, VA, DT, ONE, KR, BB, CC, E1, H, T0, XX, PB, F, ZZ, ACK = (B, B+12, B+13, B+14, B+15, B+16, B+18, B+20, B+22, B+24, B+26, B+28, B+32, B+36, B+54, B+92)
    G = F + 16; PK = ZZ + 14
    TB, TS, T2A, T3A, DSK, SPC, VPA, VMD, VXR, VST, VPF = 220, 221, 222, 223, 224, 228, 225, 227, 232, 233, 234
    PLA, MD = 236, 240
    VH, VTD, VT2, VT3, VXD, VW, VO, GA, VTD0 = 100, 101, 102, 103, 104, 105, 107, 108, 109
    a(f"""
    s_and_b32 s21, s2, 7
    s_mul_i32 s21, s21, 20
    s_lshr_b32 s3, s2, 3
    s_add_u32 s21, s21, s3             ; cg
    s_lshl_b32 s48, s21, 2
    s_add_u32 s48, s48, s20            ; channel
    s_mul_i32 s25, s48, 384
    v_lshl_add_u32 v{T0}, v1, 2, s25
    v_lshl_add_u32 v{T0+1}, v1, 1, s25
    s_lshr_b32 s26, s48, 1
    s_lshl_b32 s26, s26, 2
    v_and_b32 v5, 15, v1
    v_lshrrev_b32 v6, 4, v1
    v_lshlrev_b32 v7, 3, v6
    """)
    rows_addr(a)
    c = Asm()
    rows_addr2(c)
    nrow = len(c.ins)
    c(f"""
    s_min_u32 s30, s2, 127
    s_lshl_b32 s30, s30, 11
    s_add_u32 s30, s30, {PST}
    v_lshl_add_u32 v{U+4}, v0, 3, s30
    v_mov_b32 v{U+6}, -1.0
    v_mov_b32 v{U+7}, -1.0
    s_mul_i32 s29, s20, {KGS}
    s_mov_b32 m0, s29
    v_and_b32 v{VB}, 31, v1
    v_mul_u32_u24 v{VB}, 272, v{VB}
    v_lshrrev_b32 v{U}, 5, v1
    v_lshl_add_u32 v{U}, v{U}, 4, s29
    v_add_u32 v{VB}, v{VB}, v{U}
    v_mov_b32 v{ONE}, 0x3f80
    v_mov_b32 v{DSK}, 0
    s_mov_b32 s34, {LOG2E}
    s_mov_b32 s35, {INV2PI}
    """)
    m = arow_map()
    c(f"v_and_b32 v{U+1}, 31, v1\nv_lshrrev_b32 v{U+2}, 2, v{U+1}\nv_and_b32 v{U+1}, 3, v{U+1}\nv_lshlrev_b32 v{U+1}, 3, v{U+1}")
    for q in range(8):
        w = sum(m[4*q+k] << (8*k) for k in range(4))
        if q == 0: c(f"v_mov_b32 v{VA}, {w}")
        else: c(f"v_cmp_eq_u32 vcc, {q}, v{U+2}\nv_mov_b32 v{U+3}, {w}\nv_cndmask_b32 v{VA}, v{VA}, v{U+3}, vcc")
    c(f"v_bfe_u32 v{VA}, v{VA}, v{U+1}, 8\nv_mul_u32_u24 v{VA}, 272, v{VA}\nv_add_u32 v{VA}, v{VA}, v{U}")
    keys = ['r2q0', 'r2q1', None, 'r2q3', 'r3e', 'r3o', 'sp']
    for k, key in enumerate(keys):
        if key is None: continue
        if key == 'sp': mk = 3 << 12
        else: co, w, sh = cm.BANDS[key]; mk = ((1 << (2*w+1)) - 1) << (co + sh - w)
        c(f"v_mov_b32 v{U}, {mk}\nv_lshlrev_b32 v{U}, v5, v{U}\nv_lshrrev_b32 v{U}, v7, v{U}")
        c(f"v_and_b32 v{U}, 0xff, v{U}\nv_mul_u32_u24 v{U}, 0x8001, v{U}")
        for w in range(4):
            d = BND + 4*k + w
            if w: c(f"v_lshrrev_b32 v{U}, 2, v{U}")
            c(f"v_and_b32 v{d}, 0x10001, v{U}")
            if key != 'sp': c(f"v_mul_u32_u24 v{d}, 0x3f80, v{d}")
    c(f"""
    s_mul_i32 s24, s20, 3072
    s_add_u32 s24, s24, {L_TAB}
    s_mul_i32 s30, s20, {HST}
    s_add_u32 s30, s30, {L_H}
    v_lshlrev_b32 v{VH}, 5, v5
    v_lshl_add_u32 v{VH}, v6, 4, v{VH}
    v_add_u32 v{VH}, s30, v{VH}
    v_lshl_add_u32 v106, v1, 3, s30
    v_and_b32 v{U}, 1, v5
    v_mul_u32_u24 v{U}, {2*((cm.CH_O*8+7) - (cm.CH_E*8+8))}, v{U}
    v_sub_u32 v{VTD}, v7, v5
    v_lshl_add_u32 v{VTD}, v{VTD}, 1, v{U}
    v_add_u32 v{VTD}, {2*(cm.CH_E*8+8-16-32*16)}, v{VTD}
    v_add_u32 v{VTD}, s24, v{VTD}
    v_add_u32 v{VTD0}, 1024, v{VTD}
    v_lshlrev_b32 v{U}, 2, v6
    v_sub_u32 v{U}, v{U}, v5                    ; 4g - col
    v_lshl_add_u32 v{VT2}, v{U}, 3, s24
    v_lshl_add_u32 v{VT3}, v{U}, 2, s24
    v_add_u32 v{VT3}, {2*(cm.CH_T3*8+256-2-32*7)}, v{VT3}
    s_mul_i32 s30, s20, {XST}
    s_add_u32 s30, s30, {L_XT}
    v_lshlrev_b32 v{VXD}, 5, v5
    v_add3_u32 v{VXD}, v{VXD}, v7, s30
    v_lshlrev_b32 v{VW}, 4, v0
    v_add_u32 v{VW}, {L_H}, v{VW}
    v_lshlrev_b32 v{U}, 4, v1
    v_sub_u32 v{TB}, s24, v{U}
    v_lshlrev_b32 v{U}, 2, v1
    v_sub_u32 v{T2A}, s24, v{U}
    v_lshlrev_b32 v{U}, 1, v1
    v_sub_u32 v{T3A}, s24, v{U}
    v_and_b32 v{TS}, 31, v1
    v_mov_b32 v{U}, v{TS}
    """)
    prev = 0
    for k in range(1, 32):
        step = SPECIAL[k] - k
        if step != prev:
            c(f"v_cmp_le_u32 vcc, {k}, v{U}\nv_mov_b32 v{U+1}, {step-prev}\nv_cndmask_b32 v{U+1}, 0, v{U+1}, vcc\nv_add_u32 v{TS}, v{TS}, v{U+1}"); prev = step
    c(f"v_lshl_add_u32 v{TS}, v{TS}, 4, s24")
    for r in range(4): c(f"v_mov_b32 v{SPC+r}, 0")
    c(f"""
    s_lshl_b32 s31, s20, 12
    s_lshl_b32 s30, s20, 9
    s_add_u32 s30, s30, s100
    v_lshl_add_u32 v{VPA}, v1, 4, s30
    v_lshl_add_u32 v{VST}, v1, 4, s31
    s_mul_i32 s30, s21, {XRS}
    s_add_u32 s30, s30, {XR}
    v_add_u32 v{VXR}, s30, v{VST}
    v_add_u32 v{VST}, {STAT}, v{VST}
    v_bfe_u32 v{U}, v1, 2, 2                    ; ks
    v_and_b32 v{U+1}, 1, v6
    v_mul_u32_u24 v{U}, 30720, v{U}
    s_lshl_b32 s30, s48, 3
    s_add_u32 s30, s30, {MODT + 2*5120}
    v_add_u32 v111, s30, v{U}
    v_mul_u32_u24 v{VMD}, 5120, v{U+1}
    v_add_u32 v{VMD}, v{VMD}, v{U}
    v_and_b32 v{U}, 3, v1
    v_lshlrev_b32 v{U}, 3, v{U}
    s_lshl_b32 s30, s21, 5
    s_add_u32 s30, s30, {MODT}
    v_add3_u32 v{VMD}, v{VMD}, v{U}, s30
    v_cvt_f32_u32 v{MD+2}, v{U+1}
    """)
    cl = [i.text for i in c.ins]
    def deal(n):
        while cl and (n > 0 or 'vcc' in cl[0].split(',')[-1] or (len(cl) > 1 and cl[1].startswith('v_cndmask'))): a(cl.pop(0)); n -= 1
    deal(O['npre'])
    a("s_waitcnt lgkmcnt(0)")
    if stamp: stamp(a, 'ka')
    a("s_load_dword s27, s[16:17], s26\ns_load_dword s28, s[18:19], s26")
    p1 = [f"global_load_dword v{RAW+i}, v{T0}, s[{4+2*i}:{5+2*i}]" for i in range(6)]
    p2 = [f"global_load_ushort v{RAW+6+i}, v{T0+1}, s[{4+2*i}:{5+2*i}] offset:256" for i in range(6)]
    def rows(nyoung):
        a(f"s_cmp_ge_u32 s2, 128\ns_cbranch_scc1 u_norow\ns_waitcnt vmcnt({nyoung})")
        rows_process(a, stamp, [84, 88, 92, 96, 40])
        a(f"global_store_dwordx2 v{U+4}, {P(U+6)}, s[22:23] sc1\ns_waitcnt lgkmcnt(0)\nCLEARVM\nu_norow:")
        if stamp: stamp(a, 'row2')
    xf = O['xfirst']
    for l in ([] if xf else p1 + [EPOLD]): a(l)
    a("s_cmp_ge_u32 s2, 128\ns_cbranch_scc1 u_noiss")
    rows_issue(a)
    a("CLEARVM\nu_noiss:")
    for l in (p1 + [EPOLD] if xf else []) + p2: a(l)
    a("CLEARVM")
    if stamp: stamp(a, 'iss')
    if xf:
        deal(O['nmid']); rows(13)
    deal(999)
    a(f"s_waitcnt lgkmcnt(0)\ns_cmp_ge_u32 s2, 128\ns_cbranch_scc1 u_w0\ns_waitcnt vmcnt({13 if xf else 11})\ns_branch u_w1\nu_w0:\ns_waitcnt vmcnt(6)\nu_w1:\ns_mov_b32 s49, 0")
    nonce(a)
    a(f"""
    ds_write_b64 v106, {P(SPC)}
    s_and_b32 s30, s48, 1
    s_lshl_b32 s30, s30, 4
    s_lshr_b32 s27, s27, s30
    s_lshl_b32 s27, s27, 16
    s_lshr_b32 s28, s28, s30
    s_lshl_b32 s28, s28, 16
    v_mov_b32 v{DT}, {LOG2E}
    v_mul_f32 v{DT}, s27, v{DT}
    v_exp_f32 v{DT}, v{DT}
    v_writelane_b32 v{DSK}, s28, 0
    v_cvt_pk_bf16_f32 v{DT}, v{DT}, v{DT}
    v_and_b32 v{DT}, 0xffff0000, v{DT}
    s_mov_b32 s14, 0x05040100
    s_mov_b32 s15, 0x07060302
    """)
    pollA = [M("0xffffffff", f"global_load_dword v{PLA}, v{VPA}, s[22:23] sc1")]
    chkA = [tagchk(PLA, "0xffffffff")]
    mdl = M("0xffffffff", f"global_load_dwordx2 {P(MD)}, v{VMD}, s[22:23] sc1")
    hl = []
    for j in range(4): hl += [f"global_load_dwordx4 {V4(X+4*j)}, v{VXR}, s[22:23] offset:{1024*j} sc1", f"global_load_dwordx4 {V4(S+4*j)}, v{VST}, s[22:23] offset:{1024*j} sc1"]
    def hook(pos):
        if pos == O['hrow'] and not xf: rows(6)
        if pos == O['hgo']:
            a("s_cmp_ge_u32 s2, 128\ns_cbranch_scc1 f_naa\ns_waitcnt vmcnt(0) ; untracked\ns_barrier")
            for l in flag_set('a', 246, ONE_V, dense=True): a(l)
            if stamp: stamp(a, 'flagA')
        if pos == O['hpoll']: a(U_(mdl) + f"\ns_cmp_ge_u32 s2, 128\ns_cbranch_scc1 u_nopoll\n{U_(pollA[0])}\nu_nopoll:")
        if pos in O['hchk']:
            n = f"u_try{pos[0]}_{pos[1]}"
            a(f"s_cmp_lg_u32 s49, 0\ns_cbranch_scc1 {n}\ns_waitcnt vmcnt(0)\ns_cmp_ge_u32 s2, 128\ns_cbranch_scc1 {n}\n{chkA[0]}\ns_cbranch_vccz {n}_ok\n{U_(pollA[0])}\n{n}:")
            late.append(f"{n}_ok:\n" + "\n".join(l + " ; untracked" for l in hl) + f"\ns_mov_b32 s49, 1\ns_branch {n}")
    pend = []; ard = []
    for rd in range(3):
        FB, FA = 64*(rd & 1), 64*(rd & 1) + 32
        s = []
        for i, d in enumerate((KR, KR + 1, BB, BB + 1, CC, CC + 1)):
            if rd == 0: s.append(f"v_lshlrev_b32 v{d}, 16, v{RAW+i}")
            elif rd == 1: s.append(f"v_and_b32 v{d}, 0xffff0000, v{RAW+i}")
            else: s.append(f"v_lshlrev_b32 v{d}, 16, v{RAW+6+i}")
        s.append(f"v_pk_mul_f32 {P(KR)}, {P(KR)}, {P(DT)} op_sel_hi:[1,0]")
        s.append(f"v_pk_mul_f32 {P(BB)}, {P(BB)}, {P(DT)} op_sel_hi:[1,0]")
        s.append(f"v_pk_mul_f32 {P(KR)}, {P(KR)}, s[34:35]")
        s += [f"v_mul_f32 v{XX}, 0x41000000, v{KR}", f"v_mul_f32 v{XX+1}, 0x41000000, v{KR+1}", f"v_exp_f32 v{XX}, v{XX}", f"v_fract_f32 v{XX+1}, v{XX+1}",
              f"v_cos_f32 v{F+2}, v{XX+1}", f"v_sin_f32 v{F+3}, v{XX+1}", f"v_exp_f32 v{XX+2}, v{KR}", f"v_fract_f32 v{XX+3}, v{KR+1}",
              f"v_cos_f32 v{E1}, v{XX+3}", f"v_sin_f32 v{E1+1}, v{XX+3}",
              f"v_pk_mul_f32 {P(F+2)}, {P(F+2)}, {P(XX)} op_sel_hi:[1,0] neg_hi:[1,0]", f"v_pk_mul_f32 {P(E1)}, {P(E1)}, {P(XX+2)} op_sel_hi:[1,0]"]
        if rd == 2: a("s_cmp_lt_u32 s2, 128\ns_cbranch_scc1 u_p2ok\ns_waitcnt vmcnt(0)\nu_p2ok:" if O['hgo'] < (2, 0) else "s_waitcnt vmcnt(7)\ns_cmp_lt_u32 s2, 128\ns_cbranch_scc1 u_p2ok\ns_waitcnt vmcnt(0)\nu_p2ok:")
        if stamp: stamp(a, f'r{rd}')
        for l in s: a(l)
        vals = [([], None, 0), ([], F + 2, 1)]
        for j in range(2, 9): vals.append((cmul(F + 2*j, F + 2*(j-1), F + 2, T0), F + 2*j, j))
        for j in range(9, 32):
            z = F + 2*(j & 7)
            if j == 16:
                vals.append((cmul(F, G, G, T0) + [f"v_pk_mul_f32 {P(T0)}, {P(F)}, {P(F)} op_sel:[0,0] op_sel_hi:[0,1] neg_hi:[1,0]",
                             f"v_pk_fma_f32 {P(H)}, {P(F)}, {P(F)}, {P(T0)} op_sel:[1,1,0] op_sel_hi:[1,0,1] neg_lo:[1,0,0] neg_hi:[1,0,0]"], F, j))
            else: vals.append((cmul(z, z, G, T0), z, j))
        zr = {l: F + 2*k for k, l in enumerate(AROWS)}
        for l in AROWS:
            op = cmul(zr[0], CC, BB, T0) if l == 0 else cmul(zr[l], zr[l-1], E1, T0) if l <= 8 else cmul(zr[l], zr[l-256], H, T0)
            vals.append((op, zr[l], 32 + AROWS.index(l)))
        brd = [f"ds_read_b128 {A4(FB+4*ks)}, v{VB} offset:{32*ks}" for ks in range(8)]
        for gi in range(14):
            hook((rd, gi))
            grp = vals[4*gi:4*gi+4]
            for v in grp:
                for l in v[0]: a(l)
            if pend and gi >= 5: a(pend.pop(0))
            for k, v in enumerate(grp):
                if v[1] is not None: a(f"v_cvt_pk_bf16_f32 v{PB+k}, v{v[1]}, v{v[1]+1}")
            rds = ard if gi < 8 else brd
            for _ in range(2):
                if rds: a(rds.pop(0))
            for k, v in enumerate(grp): a(f"ds_write_addtid_b32 v{PB+k if v[1] is not None else ONE} offset:{272*v[2]}")
        assert not pend and not brd and not ard
        ard = [f"ds_read_b128 {A4(FA+4*ks)}, v{VA} offset:{32*272 + 32*ks}" for ks in range(8)]
        pend = [f"v_mfma_f32_32x32x16_bf16 v[{ACK}:{ACK+15}], {A4(FA+4*ks)}, {A4(FB+4*ks)}, " + ("0" if rd == 0 and ks == 0 else f"v[{ACK}:{ACK+15}]") for ks in range(8)]
    for l in ard: a(l)
    hook((3, 0))
    if stamp: stamp(a, 'r3')
    cmd = [tagchk(MD+1, "0xffffffff")]
    a(cmd[0] + "\ns_cbranch_vccnz u_spinmd\nu_okmd:")
    spin(a, late, "u_spinmd", [mdl], cmd, "u_okmd")
    a(f"""
    v_add_f32_dpp v{MD}, v{MD}, v{MD} row_ror:4 row_mask:0xf bank_mask:0xf
    v_add_f32_dpp v{MD}, v{MD}, v{MD} row_ror:8 row_mask:0xf bank_mask:0xf
    v_cvt_pk_bf16_f32 v{MD}, v{MD}, v{MD}
    v_and_b32 v{MD}, 0xffff0000, v{MD}
    v_add_f32 v{MD}, v{MD}, v{MD+2}
    v_cvt_pk_bf16_f32 v{MD}, v{MD}, v{MD}
    v_and_b32 v{MD}, 0xffff0000, v{MD}
    """)
    f = [f"v_readlane_b32 s{8+c}, v{MD}, {c}" for c in range(4)] + [f"v_readlane_b32 s{52+c}, v{MD}, {16+c}" for c in range(4)]
    f += [f"v_mov_b32 v{SA+c}, s{8+c}" for c in range(4)]
    for l in interleave(pend, f): a(l)
    V = ACK; E, O = PK, PK + 4
    a(f"v_add_f32 v{V}, v{V}, v{DSK}")
    for k in range(4): a(f"v_cvt_pk_bf16_f32 v{E+k}, v{V+8-2*k}, v{V+7-2*k}")
    for k in range(4): a(f"v_cvt_pk_bf16_f32 v{O+k}, v{V+7-2*k}, v{V+6-2*k}")
    a(f"ds_write_b128 v{TB}, {V4(E)} offset:{cm.CH_E*16}")
    a(f"v_cvt_pk_bf16_f32 v{PK+8}, v{V+10}, v{V+9}\nv_cvt_pk_bf16_f32 v{PK+9}, v{V+11}, v{V+12}")
    a(f"v_readlane_b32 s8, v{O+3}, 0\nv_readlane_b32 s9, v{E}, 63\nv_readlane_b32 s11, v{PK+8}, 63")
    a(f"ds_write_b128 v{TB}, {V4(O)} offset:{cm.CH_O*16}")
    a(f"s_lshr_b32 s8, s8, 16\ns_lshl_b32 s10, s9, 16\ns_and_b32 s11, s11, 0xffff")
    a(f"v_writelane_b32 v{SPC}, s8, {SPECIAL.index(cm.CH_E+1)}")
    a(f"v_writelane_b32 v{SPC+3}, s9, {SPECIAL.index(cm.CH_E-64)}")
    a(f"v_writelane_b32 v{SPC+2}, s10, {SPECIAL.index(cm.CH_O-64)}")
    a(f"v_writelane_b32 v{SPC+3}, s9, {SPECIAL.index(cm.CH_O-64)}")
    a(f"s_mov_b64 exec, 0xffffffff\nds_write_b128 v{TS}, {V4(SPC)}\ns_mov_b64 exec, -1")
    a(f"ds_write_b32 v{T2A}, v{PK+8} offset:{cm.CH_T2*16 + 2*(320-130)}")
    a(f"ds_write_b16 v{T3A}, v{PK+9} offset:{cm.CH_T3*16 + 2*(256-129)}")
    a(f"ds_write_b16_d16_hi v{T3A}, v{PK+9} offset:{cm.CH_T3*16 + 2*(256-193)}")
    NH = OPT['nh']
    TDO = [16, 0, 8] + [q for k in range(1, 8) for q in (k, k + 8)]
    HB = 256 - 4*NH; T3 = HB - 16; T2 = T3 - 24; TDB = T2 - 68
    td = lambda q: TDB + 4*TDO.index(q)
    def rd_td(q): return [f"ds_read2_b32 a[{td(q)+2*h}:{td(q)+2*h+1}], v{VTD} offset0:{16*(16-q)+2*h} offset1:{16*(16-q)+2*h+1}" if q else
                          f"ds_read2_b32 a[{td(q)+2*h}:{td(q)+2*h+1}], v{VTD0} offset0:{2*h} offset1:{2*h+1}" for h in range(2)]
    tabs = [None] + rd_td(0) + rd_td(8) + rd_td(16) + rd_td(1) + rd_td(9)
    for D in range(2, 5):
        for hh in range(2):
            off = 2*(cm.CH_T2*8 + 320 - 64*D - 4 + 8*hh)
            tabs += [f"ds_read_b64 a[{T2+8*(D-2)+4*hh+2*h}:{T2+8*(D-2)+4*hh+2*h+1}], v{VT2} offset:{off+8*h}" for h in range(2)]
    for D in range(4, 8):
        tabs += [f"ds_read2_b32 a[{T3+4*(D-4)+2*h}:{T3+4*(D-4)+2*h+1}], v{VT3} offset0:{16*(7-D)+2*h} offset1:{16*(7-D)+2*h+1}" for h in range(2)]
    ntab = OPT['ntab']
    for l in tabs[1:ntab]: a(l)
    for w in range(4): a(f"v_mul_u32_u24 v{SP+w}, s11, v{SP+w}")
    if stamp: stamp(a, 'tab')
    a(f"s_cmp_lg_u32 s49, 0\ns_cbranch_scc1 u_have\ns_cmp_lt_u32 s2, 128\ns_cbranch_scc1 u_polled\n{U_(pollA[0])}\nu_polled:\ns_waitcnt vmcnt(0)\n{chkA[0]}\ns_cbranch_vccnz u_spina\nu_oka:")
    spin(a, late, "u_spina", pollA, chkA, "u_oka")
    for l in hl: a(l + " ; untracked")
    a("u_have:")
    for l in hl: a("TRACK " + l)
    if stamp: stamp(a, 'pollA')
    UN = F
    for k in range(16):
        if k % 4 == 0:
            for q in range(k, k + 4): a(f"v_lshlrev_b32 v{UN+2*q}, 16, v{X+q}\nv_and_b32 v{UN+2*q+1}, 0xffff0000, v{X+q}")
        st = P(S + 2*(k >> 1))
        a(f"v_pk_fma_f32 {P(UN+2*k)}, {P(UN+2*k)}, {st}, {st} op_sel:[0,0,1] op_sel_hi:[1,0,1]")
    for cp in range(2):
        for k in range(cp, 16, 2): a(f"v_pk_fma_f32 {P(UN+2*k)}, {P(UN+2*k)}, s[{52+2*cp}:{53+2*cp}], {P(SA+2*cp)}")
        for c in (2*cp, 2*cp + 1):
            for tp in range(4): a(f"v_cvt_pk_bf16_f32 v{HP+4*c+tp}, v{UN+8*tp+c}, v{UN+8*tp+4+c}")
            a(f"ds_write_b128 v{VW}, {V4(HP+4*c)} offset:{HST*c + 512}")
    a("s_waitcnt lgkmcnt(0)\ns_barrier")
    if stamp: stamp(a, 'bar')
    addr = Asm(); ids(addr)
    addr(f"""
    s_lshr_b32 s4, s48, 1
    s_and_b32 s4, s4, 1
    s_lshr_b32 s5, s48, 2
    s_and_b32 s5, s5, 2
    s_or_b32 s4, s4, s5
    v_and_b32 v{VO}, 3, v5
    v_xor_b32 v{VO}, s4, v{VO}
    v_lshrrev_b32 v{U}, 1, v6
    v_lshl_add_u32 v{VO}, v{U}, 2, v{VO}
    v_and_b32 v{U}, 1, v6
    v_lshrrev_b32 v{U+1}, 2, v5
    v_lshl_add_u32 v{U}, v{U}, 2, v{U+1}
    v_mul_u32_u24 v{U}, 81920, v{U}
    v_lshl_add_u32 v{VO}, v{VO}, 4, v{U}
    s_lshl_b32 s4, s48, 7
    s_add_u32 s4, s4, {XT1}
    v_add_u32 v{VO}, s4, v{VO}
    s_mov_b32 s63, s21
    """)
    addr = [i.text for i in addr.ins] + flag_addr(128, 41, 40, OPT['dense'] & 1) + ["s_lshl_b32 s4, s2, 7", f"s_add_u32 s4, s4, {HER}", "v_lshl_add_u32 v42, v1, 2, s4"]
    XP = S
    ACC, Z3, Z2, SD, XD, XU, OUTR = 112, 144, 160, 208, 8, 24, 84
    ops = []
    first = set()
    def acc(n, A, B):
        ops.append((ACC+4*n, A, B, None if n in first else "0")); first.add(n)
    cvs = []; lastacc = {}; sdt = []
    nsd = [0]
    def sig0(n, what, rep=0):
        h, hs, sd = ('h', n, 32, rep), ('h', n, 48, rep), SD + 24*(nsd[0] & 1)
        r2, r3, dr = n < 6 and '2' in what, n < 4 and '3' in what, [j for j in range(3) if 'abc'[j] in what and n + j < 8]
        if r2 or r3: nsd[0] += 1; sdt.append(len(ops))
        if r2:
            for q in (1, 2, 3, 0): ops.append((sd+4*q, hs if q == 0 else h, V4(BND+4*(q if q != 2 else 0)), "0"))
        if r3: ops.append((sd+16, hs, V4(BND+16), "0")); ops.append((sd+20, h, V4(BND+20), "0"))
        p = len(ops)
        cv = []
        if r2:
            for hh in range(2):
                for w in range(4): cv.append(f"v_cvt_pk_bf16_f32 v{Z2+8*n+4*hh+w}, v{sd + 4*(2*(w&1)) + 2*hh + (w>>1)}, v{sd + 4*(2*(w&1)+1) + 2*hh + (w>>1)}")
        if r3: cv += [f"v_cvt_pk_bf16_f32 v{Z3+4*n+r}, v{sd+16+r}, v{sd+20+r}" for r in range(4)]
        cvs.extend((l, p + 2, p + 11, nsd[0]) for l in cv)
        for j in dr: acc(n+j, A4(td(8*j)), h)
        if r3: acc(n+4, V4(SP), h)
    far = []
    for n in range(6):
        for hh in range(2):
            for D in range(2, 5):
                if n + D < 8: far.append((n+D, V4(Z2+8*n+4*hh), A4(T2+8*(D-2)+4*hh), n))
    for n in range(4):
        for D in range(4, 8):
            if n + D < 8: far.append((n+D, V4(Z3+4*n), A4(T3+4*(D-4)), n))
    far1 = [x for x in far if x[0] < 4]; far2 = sorted((x for x in far if x[0] >= 4), key=lambda x: x[3] >= 4)
    k1 = OPT['far1']; far1 += far2[:k1]; far2 = far2[k1:]
    marks = {}
    for part, fr in ((0, far1), (1, far2)):
        if not OPT['short']:
            for n in range(4*part, 4*part + 4): sig0(n, '23abc')
        elif part == 0:
            for n in range(4): sig0(n, '2abc' if n < 2 else 'ab')
        else:
            for n in (2, 0, 3, 1): sig0(n, '3' if n < 2 else '23c', 1)
            for n in range(4, 8): sig0(n, '23abc')
        for sig in range(1, 8):
            marks[(part, sig)] = len(ops)
            k = -(-len(fr) // (7 - sig)) if sig < 7 else 0
            for n in range(4*part, 4*part + 4):
                h = ('h', n, 32 + 64*sig, 0)
                acc(n, A4(td(sig)), h); lastacc[n] = len(ops) - 1
                if n < 7: acc(n+1, A4(td(sig+8)), h)
                for _ in range((k*(n%4+1))//4 - (k*(n%4))//4): acc(*fr.pop(0)[:3])
        assert not fr
    assert len(ops) == 202
    cvs = [(l, min(lo, hi2), hi2) for l, lo, hi, k in cvs for hi2 in [min(hi, sdt[k+1] - 1 if k + 1 < len(sdt) else 999)]]
    use = {}
    for i, o in enumerate(ops):
        for x in o[1:3]: use.setdefault(x, []).append(i)
    hs = [x for x in use if isinstance(x, tuple)]
    hreg = {}; hch = []; LEAD = OPT['lead']
    for k, x in enumerate(hs):
        hreg[x] = A4(HB + 4*(k % NH))
        lo = use[hs[k-NH]][-1] if k >= NH else -1
        hch.append((f"ds_read_b128 {hreg[x]}, v{VH} offset:{512 + 512*x[1] - x[2]}", lo, max(lo, use[x][0] - LEAD)))
    m = [mf(d, hreg.get(A, A), hreg.get(B, B), c) for d, A, B, c in ops]
    def treg(l):
        r = int(re.search(r'a\[(\d+):', l).group(1)); return A4(r - r % 4)
    rest = tabs[ntab:]
    for q in range(2, 8): rest = rest + rd_td(q) + rd_td(q + 8)
    tch = sorted(((l, 0, use[treg(l)][0] - LEAD) for l in rest), key=lambda x: x[2])
    def epi(n):
        r = ACC + 4*n; o = OUTR + 2*n
        e = [f"v_fma_f32 v{r+k}, v{r+k}, s50, v{XU+4*(n&3)+k}" for k in range(4)] + [f"v_cvt_pk_bf16_f32 v{o+h}, v{r+2*h}, v{r+2*h+1}" for h in range(2)]
        if n & 1:
            o -= 2
            e += [f"v_permlane16_swap_b32 v{o}, v{o+2}", f"v_permlane16_swap_b32 v{o+1}, v{o+3}"]
            x = [f"global_store_dwordx4 v{VO}, {V4(o)}, s[22:23]" + SC + f" ; tag=x1s{n}"] + ([f"v_add_u32 v{VO}, {8*81920}, v{VO}"] if n < 7 else [])
            if n < 4 or OPT['dst'] < 0: e += x
            else: DEFER.extend(U_(l) for l in x)
        return [(l, lastacc[n] + 3, lastacc[n] + 14 if n < 4 else 999) for l in e]
    def unp(p): return [(l, 0, lastacc[4*p]) for k in range(8) for l in (f"v_lshlrev_b32 v{XU+2*k}, 16, v{XD+8*p+k}", f"v_and_b32 v{XU+2*k+1}, 0xffff0000, v{XD+8*p+k}")]
    gb0 = OPT['xbar']
    xch = []
    for c in range(4):
        xch += [(f"v_perm_b32 v{XP+4*c+tp}, v{X+4*tp+2+(c>>1)}, v{X+4*tp+(c>>1)}, s{14+(c&1)}", -1, -1) for tp in range(4)]
    xch += [(f"ds_write_b128 v{VW}, {V4(XP+4*c)} offset:{L_XT - L_H + XST*c} ; xt", 0, gb0 - 12) for c in range(4)]
    xch += [(["WAITXT", "s_barrier"], gb0, gb0)] + [(f"ds_read_b64 {P(XD+2*n)}, v{VXD} offset:{512*n}", gb0, gb0 + 16) for n in range(8)]
    xch += [(unp(0)[0][0], gb0 + 18, 999)] + unp(0)[1:]
    for n in range(4): xch += epi(n)
    xch += unp(1)
    for n in range(4, 8): xch += epi(n)
    wfl = M("0xfff", f"global_load_dword v{VWV}, v{VWF}, s[22:23] sc1")
    gfl = M("0xffff", f"global_load_dwordx2 {P(GA)}, v111, s[22:23] sc1"); gck = [tagchk(GA+1, "0xffff")]
    spin(a, late, "u_spinga", [gfl], gck, "u_okga")
    g1 = lastacc[0] - 10
    gch = [(gfl, g1 - 40, g1 - 36), ([gck[0], "s_cbranch_vccnz u_spinga", "u_okga:"], g1, g1)]
    gch += [(l, g1 + k, g1 + 8) for k, l in enumerate([f"v_add_f32_dpp v{GA}, v{GA}, v{GA} row_ror:4 row_mask:0xf bank_mask:0xf", f"v_add_f32_dpp v{GA}, v{GA}, v{GA} row_ror:8 row_mask:0xf bank_mask:0xf",
                      f"v_cvt_pk_bf16_f32 v{GA}, v{GA}, v{GA}", f"v_and_b32 v{GA}, 0xffff0000, v{GA}", f"v_readfirstlane_b32 s50, v{GA}"])]
    w0 = OPT['w0']; NE = OPT['NE']
    ach = [(l, 0, min(w0 - 44, g1)) for l in addr] + [(wfl, w0 - OPT['wl'], w0 - OPT['wl'] + 2)]
    wchk = [tagchk(VWV, "0xfff")]
    ach += [(l, 0, w0) for l in (f"s_mul_i32 s4, s62, {WPS}", f"s_add_u32 s4, s4, {WP2 + 4096}", "v_lshl_add_u32 v3, v1, 4, s4")]
    ach += [([wchk[0], "s_cbranch_vccnz f_spinw", "f_okw:"], w0, w0)]
    spin(a, late, "f_spinw", [wfl], wchk, "f_okw")
    for q in range(NE):
        lo = w0 + 1 + (q*(200 - w0))//max(NE, 1)
        if 4*q >= TDB: lo = max(lo, use[A4(4*q)][-1] + 1)
        ach.append((wld(q), lo, lo + 2))
    ga1 = lastacc[3] + OPT['ba1']; ga2 = min(200, ga1 + OPT['ba2'])
    bch = [(["WAITVM x1s3", "s_barrier"] + flag_set('b0', 41, 40, dense=OPT['dense'] & 1), ga1, ga1)] + ([(flag_set('he', 42, 40, True), ga2, ga2)] if OPT['her'] else [])
    out = listsched(m, [hch, tch, sorted(cvs, key=lambda x: x[1]), xch, gch, ach, bch])
    assert max(k for k, l in enumerate(out) if 'tag=x1s3' in l) < out.index("WAITVM x1s3")
    i = out.index("WAITXT"); j = max(k for k, l in enumerate(out) if l.endswith('; xt'))
    out[i] = f"s_waitcnt lgkmcnt({min(15, sum(l.startswith('ds_') for l in out[j+1:i]))})"
    nm = 0
    for l in out:
        if stamp and l.startswith('v_mfma'):
            if nm % 40 == 0 and nm: stamp(a, f'c{nm}')
            nm += 1
        a(l)
        if stamp and l == 'f_nab0:': stamp(a, 'arr0')
    if stamp: stamp(a, 'done')
L_CV, L_MS, L_WD = 40960, 43008, 98304
def mod_addr(a, r, vaddr):
    a(f"""
    s_add_u32 s26, s3, {96*r}
    s_cmp_ge_u32 s26, 240
    s_cselect_b32 s27, 48, 0
    s_sub_u32 s26, s26, s27
    s_lshr_b32 s27, s26, 2
    s_mul_i32 s28, s27, 6554
    s_lshr_b32 s28, s28, 16
    s_mul_i32 s29, s28, 10
    s_sub_u32 s27, s27, s29
    s_lshl_b32 s28, s28, 2
    s_lshr_b32 s28, {OPT['morder']}, s28
    s_and_b32 s28, s28, 7
    s_mul_i32 s28, s28, 10
    s_add_u32 s27, s27, s28            ; slab
    s_lshl_b32 s28, s27, 7
    v_add_u32 v{vaddr}, s28, v51
    s_lshl_b32 s27, s27, 8
    s_mul_i32 s28, s13, 15360
    s_add_u32 s27, s27, s28
    s_add_u32 s{50+2*r}, s27, {MODP}
    """)
def mod_issue(vaddr, W):
    r = []
    for j in range(5):
        r.append(f"global_load_dwordx4 {V4(W+4*j)}, v{vaddr}, s[10:11]")
        if j < 4: r.append(f"v_add_u32 v{vaddr}, {32*7680}, v{vaddr}")
    return r
def mod_process(a, r, W, pre='', post=None, slot=None):
    slot = r if slot is None else slot
    A = 238; C = 56
    d = [f"v_dot2_f32_bf16 v{A+e}, v{W+4*j+e//2}, v{C+(5 if e&1 else 0)+j}, " + ("0" if j == 0 else f"v{A+e}") for j in range(5) for e in range(8)]
    for l in d: a(l)
    for i in range(4): a(f"v_permlane32_swap_b32 v{A+i}, v{A+4+i}")
    for i in range(4): a(f"v_add_f32 v{A+i}, v{A+i}, v{A+4+i}")
    for i in range(2): a(f"v_permlane16_swap_b32 v{A+i}, v{A+2+i}")
    for i in range(2): a(f"v_add_f32 v{A+i}, v{A+i}, v{A+2+i}")
    for i in range(2): a(f"v_add_f32_dpp v{A+i}, v{A+i}, v{A+i} row_ror:8 row_mask:0xf bank_mask:0xf")
    a(f"""
    ds_write_b64 v53, {P(A)} offset:{L_MS + 1024*slot}
    v_add_u32 v{A+4}, s{50+2*r}, v55
    v_lshlrev_b32 v{A+5}, 1, v{A+4}
    v_add_u32 v{A+5}, {MODT - 2*MODP}, v{A+5}
    {pre}
    s_waitcnt lgkmcnt(0)
    s_barrier
    ds_read_b32 v{A}, v54 offset:{L_MS + 1024*slot}
    """)
    if post: post()
    a(f"""
    v_mov_b32 v{A+1}, v{A}
    v_permlane32_swap_b32 v{A}, v{A+1}
    v_add_f32 v{A}, v{A}, v{A+1}
    v_mov_b32 v{A+1}, v{A}
    v_permlane16_swap_b32 v{A}, v{A+1}
    v_add_f32 v{A}, v{A}, v{A+1}
    """)
    a(f"v_mov_b32 v{A+1}, s65\ns_mov_b64 exec, 0xffff\nglobal_store_dwordx2 v{A+5}, {P(A)}, s[22:23] sc1\nglobal_store_dword v{A+4}, v{A}, s[22:23] sc1\ns_mov_b64 exec, -1")
def mod_flag(a, r): a(f"s_mov_b64 exec, 1\nWAITVM m{r}\nglobal_store_dword v{148+r}, v{ONE_V}, s[22:23] sc1\ns_mov_b64 exec, -1")
def role_prep(a, stamp, late):
    a(f"s_load_dwordx4 s[4:7], s[0:1], {KARG['wg']}\ns_load_dwordx4 s[8:11], s[0:1], {KARG['c']}")
    ldp(a, 48, 'wd')
    VDM = 52
    a(f"""
    s_sub_u32 s3, s2, 160
    s_lshr_b32 s12, s3, 2              ; G
    s_and_b32 s13, s3, 3               ; kq
    s_mul_i32 s16, s13, 160
    v_lshrrev_b32 v50, 3, v0
    v_add_u32 v50, s16, v50
    v_mul_u32_u24 v51, 7680, v50
    v_and_b32 v5, 7, v0
    v_lshl_add_u32 v51, v5, 4, v51
    v_lshlrev_b32 v50, 1, v50
    """)
    mod_addr(a, 0, 48)
    a("s_waitcnt lgkmcnt(0)")
    if stamp: stamp(a, 'ka')
    a(EPOLD)
    for j in range(5): a(f"global_load_ushort v{56+j}, v50, s[8:9] offset:{64*j}")
    W0, W1 = 68, 88
    for l in mod_issue(48, W0): a(l)
    if stamp: stamp(a, 'iss')
    mod_addr(a, 1, 49)
    a(f"""
    v_lshrrev_b32 v6, 4, v1
    v_lshlrev_b32 v53, 3, v6
    v_lshl_add_u32 v53, v5, 5, v53
    s_lshl_b32 s26, s20, 8
    v_add_u32 v53, s26, v53
    v_and_b32 v7, 15, v1
    s_lshl_b32 s26, s20, 6
    v_lshl_add_u32 v55, v7, 2, s26
    v_lshl_add_u32 v54, v6, 8, v55
    s_lshr_b32 s14, s20, 1             ; mat
    s_and_b32 s15, s20, 1
    v_lshrrev_b32 v{VDM}, 3, v1
    v_bfe_u32 v7, v1, 4, 1
    s_lshl_b32 s17, s20, 1
    v_or_b32 v7, s17, v7
    v_xor_b32 v7, v7, v5
    v_mul_u32_u24 v{VDM}, 3072, v{VDM}
    v_lshl_add_u32 v{VDM}, v7, 4, v{VDM}
    s_lshl_b32 s17, s15, 3
    s_add_u32 s17, s17, s16
    s_mul_i32 s17, s17, 3072
    s_lshl_b32 s18, s12, 7
    s_add_u32 s17, s17, s18
    v_add_u32 v{VDM}, s17, v{VDM}
    s_mul_i32 s18, s14, 20480
    s_lshl_b32 s19, s15, 10
    s_add_u32 s18, s18, s19
    s_cmp_eq_u32 s14, 0
    s_cselect_b32 s30, s4, s6
    s_cselect_b32 s31, s5, s7
    """)
    a(f"""
    v_min_u32 v5, 159, v0
    v_add_u32 v6, s16, v5
    v_lshlrev_b32 v6, 3, v6
    """)
    for j in range(4): a(f"v_add_u32 v{44+j}, {MODT + 3*5120 + 2560 + 30720*j}, v6")
    VT, VC, VS0, VU = 16, 18, 19, 21
    a(f"""
    v_lshrrev_b32 v6, 4, v1            ; g
    v_bfe_u32 v7, v1, 2, 2             ; r
    v_lshl_add_u32 v2, v6, 3, v7
    v_lshlrev_b32 v2, 7, v2            ; (8g + r) * 128
    v_bfe_u32 v3, v1, 1, 1             ; mat
    v_mul_u32_u24 v4, 20480, v3
    v_add_u32 v2, v2, v4
    v_and_b32 v4, 1, v1
    v_lshl_add_u32 v2, v4, 3, v2
    v_lshrrev_b32 v7, 1, v7
    v_and_b32 v4, 1, v6
    v_lshl_add_u32 v7, v4, 1, v7
    v_lshl_add_u32 v7, v3, 2, v7       ; swizzle
    s_lshl_b32 s16, s20, 1
    v_xor_b32 v7, s16, v7
    v_lshl_add_u32 v{VT}, v7, 4, v2
    v_xor_b32 v7, 1, v7
    v_lshl_add_u32 v{VT+1}, v7, 4, v2
    v_lshlrev_b32 v{VC}, 4, v6
    v_bfe_u32 v2, v1, 1, 2
    v_lshlrev_b32 v2, 2, v2
    v_lshl_add_u32 v2, v6, 4, v2
    v_bfe_u32 v3, v1, 3, 1
    v_lshl_add_u32 v2, v3, 1, v2
    v_and_b32 v3, 1, v1
    v_add_u32 v2, v2, v3
    s_lshl_b32 s24, s12, 3
    s_add_u32 s24, s24, s16
    """)
    for tl in range(2):
        a(f"""
        s_add_u32 s25, s24, {tl}
        s_mul_i32 s26, s25, 21846
        s_lshr_b32 s26, s26, 16            ; T/3
        s_mul_i32 s26, s26, 60
        s_add_u32 s26, s26, s25            ; 63*(T/3) + T%3
        s_lshl_b32 s26, s26, 10
        s_add_u32 s26, s26, {WP2}
        s_mul_i32 s27, s13, {15*1024}
        s_add_u32 s27, s27, s26
        v_lshl_add_u32 v{VS0+tl}, v2, 4, s27
        s_lshl_b32 s27, s13, 8
        s_add_u32 s27, s27, s26
        s_add_u32 s27, s27, {60*1024}
        v_lshl_add_u32 v{VU+tl}, v2, 4, s27
        """)
    a("v_lshlrev_b32 v5, 1, v5")
    a(f"s_lshl_b32 s4, s3, 7\ns_add_u32 s4, s4, {GOB + 32*128}\ns_mov_b32 s63, s2\n" + "\n".join(rep_addr(23, 4)))
    pmh = lambda h: [f"global_load_dwordx2 {P(208+2*j)}, v{44+j}, s[22:23] offset:{5120*h-2560} sc1" for j in range(4)]
    pm = pmh(1)
    cm_ = [f"v_xor_b32 v{209+2*k}, s65, v{209+2*k}" for k in range(4)] + ["v_or3_b32 v209, v209, v211, v213", "v_or_b32 v209, v209, v215", "v_cmp_ne_u32 vcc, 0, v209"]
    sum4 = "v_add_f32 v208, v208, v210\nv_add_f32 v212, v212, v214\nv_add_f32 v208, v208, v212\nv_cvt_pk_bf16_f32 v208, v208, v208"
    mod_addr(a, 2, 236)
    a(f"""
    s_lshr_b32 s42, s3, 1              ; k-step
    s_and_b32 s43, s3, 1
    s_lshl_b32 s43, s43, 2
    s_add_u32 s43, s43, s20            ; db
    s_mul_i32 s44, s42, {32*1280}
    s_mul_i32 s45, s43, 160
    s_add_u32 s44, s44, s45
    s_mul_i32 s41, s20, 5120
    s_add_u32 s41, s41, {L_WD}
    v_lshrrev_b32 v2, 4, v1
    v_bfe_u32 v3, v1, 2, 2
    v_lshl_add_u32 v2, v2, 3, v3
    v_mul_u32_u24 v2, 160, v2
    v_and_b32 v3, 3, v1
    v_lshl_add_u32 v2, v3, 3, v2
    v_add_u32 v246, s41, v2
    s_mul_i32 s43, s43, 48
    s_add_u32 s43, s43, s42
    s_mul_i32 s43, s43, 5120
    s_add_u32 s43, s43, {WD + 2048}
    v_lshl_add_u32 v249, v1, 4, s43
    """)
    for k in range(5): a(f"v_add_u32 v2, {64*k}, v1\nv_mul_u32_u24 v3, 6554, v2\nv_lshrrev_b32 v3, 16, v3\nv_mul_u32_u24 v3, {1280-160}, v3\nv_lshl_add_u32 v3, v2, 4, v3\nv_add_u32 v{250+k}, s44, v3")
    C = 56
    if OPT['w1early']:
        for l in mod_issue(49, W1): a(l)
    nonce(a)
    for j in range(5): a(f"v_lshlrev_b32 v{C+j}, 16, v{C+j}\nv_mul_f32 v{C+5+j}, 0xbfb8aa3b, v{C+j}\nv_exp_f32 v{C+5+j}, v{C+5+j}")
    for j in range(5): a(f"v_add_f32 v{C+5+j}, 1.0, v{C+5+j}\nv_rcp_f32 v{C+5+j}, v{C+5+j}")
    for j in range(5): a(f"v_mul_f32 v{C+j}, v{C+j}, v{C+5+j}")
    for j in range(5): a(f"v_cvt_pk_bf16_f32 v{C+j}, v{C+j}, 0\nv_lshlrev_b32 v{C+5+j}, 16, v{C+j}")
    if not OPT['w1early'] and not OPT['wfirst']:
        for l in mod_issue(49, W1): a(l)
    def wdma(i): return [f"s_add_u32 m0, s18, {2048*i}", f"global_load_lds_dwordx4 v{VDM}, s[30:31] ; tag=w{i}"] + ([f"v_add_u32 v{VDM}, {16*3072}, v{VDM}"] if i < 9 else [])
    for i in range(OPT['aw0']):
        for l in wdma(i): a(l)
    mod_process(a, 0, W0)
    if stamp: stamp(a, 'flagA')
    for i in range(OPT['aw0'], OPT['aw1']):
        for l in wdma(i): a(l)
    if not OPT['wfirst']:
        mod_process(a, 1, W1)
        if stamp: stamp(a, 'r1')
    for l in pm: a(l)
    for i in range(OPT['aw1'], 10):
        for l in wdma(i): a(l)
    if OPT['wfirst']:
        W1 = 216
        for l in mod_issue(49, W1): a(l)
    W2 = 216
    for l in cm_: a(l)
    a("s_cbranch_vccnz u_spinm\nu_okm:")
    spin(a, late, "u_spinm", pm, cm_, "u_okm")
    if stamp: stamp(a, 'pollA')
    ONES = 24
    for w in range(4): a(f"v_mov_b32 v{ONES+w}, 0x3f803f80")
    a(f"""
    {sum4}
    v_and_b32 v12, 0xffff0000, v208
    v_add_f32 v12, 1.0, v12
    v_cvt_pk_bf16_f32 v12, v12, v12
    ds_write_b16 v5, v12 offset:{L_CV}
    WAITVM w{2*OPT['NA']-1}
    s_waitcnt lgkmcnt(0)
    s_barrier
    """)
    if stamp: stamp(a, 'bar')
    NA = OPT['NA']
    UU, CV, SV, ML, LO, OUT, D = 68, 108, 128, 8, 28, 148, 188
    def rds(s):
        a(f"ds_read_b128 {V4(CV+4*s)}, v{VC} offset:{L_CV + 64*s}")
        for tl in range(2):
            for hh in range(2): a(f"ds_read_b64_tr_b16 {P(UU+8*s+4*tl+2*hh)}, v{VT+tl} offset:{4096*s + 512*hh}")
    def pq():
        for l in mod_issue(236, W2): a(l)
        for k in range(5): a(f"s_add_u32 m0, s41, {1024*k}\nglobal_load_lds_dwordx4 v{250+k}, s[48:49] ; tag=wd")
    for s in range(NA): rds(s)
    if OPT['pq'] == 0: pq()
    for s in range(5):
        if s == NA:
            if OPT['wfirst']:
                mod_process(a, 1, W1)
                if stamp: stamp(a, 'r1')
            a("WAITVM w9")
            if stamp: stamp(a, 'r2')
            a("s_barrier")
            for q in range(NA, 5): rds(q)
            if OPT['pq'] == 1: pq()
        for w in range(4): a(f"v_and_b32 v{ML+2*w}, 0xffff, v{CV+4*s+w}\nv_and_b32 v{ML+2*w+1}, 0xffff0000, v{CV+4*s+w}")
        for tl in range(2):
            for w in range(4):
                for h in range(2): a(f"v_dot2_f32_bf16 v{LO+8*tl+2*w+h}, v{UU+8*s+4*tl+w}, v{ML+2*w+h}, 0")
        for tl in range(2):
            o = OUT + 8*s + 4*tl
            for w in range(4): a(f"v_cvt_pk_bf16_f32 v{o+w}, v{LO+8*tl+2*w}, v{LO+8*tl+2*w+1}")
            a(f"global_store_dwordx4 v{VS0+tl}, {V4(o)}, s[22:23]" + SC + " ; tag=wst")
            if s < 4: a(f"v_add_u32 v{VS0+tl}, 3072, v{VS0+tl}")
    if OPT['pq'] == 2: pq()
    for s in range(5):
        for tl in range(2):
            a(mf(D+8*tl, V4(ONES), V4(OUT+8*s+4*tl), "0" if s == 0 else None))
    def fw():
        for l in flag_set('fw', 23, ONE_V): a(l)
        if stamp: stamp(a, 'fw')
    if OPT['pq'] == 2:
        a("WAITVM wst\ns_barrier"); fw(); mod_process(a, 2, W2)
    else: mod_process(a, 2, W2, "WAITVM wst", fw)
    ids(a, 10, 11)
    wfl = M("0xfff", "global_load_dword v11, v10, s[22:23] sc1"); wchk = [tagchk(11, "0xfff")]
    a(wfl)
    a("WAITVM wd")
    for jj in range(5):
        for hh in range(2): a(f"ds_read_b64_tr_b16 {P(148+4*jj+2*hh)}, v246 offset:{32*jj + 640*hh}")
    for jj in range(5): a(f"global_store_dwordx4 v249, {V4(148+4*jj)}, s[22:23] offset:{1024*jj-2048} sc1")
    if stamp: stamp(a, 'done')
    a(f"s_mul_i32 s4, s62, {WPS}\ns_add_u32 s4, s4, {WP2 + 4096}\nv_lshl_add_u32 v3, v1, 4, s4\n{wchk[0]}\ns_cbranch_vccnz u_spinw\nu_okw:")
    spin(a, late, "u_spinw", [wfl], wchk, "u_okw")
    for q in range(OPT['NE']):
        if q == max(0, OPT['NE'] - OPT['sbq']):
            for l in pmh(0): a(l)
        for l in wld(q): a(l)
    if not OPT['NE']:
        for l in pmh(0): a(l)
    for l in cm_: a(l)
    a("s_cbranch_vccnz u_spins\nu_oks:")
    spin(a, late, "u_spins", pmh(0), cm_, "u_oks")
    a(f"{sum4}\nds_write_b16 v5, v208 offset:{L_CV + 320}\ns_sub_u32 s4, s2, 160\ns_lshl_b32 s4, s4, 7\ns_add_u32 s4, s4, {HER}\nv_mov_b32 v10, s4\ns_waitcnt lgkmcnt(0)\ns_barrier")
    for s in range(5): a(f"ds_read_b128 {V4(SV+4*s)}, v{VC} offset:{L_CV + 320 + 64*s}")
    hfl = M(1, "global_load_dword v11, v10, s[22:23] sc1"); hchk = [tagchk(11, 1)]
    if OPT['her']: a(hfl)
    for s in range(5):
        for tl in range(2): a(mf(D+8*tl+4, V4(SV+4*s), V4(UU+8*s+4*tl), "0" if s == 0 else None))
    E = 204
    for k in (1, 3, 0, 2):
        u = D + 4*k; e = E + 2*k
        a(f"v_cvt_pk_bf16_f32 v{e}, v{u}, v{u}\nv_and_b32 v{u+1}, 0xffff0000, v{e}\nv_sub_f32 v{u}, v{u}, v{u+1}\nv_cvt_pk_bf16_f32 v{e+1}, v{u}, v{u}")
    a("s_mov_b64 exec, 0xffff")
    for tl in range(2): a(f"global_store_dwordx4 v{VU+tl}, {V4(E+4*tl)}, s[22:23]" + SC)
    a("s_mov_b64 exec, -1")
    a("s_barrier")
    if OPT['her']: a(f"{hchk[0]}\ns_cbranch_vccnz u_spinh\nu_okh:")
    a(f"s_lshl_b32 s4, s2, 9\ns_lshl_b32 s5, s20, 7\ns_add_u32 s4, s4, s5\ns_add_u32 s4, s4, {HER + 0x10000}\nv_mov_b32 v107, s4\nCLEARVM")
    if OPT['her']: spin(a, late, "u_spinh", [hfl], hchk, "u_okh")
    if stamp: stamp(a, 'her')
def gemm(a, stamp, late):
    O = OPT
    VX, VW, VO, VP, VB, VSL, VSS, VG, VRW, VRR, VF = 2, 3, 4, 5, 8, 12, 14, 15, 16, 17, 18
    wq = [0]
    def wnext(n):
        r = []
        for _ in range(n):
            if wq[0] < 63: r += wld(wq[0]) if wq[0] < O.get('x_w', 63) else ['s_nop 0']; wq[0] += 1
        return r
    wnext(O['NE'])
    c0 = -2*math.sqrt(2/math.pi)*math.log2(math.e)
    VH, VPC = 26, 30; nd = 32 // O['g2']
    ad = Asm()
    ad(f"""
    v_and_b32 v6, 15, v1
    v_lshrrev_b32 v7, 4, v1
    v_lshrrev_b32 v21, 2, v1
    v_and_b32 v20, 3, v1
    v_lshl_add_u32 v20, v21, 4, v20
    s_lshl_b32 s4, s20, 2
    v_add_u32 v20, s4, v20
    s_mul_i32 s4, s60, 10
    s_sub_u32 s4, s4, 40
    v_min_u32 v21, 49, v1
    v_add_u32 v21, s4, v21
    v_cmp_gt_u32 vcc, 40, v1
    s_add_u32 s4, s100, {320*128}
    v_lshl_add_u32 v25, v20, 7, s4
    v_cndmask_b32 v20, v21, v20, vcc
    s_add_u32 s4, s100, {128*128}
    v_lshl_add_u32 v{VP}, v20, 7, s4
    """)
    if O['dense'] & 1: ad(f"v_bfe_u32 v21, v20, 2, 2\nv_lshrrev_b32 v22, 4, v20\nv_lshl_add_u32 v21, v21, 4, v22\nv_and_b32 v20, 3, v20\nv_lshl_add_u32 v20, v21, 2, v20\nv_lshl_add_u32 v{VP}, v20, 4, s4")
    if O['dense'] & 2: ad(f"s_add_u32 s4, s100, {320*128}\nv_lshl_add_u32 v25, v0, 4, s4")
    n_poll = len(ad.ins)
    ad(f"""
    s_mul_i32 s4, s61, {81920*O['TA']}
    s_lshl_b32 s30, s20, 11
    s_add_u32 s5, s4, s30
    s_add_u32 s5, s5, {XT1}
    v_lshl_add_u32 v{VX}, v1, 4, s5
    s_mov_b32 m0, s30
    v_bfe_u32 v20, v1, 2, 2            ; r
    v_lshl_add_u32 v21, v7, 3, v20
    v_lshlrev_b32 v21, 7, v21
    v_bfe_u32 v22, v1, 1, 1
    v_lshl_add_u32 v21, v22, 6, v21
    v_and_b32 v22, 1, v1
    v_lshl_add_u32 v21, v22, 3, v21
    v_lshrrev_b32 v20, 1, v20
    v_and_b32 v22, 1, v7
    v_lshl_add_u32 v20, v22, 1, v20    ; swizzle
    """)
    for t in range(4): ad(f"v_xor_b32 v22, {t}, v20\nv_lshl_add_u32 v{VB+t}, v22, 4, v21")
    ad(f"""
    s_mul_i32 s6, s60, {40*128}
    s_add_u32 s5, s4, s6
    s_and_b32 s6, s20, 1
    s_lshl_b32 s6, s6, 6
    s_add_u32 s5, s5, s6
    s_add_u32 s5, s5, {XT1 + 2048}
    v_lshrrev_b32 v20, 3, v1
    v_lshl_add_u32 v20, v20, 7, s5
    v_and_b32 v21, 3, v1
    v_lshl_add_u32 v20, v21, 2, v20
    v_bfe_u32 v21, v1, 2, 1
    v_bfe_u32 v22, v1, 4, 1
    v_xor_b32 v21, v21, v22
    s_lshl_b32 s6, s60, 1
    s_xor_b32 s6, s6, s20
    s_and_b32 s6, s6, 2
    v_xor_b32 v21, s6, v21
    v_lshl_add_u32 v{VSL}, v21, 4, v20
    v_xor_b32 v21, 2, v21
    v_lshl_add_u32 v{VSL+1}, v21, 4, v20
    """)
    n_urgent = len(ad.ins)
    for l in flag_addr(320, 245, 244, O['dense'] & 2): ad(l)
    ad(f"""
    v_mov_b32 v{VF+1}, s65
    s_lshl_b32 s5, s61, 14
    s_add_u32 s5, s5, {PST}
    s_lshl_b32 s6, s60, 10
    s_add_u32 s6, s6, s5
    s_lshr_b32 s7, s20, 1
    s_lshl_b32 s7, s7, 8
    s_add_u32 s6, s6, s7
    s_and_b32 s7, s20, 1
    s_lshl_b32 s7, s7, 6
    s_add_u32 s6, s6, s7
    v_bfe_u32 v20, v1, 2, 1
    v_and_b32 v21, 3, v1
    v_lshlrev_b32 v20, 4, v20
    v_lshl_add_u32 v20, v21, 1, v20
    v_lshrrev_b32 v22, 5, v1
    v_add_u32 v20, v20, v22
    v_lshl_add_u32 v{VSS}, v20, 3, s6
    s_mov_b32 s36, 0xff
    s_mov_b32 s37, 0xff
    s_lshl_b32 s6, s20, 7
    s_add_u32 s5, s5, s6
    v_lshrrev_b32 v20, 3, v1
    v_lshlrev_b32 v20, 11, v20
    v_and_b32 v21, 7, v1
    v_lshl_add_u32 v20, v21, 4, v20
    v_add_u32 v{VG}, s5, v20
    v_lshl_add_u32 v20, v21, 1, v22
    s_lshl_b32 s6, s20, 9
    v_lshl_add_u32 v{VRW}, v20, 5, s6
    v_lshlrev_b32 v{VRR}, 5, v6
    s_mul_i32 s5, s61, {2*196608}
    s_mul_i32 s6, s62, 3072
    s_add_u32 s5, s5, s6
    s_add_u32 s5, s5, {HH}
    v_lshl_add_u32 v{VO}, v1, 4, s5
    s_lshl_b32 s5, s61, 4
    s_add_u32 s5, s5, s60
    s_lshl_b32 s5, s5, 8
    s_add_u32 s5, s5, {UF_C2}
    v_lshl_add_u32 v{VF}, v1, 2, s5
    s_lshr_b32 s4, s60, {O['pb']+1}
    s_lshl_b32 s4, s4, {O['pb']}
    s_and_b32 s32, s60, {(1 << O['pb'])-1}
    s_add_u32 s32, s32, s4
    s_bfe_u32 s4, s60, {0x10000 + O['pb']}
    s_lshl_b32 s33, s61, 1
    s_add_u32 s33, s33, s4
    s_cmp_eq_u32 s32, 0
    s_cselect_b32 s5, 16384, 0
    v_add_u32 v{VRW}, s5, v{VRW}
    v_add_u32 v{VRR}, s5, v{VRR}
    s_lshl_b32 s4, s4, 1
    s_and_b32 s5, s20, 1
    s_add_u32 s16, s4, s5
    v_bfe_u32 v20, v1, 3, 1
    v_lshrrev_b32 v21, 5, v1
    v_lshl_add_u32 v20, v21, 1, v20
    v_xor_b32 v20, s16, v20
    v_bfe_u32 v21, v1, 1, 1
    v_lshl_add_u32 v20, v21, 2, v20
    v_lshlrev_b32 v20, 4, v20
    v_and_b32 v21, 1, v1
    v_lshl_add_u32 v20, v21, 3, v20
    v_lshrrev_b32 v21, 2, v1
    v_lshl_add_u32 v20, v21, 7, v20
    s_lshr_b32 s4, s20, 1
    s_mul_i32 s4, s4, 81920
    s_mul_i32 s5, s32, 10240
    s_add_u32 s4, s4, s5
    v_add_u32 v31, s4, v20
    s_lshl_b32 s34, s32, 2
    s_add_u32 s34, s34, s20
    s_mul_i32 s34, s34, 61440
    s_add_u32 s34, s34, {WD + 4096}
    s_lshr_b32 s35, s33, 1
    s_lshl_b32 s4, s35, 4
    s_lshl_b32 s5, s20, 2
    s_add_u32 s4, s4, s5
    s_lshl_b32 s4, s4, 8
    s_add_u32 s4, s4, {UF_C2}
    v_and_b32 v20, 3, v1
    v_lshl_add_u32 v{VPC}, v20, 8, s4
    v_lshlrev_b32 v20, 10, v7
    v_lshl_add_u32 v20, v6, 4, v20
    s_mul_i32 s4, s35, {2*196608}
    s_mul_i32 s5, s20, 49152
    s_add_u32 s4, s4, s5
    s_and_b32 s5, s33, 1
    s_lshl_b32 s5, s5, 9
    s_add_u32 s4, s4, s5
    s_add_u32 s4, s4, {HH + 4096}
    s_and_b32 s5, s20, 1
    s_lshl_b32 s5, s5, 8
    s_xor_b32 s6, s5, 256
    s_add_u32 s6, s6, s4
    s_add_u32 s5, s5, s4
    v_add_u32 v{VH}, s6, v20
    v_add_u32 v{VH+1}, s5, v20
    v_add_u32 v{VH+2}, 196608, v{VH}
    v_add_u32 v{VH+3}, 196608, v{VH+1}
    """)
    ad = [i.text for i in ad.ins]
    PL = 24
    poll = [f"global_load_dword v{PL}, v{VP}, s[22:23] sc1"]
    chk = [f"v_cmp_ne_u32 vcc, s65, v{PL}"]
    w1 = wnext(O['N1'])
    for l in (interleave(w1, ad[:n_poll]) if w1 else ad[:n_poll]): a(l)
    a(poll[0])
    for l in interleave(wnext(O['N2']), ad[n_poll:n_urgent]): a(l)
    assert wq[0] <= 60
    for l in chk: a(l)
    a("s_cbranch_vccnz f_spinb\nf_okb:")
    spin(a, late, "f_spinb", poll, chk, "f_okb")
    if stamp: stamp(a, 'pollB')
    def dma(G):
        if G >= 20: return []
        r = [f"global_load_lds_dwordx4 v{VX}, s[22:23]" + SC, f"global_load_lds_dwordx4 v{VX}, s[22:23] offset:1024" + SC + f" ; tag=x{G}"]
        if G < 19: r += [f"s_add_u32 m0, s30, {8192*(G+1)}", f"v_add_u32 v{VX}, {8192 + (81920*(O['TB']-1) if G == 9 else 0)}, v{VX}"]
        return r
    ACC, BF, EX, SL, SQ, T, GL, R = 32, 128, 192, 248, 20, 254, 224, 232
    def sld(h):
        r = [f"global_load_dword v{SL+i}, v{VSL+(i&1)}, s[22:23] offset:{1024*i-2048} sc1" for i in range(5)]
        return r + ([f"v_add_u32 v{VSL+k}, {81920*O['TB']}, v{VSL+k}" for k in range(2)] if h == 0 else [])
    for G in range(O['xd']):
        for l in dma(G): a(l)
        if G == O['sat']:
            for l in sld(0): a(l)
        if G == O['dst']:
            a("s_cmp_ge_u32 s2, 160\ns_cbranch_scc1 f_nodst\n" + "\n".join(DEFER) + "\ns_branch f_dst\nf_nodst:\n" + M(1, "global_store_dword v107, v107, s[22:23] ; untracked\nglobal_store_dword v107, v107, s[22:23] ; untracked") + "\nf_dst:")
            a("TRACK global_store_dword v107, v107, s[22:23]\nTRACK global_store_dword v107, v107, s[22:23] ; tag=x1e")
    for l in ad[n_urgent:] + [f"v_mov_b32 v{VP}, v25"]: a(l)
    def rdb(G): return [f"ds_read_b64_tr_b16 {P(BF+32*(G&1)+16*sl+4*t+2*hh)}, v{VB+t} offset:{8192*(G&7) + 4096*sl + 512*hh}" for sl in range(2) for t in range(4) for hh in range(2)]
    a("WAITVM x0\ns_barrier")
    fb1 = flag_set('b1', 245, 244, dense=O['dense'] & 2)
    for l in (fb1 if O['dst'] < 0 else []) + rdb(0): a(l)
    def st(h):
        r = []
        for i in range(5):
            r += [f"v_lshlrev_b32 v{T}, 16, v{SL+i}", f"v_and_b32 v{T+1}, 0xffff0000, v{SL+i}"]
            for e in range(2):
                if i == 0: r += [f"v_mov_b32 v{SQ+2*e}, v{T+e}", f"v_mul_f32 v{SQ+2*e+1}, v{T+e}, v{T+e}"]
                else: r += [f"v_add_f32 v{SQ+2*e}, v{SQ+2*e}, v{T+e}", f"v_fmac_f32 v{SQ+2*e+1}, v{T+e}, v{T+e}"]
        return r + red(SQ) + [M("s[36:37]", f"global_store_dwordx2 v{VSS}, {P(SQ)}, s[22:23] offset:{512*h} sc1")]
    def red(b):
        r = [f"v_permlane32_swap_b32 v{b+k}, v{b+2+k}" for k in range(2)] + [f"v_add_f32 v{b+k}, v{b+k}, v{b+2+k}" for k in range(2)]
        r += [f"v_add_f32_dpp v{b+k}, v{b+k}, v{b+k} row_ror:8 row_mask:0xf bank_mask:0xf" for k in range(2)]
        r += [f"v_mov_b32 v{b+2+k}, v{b+k}" for k in range(2)] + [f"v_permlane16_swap_b32 v{b+k}, v{b+2+k}" for k in range(2)]
        return r + [f"v_add_f32 v{b+k}, v{b+k}, v{b+2+k}" for k in range(2)]
    gat = lambda h: [f"global_load_dwordx4 {V4(GL+4*i)}, v{VG}, s[22:23] offset:{1024*i + 512*h} sc1" for i in range(2)]
    gchk = [f"v_min3_f32 v{R}, v{GL+1}, v{GL+3}, v{GL+5}", f"v_min_f32 v{R}, v{R}, v{GL+7}", f"v_cmp_gt_f32 vcc, 0, v{R}"]
    fin = [f"v_add_f32 v{GL+k}, v{GL+k}, v{GL+4+k}" for k in range(4)] + red(GL)
    fin += [f"v_mul_f32 v{GL}, 0xbacccccd, v{GL}", f"v_mul_f32 v{GL+1}, 0x3acccccd, v{GL+1}",
            f"v_fma_f32 v{GL+1}, -v{GL}, v{GL}, v{GL+1}", f"v_cvt_pk_bf16_f32 v{GL+2}, v{GL}, v{GL}", f"v_max_f32 v{GL+1}, 0, v{GL+1}",
            f"v_and_b32 v{GL+2}, 0xffff0000, v{GL+2}", f"v_add_f32 v{R+6}, 0x3727c5ac, v{GL+1}", f"v_sub_f32 v{GL+3}, v{GL}, v{GL+2}",
            f"v_rsq_f32 v{GL+4}, v{R+6}", f"v_sqrt_f32 v{GL+5}, v{R+6}", f"v_cvt_pk_bf16_f32 v{R}, v{GL+2}, v{GL+3}",
            f"v_mul_f32 v{R+5}, {f2u(c0)}, v{GL+4}", f"v_cvt_pk_bf16_f32 v{GL+6}, v{GL+5}, v{GL+5}", f"v_mul_f32 v{GL+4}, v{GL+4}, v{GL+4}",
            f"v_and_b32 v{GL+6}, 0xffff0000, v{GL+6}", f"v_mul_f32 v{GL+4}, {f2u(0.044715)}, v{GL+4}", f"v_sub_f32 v{GL+7}, v{GL+5}, v{GL+6}",
            f"v_mul_f32 v{R+4}, v{GL+4}, v{R+5}", f"v_cvt_pk_bf16_f32 v{R+2}, v{GL+6}, v{GL+7}", f"v_mov_b32 v{R+1}, v{R}", f"v_mov_b32 v{R+3}, v{R+2}",
            f"v_mov_b32 v{R+7}, v{R+6}", ]
    finh = lambda h: fin + [f"ds_write_b128 v{VRW}, {V4(R)} offset:{2048*h}", f"ds_write_b128 v{VRW}, {V4(R+4)} offset:{2048*h+16}"]
    dq = [0]
    def dnext(n, lim=60):
        r = []
        for _ in range(n):
            q = dq[0]
            if q >= min(lim, O.get('x_wd', 60)): break
            if q == 0: r.append(f"v_lshl_add_u32 v{VW}, v1, 4, s34")
            r.append(f"global_load_dwordx4 {A4(4*q)}, v{VW}, s[22:23] offset:{1024*(q&7)-4096}" + SC)
            if q & 7 == 7: r.append(f"v_add_u32 v{VW}, 8192, v{VW}")
            dq[0] += 1
        return r
    RR, TM = 224, 236
    def rdex(hb): return [f"ds_read_b128 {V4(EX+8*t+4*k)}, v{VRR} offset:{512*(4*hb+t)+16*k}" for k in range(2) for t in range(4)]
    def flagc(hb): return [f"WAITVM hh{hb}"] + ["s_waitcnt lgkmcnt(0)"]*hb + ["s_barrier"] + flag_set(f'c{hb}', VF, VF+1, True, 128*hb)
    def pollc(hb): return [M(15, f"global_load_dword v{PL}, v{VPC}, s[22:23] offset:{128*hb} sc1")]
    def checkc(hb):
        if O.get('x_c'): return
        a(chk[0] + f"\ns_cbranch_vccnz f_spinc{hb}\nf_okc{hb}:")
        spin(a, late, f"f_spinc{hb}", pollc(hb), chk, f"f_okc{hb}")
    def epilogue(hb, fill, mid=None):
        m = [mf(ACC+48*hb+12*t+4*j, A4(240+4*j), V4(EX+8*t)) for j in range(3) for t in range(4)]
        for l in interleave(m, fill(2)): a(l)
        if mid: mid()
        sts = []
        for j in range(3):
            r = RR + 4*j; ts = range(4)
            g = lambda t: ACC + 48*hb + 12*t + 4*j
            tm = lambda t: TM + 2*t
            e = []
            for t in ts: e.append(f"v_pk_mul_f32 {P(tm(t))}, {P(g(t))}, {P(g(t))}")
            for t in ts: e.append(f"v_pk_fma_f32 {P(tm(t))}, {P(tm(t))}, {P(EX+8*t+4)}, {P(EX+8*t+4)} op_sel:[0,0,1] op_sel_hi:[1,0,1]")
            for t in ts: e.append(f"v_pk_mul_f32 {P(tm(t))}, {P(tm(t))}, {P(g(t))}")
            for t in ts: e += [f"v_exp_f32 v{tm(t)}, v{tm(t)}", f"v_exp_f32 v{tm(t)+1}, v{tm(t)+1}", f"v_pk_mul_f32 {P(g(t))}, {P(g(t))}, {P(g(t)+2)}"]
            for t in ts: e.append(f"v_pk_fma_f32 {P(tm(t))}, {P(tm(t))}, {P(EX+8*t+6)}, {P(EX+8*t+6)}")
            for t in ts: e += [f"v_rcp_f32 v{tm(t)}, v{tm(t)}", f"v_rcp_f32 v{tm(t)+1}, v{tm(t)+1}"]
            for t in ts: e.append(f"v_pk_mul_f32 {P(g(t))}, {P(g(t))}, {P(tm(t))}")
            for t in (0, 2, 1, 3): e.append(f"v_cvt_pk_bf16_f32 v{r+t}, v{g(t)}, v{g(t)+1}")
            for l in interleave(e, fill(O['edr'])): a(l)
            a(f"v_permlane32_swap_b32 v{r}, v{r+2}\nv_permlane32_swap_b32 v{r+1}, v{r+3}\nv_permlane16_swap_b32 v{r}, v{r+1}\nv_permlane16_swap_b32 v{r+2}, v{r+3}")
            sts.append(f"global_store_dwordx4 v{VO}, {V4(r)}, s[22:23] offset:{1024*j}" + SC + f" ; tag=hh{hb}")
            if not (O['late'] >> hb & 1) or j == 2:
                for l in sts: a(l)
                sts = []
        if hb == 0: a(f"v_add_u32 v{VO}, 196608, v{VO}")
    A2, HB, NHB, RD, GB, RT = 80, 32, 12, 160, 220, 244
    seq = []
    for k in range(48):
        t, sl = divmod(k, 12); r = HB + 4*(k % NHB) + (96 if 12 <= k < 24 else 0)
        if k < 24 and O['pair']: sl, t = divmod(k, 2)
        ins = [f"global_load_dwordx4 {V4(r)}, v{VH+t}, s[22:23] offset:{4096*(sl&1)-4096}" + SC]
        if sl & 1 and sl < 11: ins.append(f"v_add_u32 v{VH+t}, 8192, v{VH+t}")
        seq.append((ins, [mf(A2+20*t+4*jj, A4(20*sl+4*jj), V4(r), "0" if sl == 0 else None) for jj in range(5)]))
    W = O['win']; W0 = O['win0']; assert W < NHB and W0 <= 24
    hq = [0]; okc = [0]
    def hnext(n, lim):
        r = []
        while n > 0 and hq[0] < min(lim, 48): r += seq[hq[0]][0]; hq[0] += 1; n -= 1
        return r
    valu = []
    wrate = -(-(60 - wq[0]) // O['wspan'])
    xs = [O['xd']]; covered = 0; GM = O['GM']; xt = [-1]*xs[0]
    def xnext(n, G):
        r = []
        while n > 0 and xs[0] < (20 if G >= O['b1c'] else 10): r += dma(xs[0]); xs[0] += 1; xt.append(G); n -= 1
        return r
    for G in range(20):
        h, Gl = divmod(G, 10); bf = BF + 32*(G & 1)
        m = [mf(ACC+48*h+12*t+4*j, A4(12*(2*Gl+sl)+4*j), V4(bf+16*sl+4*t), "0" if Gl == 0 and sl == 0 else None) for sl in range(2) for t in range(4) for j in range(3)]
        for k in range(2):
            if G == O['gcheck'][k]:
                for l in gchk: a(l)
                a(f"s_cbranch_vccnz f_sping{k}\nf_okg{k}:")
                spin(a, late, f"f_sping{k}", gat(k), gchk, f"f_okg{k}")
                valu += finh(k)
        if G == O['b1c']:
            a(chk[0] + "\ns_cbranch_vccnz f_spinb1\nf_okb1:")
            spin(a, late, "f_spinb1", poll, chk, "f_okb1")
            if stamp: stamp(a, 'pollB1')
        if G == O['cc0']: checkc(0); okc[0] = 1; stamp and stamp(a, 'pollC')
        if G == GM:
            if stamp: stamp(a, 'm0')
            def fill0(n):
                r = xnext(n // 2, G - 1); n -= sum(l.startswith('global') for l in r)
                return r + dnext(n, 6*Gl)
            epilogue(0, fill0)
        if stamp: stamp(a, f'g{G}')
        a("s_waitcnt lgkmcnt(0)")
        head = []; lds = []
        if G < 19:
            if G + 1 > covered:
                assert G + 1 < len(xt)
                covered = min(19, max([G + 1] + [k for k in range(len(xt)) if xt[k] <= G - O['xtl']]))
                head = [f"WAITVM x{covered}", "s_barrier"]
            lds = rdb(G+1)
        for k, g in enumerate((GM - 1, 19)):
            if G == g:
                assert not any(l.startswith('ds_write') for l in valu) and G > O['gcheck'][k]
                if not head: head = ["s_barrier"]
                lds = rdex(k) + lds + ([f"ds_read_b64_tr_b16 {P(RT+2*jj)}, v31 offset:{2048*jj}" for jj in range(5)] if k else [])
        if G == O['b1f'] and O['dst'] >= 0: head = ["WAITVM x1e"] + [x for x in head if x != 's_barrier'] + ["s_barrier"] + fb1
        if G == GM + O['cf0']: head = [x for x in head if x != 's_barrier'] + flagc(0)
        if G == O['b1c']:
            if not head: head = ["s_barrier"]
            head += ["s_cmp_lg_u32 s2, 0", "s_cbranch_scc1 u_noepo", f"v_mov_b32 v244, {EPO}", "s_mov_b64 exec, 1", f"global_store_dword v244, v{VF+1}, s[22:23] sc1 ; untracked", "s_mov_b64 exec, -1", "u_noepo:"]
        ld = []
        if G == O['cp0']: ld += pollc(0)
        if G == O['b1i']: ld += poll
        ld += xnext(O['xrate'][G] if G < len(O['xrate']) else 1, G)
        ld += wnext(min(wrate, 60 - wq[0])) if wq[0] < 60 else wnext(3) if G >= O['b1c'] else []
        if G == O['sat1']: ld += sld(1)
        for k in range(2):
            if G == O['gissue'][k]: ld += gat(k)
            if G == O['gstat'][k]: valu += st(k)
        if G > 10: assert wq[0] == 63; ld += dnext(O['wdrate'], 6*Gl)
        if okc[0]: ld += hnext(O['hrate'], min(W0, 12))
        out, valu = slots(m, head, lds, vmgroups(ld), valu, vm_cost=O['vmc'], spread=O['spread'])
        if (G + 2) % 8 == 0: out += [f"v_add_u32 v{VB+i}, 65536, v{VB+i}" for i in range(4)]
        for l in out: a(l)
    assert wq[0] == 63
    if stamp: stamp(a, 'g20')
    def fill1(n):
        r = dnext(n, O['dlim']); n -= sum(l.startswith('global') for l in r)
        return r + (hnext(n, W0) if okc[0] else [])
    def mid1():
        if not okc[0]: checkc(0); okc[0] = 1; stamp and stamp(a, 'pollC')
    epilogue(1, fill1, mid1)
    ldp(a, 24, 'out')
    for l in dnext(60, O['dlim']): a(l)
    dq0 = dq[0]; drest = vmgroups(dnext(60))
    if stamp: stamp(a, 'epi')
    VR, VGB, VXW, VXR, VST, VOUT, SRD, VTR = 2, 5, 8, 12, 13, 14, 20, 17
    L_EX = 5120; L_ST = L_EX + 4*3*5*1024; L_RES = 81920
    ad = Asm()
    ad(f"""
    s_lshr_b32 s8, s20, 1
    s_and_b32 s9, s20, 1
    s_mul_i32 s10, s35, {O['TA']}
    s_mul_i32 s11, s8, {O['TB']}
    s_add_u32 s14, s10, s11
    s_mul_i32 s10, s32, 320
    s_add_u32 s10, s10, {MODP + 5*2560}
    v_lshl_add_u32 v{VGB}, v1, 4, s10
    s_lshl_b32 s10, s20, 10
    s_add_u32 s10, s10, {L_RES}
    v_lshl_add_u32 v{VR}, v1, 4, s10
    v_lshl_add_u32 v{VTR}, v7, 4, s10
    """)
    for lam in range(4):
        ad(f"s_xor_b32 s10, s9, {2*(lam>>1) + ((lam&1)^1)}\ns_xor_b32 s11, s10, s20\ns_mul_i32 s10, s10, 15360\ns_mul_i32 s11, s11, 5120\ns_add_u32 s10, s10, s11\nv_lshl_add_u32 v{VXW+lam}, v1, 4, s10")
    n_early = len(ad.ins)
    ad(f"""
    s_mul_i32 s10, s20, 15360
    v_lshl_add_u32 v{VXR}, v1, 4, s10
    s_mul_i32 s10, s20, {16*176}
    s_add_u32 s10, s10, {L_ST}
    v_mul_u32_u24 v4, 176, v6
    v_lshl_add_u32 v4, v7, 3, v4
    v_add_u32 v{VST}, s10, v4
    s_lshl_b32 s11, s14, 2
    s_add_u32 s11, s11, s16
    s_mul_i32 s11, s11, {16*1280}
    s_mul_i32 s12, s32, 160
    s_add_u32 s11, s11, s12
    """)
    for i in range(3):
        ad(f"v_add_u32 v4, {64*i}, v1\nv_min_u32 v4, 159, v4\nv_mul_u32_u24 v31, 6554, v4\nv_lshrrev_b32 v31, 16, v31")
        ad(f"v_add_u32 v{SRD+i}, v4, v31\nv_lshl_add_u32 v{SRD+i}, v{SRD+i}, 4, s10")
        ad(f"v_mul_u32_u24 v31, {1280-160}, v31\nv_lshl_add_u32 v31, v4, 4, v31\nv_add_u32 v{VOUT+i}, s11, v31")
    ad = [i.text for i in ad.ins]
    def wr(t): return [f"ds_write_b128 v{VXW+t}, {V4(A2+20*t+4*jj)} offset:{L_EX - 5120 + 1024*jj + 5120*0}" for jj in range(5 if not O.get('x_wr') else 0)]
    gbl = [M("0xfffff", "\n".join(f"global_load_dwordx4 {V4(GB+4*k)}, v{VGB}, s[22:23] sc1\nv_add_u32 v{VGB}, 15360, v{VGB}" for k in (2*j, 2*j+1))) for j in range(2)]
    gb = [f"v_add_f32 v{GB+k}, v{GB+k}, v{GB+8+k}" for k in range(8)] + [f"v_add_f32 v{GB+k}, v{GB+k}, v{GB+4+k}" for k in range(4)]
    for k in range(2): gb += [f"v_cvt_pk_bf16_f32 v31, v{GB+2*k}, v{GB+2*k+1}", f"v_lshlrev_b32 v{GB+2*k}, 16, v31", f"v_and_b32 v{GB+2*k+1}, 0xffff0000, v31"]
    gb += [f"ds_write_b128 v{VR}, {V4(GB)}"] + [f"ds_read_b128 {V4(GB+4*jj)}, v{VTR} offset:{64*jj}" for jj in range(5)]
    def rdp(ps): return [f"ds_read_b128 {V4(RD+20*p+4*jj)}, v{VXR} offset:{L_EX + 5120*p + 1024*jj}" for jj in range(5) for p in ps]
    XU = A2
    unp = []
    for k in range(10): unp += [f"v_lshlrev_b32 v{XU+2*k}, 16, v{RT+k}", f"v_and_b32 v{XU+2*k+1}, 0xffff0000, v{RT+k}"]
    add = lambda d, x: [f"v_add_f32 v{d+k}, v{d+k}, v{x+k}" for k in range(20)]
    def outst():
        r = [f"ds_read_b128 {V4(RD+4*i)}, v{SRD+i}" for i in range(3)]
        for i in range(3):
            if i == 2: r += ["s_waitcnt lgkmcnt(0)", "s_mov_b64 exec, 0xffffffff"]
            r.append(f"global_store_dwordx4 v{VOUT+i}, {V4(RD+4*i)}, s[24:25]")
        return r + ["s_mov_b64 exec, -1"]
    BAR = ["s_waitcnt lgkmcnt(0)", "s_barrier"]
    mm = [l for x in seq for l in x[1]]
    f1, pI, pc = 5*O['fC1'], 5*O['pI'], 5*O['pc']
    spin(a, late, "f_spinc1", pollc(1), chk, "f_okc1")
    hch = []
    for k in range(hq[0], 48):
        if k == 24 and not O.get('x_c'): hch.append(([chk[0], "s_cbranch_vccnz f_spinc1", "f_okc1:"], pc, pc))
        lo = max(5*(k - (12 if k >= 36 else 24)) + 4, 5*(k - W), pc) if k >= 24 else max(-1, 5*(k - W0))
        hi = min(5*k - 1, lo + O['hsl']) if k >= 24 else max(lo, 5*(k - W))
        hch.append((seq[k][0] if not O.get('x_h') else ['s_nop 0'], lo, hi))
    if O.get('x_c'): late.append("f_okc1:\ns_endpgm")
    T_ = lambda l, lo, hi=999: [(x, lo, hi) for x in l]
    ach = T_(ad[:12], 0, 8) + T_(ad[12:n_early], 0, 60) + T_(ad[n_early:], 0, min(118, O['gbp'] + 54))
    vch = [(flagc(1) if not O.get('x_f') else ['s_nop 0'], f1, f1)] + [(gbl[0], O['gbp'], O['gbp']), (gbl[1], O['gbp'] + 5, O['gbp'] + 5)]
    pch = [(pollc(1), pI, pI)]
    dch = [(g, -1, max(-1, (10 if O['pair'] else 5)*((dq0 + k)//5) - 5*W)) for k, g in enumerate(drest)]
    wch = T_(wr(0), max(63, f1 + 6), 118) if not O['pair'] else []
    w0l = wr(0) if O['pair'] else []
    gch = T_(gb, O['gbp'] + 55)
    rsv = lambda g: 1 if g % 5 == 4 else 0
    def emit(out, base):
        n = base
        for l in out:
            if stamp and l.startswith('v_mfma'):
                if n % 60 == 5: stamp(a, f'q{n//5}')
                n += 1
            a(l)
            if stamp and l == 'f_okc1:': stamp(a, 'pollC1')
    out, rest = listsched(mm[:120], [hch, ach, vch, pch, wch, gch, dch], vmgap=O['vg'], reserve=rsv, flush=False)
    emit(out, 0)
    assert not (rest[1] or rest[2] or rest[3] or rest[4] or rest[6])
    sh = lambda c: [(t, lo - 120, hi - 120) for t, lo, hi in c]
    a("s_cmp_ge_u32 s20, 2\ns_cbranch_scc1 f_pathb")
    b2, b3 = O['b2'], O['b3']
    c = A2 + 20
    fa = add(RD, RD+20) + add(c, RD+40) + unp + add(c, RD)
    for jj in range(5):
        fa += [f"v_fma_f32 v{c+4*jj+k}, v{c+4*jj+k}, v{GB+4*jj+k}, v{XU+4*jj+k}" for k in range(4)]
        fa += [f"v_cvt_pk_bf16_f32 v{c+4*jj+h}, v{c+4*jj+2*h}, v{c+4*jj+2*h+1}" for h in range(2)] + [f"ds_write_b64 v{VST}, {P(c+4*jj)} offset:{32*jj}"]
    lch = T_(w0l, 0, b2 - 4) + [(BAR, b2, b2)] + T_(rdp((0, 1)) + rdp((2,)), b2, b2 + 18) + T_(wr(2), 63, b3 - 4) + [(BAR, b3, b3)]
    out, r2 = listsched(mm[120:], [sh(rest[0]), lch, sh(rest[5]) + T_(fa, b2 + 20)], vmgap=O['vg'], reserve=rsv, flush=False)
    emit(out, 120)
    assert not (r2[0] or r2[1])
    left = [x[0] for x in r2[2]]
    for l in left[:6] + wr(3) + BAR + left[6:] + outst(): a(l)
    if stamp: stamp(a, 'q48')
    a("s_branch f_done\nf_pathb:")
    c = A2 + 60
    lch = T_(w0l, 0, b2 - 4) + T_(wr(1), 3, b2 - 4) + [(BAR, b2, b2)] + T_(wr(2), 63, b3 - 4) + [(BAR, b3, b3)] + T_(rdp((0, 2)), b3, b3 + 12)
    emit(listsched(mm[120:], [sh(rest[0]), lch, sh(rest[5]) + T_(unp, b2 + 1) + T_(add(RD, RD+40), b3 + 16)], vmgap=O['vg'], reserve=rsv), 120)
    for jj in range(5):
        for h in range(2): a(f"v_pk_add_f32 {P(c+4*jj+2*h)}, {P(c+4*jj+2*h)}, {P(RD+4*jj+2*h)}")
    a("s_barrier")
    if stamp: stamp(a, 'q48')
    for l in rdp((1,)): a(l)
    for jj in range(5):
        r = c + 4*jj
        for h in range(2): a(f"v_pk_add_f32 {P(r+2*h)}, {P(r+2*h)}, {P(RD+20+4*jj+2*h)}")
        for h in range(2): a(f"v_pk_fma_f32 {P(r+2*h)}, {P(r+2*h)}, {P(GB+4*jj+2*h)}, {P(XU+4*jj+2*h)}")
        for h in range(2): a(f"v_cvt_pk_bf16_f32 v{r+h}, v{r+2*h}, v{r+2*h+1}")
        a(f"ds_write_b64 v{VST}, {P(r)} offset:{32*jj}")
    for l in outst(): a(l)
    a("f_done:")
def kf(stamp=None):
    a = Asm(); late = []; del SPINS[:]; del DEFER[:]; DIAG[0] = bool(stamp)
    if stamp: a("s_mov_b32 s101, 0")
    a(f"""
    s_cmp_ge_u32 s2, 256
    s_cbranch_scc1 f_end
    """)
    ldp(a, 22, 'ws'); ldp(a, 36, 'x')
    if stamp: stamp(a, 0)
    a(f"""
    v_lshrrev_b32 v1, 6, v0
    s_getpc_b64 s[40:41]
u_pc:
    v_readfirstlane_b32 s20, v1
    s_lshr_b32 s42, s2, 3
    s_lshl_b32 s42, s42, 11
    v_and_b32 v2, 3, v0
    v_lshl_add_u32 v2, v1, 2, v2
    v_lshl_add_u32 v2, v2, 7, s42
    v_min_u32 v2, code_end-u_pc-4, v2
    v_mov_b32 v3, s41
    v_add_co_u32 v2, vcc, s40, v2
    v_addc_co_u32 v3, vcc, 0, v3, vcc
    s_mov_b64 exec, 15
    PFLOAD
    s_mov_b64 exec, -1
    v_and_b32 v1, 63, v0
    """)
    for k, i in enumerate(a.ins):
        if i.text == 'PFLOAD': a.ins[k] = I("global_load_dword v255, v[2:3], off")
    a(f"v_mov_b32 v247, {EPO}\ns_and_b32 s100, s2, 7\ns_mul_i32 s100, s100, {GOS}\ns_add_u32 s100, s100, {GOB}")
    a("s_cmp_lt_u32 s2, 160\ns_cbranch_scc1 f_conv")
    role_prep(a, stamp, late)
    a("s_branch f_join\nf_conv:")
    role_conv(a, stamp, late)
    a("CLEARVM\nf_join:")
    gemm(a, stamp, late)
    if stamp: stamp(a, 'end')
    a("f_end:\ns_endpgm")
    for l in late: a(l)
    return a
```

```python
KARG = dict(x=0, are=8, aim=16, bre=24, bim=32, cre=40, cim=48, ldt=56, dsk=64, bx=72, wg=80, wu=88, wd=96, c=104, wmod=112, out=120, dbg=128, ws=136)
MODP = 0
STAT = 0x20000
U12  = 0x30000
XRS  = 16384 + 256
XR   = 0x100000
KTS  = 3072
KT   = 0x400000
WD   = 0x600000
WP   = 0x800000
X1   = 0xC00000
HH   = 0x1000000
STAMP = 0x8000000

XT1  = 0xC00000
WPS  = 63*1024
WP2  = 0x1800000
PST  = 0x40000
FLG  = 0x80000
FLG_B, FLG_W, FLG_D, FLG_C = FLG, FLG + 160*64, FLG + 256*64, FLG + 512*64
FLG_BYTES = 768*64

UF_B, UF_W = FLG, FLG + 160*64
UF_C = FLG + 256*64
UF_A = FLG + 512*64
UF_M = FLG + 768*64
UF_D = FLG + 1008*64
UF_LINES = 1024
MODT = 0xA0000
EPO  = FLG + 1023*64
UF_E = FLG + 160*64
UF_W = FLG + 768*64
GOB  = 0x400000
GOS  = 73728 + 256
HER  = 0x4C0000
CNB  = 0xF0000
UF_C2 = 0x90000
```

```python
import sys
from asmlib import *
from layout import *
from gen_common import kstart, kdesc
import gen_k1
REF = 'adaLN_cond__ssm_conv_s4__glu_gated_geglu__prompt.s.ref'
ALIGN = [1]
CLK = ['s_memrealtime']
NAMES = [0]
def mkstamp(kidx):
    used = []
    def stamp(a, k):
        if k != 'end':
            if k not in NAMES: return
            i = NAMES.index(k); a(f"{CLK[0]} s[{70+2*i}:{71+2*i}]"); return
        a(f"s_waitcnt vmcnt(0)\n{CLK[0]} s[98:99]\ns_load_dwordx2 s[68:69], s[0:1], {KARG['ws']}\ns_mov_b64 exec, -1")
        a(f"s_lshl_b32 s64, s2, 9\ns_lshl_b32 s63, s20, 6\ns_add_u32 s64, s64, s63\ns_add_u32 s64, s64, {STAMP + kidx*(1<<20)}\nv_mov_b32 v1, s64\ns_waitcnt lgkmcnt(0)")
        for q in range(4):
            for r in range(4):
                i = 4*q + r
                a(f"v_mov_b32 v{4+r}, s{70+2*i}" if i < 15 else f"v_mov_b32 v{4+r}, s101")
            a(f"global_store_dwordx4 v1, v[4:7], s[68:69] offset:{16*q}")
    return stamp
def build(parts, path, stamps=False, pre=""):
    hdr = [l for l in open(REF).read().split('\n') if l.startswith(';') and '@launch' not in l and 'Override' not in l and 'grid=ceil' not in l]
    s = '\n'.join(hdr) + '\n'
    for (name, fn, grid, block, lds, vgpr, accum) in parts:
        s += f"; @launch kernel={name} grid=({grid},1,1) block=({block},1,1) lds={lds}\n"
    s += '.amdgcn_target "amdgcn-amd-amdhsa--gfx950"\n.text\n'
    done = set()
    for k, (name, fn, grid, block, lds, vgpr, accum) in enumerate(parts):
        if name in done: continue
        done.add(name)
        a = fn(mkstamp(k) if stamps else None)
        body = a.final() if isinstance(a, Asm) else a
        if isinstance(a, Asm) and ALIGN[0]:
            body, n1, n2 = align_pass(body); print('aligned: promoted', n1, 'nops', n2, file=sys.stderr)
        if isinstance(a, Asm): print(name, 'instr', len(body.split('\n')), 'auto nop states', a.nnop, 'auto waits', a.nwait, file=sys.stderr)
        s += kstart(name) + body + kdesc(name, vgpr, 102, accum)
    s += 'code_end:\n'
    if stamps: s += '; SPINS ' + repr(getattr(sys.modules.get('gen_u'), 'SPINS', [])) + '\n'
    if stamps: s += '; STAMPS ' + repr((NAMES, CLK[0])) + '\n'
    open(path, 'w').write(s)
def parts():
    import gen_u
    return [("adaLN_cond__ssm_conv_s4__glu_gated_geglu__prompt_kernel", gen_u.kf, 256, 256, gen_u.F_LDS, gen_u.F_VGPR, gen_u.F_ACC)]
if __name__ == '__main__':
    build(parts(), 'full.s')
    build(parts(), 'full_st.s', stamps=True)
```

```python
from asmlib import *
from layout import *
import conv_model as cm
from gen_k1 import ldp, P, cmul, AROWS, arow_map, SPECIAL, LOG2E, INV2PI
from gen_k2 import V4, A4, mf, round_pair
import struct, math
F_LDS = 163840; F_ACC = 256; F_VGPR = 512
HST, XST = 4608, 4160
KGS = 54*272
L_KG = 0; L_H = 81920; L_XT = L_H + 4*HST; L_TAB = L_XT + 4*XST; L_XS = L_TAB + 4*3072
OPT = dict(rel=5, sen=0, pfg=3, her=0, wl=36, sbq=6, gather=1, htouch=(0, 4), hstat=(1, 2), hgat=((1,0),(1,4),(1,8),(1,12),(2,2),(2,6),(2,10),(3,0)), hsl2=(2, 12), dst=3, b1f=2, short=0, dense=2, pair=0, win0=9, dlim=60, late=0, pb=2, gbp=50, ba1=44, ba2=40, b1i=3, b1c=5, sat1=6, cc0=17, hrate=2, hsl=10, b2=24, b3=84, sat=1, xtl=3, vg=4, NX=0, pq=2, hwd=((0, 6), (0, 12), (1, 4)), hwd2=(1, 13), wfirst=0, nh=10, far1=8, lead=8, xbar=56, w0=170, NE=0, TA=1, TB=16, g2=8, GM=11, cf0=2, cp0=15, fC1=8, pI=14, pc=19, edr=4, NA=3, w1early=0, N0b=4, aw0=0, aw1=5, morder=0x532104, pf=1, gopos=2, hrow1=(0, 4), hrow2=(0, 5), nd1=12, hgo=(1, 0), hgo2=(1, 7), hpoll=(2, 0), hchk=((2, 7), (3, 0)), ntab=23, npre=70, nmid1=40, nmid2=90, cpf=0, hpf=(0, 0), spread=1, wspan=8, xrate=[1,1,1,1,1,1,2,2,2,2], xlag=2, xall=12, vmc=1, gstat=(0, 10), N0=6, N1=10, N2=6, xd=3, M0=2, M1=60, win=11, rbx=8, gissue=(5, 14), gcheck=(7, 16), wdrate=6)
OPT.update(N1=8,b1i=5,b1c=7,sat1=8,cp0=18,cc0=20,NE=16,w0=120,fC1=8,pI=16,pc=21,gstat=(0,10),xrate=[2,2,1,1,1,1,2,2,2,2,2],ba2=25,vg=3,gissue=(6,15),gcheck=(8,16),GM=12,win=9,xtl=4,xd=4)
OPT.update(cf0=3,b1i=5,b1c=7,sat1=7,gstat=(0,9),gissue=(6,13),gcheck=(8,16),GM=12,hpoll=(2,7),hchk=((3,0),),cp0=17,cc0=19,xrate=[2,1,1,1,1,1,2,2,1,1,1,1],NA=4,dense=3,lead=6,vg=4,hgo=(0,12),hgo2=(1,4),hrate=1,win=9,ntab=31)
OPT.update(xfirst=0, nmid=130, hrow=(0, 10), hgo=(1, 8), hpoll=(2, 7), hchk=((3, 0),))
OPT.update(cp0=18,cc0=20,aw0=0,aw1=7,cf0=2,hpoll=(2,5),gissue=(6,14),gcheck=(8,16))
SPINS = []; DIAG = [0]; DEFER = []
SC = " sc1"
def f2u(x): return hex(struct.unpack('<I', struct.pack('<f', x))[0])
VWV = 106
VWF = 110
def wld(q):
    r = [f"global_load_dwordx4 {A4(4*q)}, v3, s[22:23] offset:{1024*(q&7)-4096}" + SC]
    if q & 7 == 7: r.append(f"v_add_u32 v3, 8192, v3")
    return r
def ids(a, VWF=VWF, VWV=VWV):
    rbx = OPT['rbx']; cbx = 32 // rbx; gx = 16 // cbx
    a(f"""
    s_and_b32 s4, s2, 7
    s_lshr_b32 s5, s2, 3
    s_and_b32 s60, s4, {gx-1}
    s_mul_i32 s60, s60, {cbx}
    s_and_b32 s6, s5, {cbx-1}
    s_add_u32 s60, s60, s6
    s_lshr_b32 s61, s4, {gx.bit_length()-1}
    s_mul_i32 s61, s61, {rbx}
    s_lshr_b32 s6, s5, {cbx.bit_length()-1}
    s_add_u32 s61, s61, s6
    s_lshl_b32 s62, s60, 2
    s_add_u32 s62, s62, s20
    s_mul_i32 s6, s62, 3
    v_bfe_u32 v{VWF}, v1, 2, 2
    v_min_u32 v{VWF}, 2, v{VWF}
    v_add_u32 v{VWF}, s6, v{VWF}                 ; tile T
    v_lshrrev_b32 v{VWF}, 3, v{VWF}              ; G
    v_lshlrev_b32 v{VWF}, 9, v{VWF}
    v_and_b32 v{VWV}, 3, v1
    v_lshl_add_u32 v{VWF}, v{VWV}, 7, v{VWF}
    s_add_u32 s6, s100, {32*128}
    v_add_u32 v{VWF}, s6, v{VWF}
    """)
def spin(a, late, name, loads, chk, back):
    SPINS.append(name)
    late.append(f"{name}:\n" + (f"s_or_b32 s101, s101, {1 << (len(SPINS)-1)}\n" if DIAG[0] else "") + f"s_mov_b32 s64, 0\n{name}_l:\ns_waitcnt vmcnt(0)\ns_sleep 2\n" + "\n".join(loads) + "\ns_waitcnt vmcnt(0)\n" + "\n".join(chk) +
                f"\ns_add_u32 s64, s64, 1\ns_cmp_ge_u32 s64, 0x40000\ns_cbranch_scc1 {back}\ns_cbranch_vccnz {name}_l\ns_branch {back}")
ONE_V = 248
def chk4(r, n=4):
    c = [f"v_xor_b32 v{r+k}, s65, v{r+k}" for k in range(n)]
    c += [f"v_or3_b32 v{r}, v{r}, v{r+1}, v{r+2}", f"v_or_b32 v{r}, v{r}, v{r+3}"] if n == 4 else []
    return c + [f"v_cmp_ne_u32 vcc, 0, v{r}"]
def M(mask, ins): return f"s_mov_b64 exec, {mask}\n{ins}\ns_mov_b64 exec, -1"
def tagchk(r, mask): return f"v_cmp_ne_u32 vcc, s65, v{r}\ns_and_b64 vcc, vcc, {mask}"
def U_(l): return "\n".join(x + " ; untracked" if x.startswith('global') else x for x in l.split("\n"))
def nonce(a):
    a(f"v_readfirstlane_b32 s65, v{ONE_V}\ns_mul_i32 s65, s65, 0x9e3779b5\ns_add_u32 s65, s65, 0x7f4a7c15\nv_mov_b32 v{ONE_V}, s65")
EPOLD = M(1, f"global_load_dword v{ONE_V}, v247, s[22:23] sc1")
def publish(a, name, old, n, vaddr, vval):
    a(f"v_readfirstlane_b32 s4, v{old}\ns_cmp_lg_u32 s4, {n-1}\ns_cbranch_scc1 {name}\nglobal_store_dwordx4 v{vaddr}, {V4(vval)}, s[22:23] sc1 ; untracked")
def rep_addr(r, sb):
    return [f"v_lshrrev_b32 v{r}, 3, v1", f"v_mul_u32_u24 v{r}, {GOS - 128}, v{r}", f"v_lshl_add_u32 v{r}, v1, 4, v{r}", f"v_add_u32 v{r}, s{sb}, v{r}"]
def flag_addr(line0, r, val, dense=False):
    if dense:
        return ["s_bfe_u32 s4, s63, 0x20002", "s_lshl_b32 s4, s4, 4", "s_lshr_b32 s5, s63, 4", "s_add_u32 s4, s4, s5", "s_lshl_b32 s4, s4, 2", "s_and_b32 s5, s63, 3",
                "s_add_u32 s4, s4, s5", "s_lshl_b32 s4, s4, 4", f"s_add_u32 s4, s4, {GOB + 128*line0}", f"v_mul_u32_u24 v{r}, {GOS}, v1", f"v_add_u32 v{r}, s4, v{r}", f"v_mov_b32 v{val}, s65"]
    return ["s_lshl_b32 s4, s63, 7", f"s_add_u32 s4, s4, {GOB + 128*line0}"] + rep_addr(r, 4) + [f"v_mov_b32 v{val}, s65"]
def flag_set(tag, r, val, single=False, off=0, dense=False):
    st = [M("0xffffffff", f"global_store_dword v{r}, v{val}, s[22:23] offset:{off} sc1 ; untracked")] if single else [f"global_store_dwordx4 v{r}, {V4(val)}, s[22:23] sc1 ; untracked"]
    if dense: st = [M("0xff", st[0])]
    return ["s_cmp_lg_u32 s20, 0", f"s_cbranch_scc1 f_na{tag}"] + st + [f"f_na{tag}:"]
def rows_addr(a):
    a(f"""
    s_and_b32 s40, s2, 3               ; j
    s_bfe_u32 s41, s2, 0x50002         ; uo
    s_lshl_b32 s42, s41, 5
    s_lshl_b32 s43, s20, 3
    s_add_u32 s42, s42, s43
    s_add_u32 s42, s42, s40
    s_mul_i32 s42, s42, 2560
    v_lshrrev_b32 v3, 1, v6
    v_and_b32 v4, 1, v6
    v_lshl_add_u32 v2, v3, 3, v4
    v_mul_u32_u24 v2, 1280, v2
    v_lshl_add_u32 v2, v5, 4, v2
    v_add_u32 v2, s42, v2
    """)
def rows_issue(a):
    for i in range(5): a(f"global_load_dwordx4 {V4(8+4*i)}, v2, s[36:37] offset:{256*i}")
def rows_addr2(a):
    a(f"""
    s_lshl_b32 s42, s20, 5
    s_add_u32 s43, s42, {L_XS}
    v_mul_u32_u24 v28, 144, v5
    v_add3_u32 v28, v28, v7, s43
    s_lshr_b32 s43, s41, 3
    s_lshl_b32 s43, s43, 12
    s_lshl_b32 s44, s40, 10
    s_add_u32 s43, s43, s44
    s_and_b32 s44, s41, 7
    s_lshl_b32 s44, s44, 7
    s_add_u32 s43, s43, s44
    s_add_u32 s44, s43, s42
    s_add_u32 s44, s44, {STAT}
    v_add_u32 v31, s44, v7
    s_and_b32 s44, s20, 1
    s_mul_i32 s44, s44, 40
    v_lshrrev_b32 v3, 3, v1
    v_add_u32 v3, s44, v3              ; chunk
    v_and_b32 v4, 7, v1
    v_lshlrev_b32 v4, 4, v4
    v_mul_u32_u24 v29, 144, v3
    s_lshr_b32 s44, s20, 1
    s_mul_i32 s42, s44, {80*144}
    s_add_u32 s42, s42, {L_XS}
    v_add3_u32 v29, v29, v4, s42
    v_mul_u32_u24 v30, {2*XRS}, v3
    s_mul_i32 s44, s44, {XRS}
    s_add_u32 s43, s43, s44
    s_add_u32 s43, s43, {XR}
    v_add3_u32 v30, v30, v4, s43
    s_lshl_b32 s44, s2, 4
    s_add_u32 s44, s44, {GOB}
    v_mul_u32_u24 v246, {GOS}, v1
    v_add_u32 v246, s44, v246
    s_mov_b32 s45, 0x3f803f80
    s_mov_b32 s46, 0x00010001
    s_mov_b32 s47, 0x00010001
    """)
def rows_process(a, stamp, RB):
    for i in range(5):
        for h in range(2): a(f"ds_write_b64 v28, {P(8+4*i+2*h)} offset:{16*144*i + 80*144*h}")
    d = []
    for k in range(20):
        d += [f"v_dot2_f32_bf16 v{32+(k&1)}, v{8+k}, s45, " + ("0" if k < 2 else f"v{32+(k&1)}"),
              f"v_dot2_f32_bf16 v{34+(k&1)}, v{8+k}, v{8+k}, " + ("0" if k < 2 else f"v{34+(k&1)}")]
    nd = OPT['nd1']
    for l in d[:nd]: a(l)
    a("s_waitcnt lgkmcnt(0)\ns_barrier")
    for k in range(5): a(f"ds_read_b128 {V4(RB[k])}, v29 offset:{8*144*k}")
    for l in d[nd:nd+16]: a(l)
    f = d[nd+16:] + ["s_nop 1", "v_add_f32 v32, v32, v33", "v_add_f32 v33, v34, v35"]
    for r in (8, 4, 2, 1): f += [f"v_add_f32_dpp v{32+k}, v{32+k}, v{32+k} row_ror:{r} row_mask:0xf bank_mask:0xf" for k in range(2)]
    st = []
    for k in range(5): st += [f"global_store_dwordx4 v30, {V4(RB[k])}, s[22:23] sc1"] + ([f"v_add_u32 v30, {16*XRS}, v30"] if k < 4 else [])
    for l in interleave(st, f): a(l)
    a(f"""
    v_mul_f32 v32, 0x3acccccd, v32
    v_mul_f32 v33, 0x3acccccd, v33
    v_fma_f32 v33, -v32, v32, v33
    v_max_f32 v33, 0, v33
    v_add_f32 v33, 0x3727c5ac, v33
    v_rsq_f32 v34, v33
    s_mov_b64 exec, s[46:47]
    v_mul_f32 v35, -v32, v34
    global_store_dwordx2 v31, v[34:35], s[22:23] sc1
    s_mov_b64 exec, -1
    """)
def role_conv(a, stamp, late):
    O = OPT
    X, S, SA, CA, BND, SP, U, HP = 8, 24, 40, 44, 48, 72, 76, 84
    a(f"s_load_dwordx16 s[4:19], s[0:1], {KARG['are']}")
    B = 112
    RAW, VB, VA, DT, ONE, KR, BB, CC, E1, H, T0, XX, PB, F, ZZ, ACK = (B, B+12, B+13, B+14, B+15, B+16, B+18, B+20, B+22, B+24, B+26, B+28, B+32, B+36, B+54, B+92)
    G = F + 16; PK = ZZ + 14
    TB, TS, T2A, T3A, DSK, SPC, VPA, VMD, VXR, VST, VPF = 220, 221, 222, 223, 224, 228, 225, 227, 232, 233, 234
    PLA, MD = 236, 240
    VH, VTD, VT2, VT3, VXD, VW, VO, GA, VTD0 = 100, 101, 102, 103, 104, 105, 107, 108, 109
    a(f"""
    s_and_b32 s21, s2, 7
    s_mul_i32 s21, s21, 20
    s_lshr_b32 s3, s2, 3
    s_add_u32 s21, s21, s3             ; cg
    s_lshl_b32 s48, s21, 2
    s_add_u32 s48, s48, s20            ; channel
    s_mul_i32 s25, s48, 384
    v_lshl_add_u32 v{T0}, v1, 2, s25
    v_lshl_add_u32 v{T0+1}, v1, 1, s25
    s_lshr_b32 s26, s48, 1
    s_lshl_b32 s26, s26, 2
    v_and_b32 v5, 15, v1
    v_lshrrev_b32 v6, 4, v1
    v_lshlrev_b32 v7, 3, v6
    """)
    rows_addr(a)
    c = Asm()
    rows_addr2(c)
    nrow = len(c.ins)
    c(f"""
    s_min_u32 s30, s2, 127
    s_lshl_b32 s30, s30, 11
    s_add_u32 s30, s30, {PST}
    v_lshl_add_u32 v{U+4}, v0, 3, s30
    v_mov_b32 v{U+6}, -1.0
    v_mov_b32 v{U+7}, -1.0
    s_mul_i32 s29, s20, {KGS}
    s_mov_b32 m0, s29
    v_and_b32 v{VB}, 31, v1
    v_mul_u32_u24 v{VB}, 272, v{VB}
    v_lshrrev_b32 v{U}, 5, v1
    v_lshl_add_u32 v{U}, v{U}, 4, s29
    v_add_u32 v{VB}, v{VB}, v{U}
    v_mov_b32 v{ONE}, 0x3f80
    v_mov_b32 v{DSK}, 0
    s_mov_b32 s34, {LOG2E}
    s_mov_b32 s35, {INV2PI}
    """)
    m = arow_map()
    c(f"v_and_b32 v{U+1}, 31, v1\nv_lshrrev_b32 v{U+2}, 2, v{U+1}\nv_and_b32 v{U+1}, 3, v{U+1}\nv_lshlrev_b32 v{U+1}, 3, v{U+1}")
    for q in range(8):
        w = sum(m[4*q+k] << (8*k) for k in range(4))
        if q == 0: c(f"v_mov_b32 v{VA}, {w}")
        else: c(f"v_cmp_eq_u32 vcc, {q}, v{U+2}\nv_mov_b32 v{U+3}, {w}\nv_cndmask_b32 v{VA}, v{VA}, v{U+3}, vcc")
    c(f"v_bfe_u32 v{VA}, v{VA}, v{U+1}, 8\nv_mul_u32_u24 v{VA}, 272, v{VA}\nv_add_u32 v{VA}, v{VA}, v{U}")
    keys = ['r2q0', 'r2q1', None, 'r2q3', 'r3e', 'r3o', 'sp']
    for k, key in enumerate(keys):
        if key is None: continue
        if key == 'sp': mk = 3 << 12
        else: co, w, sh = cm.BANDS[key]; mk = ((1 << (2*w+1)) - 1) << (co + sh - w)
        c(f"v_mov_b32 v{U}, {mk}\nv_lshlrev_b32 v{U}, v5, v{U}\nv_lshrrev_b32 v{U}, v7, v{U}")
        c(f"v_and_b32 v{U}, 0xff, v{U}\nv_mul_u32_u24 v{U}, 0x8001, v{U}")
        for w in range(4):
            d = BND + 4*k + w
            if w: c(f"v_lshrrev_b32 v{U}, 2, v{U}")
            c(f"v_and_b32 v{d}, 0x10001, v{U}")
            if key != 'sp': c(f"v_mul_u32_u24 v{d}, 0x3f80, v{d}")
    c(f"""
    s_mul_i32 s24, s20, 3072
    s_add_u32 s24, s24, {L_TAB}
    s_mul_i32 s30, s20, {HST}
    s_add_u32 s30, s30, {L_H}
    v_lshlrev_b32 v{VH}, 5, v5
    v_lshl_add_u32 v{VH}, v6, 4, v{VH}
    v_add_u32 v{VH}, s30, v{VH}
    v_lshl_add_u32 v106, v1, 3, s30
    v_and_b32 v{U}, 1, v5
    v_mul_u32_u24 v{U}, {2*((cm.CH_O*8+7) - (cm.CH_E*8+8))}, v{U}
    v_sub_u32 v{VTD}, v7, v5
    v_lshl_add_u32 v{VTD}, v{VTD}, 1, v{U}
    v_add_u32 v{VTD}, {2*(cm.CH_E*8+8-16-32*16)}, v{VTD}
    v_add_u32 v{VTD}, s24, v{VTD}
    v_add_u32 v{VTD0}, 1024, v{VTD}
    v_lshlrev_b32 v{U}, 2, v6
    v_sub_u32 v{U}, v{U}, v5                    ; 4g - col
    v_lshl_add_u32 v{VT2}, v{U}, 3, s24
    v_lshl_add_u32 v{VT3}, v{U}, 2, s24
    v_add_u32 v{VT3}, {2*(cm.CH_T3*8+256-2-32*7)}, v{VT3}
    s_mul_i32 s30, s20, {XST}
    s_add_u32 s30, s30, {L_XT}
    v_lshlrev_b32 v{VXD}, 5, v5
    v_add3_u32 v{VXD}, v{VXD}, v7, s30
    v_lshlrev_b32 v{VW}, 4, v0
    v_add_u32 v{VW}, {L_H}, v{VW}
    v_lshlrev_b32 v{U}, 4, v1
    v_sub_u32 v{TB}, s24, v{U}
    v_lshlrev_b32 v{U}, 2, v1
    v_sub_u32 v{T2A}, s24, v{U}
    v_lshlrev_b32 v{U}, 1, v1
    v_sub_u32 v{T3A}, s24, v{U}
    v_and_b32 v{TS}, 31, v1
    v_mov_b32 v{U}, v{TS}
    """)
    prev = 0
    for k in range(1, 32):
        step = SPECIAL[k] - k
        if step != prev:
            c(f"v_cmp_le_u32 vcc, {k}, v{U}\nv_mov_b32 v{U+1}, {step-prev}\nv_cndmask_b32 v{U+1}, 0, v{U+1}, vcc\nv_add_u32 v{TS}, v{TS}, v{U+1}"); prev = step
    c(f"v_lshl_add_u32 v{TS}, v{TS}, 4, s24")
    for r in range(4): c(f"v_mov_b32 v{SPC+r}, 0")
    c(f"""
    s_lshl_b32 s31, s20, 12
    s_lshl_b32 s30, s20, 9
    s_add_u32 s30, s30, s100
    v_lshl_add_u32 v{VPA}, v1, 4, s30
    v_lshl_add_u32 v{VST}, v1, 4, s31
    s_mul_i32 s30, s21, {XRS}
    s_add_u32 s30, s30, {XR}
    v_add_u32 v{VXR}, s30, v{VST}
    v_add_u32 v{VST}, {STAT}, v{VST}
    v_bfe_u32 v{U}, v1, 2, 2                    ; ks
    v_and_b32 v{U+1}, 1, v6
    v_mul_u32_u24 v{U}, 30720, v{U}
    s_lshl_b32 s30, s48, 3
    s_add_u32 s30, s30, {MODT + 2*5120}
    v_add_u32 v111, s30, v{U}
    v_mul_u32_u24 v{VMD}, 5120, v{U+1}
    v_add_u32 v{VMD}, v{VMD}, v{U}
    v_and_b32 v{U}, 3, v1
    v_lshlrev_b32 v{U}, 3, v{U}
    s_lshl_b32 s30, s21, 5
    s_add_u32 s30, s30, {MODT}
    v_add3_u32 v{VMD}, v{VMD}, v{U}, s30
    v_cvt_f32_u32 v{MD+2}, v{U+1}
    """)
    cl = [i.text for i in c.ins]
    def deal(n):
        while cl and (n > 0 or 'vcc' in cl[0].split(',')[-1] or (len(cl) > 1 and cl[1].startswith('v_cndmask'))): a(cl.pop(0)); n -= 1
    deal(O['npre'])
    a("s_waitcnt lgkmcnt(0)")
    if stamp: stamp(a, 'ka')
    a("s_load_dword s27, s[16:17], s26\ns_load_dword s28, s[18:19], s26")
    p1 = [f"global_load_dword v{RAW+i}, v{T0}, s[{4+2*i}:{5+2*i}]" for i in range(6)]
    p2 = [f"global_load_ushort v{RAW+6+i}, v{T0+1}, s[{4+2*i}:{5+2*i}] offset:256" for i in range(6)]
    def rows(nyoung):
        a(f"s_cmp_ge_u32 s2, 128\ns_cbranch_scc1 u_norow\ns_waitcnt vmcnt({nyoung})")
        rows_process(a, stamp, [84, 88, 92, 96, 40])
        a(f"global_store_dwordx2 v{U+4}, {P(U+6)}, s[22:23] sc1\ns_waitcnt lgkmcnt(0)\nCLEARVM\nu_norow:")
        if stamp: stamp(a, 'row2')
    xf = O['xfirst']
    for l in ([] if xf else p1 + [EPOLD]): a(l)
    a("s_cmp_ge_u32 s2, 128\ns_cbranch_scc1 u_noiss")
    rows_issue(a)
    a("CLEARVM\nu_noiss:")
    for l in (p1 + [EPOLD] if xf else []) + p2: a(l)
    a("CLEARVM")
    if stamp: stamp(a, 'iss')
    if xf:
        deal(O['nmid']); rows(13)
    deal(999)
    a(f"s_waitcnt lgkmcnt(0)\ns_cmp_ge_u32 s2, 128\ns_cbranch_scc1 u_w0\ns_waitcnt vmcnt({13 if xf else 11})\ns_branch u_w1\nu_w0:\ns_waitcnt vmcnt(6)\nu_w1:\ns_mov_b32 s49, 0")
    nonce(a)
    a(f"""
    ds_write_b64 v106, {P(SPC)}
    s_and_b32 s30, s48, 1
    s_lshl_b32 s30, s30, 4
    s_lshr_b32 s27, s27, s30
    s_lshl_b32 s27, s27, 16
    s_lshr_b32 s28, s28, s30
    s_lshl_b32 s28, s28, 16
    v_mov_b32 v{DT}, {LOG2E}
    v_mul_f32 v{DT}, s27, v{DT}
    v_exp_f32 v{DT}, v{DT}
    v_writelane_b32 v{DSK}, s28, 0
    v_cvt_pk_bf16_f32 v{DT}, v{DT}, v{DT}
    v_and_b32 v{DT}, 0xffff0000, v{DT}
    s_mov_b32 s14, 0x05040100
    s_mov_b32 s15, 0x07060302
    """)
    pollA = [M("0xffffffff", f"global_load_dword v{PLA}, v{VPA}, s[22:23] sc1")]
    chkA = [tagchk(PLA, "0xffffffff")]
    mdl = M("0xffffffff", f"global_load_dwordx2 {P(MD)}, v{VMD}, s[22:23] sc1")
    hl = []
    for j in range(4): hl += [f"global_load_dwordx4 {V4(X+4*j)}, v{VXR}, s[22:23] offset:{1024*j} sc1", f"global_load_dwordx4 {V4(S+4*j)}, v{VST}, s[22:23] offset:{1024*j} sc1"]
    def hook(pos):
        if pos == O['hrow'] and not xf: rows(6)
        if pos == O['hgo']:
            a("s_cmp_ge_u32 s2, 128\ns_cbranch_scc1 f_naa\ns_waitcnt vmcnt(0) ; untracked\ns_barrier")
            for l in flag_set('a', 246, ONE_V, dense=True): a(l)
            if stamp: stamp(a, 'flagA')
        if pos == O['hpoll']: a(U_(mdl) + f"\ns_cmp_ge_u32 s2, 128\ns_cbranch_scc1 u_nopoll\n{U_(pollA[0])}\nu_nopoll:")
        if pos in O['hchk']:
            n = f"u_try{pos[0]}_{pos[1]}"
            a(f"s_cmp_lg_u32 s49, 0\ns_cbranch_scc1 {n}\ns_waitcnt vmcnt(0)\ns_cmp_ge_u32 s2, 128\ns_cbranch_scc1 {n}\n{chkA[0]}\ns_cbranch_vccz {n}_ok\n{U_(pollA[0])}\n{n}:")
            late.append(f"{n}_ok:\n" + "\n".join(l + " ; untracked" for l in hl) + f"\ns_mov_b32 s49, 1\ns_branch {n}")
    pend = []; ard = []
    for rd in range(3):
        FB, FA = 64*(rd & 1), 64*(rd & 1) + 32
        s = []
        for i, d in enumerate((KR, KR + 1, BB, BB + 1, CC, CC + 1)):
            if rd == 0: s.append(f"v_lshlrev_b32 v{d}, 16, v{RAW+i}")
            elif rd == 1: s.append(f"v_and_b32 v{d}, 0xffff0000, v{RAW+i}")
            else: s.append(f"v_lshlrev_b32 v{d}, 16, v{RAW+6+i}")
        s.append(f"v_pk_mul_f32 {P(KR)}, {P(KR)}, {P(DT)} op_sel_hi:[1,0]")
        s.append(f"v_pk_mul_f32 {P(BB)}, {P(BB)}, {P(DT)} op_sel_hi:[1,0]")
        s.append(f"v_pk_mul_f32 {P(KR)}, {P(KR)}, s[34:35]")
        s += [f"v_mul_f32 v{XX}, 0x41000000, v{KR}", f"v_mul_f32 v{XX+1}, 0x41000000, v{KR+1}", f"v_exp_f32 v{XX}, v{XX}", f"v_fract_f32 v{XX+1}, v{XX+1}",
              f"v_cos_f32 v{F+2}, v{XX+1}", f"v_sin_f32 v{F+3}, v{XX+1}", f"v_exp_f32 v{XX+2}, v{KR}", f"v_fract_f32 v{XX+3}, v{KR+1}",
              f"v_cos_f32 v{E1}, v{XX+3}", f"v_sin_f32 v{E1+1}, v{XX+3}",
              f"v_pk_mul_f32 {P(F+2)}, {P(F+2)}, {P(XX)} op_sel_hi:[1,0] neg_hi:[1,0]", f"v_pk_mul_f32 {P(E1)}, {P(E1)}, {P(XX+2)} op_sel_hi:[1,0]"]
        if rd == 2: a("s_cmp_lt_u32 s2, 128\ns_cbranch_scc1 u_p2ok\ns_waitcnt vmcnt(0)\nu_p2ok:" if O['hgo'] < (2, 0) else "s_waitcnt vmcnt(7)\ns_cmp_lt_u32 s2, 128\ns_cbranch_scc1 u_p2ok\ns_waitcnt vmcnt(0)\nu_p2ok:")
        if stamp: stamp(a, f'r{rd}')
        for l in s: a(l)
        vals = [([], None, 0), ([], F + 2, 1)]
        for j in range(2, 9): vals.append((cmul(F + 2*j, F + 2*(j-1), F + 2, T0), F + 2*j, j))
        for j in range(9, 32):
            z = F + 2*(j & 7)
            if j == 16:
                vals.append((cmul(F, G, G, T0) + [f"v_pk_mul_f32 {P(T0)}, {P(F)}, {P(F)} op_sel:[0,0] op_sel_hi:[0,1] neg_hi:[1,0]",
                             f"v_pk_fma_f32 {P(H)}, {P(F)}, {P(F)}, {P(T0)} op_sel:[1,1,0] op_sel_hi:[1,0,1] neg_lo:[1,0,0] neg_hi:[1,0,0]"], F, j))
            else: vals.append((cmul(z, z, G, T0), z, j))
        zr = {l: F + 2*k for k, l in enumerate(AROWS)}
        for l in AROWS:
            op = cmul(zr[0], CC, BB, T0) if l == 0 else cmul(zr[l], zr[l-1], E1, T0) if l <= 8 else cmul(zr[l], zr[l-256], H, T0)
            vals.append((op, zr[l], 32 + AROWS.index(l)))
        brd = [f"ds_read_b128 {A4(FB+4*ks)}, v{VB} offset:{32*ks}" for ks in range(8)]
        for gi in range(14):
            hook((rd, gi))
            grp = vals[4*gi:4*gi+4]
            for v in grp:
                for l in v[0]: a(l)
            if pend and gi >= 5: a(pend.pop(0))
            for k, v in enumerate(grp):
                if v[1] is not None: a(f"v_cvt_pk_bf16_f32 v{PB+k}, v{v[1]}, v{v[1]+1}")
            rds = ard if gi < 8 else brd
            for _ in range(2):
                if rds: a(rds.pop(0))
            for k, v in enumerate(grp): a(f"ds_write_addtid_b32 v{PB+k if v[1] is not None else ONE} offset:{272*v[2]}")
        assert not pend and not brd and not ard
        ard = [f"ds_read_b128 {A4(FA+4*ks)}, v{VA} offset:{32*272 + 32*ks}" for ks in range(8)]
        pend = [f"v_mfma_f32_32x32x16_bf16 v[{ACK}:{ACK+15}], {A4(FA+4*ks)}, {A4(FB+4*ks)}, " + ("0" if rd == 0 and ks == 0 else f"v[{ACK}:{ACK+15}]") for ks in range(8)]
    for l in ard: a(l)
    hook((3, 0))
    if stamp: stamp(a, 'r3')
    cmd = [tagchk(MD+1, "0xffffffff")]
    a(cmd[0] + "\ns_cbranch_vccnz u_spinmd\nu_okmd:")
    spin(a, late, "u_spinmd", [mdl], cmd, "u_okmd")
    a(f"""
    v_add_f32_dpp v{MD}, v{MD}, v{MD} row_ror:4 row_mask:0xf bank_mask:0xf
    v_add_f32_dpp v{MD}, v{MD}, v{MD} row_ror:8 row_mask:0xf bank_mask:0xf
    v_cvt_pk_bf16_f32 v{MD}, v{MD}, v{MD}
    v_and_b32 v{MD}, 0xffff0000, v{MD}
    v_add_f32 v{MD}, v{MD}, v{MD+2}
    v_cvt_pk_bf16_f32 v{MD}, v{MD}, v{MD}
    v_and_b32 v{MD}, 0xffff0000, v{MD}
    """)
    f = [f"v_readlane_b32 s{8+c}, v{MD}, {c}" for c in range(4)] + [f"v_readlane_b32 s{52+c}, v{MD}, {16+c}" for c in range(4)]
    f += [f"v_mov_b32 v{SA+c}, s{8+c}" for c in range(4)]
    for l in interleave(pend, f): a(l)
    V = ACK; E, O = PK, PK + 4
    a(f"v_add_f32 v{V}, v{V}, v{DSK}")
    for k in range(4): a(f"v_cvt_pk_bf16_f32 v{E+k}, v{V+8-2*k}, v{V+7-2*k}")
    for k in range(4): a(f"v_cvt_pk_bf16_f32 v{O+k}, v{V+7-2*k}, v{V+6-2*k}")
    a(f"ds_write_b128 v{TB}, {V4(E)} offset:{cm.CH_E*16}")
    a(f"v_cvt_pk_bf16_f32 v{PK+8}, v{V+10}, v{V+9}\nv_cvt_pk_bf16_f32 v{PK+9}, v{V+11}, v{V+12}")
    a(f"v_readlane_b32 s8, v{O+3}, 0\nv_readlane_b32 s9, v{E}, 63\nv_readlane_b32 s11, v{PK+8}, 63")
    a(f"ds_write_b128 v{TB}, {V4(O)} offset:{cm.CH_O*16}")
    a(f"s_lshr_b32 s8, s8, 16\ns_lshl_b32 s10, s9, 16\ns_and_b32 s11, s11, 0xffff")
    a(f"v_writelane_b32 v{SPC}, s8, {SPECIAL.index(cm.CH_E+1)}")
    a(f"v_writelane_b32 v{SPC+3}, s9, {SPECIAL.index(cm.CH_E-64)}")
    a(f"v_writelane_b32 v{SPC+2}, s10, {SPECIAL.index(cm.CH_O-64)}")
    a(f"v_writelane_b32 v{SPC+3}, s9, {SPECIAL.index(cm.CH_O-64)}")
    a(f"s_mov_b64 exec, 0xffffffff\nds_write_b128 v{TS}, {V4(SPC)}\ns_mov_b64 exec, -1")
    a(f"ds_write_b32 v{T2A}, v{PK+8} offset:{cm.CH_T2*16 + 2*(320-130)}")
    a(f"ds_write_b16 v{T3A}, v{PK+9} offset:{cm.CH_T3*16 + 2*(256-129)}")
    a(f"ds_write_b16_d16_hi v{T3A}, v{PK+9} offset:{cm.CH_T3*16 + 2*(256-193)}")
    NH = OPT['nh']
    TDO = [16, 0, 8] + [q for k in range(1, 8) for q in (k, k + 8)]
    HB = 256 - 4*NH; T3 = HB - 16; T2 = T3 - 24; TDB = T2 - 68
    td = lambda q: TDB + 4*TDO.index(q)
    def rd_td(q): return [f"ds_read2_b32 a[{td(q)+2*h}:{td(q)+2*h+1}], v{VTD} offset0:{16*(16-q)+2*h} offset1:{16*(16-q)+2*h+1}" if q else
                          f"ds_read2_b32 a[{td(q)+2*h}:{td(q)+2*h+1}], v{VTD0} offset0:{2*h} offset1:{2*h+1}" for h in range(2)]
    tabs = [None] + rd_td(0) + rd_td(8) + rd_td(16) + rd_td(1) + rd_td(9)
    for D in range(2, 5):
        for hh in range(2):
            off = 2*(cm.CH_T2*8 + 320 - 64*D - 4 + 8*hh)
            tabs += [f"ds_read_b64 a[{T2+8*(D-2)+4*hh+2*h}:{T2+8*(D-2)+4*hh+2*h+1}], v{VT2} offset:{off+8*h}" for h in range(2)]
    for D in range(4, 8):
        tabs += [f"ds_read2_b32 a[{T3+4*(D-4)+2*h}:{T3+4*(D-4)+2*h+1}], v{VT3} offset0:{16*(7-D)+2*h} offset1:{16*(7-D)+2*h+1}" for h in range(2)]
    ntab = OPT['ntab']
    for l in tabs[1:ntab]: a(l)
    for w in range(4): a(f"v_mul_u32_u24 v{SP+w}, s11, v{SP+w}")
    if stamp: stamp(a, 'tab')
    a(f"s_cmp_lg_u32 s49, 0\ns_cbranch_scc1 u_have\ns_cmp_lt_u32 s2, 128\ns_cbranch_scc1 u_polled\n{U_(pollA[0])}\nu_polled:\ns_waitcnt vmcnt(0)\n{chkA[0]}\ns_cbranch_vccnz u_spina\nu_oka:")
    spin(a, late, "u_spina", pollA, chkA, "u_oka")
    for l in hl: a(l + " ; untracked")
    a("u_have:")
    for l in hl: a("TRACK " + l)
    if stamp: stamp(a, 'pollA')
    UN = F
    for k in range(16):
        if k % 4 == 0:
            for q in range(k, k + 4): a(f"v_lshlrev_b32 v{UN+2*q}, 16, v{X+q}\nv_and_b32 v{UN+2*q+1}, 0xffff0000, v{X+q}")
        st = P(S + 2*(k >> 1))
        a(f"v_pk_fma_f32 {P(UN+2*k)}, {P(UN+2*k)}, {st}, {st} op_sel:[0,0,1] op_sel_hi:[1,0,1]")
    for cp in range(2):
        for k in range(cp, 16, 2): a(f"v_pk_fma_f32 {P(UN+2*k)}, {P(UN+2*k)}, s[{52+2*cp}:{53+2*cp}], {P(SA+2*cp)}")
        for c in (2*cp, 2*cp + 1):
            for tp in range(4): a(f"v_cvt_pk_bf16_f32 v{HP+4*c+tp}, v{UN+8*tp+c}, v{UN+8*tp+4+c}")
            a(f"ds_write_b128 v{VW}, {V4(HP+4*c)} offset:{HST*c + 512}")
    a("s_waitcnt lgkmcnt(0)\ns_barrier")
    if stamp: stamp(a, 'bar')
    addr = Asm(); ids(addr)
    addr(f"""
    s_lshr_b32 s4, s48, 1
    s_and_b32 s4, s4, 1
    s_lshr_b32 s5, s48, 2
    s_and_b32 s5, s5, 2
    s_or_b32 s4, s4, s5
    v_and_b32 v{VO}, 3, v5
    v_xor_b32 v{VO}, s4, v{VO}
    v_lshrrev_b32 v{U}, 1, v6
    v_lshl_add_u32 v{VO}, v{U}, 2, v{VO}
    v_and_b32 v{U}, 1, v6
    v_lshrrev_b32 v{U+1}, 2, v5
    v_lshl_add_u32 v{U}, v{U}, 2, v{U+1}
    v_mul_u32_u24 v{U}, 81920, v{U}
    v_lshl_add_u32 v{VO}, v{VO}, 4, v{U}
    s_lshl_b32 s4, s48, 7
    s_add_u32 s4, s4, {XT1}
    v_add_u32 v{VO}, s4, v{VO}
    s_mov_b32 s63, s21
    """)
    addr = [i.text for i in addr.ins] + flag_addr(128, 41, 40, OPT['dense'] & 1) + ["s_lshl_b32 s4, s2, 7", f"s_add_u32 s4, s4, {HER}", "v_lshl_add_u32 v42, v1, 2, s4"]
    XP = S
    ACC, Z3, Z2, SD, XD, XU, OUTR = 112, 144, 160, 208, 8, 24, 84
    ops = []
    first = set()
    def acc(n, A, B):
        ops.append((ACC+4*n, A, B, None if n in first else "0")); first.add(n)
    cvs = []; lastacc = {}; sdt = []
    nsd = [0]
    def sig0(n, what, rep=0):
        h, hs, sd = ('h', n, 32, rep), ('h', n, 48, rep), SD + 24*(nsd[0] & 1)
        r2, r3, dr = n < 6 and '2' in what, n < 4 and '3' in what, [j for j in range(3) if 'abc'[j] in what and n + j < 8]
        if r2 or r3: nsd[0] += 1; sdt.append(len(ops))
        if r2:
            for q in (1, 2, 3, 0): ops.append((sd+4*q, hs if q == 0 else h, V4(BND+4*(q if q != 2 else 0)), "0"))
        if r3: ops.append((sd+16, hs, V4(BND+16), "0")); ops.append((sd+20, h, V4(BND+20), "0"))
        p = len(ops)
        cv = []
        if r2:
            for hh in range(2):
                for w in range(4): cv.append(f"v_cvt_pk_bf16_f32 v{Z2+8*n+4*hh+w}, v{sd + 4*(2*(w&1)) + 2*hh + (w>>1)}, v{sd + 4*(2*(w&1)+1) + 2*hh + (w>>1)}")
        if r3: cv += [f"v_cvt_pk_bf16_f32 v{Z3+4*n+r}, v{sd+16+r}, v{sd+20+r}" for r in range(4)]
        cvs.extend((l, p + 2, p + 11, nsd[0]) for l in cv)
        for j in dr: acc(n+j, A4(td(8*j)), h)
        if r3: acc(n+4, V4(SP), h)
    far = []
    for n in range(6):
        for hh in range(2):
            for D in range(2, 5):
                if n + D < 8: far.append((n+D, V4(Z2+8*n+4*hh), A4(T2+8*(D-2)+4*hh), n))
    for n in range(4):
        for D in range(4, 8):
            if n + D < 8: far.append((n+D, V4(Z3+4*n), A4(T3+4*(D-4)), n))
    far1 = [x for x in far if x[0] < 4]; far2 = sorted((x for x in far if x[0] >= 4), key=lambda x: x[3] >= 4)
    k1 = OPT['far1']; far1 += far2[:k1]; far2 = far2[k1:]
    marks = {}
    for part, fr in ((0, far1), (1, far2)):
        if not OPT['short']:
            for n in range(4*part, 4*part + 4): sig0(n, '23abc')
        elif part == 0:
            for n in range(4): sig0(n, '2abc' if n < 2 else 'ab')
        else:
            for n in (2, 0, 3, 1): sig0(n, '3' if n < 2 else '23c', 1)
            for n in range(4, 8): sig0(n, '23abc')
        for sig in range(1, 8):
            marks[(part, sig)] = len(ops)
            k = -(-len(fr) // (7 - sig)) if sig < 7 else 0
            for n in range(4*part, 4*part + 4):
                h = ('h', n, 32 + 64*sig, 0)
                acc(n, A4(td(sig)), h); lastacc[n] = len(ops) - 1
                if n < 7: acc(n+1, A4(td(sig+8)), h)
                for _ in range((k*(n%4+1))//4 - (k*(n%4))//4): acc(*fr.pop(0)[:3])
        assert not fr
    assert len(ops) == 202
    cvs = [(l, min(lo, hi2), hi2) for l, lo, hi, k in cvs for hi2 in [min(hi, sdt[k+1] - 1 if k + 1 < len(sdt) else 999)]]
    use = {}
    for i, o in enumerate(ops):
        for x in o[1:3]: use.setdefault(x, []).append(i)
    hs = [x for x in use if isinstance(x, tuple)]
    hreg = {}; hch = []; LEAD = OPT['lead']
    for k, x in enumerate(hs):
        hreg[x] = A4(HB + 4*(k % NH))
        lo = use[hs[k-NH]][-1] if k >= NH else -1
        hch.append((f"ds_read_b128 {hreg[x]}, v{VH} offset:{512 + 512*x[1] - x[2]}", lo, max(lo, use[x][0] - LEAD)))
    m = [mf(d, hreg.get(A, A), hreg.get(B, B), c) for d, A, B, c in ops]
    def treg(l):
        r = int(re.search(r'a\[(\d+):', l).group(1)); return A4(r - r % 4)
    rest = tabs[ntab:]
    for q in range(2, 8): rest = rest + rd_td(q) + rd_td(q + 8)
    tch = sorted(((l, 0, use[treg(l)][0] - LEAD) for l in rest), key=lambda x: x[2])
    def epi(n):
        r = ACC + 4*n; o = OUTR + 2*n
        e = [f"v_fma_f32 v{r+k}, v{r+k}, s50, v{XU+4*(n&3)+k}" for k in range(4)] + [f"v_cvt_pk_bf16_f32 v{o+h}, v{r+2*h}, v{r+2*h+1}" for h in range(2)]
        if n & 1:
            o -= 2
            e += [f"v_permlane16_swap_b32 v{o}, v{o+2}", f"v_permlane16_swap_b32 v{o+1}, v{o+3}"]
            x = [f"global_store_dwordx4 v{VO}, {V4(o)}, s[22:23]" + SC + f" ; tag=x1s{n}"] + ([f"v_add_u32 v{VO}, {8*81920}, v{VO}"] if n < 7 else [])
            if n < 4 or OPT['dst'] < 0: e += x
            else: DEFER.extend(U_(l) for l in x)
        return [(l, lastacc[n] + 3, lastacc[n] + 14 if n < 4 else 999) for l in e]
    def unp(p): return [(l, 0, lastacc[4*p]) for k in range(8) for l in (f"v_lshlrev_b32 v{XU+2*k}, 16, v{XD+8*p+k}", f"v_and_b32 v{XU+2*k+1}, 0xffff0000, v{XD+8*p+k}")]
    gb0 = OPT['xbar']
    xch = []
    for c in range(4):
        xch += [(f"v_perm_b32 v{XP+4*c+tp}, v{X+4*tp+2+(c>>1)}, v{X+4*tp+(c>>1)}, s{14+(c&1)}", -1, -1) for tp in range(4)]
    xch += [(f"ds_write_b128 v{VW}, {V4(XP+4*c)} offset:{L_XT - L_H + XST*c} ; xt", 0, gb0 - 12) for c in range(4)]
    xch += [(["WAITXT", "s_barrier"], gb0, gb0)] + [(f"ds_read_b64 {P(XD+2*n)}, v{VXD} offset:{512*n}", gb0, gb0 + 16) for n in range(8)]
    xch += [(unp(0)[0][0], gb0 + 18, 999)] + unp(0)[1:]
    for n in range(4): xch += epi(n)
    xch += unp(1)
    for n in range(4, 8): xch += epi(n)
    wfl = M("0xfff", f"global_load_dword v{VWV}, v{VWF}, s[22:23] sc1")
    gfl = M("0xffff", f"global_load_dwordx2 {P(GA)}, v111, s[22:23] sc1"); gck = [tagchk(GA+1, "0xffff")]
    spin(a, late, "u_spinga", [gfl], gck, "u_okga")
    g1 = lastacc[0] - 10
    gch = [(gfl, g1 - 40, g1 - 36), ([gck[0], "s_cbranch_vccnz u_spinga", "u_okga:"], g1, g1)]
    gch += [(l, g1 + k, g1 + 8) for k, l in enumerate([f"v_add_f32_dpp v{GA}, v{GA}, v{GA} row_ror:4 row_mask:0xf bank_mask:0xf", f"v_add_f32_dpp v{GA}, v{GA}, v{GA} row_ror:8 row_mask:0xf bank_mask:0xf",
                      f"v_cvt_pk_bf16_f32 v{GA}, v{GA}, v{GA}", f"v_and_b32 v{GA}, 0xffff0000, v{GA}", f"v_readfirstlane_b32 s50, v{GA}"])]
    w0 = OPT['w0']; NE = OPT['NE']
    ach = [(l, 0, min(w0 - 44, g1)) for l in addr] + [(wfl, w0 - OPT['wl'], w0 - OPT['wl'] + 2)]
    wchk = [tagchk(VWV, "0xfff")]
    ach += [(l, 0, w0) for l in (f"s_mul_i32 s4, s62, {WPS}", f"s_add_u32 s4, s4, {WP2 + 4096}", "v_lshl_add_u32 v3, v1, 4, s4")]
    ach += [([wchk[0], "s_cbranch_vccnz f_spinw", "f_okw:"], w0, w0)]
    spin(a, late, "f_spinw", [wfl], wchk, "f_okw")
    for q in range(NE):
        lo = w0 + 1 + (q*(200 - w0))//max(NE, 1)
        if 4*q >= TDB: lo = max(lo, use[A4(4*q)][-1] + 1)
        ach.append((wld(q), lo, lo + 2))
    ga1 = lastacc[3] + OPT['ba1']; ga2 = min(200, ga1 + OPT['ba2'])
    bch = [(["WAITVM x1s3", "s_barrier"] + flag_set('b0', 41, 40, dense=OPT['dense'] & 1), ga1, ga1)] + ([(flag_set('he', 42, 40, True), ga2, ga2)] if OPT['her'] else [])
    out = listsched(m, [hch, tch, sorted(cvs, key=lambda x: x[1]), xch, gch, ach, bch])
    assert max(k for k, l in enumerate(out) if 'tag=x1s3' in l) < out.index("WAITVM x1s3")
    i = out.index("WAITXT"); j = max(k for k, l in enumerate(out) if l.endswith('; xt'))
    out[i] = f"s_waitcnt lgkmcnt({min(15, sum(l.startswith('ds_') for l in out[j+1:i]))})"
    nm = 0
    for l in out:
        if stamp and l.startswith('v_mfma'):
            if nm % 40 == 0 and nm: stamp(a, f'c{nm}')
            nm += 1
        a(l)
        if stamp and l == 'f_nab0:': stamp(a, 'arr0')
    if stamp: stamp(a, 'done')
L_CV, L_MS, L_WD = 40960, 43008, 98304
def mod_addr(a, r, vaddr):
    a(f"""
    s_add_u32 s26, s3, {96*r}
    s_cmp_ge_u32 s26, 240
    s_cselect_b32 s27, 48, 0
    s_sub_u32 s26, s26, s27
    s_lshr_b32 s27, s26, 2
    s_mul_i32 s28, s27, 6554
    s_lshr_b32 s28, s28, 16
    s_mul_i32 s29, s28, 10
    s_sub_u32 s27, s27, s29
    s_lshl_b32 s28, s28, 2
    s_lshr_b32 s28, {OPT['morder']}, s28
    s_and_b32 s28, s28, 7
    s_mul_i32 s28, s28, 10
    s_add_u32 s27, s27, s28            ; slab
    s_lshl_b32 s28, s27, 7
    v_add_u32 v{vaddr}, s28, v51
    s_lshl_b32 s27, s27, 8
    s_mul_i32 s28, s13, 15360
    s_add_u32 s27, s27, s28
    s_add_u32 s{50+2*r}, s27, {MODP}
    """)
def mod_issue(vaddr, W):
    r = []
    for j in range(5):
        r.append(f"global_load_dwordx4 {V4(W+4*j)}, v{vaddr}, s[10:11]")
        if j < 4: r.append(f"v_add_u32 v{vaddr}, {32*7680}, v{vaddr}")
    return r
def mod_process(a, r, W, pre='', post=None, slot=None):
    slot = r if slot is None else slot
    A = 238; C = 56
    d = [f"v_dot2_f32_bf16 v{A+e}, v{W+4*j+e//2}, v{C+(5 if e&1 else 0)+j}, " + ("0" if j == 0 else f"v{A+e}") for j in range(5) for e in range(8)]
    for l in d: a(l)
    for i in range(4): a(f"v_permlane32_swap_b32 v{A+i}, v{A+4+i}")
    for i in range(4): a(f"v_add_f32 v{A+i}, v{A+i}, v{A+4+i}")
    for i in range(2): a(f"v_permlane16_swap_b32 v{A+i}, v{A+2+i}")
    for i in range(2): a(f"v_add_f32 v{A+i}, v{A+i}, v{A+2+i}")
    for i in range(2): a(f"v_add_f32_dpp v{A+i}, v{A+i}, v{A+i} row_ror:8 row_mask:0xf bank_mask:0xf")
    a(f"""
    ds_write_b64 v53, {P(A)} offset:{L_MS + 1024*slot}
    v_add_u32 v{A+4}, s{50+2*r}, v55
    v_lshlrev_b32 v{A+5}, 1, v{A+4}
    v_add_u32 v{A+5}, {MODT - 2*MODP}, v{A+5}
    {pre}
    s_waitcnt lgkmcnt(0)
    s_barrier
    ds_read_b32 v{A}, v54 offset:{L_MS + 1024*slot}
    """)
    if post: post()
    a(f"""
    v_mov_b32 v{A+1}, v{A}
    v_permlane32_swap_b32 v{A}, v{A+1}
    v_add_f32 v{A}, v{A}, v{A+1}
    v_mov_b32 v{A+1}, v{A}
    v_permlane16_swap_b32 v{A}, v{A+1}
    v_add_f32 v{A}, v{A}, v{A+1}
    """)
    a(f"v_mov_b32 v{A+1}, s65\ns_mov_b64 exec, 0xffff\nglobal_store_dwordx2 v{A+5}, {P(A)}, s[22:23] sc1\nglobal_store_dword v{A+4}, v{A}, s[22:23] sc1\ns_mov_b64 exec, -1")
def mod_flag(a, r): a(f"s_mov_b64 exec, 1\nWAITVM m{r}\nglobal_store_dword v{148+r}, v{ONE_V}, s[22:23] sc1\ns_mov_b64 exec, -1")
def role_prep(a, stamp, late):
    a(f"s_load_dwordx4 s[4:7], s[0:1], {KARG['wg']}\ns_load_dwordx4 s[8:11], s[0:1], {KARG['c']}")
    ldp(a, 48, 'wd')
    VDM = 52
    a(f"""
    s_sub_u32 s3, s2, 160
    s_lshr_b32 s12, s3, 2              ; G
    s_and_b32 s13, s3, 3               ; kq
    s_mul_i32 s16, s13, 160
    v_lshrrev_b32 v50, 3, v0
    v_add_u32 v50, s16, v50
    v_mul_u32_u24 v51, 7680, v50
    v_and_b32 v5, 7, v0
    v_lshl_add_u32 v51, v5, 4, v51
    v_lshlrev_b32 v50, 1, v50
    """)
    mod_addr(a, 0, 48)
    a("s_waitcnt lgkmcnt(0)")
    if stamp: stamp(a, 'ka')
    a(EPOLD)
    for j in range(5): a(f"global_load_ushort v{56+j}, v50, s[8:9] offset:{64*j}")
    W0, W1 = 68, 88
    for l in mod_issue(48, W0): a(l)
    if stamp: stamp(a, 'iss')
    mod_addr(a, 1, 49)
    a(f"""
    v_lshrrev_b32 v6, 4, v1
    v_lshlrev_b32 v53, 3, v6
    v_lshl_add_u32 v53, v5, 5, v53
    s_lshl_b32 s26, s20, 8
    v_add_u32 v53, s26, v53
    v_and_b32 v7, 15, v1
    s_lshl_b32 s26, s20, 6
    v_lshl_add_u32 v55, v7, 2, s26
    v_lshl_add_u32 v54, v6, 8, v55
    s_lshr_b32 s14, s20, 1             ; mat
    s_and_b32 s15, s20, 1
    v_lshrrev_b32 v{VDM}, 3, v1
    v_bfe_u32 v7, v1, 4, 1
    s_lshl_b32 s17, s20, 1
    v_or_b32 v7, s17, v7
    v_xor_b32 v7, v7, v5
    v_mul_u32_u24 v{VDM}, 3072, v{VDM}
    v_lshl_add_u32 v{VDM}, v7, 4, v{VDM}
    s_lshl_b32 s17, s15, 3
    s_add_u32 s17, s17, s16
    s_mul_i32 s17, s17, 3072
    s_lshl_b32 s18, s12, 7
    s_add_u32 s17, s17, s18
    v_add_u32 v{VDM}, s17, v{VDM}
    s_mul_i32 s18, s14, 20480
    s_lshl_b32 s19, s15, 10
    s_add_u32 s18, s18, s19
    s_cmp_eq_u32 s14, 0
    s_cselect_b32 s30, s4, s6
    s_cselect_b32 s31, s5, s7
    """)
    a(f"""
    v_min_u32 v5, 159, v0
    v_add_u32 v6, s16, v5
    v_lshlrev_b32 v6, 3, v6
    """)
    for j in range(4): a(f"v_add_u32 v{44+j}, {MODT + 3*5120 + 2560 + 30720*j}, v6")
    VT, VC, VS0, VU = 16, 18, 19, 21
    a(f"""
    v_lshrrev_b32 v6, 4, v1            ; g
    v_bfe_u32 v7, v1, 2, 2             ; r
    v_lshl_add_u32 v2, v6, 3, v7
    v_lshlrev_b32 v2, 7, v2            ; (8g + r) * 128
    v_bfe_u32 v3, v1, 1, 1             ; mat
    v_mul_u32_u24 v4, 20480, v3
    v_add_u32 v2, v2, v4
    v_and_b32 v4, 1, v1
    v_lshl_add_u32 v2, v4, 3, v2
    v_lshrrev_b32 v7, 1, v7
    v_and_b32 v4, 1, v6
    v_lshl_add_u32 v7, v4, 1, v7
    v_lshl_add_u32 v7, v3, 2, v7       ; swizzle
    s_lshl_b32 s16, s20, 1
    v_xor_b32 v7, s16, v7
    v_lshl_add_u32 v{VT}, v7, 4, v2
    v_xor_b32 v7, 1, v7
    v_lshl_add_u32 v{VT+1}, v7, 4, v2
    v_lshlrev_b32 v{VC}, 4, v6
    v_bfe_u32 v2, v1, 1, 2
    v_lshlrev_b32 v2, 2, v2
    v_lshl_add_u32 v2, v6, 4, v2
    v_bfe_u32 v3, v1, 3, 1
    v_lshl_add_u32 v2, v3, 1, v2
    v_and_b32 v3, 1, v1
    v_add_u32 v2, v2, v3
    s_lshl_b32 s24, s12, 3
    s_add_u32 s24, s24, s16
    """)
    for tl in range(2):
        a(f"""
        s_add_u32 s25, s24, {tl}
        s_mul_i32 s26, s25, 21846
        s_lshr_b32 s26, s26, 16            ; T/3
        s_mul_i32 s26, s26, 60
        s_add_u32 s26, s26, s25            ; 63*(T/3) + T%3
        s_lshl_b32 s26, s26, 10
        s_add_u32 s26, s26, {WP2}
        s_mul_i32 s27, s13, {15*1024}
        s_add_u32 s27, s27, s26
        v_lshl_add_u32 v{VS0+tl}, v2, 4, s27
        s_lshl_b32 s27, s13, 8
        s_add_u32 s27, s27, s26
        s_add_u32 s27, s27, {60*1024}
        v_lshl_add_u32 v{VU+tl}, v2, 4, s27
        """)
    a("v_lshlrev_b32 v5, 1, v5")
    a(f"s_lshl_b32 s4, s3, 7\ns_add_u32 s4, s4, {GOB + 32*128}\ns_mov_b32 s63, s2\n" + "\n".join(rep_addr(23, 4)))
    pmh = lambda h: [f"global_load_dwordx2 {P(208+2*j)}, v{44+j}, s[22:23] offset:{5120*h-2560} sc1" for j in range(4)]
    pm = pmh(1)
    cm_ = [f"v_xor_b32 v{209+2*k}, s65, v{209+2*k}" for k in range(4)] + ["v_or3_b32 v209, v209, v211, v213", "v_or_b32 v209, v209, v215", "v_cmp_ne_u32 vcc, 0, v209"]
    sum4 = "v_add_f32 v208, v208, v210\nv_add_f32 v212, v212, v214\nv_add_f32 v208, v208, v212\nv_cvt_pk_bf16_f32 v208, v208, v208"
    mod_addr(a, 2, 236)
    a(f"""
    s_lshr_b32 s42, s3, 1              ; k-step
    s_and_b32 s43, s3, 1
    s_lshl_b32 s43, s43, 2
    s_add_u32 s43, s43, s20            ; db
    s_mul_i32 s44, s42, {32*1280}
    s_mul_i32 s45, s43, 160
    s_add_u32 s44, s44, s45
    s_mul_i32 s41, s20, 5120
    s_add_u32 s41, s41, {L_WD}
    v_lshrrev_b32 v2, 4, v1
    v_bfe_u32 v3, v1, 2, 2
    v_lshl_add_u32 v2, v2, 3, v3
    v_mul_u32_u24 v2, 160, v2
    v_and_b32 v3, 3, v1
    v_lshl_add_u32 v2, v3, 3, v2
    v_add_u32 v246, s41, v2
    s_mul_i32 s43, s43, 48
    s_add_u32 s43, s43, s42
    s_mul_i32 s43, s43, 5120
    s_add_u32 s43, s43, {WD + 2048}
    v_lshl_add_u32 v249, v1, 4, s43
    """)
    for k in range(5): a(f"v_add_u32 v2, {64*k}, v1\nv_mul_u32_u24 v3, 6554, v2\nv_lshrrev_b32 v3, 16, v3\nv_mul_u32_u24 v3, {1280-160}, v3\nv_lshl_add_u32 v3, v2, 4, v3\nv_add_u32 v{250+k}, s44, v3")
    C = 56
    if OPT['w1early']:
        for l in mod_issue(49, W1): a(l)
    nonce(a)
    for j in range(5): a(f"v_lshlrev_b32 v{C+j}, 16, v{C+j}\nv_mul_f32 v{C+5+j}, 0xbfb8aa3b, v{C+j}\nv_exp_f32 v{C+5+j}, v{C+5+j}")
    for j in range(5): a(f"v_add_f32 v{C+5+j}, 1.0, v{C+5+j}\nv_rcp_f32 v{C+5+j}, v{C+5+j}")
    for j in range(5): a(f"v_mul_f32 v{C+j}, v{C+j}, v{C+5+j}")
    for j in range(5): a(f"v_cvt_pk_bf16_f32 v{C+j}, v{C+j}, 0\nv_lshlrev_b32 v{C+5+j}, 16, v{C+j}")
    if not OPT['w1early'] and not OPT['wfirst']:
        for l in mod_issue(49, W1): a(l)
    def wdma(i): return [f"s_add_u32 m0, s18, {2048*i}", f"global_load_lds_dwordx4 v{VDM}, s[30:31] ; tag=w{i}"] + ([f"v_add_u32 v{VDM}, {16*3072}, v{VDM}"] if i < 9 else [])
    for i in range(OPT['aw0']):
        for l in wdma(i): a(l)
    mod_process(a, 0, W0)
    if stamp: stamp(a, 'flagA')
    for i in range(OPT['aw0'], OPT['aw1']):
        for l in wdma(i): a(l)
    if not OPT['wfirst']:
        mod_process(a, 1, W1)
        if stamp: stamp(a, 'r1')
    for l in pm: a(l)
    for i in range(OPT['aw1'], 10):
        for l in wdma(i): a(l)
    if OPT['wfirst']:
        W1 = 216
        for l in mod_issue(49, W1): a(l)
    W2 = 216
    for l in cm_: a(l)
    a("s_cbranch_vccnz u_spinm\nu_okm:")
    spin(a, late, "u_spinm", pm, cm_, "u_okm")
    if stamp: stamp(a, 'pollA')
    ONES = 24
    for w in range(4): a(f"v_mov_b32 v{ONES+w}, 0x3f803f80")
    a(f"""
    {sum4}
    v_and_b32 v12, 0xffff0000, v208
    v_add_f32 v12, 1.0, v12
    v_cvt_pk_bf16_f32 v12, v12, v12
    ds_write_b16 v5, v12 offset:{L_CV}
    WAITVM w{2*OPT['NA']-1}
    s_waitcnt lgkmcnt(0)
    s_barrier
    """)
    if stamp: stamp(a, 'bar')
    NA = OPT['NA']
    UU, CV, SV, ML, LO, OUT, D = 68, 108, 128, 8, 28, 148, 188
    def rds(s):
        a(f"ds_read_b128 {V4(CV+4*s)}, v{VC} offset:{L_CV + 64*s}")
        for tl in range(2):
            for hh in range(2): a(f"ds_read_b64_tr_b16 {P(UU+8*s+4*tl+2*hh)}, v{VT+tl} offset:{4096*s + 512*hh}")
    def pq():
        for l in mod_issue(236, W2): a(l)
        for k in range(5): a(f"s_add_u32 m0, s41, {1024*k}\nglobal_load_lds_dwordx4 v{250+k}, s[48:49] ; tag=wd")
    for s in range(NA): rds(s)
    if OPT['pq'] == 0: pq()
    for s in range(5):
        if s == NA:
            if OPT['wfirst']:
                mod_process(a, 1, W1)
                if stamp: stamp(a, 'r1')
            a("WAITVM w9")
            if stamp: stamp(a, 'r2')
            a("s_barrier")
            for q in range(NA, 5): rds(q)
            if OPT['pq'] == 1: pq()
        for w in range(4): a(f"v_and_b32 v{ML+2*w}, 0xffff, v{CV+4*s+w}\nv_and_b32 v{ML+2*w+1}, 0xffff0000, v{CV+4*s+w}")
        for tl in range(2):
            for w in range(4):
                for h in range(2): a(f"v_dot2_f32_bf16 v{LO+8*tl+2*w+h}, v{UU+8*s+4*tl+w}, v{ML+2*w+h}, 0")
        for tl in range(2):
            o = OUT + 8*s + 4*tl
            for w in range(4): a(f"v_cvt_pk_bf16_f32 v{o+w}, v{LO+8*tl+2*w}, v{LO+8*tl+2*w+1}")
            a(f"global_store_dwordx4 v{VS0+tl}, {V4(o)}, s[22:23]" + SC + " ; tag=wst")
            if s < 4: a(f"v_add_u32 v{VS0+tl}, 3072, v{VS0+tl}")
    if OPT['pq'] == 2: pq()
    for s in range(5):
        for tl in range(2):
            a(mf(D+8*tl, V4(ONES), V4(OUT+8*s+4*tl), "0" if s == 0 else None))
    def fw():
        for l in flag_set('fw', 23, ONE_V): a(l)
        if stamp: stamp(a, 'fw')
    if OPT['pq'] == 2:
        a("WAITVM wst\ns_barrier"); fw(); mod_process(a, 2, W2)
    else: mod_process(a, 2, W2, "WAITVM wst", fw)
    ids(a, 10, 11)
    wfl = M("0xfff", "global_load_dword v11, v10, s[22:23] sc1"); wchk = [tagchk(11, "0xfff")]
    a(wfl)
    a("WAITVM wd")
    for jj in range(5):
        for hh in range(2): a(f"ds_read_b64_tr_b16 {P(148+4*jj+2*hh)}, v246 offset:{32*jj + 640*hh}")
    for jj in range(5): a(f"global_store_dwordx4 v249, {V4(148+4*jj)}, s[22:23] offset:{1024*jj-2048} sc1")
    if stamp: stamp(a, 'done')
    a(f"s_mul_i32 s4, s62, {WPS}\ns_add_u32 s4, s4, {WP2 + 4096}\nv_lshl_add_u32 v3, v1, 4, s4\n{wchk[0]}\ns_cbranch_vccnz u_spinw\nu_okw:")
    spin(a, late, "u_spinw", [wfl], wchk, "u_okw")
    for q in range(OPT['NE']):
        if q == max(0, OPT['NE'] - OPT['sbq']):
            for l in pmh(0): a(l)
        for l in wld(q): a(l)
    if not OPT['NE']:
        for l in pmh(0): a(l)
    for l in cm_: a(l)
    a("s_cbranch_vccnz u_spins\nu_oks:")
    spin(a, late, "u_spins", pmh(0), cm_, "u_oks")
    a(f"{sum4}\nds_write_b16 v5, v208 offset:{L_CV + 320}\ns_sub_u32 s4, s2, 160\ns_lshl_b32 s4, s4, 7\ns_add_u32 s4, s4, {HER}\nv_mov_b32 v10, s4\ns_waitcnt lgkmcnt(0)\ns_barrier")
    for s in range(5): a(f"ds_read_b128 {V4(SV+4*s)}, v{VC} offset:{L_CV + 320 + 64*s}")
    hfl = M(1, "global_load_dword v11, v10, s[22:23] sc1"); hchk = [tagchk(11, 1)]
    if OPT['her']: a(hfl)
    for s in range(5):
        for tl in range(2): a(mf(D+8*tl+4, V4(SV+4*s), V4(UU+8*s+4*tl), "0" if s == 0 else None))
    E = 204
    for k in (1, 3, 0, 2):
        u = D + 4*k; e = E + 2*k
        a(f"v_cvt_pk_bf16_f32 v{e}, v{u}, v{u}\nv_and_b32 v{u+1}, 0xffff0000, v{e}\nv_sub_f32 v{u}, v{u}, v{u+1}\nv_cvt_pk_bf16_f32 v{e+1}, v{u}, v{u}")
    a("s_mov_b64 exec, 0xffff")
    for tl in range(2): a(f"global_store_dwordx4 v{VU+tl}, {V4(E+4*tl)}, s[22:23]" + SC)
    a("s_mov_b64 exec, -1")
    a("s_barrier")
    if OPT['her']: a(f"{hchk[0]}\ns_cbranch_vccnz u_spinh\nu_okh:")
    a(f"s_lshl_b32 s4, s2, 9\ns_lshl_b32 s5, s20, 7\ns_add_u32 s4, s4, s5\ns_add_u32 s4, s4, {HER + 0x10000}\nv_mov_b32 v107, s4\nCLEARVM")
    if OPT['her']: spin(a, late, "u_spinh", [hfl], hchk, "u_okh")
    if stamp: stamp(a, 'her')
def gemm(a, stamp, late):
    O = OPT
    VX, VW, VO, VP, VB, VSL, VSS, VG, VRW, VRR, VF = 2, 3, 4, 5, 8, 12, 14, 15, 16, 17, 18
    wq = [0]
    def wnext(n):
        r = []
        for _ in range(n):
            if wq[0] < 63: r += wld(wq[0]) if wq[0] < O.get('x_w', 63) else ['s_nop 0']; wq[0] += 1
        return r
    wnext(O['NE'])
    c0 = -2*math.sqrt(2/math.pi)*math.log2(math.e)
    VH, VPC = 26, 30; nd = 32 // O['g2']
    ad = Asm()
    ad(f"""
    v_and_b32 v6, 15, v1
    v_lshrrev_b32 v7, 4, v1
    v_lshrrev_b32 v21, 2, v1
    v_and_b32 v20, 3, v1
    v_lshl_add_u32 v20, v21, 4, v20
    s_lshl_b32 s4, s20, 2
    v_add_u32 v20, s4, v20
    s_mul_i32 s4, s60, 10
    s_sub_u32 s4, s4, 40
    v_min_u32 v21, 49, v1
    v_add_u32 v21, s4, v21
    v_cmp_gt_u32 vcc, 40, v1
    s_add_u32 s4, s100, {320*128}
    v_lshl_add_u32 v25, v20, 7, s4
    v_cndmask_b32 v20, v21, v20, vcc
    s_add_u32 s4, s100, {128*128}
    v_lshl_add_u32 v{VP}, v20, 7, s4
    """)
    if O['dense'] & 1: ad(f"v_bfe_u32 v21, v20, 2, 2\nv_lshrrev_b32 v22, 4, v20\nv_lshl_add_u32 v21, v21, 4, v22\nv_and_b32 v20, 3, v20\nv_lshl_add_u32 v20, v21, 2, v20\nv_lshl_add_u32 v{VP}, v20, 4, s4")
    if O['dense'] & 2: ad(f"s_add_u32 s4, s100, {320*128}\nv_lshl_add_u32 v25, v0, 4, s4")
    n_poll = len(ad.ins)
    ad(f"""
    s_mul_i32 s4, s61, {81920*O['TA']}
    s_lshl_b32 s30, s20, 11
    s_add_u32 s5, s4, s30
    s_add_u32 s5, s5, {XT1}
    v_lshl_add_u32 v{VX}, v1, 4, s5
    s_mov_b32 m0, s30
    v_bfe_u32 v20, v1, 2, 2            ; r
    v_lshl_add_u32 v21, v7, 3, v20
    v_lshlrev_b32 v21, 7, v21
    v_bfe_u32 v22, v1, 1, 1
    v_lshl_add_u32 v21, v22, 6, v21
    v_and_b32 v22, 1, v1
    v_lshl_add_u32 v21, v22, 3, v21
    v_lshrrev_b32 v20, 1, v20
    v_and_b32 v22, 1, v7
    v_lshl_add_u32 v20, v22, 1, v20    ; swizzle
    """)
    for t in range(4): ad(f"v_xor_b32 v22, {t}, v20\nv_lshl_add_u32 v{VB+t}, v22, 4, v21")
    ad(f"""
    s_mul_i32 s6, s60, {40*128}
    s_add_u32 s5, s4, s6
    s_and_b32 s6, s20, 1
    s_lshl_b32 s6, s6, 6
    s_add_u32 s5, s5, s6
    s_add_u32 s5, s5, {XT1 + 2048}
    v_lshrrev_b32 v20, 3, v1
    v_lshl_add_u32 v20, v20, 7, s5
    v_and_b32 v21, 3, v1
    v_lshl_add_u32 v20, v21, 2, v20
    v_bfe_u32 v21, v1, 2, 1
    v_bfe_u32 v22, v1, 4, 1
    v_xor_b32 v21, v21, v22
    s_lshl_b32 s6, s60, 1
    s_xor_b32 s6, s6, s20
    s_and_b32 s6, s6, 2
    v_xor_b32 v21, s6, v21
    v_lshl_add_u32 v{VSL}, v21, 4, v20
    v_xor_b32 v21, 2, v21
    v_lshl_add_u32 v{VSL+1}, v21, 4, v20
    """)
    n_urgent = len(ad.ins)
    for l in flag_addr(320, 245, 244, O['dense'] & 2): ad(l)
    ad(f"""
    v_mov_b32 v{VF+1}, s65
    s_lshl_b32 s5, s61, 14
    s_add_u32 s5, s5, {PST}
    s_lshl_b32 s6, s60, 10
    s_add_u32 s6, s6, s5
    s_lshr_b32 s7, s20, 1
    s_lshl_b32 s7, s7, 8
    s_add_u32 s6, s6, s7
    s_and_b32 s7, s20, 1
    s_lshl_b32 s7, s7, 6
    s_add_u32 s6, s6, s7
    v_bfe_u32 v20, v1, 2, 1
    v_and_b32 v21, 3, v1
    v_lshlrev_b32 v20, 4, v20
    v_lshl_add_u32 v20, v21, 1, v20
    v_lshrrev_b32 v22, 5, v1
    v_add_u32 v20, v20, v22
    v_lshl_add_u32 v{VSS}, v20, 3, s6
    s_mov_b32 s36, 0xff
    s_mov_b32 s37, 0xff
    s_lshl_b32 s6, s20, 7
    s_add_u32 s5, s5, s6
    v_lshrrev_b32 v20, 3, v1
    v_lshlrev_b32 v20, 11, v20
    v_and_b32 v21, 7, v1
    v_lshl_add_u32 v20, v21, 4, v20
    v_add_u32 v{VG}, s5, v20
    v_lshl_add_u32 v20, v21, 1, v22
    s_lshl_b32 s6, s20, 9
    v_lshl_add_u32 v{VRW}, v20, 5, s6
    v_lshlrev_b32 v{VRR}, 5, v6
    s_mul_i32 s5, s61, {2*196608}
    s_mul_i32 s6, s62, 3072
    s_add_u32 s5, s5, s6
    s_add_u32 s5, s5, {HH}
    v_lshl_add_u32 v{VO}, v1, 4, s5
    s_lshl_b32 s5, s61, 4
    s_add_u32 s5, s5, s60
    s_lshl_b32 s5, s5, 8
    s_add_u32 s5, s5, {UF_C2}
    v_lshl_add_u32 v{VF}, v1, 2, s5
    s_lshr_b32 s4, s60, {O['pb']+1}
    s_lshl_b32 s4, s4, {O['pb']}
    s_and_b32 s32, s60, {(1 << O['pb'])-1}
    s_add_u32 s32, s32, s4
    s_bfe_u32 s4, s60, {0x10000 + O['pb']}
    s_lshl_b32 s33, s61, 1
    s_add_u32 s33, s33, s4
    s_cmp_eq_u32 s32, 0
    s_cselect_b32 s5, 16384, 0
    v_add_u32 v{VRW}, s5, v{VRW}
    v_add_u32 v{VRR}, s5, v{VRR}
    s_lshl_b32 s4, s4, 1
    s_and_b32 s5, s20, 1
    s_add_u32 s16, s4, s5
    v_bfe_u32 v20, v1, 3, 1
    v_lshrrev_b32 v21, 5, v1
    v_lshl_add_u32 v20, v21, 1, v20
    v_xor_b32 v20, s16, v20
    v_bfe_u32 v21, v1, 1, 1
    v_lshl_add_u32 v20, v21, 2, v20
    v_lshlrev_b32 v20, 4, v20
    v_and_b32 v21, 1, v1
    v_lshl_add_u32 v20, v21, 3, v20
    v_lshrrev_b32 v21, 2, v1
    v_lshl_add_u32 v20, v21, 7, v20
    s_lshr_b32 s4, s20, 1
    s_mul_i32 s4, s4, 81920
    s_mul_i32 s5, s32, 10240
    s_add_u32 s4, s4, s5
    v_add_u32 v31, s4, v20
    s_lshl_b32 s34, s32, 2
    s_add_u32 s34, s34, s20
    s_mul_i32 s34, s34, 61440
    s_add_u32 s34, s34, {WD + 4096}
    s_lshr_b32 s35, s33, 1
    s_lshl_b32 s4, s35, 4
    s_lshl_b32 s5, s20, 2
    s_add_u32 s4, s4, s5
    s_lshl_b32 s4, s4, 8
    s_add_u32 s4, s4, {UF_C2}
    v_and_b32 v20, 3, v1
    v_lshl_add_u32 v{VPC}, v20, 8, s4
    v_lshlrev_b32 v20, 10, v7
    v_lshl_add_u32 v20, v6, 4, v20
    s_mul_i32 s4, s35, {2*196608}
    s_mul_i32 s5, s20, 49152
    s_add_u32 s4, s4, s5
    s_and_b32 s5, s33, 1
    s_lshl_b32 s5, s5, 9
    s_add_u32 s4, s4, s5
    s_add_u32 s4, s4, {HH + 4096}
    s_and_b32 s5, s20, 1
    s_lshl_b32 s5, s5, 8
    s_xor_b32 s6, s5, 256
    s_add_u32 s6, s6, s4
    s_add_u32 s5, s5, s4
    v_add_u32 v{VH}, s6, v20
    v_add_u32 v{VH+1}, s5, v20
    v_add_u32 v{VH+2}, 196608, v{VH}
    v_add_u32 v{VH+3}, 196608, v{VH+1}
    """)
    ad = [i.text for i in ad.ins]
    PL = 24
    poll = [f"global_load_dword v{PL}, v{VP}, s[22:23] sc1"]
    chk = [f"v_cmp_ne_u32 vcc, s65, v{PL}"]
    w1 = wnext(O['N1'])
    for l in (interleave(w1, ad[:n_poll]) if w1 else ad[:n_poll]): a(l)
    a(poll[0])
    for l in interleave(wnext(O['N2']), ad[n_poll:n_urgent]): a(l)
    assert wq[0] <= 60
    for l in chk: a(l)
    a("s_cbranch_vccnz f_spinb\nf_okb:")
    spin(a, late, "f_spinb", poll, chk, "f_okb")
    if stamp: stamp(a, 'pollB')
    def dma(G):
        if G >= 20: return []
        r = [f"global_load_lds_dwordx4 v{VX}, s[22:23]" + SC, f"global_load_lds_dwordx4 v{VX}, s[22:23] offset:1024" + SC + f" ; tag=x{G}"]
        if G < 19: r += [f"s_add_u32 m0, s30, {8192*(G+1)}", f"v_add_u32 v{VX}, {8192 + (81920*(O['TB']-1) if G == 9 else 0)}, v{VX}"]
        return r
    ACC, BF, EX, SL, SQ, T, GL, R = 32, 128, 192, 248, 20, 254, 224, 232
    def sld(h):
        r = [f"global_load_dword v{SL+i}, v{VSL+(i&1)}, s[22:23] offset:{1024*i-2048} sc1" for i in range(5)]
        return r + ([f"v_add_u32 v{VSL+k}, {81920*O['TB']}, v{VSL+k}" for k in range(2)] if h == 0 else [])
    for G in range(O['xd']):
        for l in dma(G): a(l)
        if G == O['sat']:
            for l in sld(0): a(l)
        if G == O['dst']:
            a("s_cmp_ge_u32 s2, 160\ns_cbranch_scc1 f_nodst\n" + "\n".join(DEFER) + "\ns_branch f_dst\nf_nodst:\n" + M(1, "global_store_dword v107, v107, s[22:23] ; untracked\nglobal_store_dword v107, v107, s[22:23] ; untracked") + "\nf_dst:")
            a("TRACK global_store_dword v107, v107, s[22:23]\nTRACK global_store_dword v107, v107, s[22:23] ; tag=x1e")
    for l in ad[n_urgent:] + [f"v_mov_b32 v{VP}, v25"]: a(l)
    def rdb(G): return [f"ds_read_b64_tr_b16 {P(BF+32*(G&1)+16*sl+4*t+2*hh)}, v{VB+t} offset:{8192*(G&7) + 4096*sl + 512*hh}" for sl in range(2) for t in range(4) for hh in range(2)]
    a("WAITVM x0\ns_barrier")
    fb1 = flag_set('b1', 245, 244, dense=O['dense'] & 2)
    for l in (fb1 if O['dst'] < 0 else []) + rdb(0): a(l)
    def st(h):
        r = []
        for i in range(5):
            r += [f"v_lshlrev_b32 v{T}, 16, v{SL+i}", f"v_and_b32 v{T+1}, 0xffff0000, v{SL+i}"]
            for e in range(2):
                if i == 0: r += [f"v_mov_b32 v{SQ+2*e}, v{T+e}", f"v_mul_f32 v{SQ+2*e+1}, v{T+e}, v{T+e}"]
                else: r += [f"v_add_f32 v{SQ+2*e}, v{SQ+2*e}, v{T+e}", f"v_fmac_f32 v{SQ+2*e+1}, v{T+e}, v{T+e}"]
        return r + red(SQ) + [M("s[36:37]", f"global_store_dwordx2 v{VSS}, {P(SQ)}, s[22:23] offset:{512*h} sc1")]
    def red(b):
        r = [f"v_permlane32_swap_b32 v{b+k}, v{b+2+k}" for k in range(2)] + [f"v_add_f32 v{b+k}, v{b+k}, v{b+2+k}" for k in range(2)]
        r += [f"v_add_f32_dpp v{b+k}, v{b+k}, v{b+k} row_ror:8 row_mask:0xf bank_mask:0xf" for k in range(2)]
        r += [f"v_mov_b32 v{b+2+k}, v{b+k}" for k in range(2)] + [f"v_permlane16_swap_b32 v{b+k}, v{b+2+k}" for k in range(2)]
        return r + [f"v_add_f32 v{b+k}, v{b+k}, v{b+2+k}" for k in range(2)]
    gat = lambda h: [f"global_load_dwordx4 {V4(GL+4*i)}, v{VG}, s[22:23] offset:{1024*i + 512*h} sc1" for i in range(2)]
    gchk = [f"v_min3_f32 v{R}, v{GL+1}, v{GL+3}, v{GL+5}", f"v_min_f32 v{R}, v{R}, v{GL+7}", f"v_cmp_gt_f32 vcc, 0, v{R}"]
    fin = [f"v_add_f32 v{GL+k}, v{GL+k}, v{GL+4+k}" for k in range(4)] + red(GL)
    fin += [f"v_mul_f32 v{GL}, 0xbacccccd, v{GL}", f"v_mul_f32 v{GL+1}, 0x3acccccd, v{GL+1}",
            f"v_fma_f32 v{GL+1}, -v{GL}, v{GL}, v{GL+1}", f"v_cvt_pk_bf16_f32 v{GL+2}, v{GL}, v{GL}", f"v_max_f32 v{GL+1}, 0, v{GL+1}",
            f"v_and_b32 v{GL+2}, 0xffff0000, v{GL+2}", f"v_add_f32 v{R+6}, 0x3727c5ac, v{GL+1}", f"v_sub_f32 v{GL+3}, v{GL}, v{GL+2}",
            f"v_rsq_f32 v{GL+4}, v{R+6}", f"v_sqrt_f32 v{GL+5}, v{R+6}", f"v_cvt_pk_bf16_f32 v{R}, v{GL+2}, v{GL+3}",
            f"v_mul_f32 v{R+5}, {f2u(c0)}, v{GL+4}", f"v_cvt_pk_bf16_f32 v{GL+6}, v{GL+5}, v{GL+5}", f"v_mul_f32 v{GL+4}, v{GL+4}, v{GL+4}",
            f"v_and_b32 v{GL+6}, 0xffff0000, v{GL+6}", f"v_mul_f32 v{GL+4}, {f2u(0.044715)}, v{GL+4}", f"v_sub_f32 v{GL+7}, v{GL+5}, v{GL+6}",
            f"v_mul_f32 v{R+4}, v{GL+4}, v{R+5}", f"v_cvt_pk_bf16_f32 v{R+2}, v{GL+6}, v{GL+7}", f"v_mov_b32 v{R+1}, v{R}", f"v_mov_b32 v{R+3}, v{R+2}",
            f"v_mov_b32 v{R+7}, v{R+6}", ]
    finh = lambda h: fin + [f"ds_write_b128 v{VRW}, {V4(R)} offset:{2048*h}", f"ds_write_b128 v{VRW}, {V4(R+4)} offset:{2048*h+16}"]
    dq = [0]
    def dnext(n, lim=60):
        r = []
        for _ in range(n):
            q = dq[0]
            if q >= min(lim, O.get('x_wd', 60)): break
            if q == 0: r.append(f"v_lshl_add_u32 v{VW}, v1, 4, s34")
            r.append(f"global_load_dwordx4 {A4(4*q)}, v{VW}, s[22:23] offset:{1024*(q&7)-4096}" + SC)
            if q & 7 == 7: r.append(f"v_add_u32 v{VW}, 8192, v{VW}")
            dq[0] += 1
        return r
    RR, TM = 224, 236
    def rdex(hb): return [f"ds_read_b128 {V4(EX+8*t+4*k)}, v{VRR} offset:{512*(4*hb+t)+16*k}" for k in range(2) for t in range(4)]
    def flagc(hb): return [f"WAITVM hh{hb}"] + ["s_waitcnt lgkmcnt(0)"]*hb + ["s_barrier"] + flag_set(f'c{hb}', VF, VF+1, True, 128*hb)
    def pollc(hb): return [M(15, f"global_load_dword v{PL}, v{VPC}, s[22:23] offset:{128*hb} sc1")]
    def checkc(hb):
        if O.get('x_c'): return
        a(chk[0] + f"\ns_cbranch_vccnz f_spinc{hb}\nf_okc{hb}:")
        spin(a, late, f"f_spinc{hb}", pollc(hb), chk, f"f_okc{hb}")
    def epilogue(hb, fill, mid=None):
        m = [mf(ACC+48*hb+12*t+4*j, A4(240+4*j), V4(EX+8*t)) for j in range(3) for t in range(4)]
        for l in interleave(m, fill(2)): a(l)
        if mid: mid()
        sts = []
        for j in range(3):
            r = RR + 4*j; ts = range(4)
            g = lambda t: ACC + 48*hb + 12*t + 4*j
            tm = lambda t: TM + 2*t
            e = []
            for t in ts: e.append(f"v_pk_mul_f32 {P(tm(t))}, {P(g(t))}, {P(g(t))}")
            for t in ts: e.append(f"v_pk_fma_f32 {P(tm(t))}, {P(tm(t))}, {P(EX+8*t+4)}, {P(EX+8*t+4)} op_sel:[0,0,1] op_sel_hi:[1,0,1]")
            for t in ts: e.append(f"v_pk_mul_f32 {P(tm(t))}, {P(tm(t))}, {P(g(t))}")
            for t in ts: e += [f"v_exp_f32 v{tm(t)}, v{tm(t)}", f"v_exp_f32 v{tm(t)+1}, v{tm(t)+1}", f"v_pk_mul_f32 {P(g(t))}, {P(g(t))}, {P(g(t)+2)}"]
            for t in ts: e.append(f"v_pk_fma_f32 {P(tm(t))}, {P(tm(t))}, {P(EX+8*t+6)}, {P(EX+8*t+6)}")
            for t in ts: e += [f"v_rcp_f32 v{tm(t)}, v{tm(t)}", f"v_rcp_f32 v{tm(t)+1}, v{tm(t)+1}"]
            for t in ts: e.append(f"v_pk_mul_f32 {P(g(t))}, {P(g(t))}, {P(tm(t))}")
            for t in (0, 2, 1, 3): e.append(f"v_cvt_pk_bf16_f32 v{r+t}, v{g(t)}, v{g(t)+1}")
            for l in interleave(e, fill(O['edr'])): a(l)
            a(f"v_permlane32_swap_b32 v{r}, v{r+2}\nv_permlane32_swap_b32 v{r+1}, v{r+3}\nv_permlane16_swap_b32 v{r}, v{r+1}\nv_permlane16_swap_b32 v{r+2}, v{r+3}")
            sts.append(f"global_store_dwordx4 v{VO}, {V4(r)}, s[22:23] offset:{1024*j}" + SC + f" ; tag=hh{hb}")
            if not (O['late'] >> hb & 1) or j == 2:
                for l in sts: a(l)
                sts = []
        if hb == 0: a(f"v_add_u32 v{VO}, 196608, v{VO}")
    A2, HB, NHB, RD, GB, RT = 80, 32, 12, 160, 220, 244
    seq = []
    for k in range(48):
        t, sl = divmod(k, 12); r = HB + 4*(k % NHB) + (96 if 12 <= k < 24 else 0)
        if k < 24 and O['pair']: sl, t = divmod(k, 2)
        ins = [f"global_load_dwordx4 {V4(r)}, v{VH+t}, s[22:23] offset:{4096*(sl&1)-4096}" + SC]
        if sl & 1 and sl < 11: ins.append(f"v_add_u32 v{VH+t}, 8192, v{VH+t}")
        seq.append((ins, [mf(A2+20*t+4*jj, A4(20*sl+4*jj), V4(r), "0" if sl == 0 else None) for jj in range(5)]))
    W = O['win']; W0 = O['win0']; assert W < NHB and W0 <= 24
    hq = [0]; okc = [0]
    def hnext(n, lim):
        r = []
        while n > 0 and hq[0] < min(lim, 48): r += seq[hq[0]][0]; hq[0] += 1; n -= 1
        return r
    valu = []
    wrate = -(-(60 - wq[0]) // O['wspan'])
    xs = [O['xd']]; covered = 0; GM = O['GM']; xt = [-1]*xs[0]
    def xnext(n, G):
        r = []
        while n > 0 and xs[0] < (20 if G >= O['b1c'] else 10): r += dma(xs[0]); xs[0] += 1; xt.append(G); n -= 1
        return r
    for G in range(20):
        h, Gl = divmod(G, 10); bf = BF + 32*(G & 1)
        m = [mf(ACC+48*h+12*t+4*j, A4(12*(2*Gl+sl)+4*j), V4(bf+16*sl+4*t), "0" if Gl == 0 and sl == 0 else None) for sl in range(2) for t in range(4) for j in range(3)]
        for k in range(2):
            if G == O['gcheck'][k]:
                for l in gchk: a(l)
                a(f"s_cbranch_vccnz f_sping{k}\nf_okg{k}:")
                spin(a, late, f"f_sping{k}", gat(k), gchk, f"f_okg{k}")
                valu += finh(k)
        if G == O['b1c']:
            a(chk[0] + "\ns_cbranch_vccnz f_spinb1\nf_okb1:")
            spin(a, late, "f_spinb1", poll, chk, "f_okb1")
            if stamp: stamp(a, 'pollB1')
        if G == O['cc0']: checkc(0); okc[0] = 1; stamp and stamp(a, 'pollC')
        if G == GM:
            if stamp: stamp(a, 'm0')
            def fill0(n):
                r = xnext(n // 2, G - 1); n -= sum(l.startswith('global') for l in r)
                return r + dnext(n, 6*Gl)
            epilogue(0, fill0)
        if stamp: stamp(a, f'g{G}')
        a("s_waitcnt lgkmcnt(0)")
        head = []; lds = []
        if G < 19:
            if G + 1 > covered:
                assert G + 1 < len(xt)
                covered = min(19, max([G + 1] + [k for k in range(len(xt)) if xt[k] <= G - O['xtl']]))
                head = [f"WAITVM x{covered}", "s_barrier"]
            lds = rdb(G+1)
        for k, g in enumerate((GM - 1, 19)):
            if G == g:
                assert not any(l.startswith('ds_write') for l in valu) and G > O['gcheck'][k]
                if not head: head = ["s_barrier"]
                lds = rdex(k) + lds + ([f"ds_read_b64_tr_b16 {P(RT+2*jj)}, v31 offset:{2048*jj}" for jj in range(5)] if k else [])
        if G == O['b1f'] and O['dst'] >= 0: head = ["WAITVM x1e"] + [x for x in head if x != 's_barrier'] + ["s_barrier"] + fb1
        if G == GM + O['cf0']: head = [x for x in head if x != 's_barrier'] + flagc(0)
        if G == O['b1c']:
            if not head: head = ["s_barrier"]
            head += ["s_cmp_lg_u32 s2, 0", "s_cbranch_scc1 u_noepo", f"v_mov_b32 v244, {EPO}", "s_mov_b64 exec, 1", f"global_store_dword v244, v{VF+1}, s[22:23] sc1 ; untracked", "s_mov_b64 exec, -1", "u_noepo:"]
        ld = []
        if G == O['cp0']: ld += pollc(0)
        if G == O['b1i']: ld += poll
        ld += xnext(O['xrate'][G] if G < len(O['xrate']) else 1, G)
        ld += wnext(min(wrate, 60 - wq[0])) if wq[0] < 60 else wnext(3) if G >= O['b1c'] else []
        if G == O['sat1']: ld += sld(1)
        if G == O['pfg'] and O['sen']:
            ld += [f"v_add_u32 v246, {196608 if G < GM else 0}, v{VO}\n" + "\n".join(f"v_mov_b32 v{240+k}, -1" for k in range(4))] + [f"global_store_dwordx4 v246, {V4(240)}, s[22:23] offset:{1024*j} sc1 ; tag=hh0" for j in range(3)]
            assert G < GM + O['cf0'] and G > O['b1f']
        for k in range(2):
            if G == O['gissue'][k]: ld += gat(k)
            if G == O['gstat'][k]: valu += st(k)
        if G > 10: assert wq[0] == 63; ld += dnext(O['wdrate'], 6*Gl)
        if okc[0]: ld += hnext(O['hrate'], min(W0, 12))
        out, valu = slots(m, head, lds, vmgroups(ld), valu, vm_cost=O['vmc'], spread=O['spread'])
        if (G + 2) % 8 == 0: out += [f"v_add_u32 v{VB+i}, 65536, v{VB+i}" for i in range(4)]
        for l in out: a(l)
    assert wq[0] == 63
    if stamp: stamp(a, 'g20')
    def fill1(n):
        r = dnext(n, O['dlim']); n -= sum(l.startswith('global') for l in r)
        return r + (hnext(n, W0) if okc[0] else [])
    def mid1():
        if not okc[0]: checkc(0); okc[0] = 1; stamp and stamp(a, 'pollC')
    epilogue(1, fill1, mid1)
    ldp(a, 24, 'out')
    for l in dnext(60, O['dlim']): a(l)
    dq0 = dq[0]; drest = vmgroups(dnext(60))
    if stamp: stamp(a, 'epi')
    VR, VGB, VXW, VXR, VST, VOUT, SRD, VTR = 2, 5, 8, 12, 13, 14, 20, 17
    L_EX = 5120; L_ST = L_EX + 4*3*5*1024; L_RES = 81920
    ad = Asm()
    ad(f"""
    s_lshr_b32 s8, s20, 1
    s_and_b32 s9, s20, 1
    s_mul_i32 s10, s35, {O['TA']}
    s_mul_i32 s11, s8, {O['TB']}
    s_add_u32 s14, s10, s11
    s_mul_i32 s10, s32, 320
    s_add_u32 s10, s10, {MODP + 5*2560}
    v_lshl_add_u32 v{VGB}, v1, 4, s10
    s_lshl_b32 s10, s20, 10
    s_add_u32 s10, s10, {L_RES}
    v_lshl_add_u32 v{VR}, v1, 4, s10
    v_lshl_add_u32 v{VTR}, v7, 4, s10
    """)
    for lam in range(4):
        ad(f"s_xor_b32 s10, s9, {2*(lam>>1) + ((lam&1)^1)}\ns_xor_b32 s11, s10, s20\ns_mul_i32 s10, s10, 15360\ns_mul_i32 s11, s11, 5120\ns_add_u32 s10, s10, s11\nv_lshl_add_u32 v{VXW+lam}, v1, 4, s10")
    n_early = len(ad.ins)
    ad(f"""
    s_mul_i32 s10, s20, 15360
    v_lshl_add_u32 v{VXR}, v1, 4, s10
    s_mul_i32 s10, s20, {16*176}
    s_add_u32 s10, s10, {L_ST}
    v_mul_u32_u24 v4, 176, v6
    v_lshl_add_u32 v4, v7, 3, v4
    v_add_u32 v{VST}, s10, v4
    s_lshl_b32 s11, s14, 2
    s_add_u32 s11, s11, s16
    s_mul_i32 s11, s11, {16*1280}
    s_mul_i32 s12, s32, 160
    s_add_u32 s11, s11, s12
    """)
    for i in range(3):
        ad(f"v_add_u32 v4, {64*i}, v1\nv_min_u32 v4, 159, v4\nv_mul_u32_u24 v31, 6554, v4\nv_lshrrev_b32 v31, 16, v31")
        ad(f"v_add_u32 v{SRD+i}, v4, v31\nv_lshl_add_u32 v{SRD+i}, v{SRD+i}, 4, s10")
        ad(f"v_mul_u32_u24 v31, {1280-160}, v31\nv_lshl_add_u32 v31, v4, 4, v31\nv_add_u32 v{VOUT+i}, s11, v31")
    ad = [i.text for i in ad.ins]
    def wr(t): return [f"ds_write_b128 v{VXW+t}, {V4(A2+20*t+4*jj)} offset:{L_EX - 5120 + 1024*jj + 5120*0}" for jj in range(5 if not O.get('x_wr') else 0)]
    gbl = [M("0xfffff", "\n".join(f"global_load_dwordx4 {V4(GB+4*k)}, v{VGB}, s[22:23] sc1\nv_add_u32 v{VGB}, 15360, v{VGB}" for k in (2*j, 2*j+1))) for j in range(2)]
    gb = [f"v_add_f32 v{GB+k}, v{GB+k}, v{GB+8+k}" for k in range(8)] + [f"v_add_f32 v{GB+k}, v{GB+k}, v{GB+4+k}" for k in range(4)]
    for k in range(2): gb += [f"v_cvt_pk_bf16_f32 v31, v{GB+2*k}, v{GB+2*k+1}", f"v_lshlrev_b32 v{GB+2*k}, 16, v31", f"v_and_b32 v{GB+2*k+1}, 0xffff0000, v31"]
    gb += [f"ds_write_b128 v{VR}, {V4(GB)}"] + [f"ds_read_b128 {V4(GB+4*jj)}, v{VTR} offset:{64*jj}" for jj in range(5)]
    def rdp(ps): return [f"ds_read_b128 {V4(RD+20*p+4*jj)}, v{VXR} offset:{L_EX + 5120*p + 1024*jj}" for jj in range(5) for p in ps]
    XU = A2
    unp = []
    for k in range(10): unp += [f"v_lshlrev_b32 v{XU+2*k}, 16, v{RT+k}", f"v_and_b32 v{XU+2*k+1}, 0xffff0000, v{RT+k}"]
    add = lambda d, x: [f"v_add_f32 v{d+k}, v{d+k}, v{x+k}" for k in range(20)]
    def outst():
        r = [f"ds_read_b128 {V4(RD+4*i)}, v{SRD+i}" for i in range(3)]
        for i in range(3):
            if i == 2: r += ["s_waitcnt lgkmcnt(0)", "s_mov_b64 exec, 0xffffffff"]
            r.append(f"global_store_dwordx4 v{VOUT+i}, {V4(RD+4*i)}, s[24:25]")
        return r + ["s_mov_b64 exec, -1"]
    BAR = ["s_waitcnt lgkmcnt(0)", "s_barrier"]
    mm = [l for x in seq for l in x[1]]
    f1, pI, pc = 5*O['fC1'], 5*O['pI'], 5*O['pc']
    if not O['sen']: spin(a, late, "f_spinc1", pollc(1), chk, "f_okc1")
    hreg = lambda k: HB + 4*(k % NHB)
    def sch(p):
        r = []
        for k in range(24, 48):
            g = 5*(k - 24) - 1
            r += [(f"v_cmp_eq_u32 vcc, -1, v{hreg(k)}", max(-1, g - 1), max(-1, g - 1)), ([f"s_cbranch_vccnz f_re{k} ; nosnap", f"f_ok{p}{k}:"], g, g)]
        return r if O['sen'] else []
    if O['sen']:
        SPINS.append('f_re')
        for k in range(24, 48):
            ld = lambda q: f"v_add_u32 v4, {4096*(q % 12)}, v{(23, 25)[q//12 - 2]}\nglobal_load_dwordx4 {V4(hreg(q))}, v4, s[22:23] offset:-4096 sc1"
            late.append(f"f_re{k}:\n" + (f"s_or_b32 s101, s101, {1 << (len(SPINS)-1)}\n" if DIAG[0] else "") + f"s_mov_b32 s64, 0\nf_re{k}_l:\ns_waitcnt vmcnt(0)\ns_sleep 1\n{ld(k)}\ns_waitcnt vmcnt(0)\n"
                        f"v_cmp_eq_u32 vcc, -1, v{hreg(k)}\ns_add_u32 s64, s64, 1\ns_cmp_ge_u32 s64, 0x40000\ns_cbranch_scc1 f_re{k}_x\ns_cbranch_vccnz f_re{k}_l\nf_re{k}_x:\n"
                        + "\n".join(ld(q) for q in range(k + 1, min(k + O['rel'], 47) + 1)) + f"\ns_waitcnt vmcnt(0)\ns_cmp_ge_u32 s20, 2\ns_cbranch_scc1 f_okb{k}\ns_branch f_oka{k}")
    hch = []
    for k in range(hq[0], 48):
        if k == 24 and not O['sen']: hch.append(([chk[0], "s_cbranch_vccnz f_spinc1", "f_okc1:"], pc, pc))
        lo = max(5*(k - (12 if k >= 36 else 24)) + 4, 5*(k - W), pc) if k >= 24 else max(-1, 5*(k - W0))
        hi = min(5*k - 1, lo + O['hsl']) if k >= 24 else max(lo, 5*(k - W))
        hch.append((seq[k][0] if not O.get('x_h') else ['s_nop 0'], lo, hi))
    T_ = lambda l, lo, hi=999: [(x, lo, hi) for x in l]
    ach = T_(ad[:12], 0, 8) + T_(ad[12:n_early], 0, 60) + T_(ad[n_early:], 0, min(118, O['gbp'] + 54))
    vch = [(flagc(1) if not O['sen'] else BAR, f1, f1)] + [(gbl[0], O['gbp'], O['gbp']), (gbl[1], O['gbp'] + 5, O['gbp'] + 5)]
    pch = [(pollc(1), pI, pI)] if not O['sen'] else [(f"v_mov_b32 v23, v{VH+2}", 0, 2), (f"v_mov_b32 v25, v{VH+3}", 0, 2)]
    dch = [(g, -1, max(-1, (10 if O['pair'] else 5)*((dq0 + k)//5) - 5*W)) for k, g in enumerate(drest)]
    wch = T_(wr(0), max(63, f1 + 6), 118) if not O['pair'] else []
    w0l = wr(0) if O['pair'] else []
    gch = T_(gb, O['gbp'] + 55)
    rsv = lambda g: 1 if g % 5 == 4 else 0
    rsv2 = (lambda g: 1 if g % 5 == 3 else 0) if O['sen'] else rsv
    def emit(out, base):
        n = base
        for l in out:
            if stamp and l.startswith('v_mfma'):
                if n % 60 == 5: stamp(a, f'q{n//5}')
                n += 1
            a(l)
            if stamp and l == 'f_okc1:': stamp(a, 'pollC1')
    out, rest = listsched(mm[:120], [hch, ach, vch, pch, wch, gch, dch], vmgap=O['vg'], reserve=rsv, flush=False)
    emit(out, 0)
    assert not (rest[1] or rest[2] or rest[3] or rest[4] or rest[6])
    sh = lambda c: [(t, lo - 120, hi - 120) for t, lo, hi in c]
    a("s_cmp_ge_u32 s20, 2\ns_cbranch_scc1 f_pathb")
    b2, b3 = O['b2'], O['b3']
    c = A2 + 20
    fa = add(RD, RD+20) + add(c, RD+40) + unp + add(c, RD)
    for jj in range(5):
        fa += [f"v_fma_f32 v{c+4*jj+k}, v{c+4*jj+k}, v{GB+4*jj+k}, v{XU+4*jj+k}" for k in range(4)]
        fa += [f"v_cvt_pk_bf16_f32 v{c+4*jj+h}, v{c+4*jj+2*h}, v{c+4*jj+2*h+1}" for h in range(2)] + [f"ds_write_b64 v{VST}, {P(c+4*jj)} offset:{32*jj}"]
    lch = T_(w0l, 0, b2 - 4) + [(BAR, b2, b2)] + T_(rdp((0, 1)) + rdp((2,)), b2, b2 + 18) + T_(wr(2), 63, b3 - 4) + [(BAR, b3, b3)]
    out, r2 = listsched(mm[120:], [sh(rest[0]), lch, sh(rest[5]) + T_(fa, b2 + 20), sch('a')], vmgap=O['vg'], reserve=rsv2, flush=False)
    emit(out, 120)
    assert not (r2[0] or r2[1])
    left = [x[0] for x in r2[2]]
    for l in left[:6] + wr(3) + BAR + left[6:] + outst(): a(l)
    if stamp: stamp(a, 'q48')
    a("s_branch f_done\nf_pathb:")
    c = A2 + 60
    lch = T_(w0l, 0, b2 - 4) + T_(wr(1), 3, b2 - 4) + [(BAR, b2, b2)] + T_(wr(2), 63, b3 - 4) + [(BAR, b3, b3)] + T_(rdp((0, 2)), b3, b3 + 12)
    emit(listsched(mm[120:], [sh(rest[0]), lch, sh(rest[5]) + T_(unp, b2 + 1) + T_(add(RD, RD+40), b3 + 16), sch('b')], vmgap=O['vg'], reserve=rsv2), 120)
    for jj in range(5):
        for h in range(2): a(f"v_pk_add_f32 {P(c+4*jj+2*h)}, {P(c+4*jj+2*h)}, {P(RD+4*jj+2*h)}")
    a("s_barrier")
    if stamp: stamp(a, 'q48')
    for l in rdp((1,)): a(l)
    for jj in range(5):
        r = c + 4*jj
        for h in range(2): a(f"v_pk_add_f32 {P(r+2*h)}, {P(r+2*h)}, {P(RD+20+4*jj+2*h)}")
        for h in range(2): a(f"v_pk_fma_f32 {P(r+2*h)}, {P(r+2*h)}, {P(GB+4*jj+2*h)}, {P(XU+4*jj+2*h)}")
        for h in range(2): a(f"v_cvt_pk_bf16_f32 v{r+h}, v{r+2*h}, v{r+2*h+1}")
        a(f"ds_write_b64 v{VST}, {P(r)} offset:{32*jj}")
    for l in outst(): a(l)
    a("f_done:")
def kf(stamp=None):
    a = Asm(); late = []; del SPINS[:]; del DEFER[:]; DIAG[0] = bool(stamp)
    if stamp: a("s_mov_b32 s101, 0")
    a(f"""
    s_cmp_ge_u32 s2, 256
    s_cbranch_scc1 f_end
    """)
    ldp(a, 22, 'ws'); ldp(a, 36, 'x')
    if stamp: stamp(a, 0)
    a(f"""
    v_lshrrev_b32 v1, 6, v0
    s_getpc_b64 s[40:41]
u_pc:
    v_readfirstlane_b32 s20, v1
    s_lshr_b32 s42, s2, 3
    s_lshl_b32 s42, s42, 11
    v_and_b32 v2, 3, v0
    v_lshl_add_u32 v2, v1, 2, v2
    v_lshl_add_u32 v2, v2, 7, s42
    v_min_u32 v2, code_end-u_pc-4, v2
    v_mov_b32 v3, s41
    v_add_co_u32 v2, vcc, s40, v2
    v_addc_co_u32 v3, vcc, 0, v3, vcc
    s_mov_b64 exec, 15
    PFLOAD
    s_mov_b64 exec, -1
    v_and_b32 v1, 63, v0
    """)
    for k, i in enumerate(a.ins):
        if i.text == 'PFLOAD': a.ins[k] = I("global_load_dword v255, v[2:3], off")
    a(f"v_mov_b32 v247, {EPO}\ns_and_b32 s100, s2, 7\ns_mul_i32 s100, s100, {GOS}\ns_add_u32 s100, s100, {GOB}")
    a("s_cmp_lt_u32 s2, 160\ns_cbranch_scc1 f_conv")
    role_prep(a, stamp, late)
    a("s_branch f_join\nf_conv:")
    role_conv(a, stamp, late)
    a("CLEARVM\nf_join:")
    gemm(a, stamp, late)
    if stamp: stamp(a, 'end')
    a("f_end:\ns_endpgm")
    for l in late: a(l)
    return a
```

```python
from asmlib import *
from layout import *
import conv_model as cm
from gen_k1 import ldp, P, cmul, AROWS, arow_map, SPECIAL, LOG2E, INV2PI
from gen_k2 import V4, A4, mf, round_pair
import struct, math
F_LDS = 163840; F_ACC = 256; F_VGPR = 512
HST, XST = 4608, 4160
KGS = 54*272
L_KG = 0; L_H = 81920; L_XT = L_H + 4*HST; L_TAB = L_XT + 4*XST; L_XS = L_TAB + 4*3072
OPT = dict(qall=1, qs=135, qg=2, p2a=2, e1d=14, lin=0, xl=0, hl=180, tord=1, go0=0, nsh=16, qlate=1, ail=0, adl=1, rel=5, sen=0, pfg=3, her=0, wl=36, sbq=6, gather=1, htouch=(0, 4), hstat=(1, 2), hgat=((1,0),(1,4),(1,8),(1,12),(2,2),(2,6),(2,10),(3,0)), hsl2=(2, 12), dst=3, b1f=2, short=0, dense=2, pair=0, win0=9, dlim=60, late=0, pb=2, gbp=50, ba1=44, ba2=40, b1i=3, b1c=5, sat1=6, cc0=17, hrate=2, hsl=10, b2=24, b3=84, sat=1, xtl=3, vg=4, NX=0, pq=2, hwd=((0, 6), (0, 12), (1, 4)), hwd2=(1, 13), wfirst=0, nh=10, far1=8, lead=8, xbar=56, w0=170, NE=0, TA=1, TB=16, g2=8, GM=11, cf0=2, cp0=15, fC1=8, pI=14, pc=19, edr=4, NA=3, w1early=0, N0b=4, aw0=0, aw1=5, morder=0x532104, pf=1, gopos=2, hrow1=(0, 4), hrow2=(0, 5), nd1=12, hgo=(1, 0), hgo2=(1, 7), hpoll=(2, 0), hchk=((2, 7), (3, 0)), ntab=23, npre=70, nmid1=40, nmid2=90, cpf=0, hpf=(0, 0), spread=1, wspan=8, xrate=[1,1,1,1,1,1,2,2,2,2], xlag=2, xall=12, vmc=1, gstat=(0, 10), N0=6, N1=10, N2=6, xd=3, M0=2, M1=60, win=11, rbx=8, gissue=(5, 14), gcheck=(7, 16), wdrate=6)
OPT.update(N1=8,b1i=5,b1c=7,sat1=8,cp0=18,cc0=20,NE=16,w0=120,fC1=8,pI=16,pc=21,gstat=(0,10),xrate=[2,2,1,1,1,1,2,2,2,2,2],ba2=25,vg=3,gissue=(6,15),gcheck=(8,16),GM=12,win=9,xtl=4,xd=4)
OPT.update(cf0=3,b1i=5,b1c=7,sat1=7,gstat=(0,9),gissue=(6,13),gcheck=(8,16),GM=12,hpoll=(2,7),hchk=((3,0),),cp0=17,cc0=19,xrate=[2,1,1,1,1,1,2,2,1,1,1,1],NA=4,dense=3,lead=6,vg=4,hgo=(0,12),hgo2=(1,4),hrate=1,win=9,ntab=31)
OPT.update(xfirst=0, nmid=130, hrow=(0, 10), hgo=(1, 8), hpoll=(2, 7), hchk=((3, 0),))
OPT.update(cp0=18,cc0=20,aw0=0,aw1=7,cf0=2,hpoll=(2,5),gissue=(6,14),gcheck=(8,16))
OPT.update(far1=0)
OPT.update(short=1,far1=0,xbar=38,ba1=40,ntab=31,lead=10,her=1,ba2=10,N1=0,N2=4,NE=27,w0=110,xl=1,hl=170,dst=1,b1f=1,hrow=(0,8),hgo=(1,6),b3=90,npre=100,fC1=7,pI=15,pc=20,vg=3)
OPT.update(hh1=(1, 12), hh2=(2, 3), hpoll=(2, 4), hchk=(2, 11), hr=2, mdp=0)
OPT.update(hr=1, wfp=2)
OPT.update(pq=2, wfp=2, w0=110, lead=8)
SPINS = []; DIAG = [0]; DEFER = []; EXT = []
SC = " sc1"
def f2u(x): return hex(struct.unpack('<I', struct.pack('<f', x))[0])
VWV = 106
VWF = 110
L_Q = 155648
def q_addr(r, first='s_min_u32 s4, s2, 239', dst=(59, 51)):
    x = [first, "s_mul_i32 s5, s4, 13108", "s_lshr_b32 s5, s5, 16", "s_mul_i32 s6, s5, 5", "s_sub_u32 s4, s4, s6", "s_lshl_b32 s4, s4, 2", "s_add_u32 s4, s4, s20",
         f"s_mul_i32 s6, s5, {32*1280}", "s_lshl_b32 s7, s4, 6", "s_add_u32 s6, s6, s7",
         f"v_lshrrev_b32 v{r}, 2, v1", f"v_mul_u32_u24 v{r}, {1280-64}, v{r}", f"v_lshl_add_u32 v{r}, v1, 4, v{r}", f"v_add_u32 v{r}, s6, v{r}",
         "s_mul_i32 s5, s5, 5", "s_lshl_b32 s4, s4, 1"]
    for d in dst:
        x += ["s_mul_i32 s6, s4, 13108", "s_lshr_b32 s6, s6, 16", "s_mul_i32 s6, s6, 235", "s_add_u32 s6, s6, s4", "s_add_u32 s6, s6, s5", "s_lshl_b32 s6, s6, 10", f"s_add_u32 s{d}, s6, {WD}", "s_add_u32 s4, s4, 1"]
    return x
def q_issue(r, k=0):
    return [f"s_lshl_b32 s4, s20, 11\ns_add_u32 m0, s4, {L_Q - 8192*k}\nglobal_load_lds_dwordx4 v{r}, s[38:39]", f"v_add_u32 v{r}, {16*1280 - 1024}, v{r}", f"global_load_lds_dwordx4 v{r}, s[38:39] offset:1024 ; tag=wd"]
def q_process(A, B, D, k=0, dst=(59, 51)):
    x = [f"v_bfe_u32 v{A}, v1, 2, 2", f"v_lshrrev_b32 v{B}, 4, v1", f"v_lshl_add_u32 v{A}, v{B}, 3, v{A}", f"v_and_b32 v{B}, 3, v1", f"v_lshlrev_b32 v{B}, 3, v{B}", f"v_lshl_add_u32 v{A}, v{A}, 6, v{B}",
         "s_lshl_b32 s7, s20, 11", f"s_add_u32 s7, s7, {L_Q - 8192*k}", f"v_add_u32 v{A}, s7, v{A}", "WAITVM wd"]
    x += [f"ds_read_b64_tr_b16 {P(D+4*t+2*hh)}, v{A} offset:{32*t + 256*hh}" for t in range(2) for hh in range(2)]
    x += [f"v_lshl_add_u32 v{(A, B)[t]}, v1, 4, s{dst[t]}" for t in range(2)]
    return x, [f"global_store_dwordx4 v{(A, B)[t]}, {V4(D+4*t)}, s[22:23] sc1" for t in range(2)]
def wbase():
    r = [f"s_mul_i32 s4, s62, {WPS}", f"s_add_u32 s4, s4, {WP2 + 4096}"]
    if not OPT['lin']: return r + ["v_lshl_add_u32 v3, v1, 4, s4"]
    return r + ["v_lshrrev_b32 v3, 1, v1", "v_xor_b32 v3, v3, v1", "v_and_b32 v3, 2, v3", "v_mul_u32_u24 v3, 3, v3", "v_xor_b32 v3, v3, v1", "v_lshl_add_u32 v3, v3, 4, s4"]
def wld(q):
    r = [f"global_load_dwordx4 {A4(4*q)}, v3, s[22:23] offset:{1024*(q&7)-4096}" + SC]
    if q & 7 == 7: r.append(f"v_add_u32 v3, 8192, v3")
    return r
def ids(a, VWF=VWF, VWV=VWV):
    rbx = OPT['rbx']; cbx = 32 // rbx; gx = 16 // cbx
    a(f"""
    s_and_b32 s4, s2, 7
    s_lshr_b32 s5, s2, 3
    s_and_b32 s60, s4, {gx-1}
    s_mul_i32 s60, s60, {cbx}
    s_and_b32 s6, s5, {cbx-1}
    s_add_u32 s60, s60, s6
    s_lshr_b32 s61, s4, {gx.bit_length()-1}
    s_mul_i32 s61, s61, {rbx}
    s_lshr_b32 s6, s5, {cbx.bit_length()-1}
    s_add_u32 s61, s61, s6
    s_lshl_b32 s62, s60, 2
    s_add_u32 s62, s62, s20
    s_mul_i32 s6, s62, 3
    v_bfe_u32 v{VWF}, v1, 2, 2
    v_min_u32 v{VWF}, 2, v{VWF}
    v_add_u32 v{VWF}, s6, v{VWF}                 ; tile T
    v_lshrrev_b32 v{VWF}, 3, v{VWF}              ; G
    v_lshlrev_b32 v{VWF}, 9, v{VWF}
    v_and_b32 v{VWV}, 3, v1
    v_lshl_add_u32 v{VWF}, v{VWV}, 7, v{VWF}
    s_add_u32 s6, s100, {32*128}
    v_add_u32 v{VWF}, s6, v{VWF}
    """)
def spin(a, late, name, loads, chk, back, bound=0x40000, slp=2):
    SPINS.append(name)
    late.append(f"{name}:\n" + (f"s_or_b32 s101, s101, {1 << (len(SPINS)-1)}\n" if DIAG[0] else "") + f"s_mov_b32 s64, 0\n{name}_l:\ns_waitcnt vmcnt(0)\ns_sleep {slp}\n" + "\n".join(loads) + "\ns_waitcnt vmcnt(0)\n" + "\n".join(chk) +
                f"\ns_add_u32 s64, s64, 1\ns_cmp_ge_u32 s64, {bound}\ns_cbranch_scc1 {back}\ns_cbranch_vccnz {name}_l\ns_branch {back}")
ONE_V = 248
def chk4(r, n=4):
    c = [f"v_xor_b32 v{r+k}, s65, v{r+k}" for k in range(n)]
    c += [f"v_or3_b32 v{r}, v{r}, v{r+1}, v{r+2}", f"v_or_b32 v{r}, v{r}, v{r+3}"] if n == 4 else []
    return c + [f"v_cmp_ne_u32 vcc, 0, v{r}"]
def M(mask, ins): return f"s_mov_b64 exec, {mask}\n{ins}\ns_mov_b64 exec, -1"
def tagchk(r, mask): return f"v_cmp_ne_u32 vcc, s65, v{r}\ns_and_b64 vcc, vcc, {mask}"
def U_(l): return "\n".join(x + " ; untracked" if x.startswith('global') else x for x in l.split("\n"))
HFL = M("0xfffff", "global_load_dword v109, v108, s[22:23] sc1"); HCHK = [tagchk(109, "0xfffff")]
def hint(a, late, name):
    a(f"{HCHK[0]}\ns_cbranch_vccnz {name}\n{name}_ok:")
    spin(a, late, name, [HFL], HCHK, name + "_ok", bound=24, slp=0)
def nonce(a):
    a(f"v_readfirstlane_b32 s65, v{ONE_V}\ns_mul_i32 s65, s65, 0x9e3779b5\ns_add_u32 s65, s65, 0x7f4a7c15\nv_mov_b32 v{ONE_V}, s65")
EPOLD = M(1, f"global_load_dword v{ONE_V}, v247, s[22:23] sc1")
def publish(a, name, old, n, vaddr, vval):
    a(f"v_readfirstlane_b32 s4, v{old}\ns_cmp_lg_u32 s4, {n-1}\ns_cbranch_scc1 {name}\nglobal_store_dwordx4 v{vaddr}, {V4(vval)}, s[22:23] sc1 ; untracked")
def rep_addr(r, sb):
    return [f"v_lshrrev_b32 v{r}, 3, v1", f"v_mul_u32_u24 v{r}, {GOS - 128}, v{r}", f"v_lshl_add_u32 v{r}, v1, 4, v{r}", f"v_add_u32 v{r}, s{sb}, v{r}"]
def flag_addr(line0, r, val, dense=False):
    if dense:
        return ["s_bfe_u32 s4, s63, 0x20002", "s_lshl_b32 s4, s4, 4", "s_lshr_b32 s5, s63, 4", "s_add_u32 s4, s4, s5", "s_lshl_b32 s4, s4, 2", "s_and_b32 s5, s63, 3",
                "s_add_u32 s4, s4, s5", "s_lshl_b32 s4, s4, 4", f"s_add_u32 s4, s4, {GOB + 128*line0}", f"v_mul_u32_u24 v{r}, {GOS}, v1", f"v_add_u32 v{r}, s4, v{r}", f"v_mov_b32 v{val}, s65"]
    return ["s_lshl_b32 s4, s63, 7", f"s_add_u32 s4, s4, {GOB + 128*line0}"] + rep_addr(r, 4) + [f"v_mov_b32 v{val}, s65"]
def flag_set(tag, r, val, single=False, off=0, dense=False):
    st = [M("0xffffffff", f"global_store_dword v{r}, v{val}, s[22:23] offset:{off} sc1 ; untracked")] if single else [f"global_store_dwordx4 v{r}, {V4(val)}, s[22:23] sc1 ; untracked"]
    if dense: st = [M("0xff", st[0])]
    return ["s_cmp_lg_u32 s20, 0", f"s_cbranch_scc1 f_na{tag}"] + st + [f"f_na{tag}:"]
def rows_addr(a):
    a(f"""
    s_and_b32 s40, s2, 3               ; j
    s_bfe_u32 s41, s2, 0x50002         ; uo
    s_lshl_b32 s42, s41, 5
    s_lshl_b32 s43, s20, 3
    s_add_u32 s42, s42, s43
    s_add_u32 s42, s42, s40
    s_mul_i32 s42, s42, 2560
    v_lshrrev_b32 v3, 1, v6
    v_and_b32 v4, 1, v6
    v_lshl_add_u32 v2, v3, 3, v4
    v_mul_u32_u24 v2, 1280, v2
    v_lshl_add_u32 v2, v5, 4, v2
    v_add_u32 v2, s42, v2
    """)
def rows_issue(a):
    for i in range(5): a(f"global_load_dwordx4 {V4(8+4*i)}, v2, s[36:37] offset:{256*i}")
def rows_addr2(a):
    a(f"""
    s_lshl_b32 s42, s20, 5
    s_add_u32 s43, s42, {L_XS}
    v_mul_u32_u24 v28, 144, v5
    v_add3_u32 v28, v28, v7, s43
    s_lshr_b32 s43, s41, 3
    s_lshl_b32 s43, s43, 12
    s_lshl_b32 s44, s40, 10
    s_add_u32 s43, s43, s44
    s_and_b32 s44, s41, 7
    s_lshl_b32 s44, s44, 7
    s_add_u32 s43, s43, s44
    s_add_u32 s44, s43, s42
    s_add_u32 s44, s44, {STAT}
    v_add_u32 v31, s44, v7
    s_and_b32 s44, s20, 1
    s_mul_i32 s44, s44, 40
    v_lshrrev_b32 v3, 3, v1
    v_add_u32 v3, s44, v3              ; chunk
    v_and_b32 v4, 7, v1
    v_lshlrev_b32 v4, 4, v4
    v_mul_u32_u24 v29, 144, v3
    s_lshr_b32 s44, s20, 1
    s_mul_i32 s42, s44, {80*144}
    s_add_u32 s42, s42, {L_XS}
    v_add3_u32 v29, v29, v4, s42
    v_mul_u32_u24 v30, {2*XRS}, v3
    s_mul_i32 s44, s44, {XRS}
    s_add_u32 s43, s43, s44
    s_add_u32 s43, s43, {XR}
    v_add3_u32 v30, v30, v4, s43
    s_lshl_b32 s44, s2, 4
    s_add_u32 s44, s44, {GOB}
    v_mul_u32_u24 v246, {GOS}, v1
    v_add_u32 v246, s44, v246
    s_mov_b32 s45, 0x3f803f80
    s_mov_b32 s46, 0x00010001
    s_mov_b32 s47, 0x00010001
    """)
def rows_process(a, stamp, RB):
    for i in range(5):
        for h in range(2): a(f"ds_write_b64 v28, {P(8+4*i+2*h)} offset:{16*144*i + 80*144*h}")
    d = []
    for k in range(20):
        d += [f"v_dot2_f32_bf16 v{32+(k&1)}, v{8+k}, s45, " + ("0" if k < 2 else f"v{32+(k&1)}"),
              f"v_dot2_f32_bf16 v{34+(k&1)}, v{8+k}, v{8+k}, " + ("0" if k < 2 else f"v{34+(k&1)}")]
    nd = OPT['nd1']
    for l in d[:nd]: a(l)
    a("s_waitcnt lgkmcnt(0)\ns_barrier")
    for k in range(5): a(f"ds_read_b128 {V4(RB[k])}, v29 offset:{8*144*k}")
    for l in d[nd:nd+16]: a(l)
    f = d[nd+16:] + ["s_nop 1", "v_add_f32 v32, v32, v33", "v_add_f32 v33, v34, v35"]
    for r in (8, 4, 2, 1): f += [f"v_add_f32_dpp v{32+k}, v{32+k}, v{32+k} row_ror:{r} row_mask:0xf bank_mask:0xf" for k in range(2)]
    st = []
    for k in range(5): st += [f"global_store_dwordx4 v30, {V4(RB[k])}, s[22:23] sc1"] + ([f"v_add_u32 v30, {16*XRS}, v30"] if k < 4 else [])
    for l in interleave(st, f): a(l)
    a(f"""
    v_mul_f32 v32, 0x3acccccd, v32
    v_mul_f32 v33, 0x3acccccd, v33
    v_fma_f32 v33, -v32, v32, v33
    v_max_f32 v33, 0, v33
    v_add_f32 v33, 0x3727c5ac, v33
    v_rsq_f32 v34, v33
    s_mov_b64 exec, s[46:47]
    v_mul_f32 v35, -v32, v34
    global_store_dwordx2 v31, v[34:35], s[22:23] sc1
    s_mov_b64 exec, -1
    """)
def role_conv(a, stamp, late):
    O = OPT
    X, S, SA, CA, BND, SP, U, HP = 8, 24, 40, 44, 48, 72, 76, 84
    a(f"s_load_dwordx16 s[4:19], s[0:1], {KARG['are']}")
    B = 112
    RAW, VB, VA, DT, ONE, KR, BB, CC, E1, H, T0, XX, PB, F, ZZ, ACK = (B, B+12, B+13, B+14, B+15, B+16, B+18, B+20, B+22, B+24, B+26, B+28, B+32, B+36, B+54, B+92)
    G = F + 16; PK = ZZ + 14
    TB, TS, T2A, T3A, DSK, SPC, VPA, VMD, VXR, VST, VPF = 220, 221, 222, 223, 224, 228, 225, 227, 232, 233, 234
    PLA, MD = 236, 240
    VH, VTD, VT2, VT3, VXD, VW, VO, GA, VTD0 = 100, 101, 102, 103, 104, 105, 107, 108, 109
    a(f"""
    s_and_b32 s21, s2, 7
    s_mul_i32 s21, s21, 20
    s_lshr_b32 s3, s2, 3
    s_add_u32 s21, s21, s3             ; cg
    s_lshl_b32 s48, s21, 2
    s_add_u32 s48, s48, s20            ; channel
    s_mul_i32 s25, s48, 384
    v_lshl_add_u32 v{T0}, v1, 2, s25
    v_lshl_add_u32 v{T0+1}, v1, 1, s25
    s_lshr_b32 s26, s48, 1
    s_lshl_b32 s26, s26, 2
    v_and_b32 v5, 15, v1
    v_lshrrev_b32 v6, 4, v1
    v_lshlrev_b32 v7, 3, v6
    """)
    rows_addr(a)
    c = Asm()
    rows_addr2(c)
    nrow = len(c.ins)
    c(f"""
    s_min_u32 s30, s2, 127
    s_lshl_b32 s30, s30, 11
    s_add_u32 s30, s30, {PST}
    v_lshl_add_u32 v{U+4}, v0, 3, s30
    v_mov_b32 v{U+6}, -1.0
    v_mov_b32 v{U+7}, -1.0
    s_mul_i32 s29, s20, {KGS}
    s_mov_b32 m0, s29
    v_and_b32 v{VB}, 31, v1
    v_mul_u32_u24 v{VB}, 272, v{VB}
    v_lshrrev_b32 v{U}, 5, v1
    v_lshl_add_u32 v{U}, v{U}, 4, s29
    v_add_u32 v{VB}, v{VB}, v{U}
    v_mov_b32 v{ONE}, 0x3f80
    v_mov_b32 v{DSK}, 0
    s_mov_b32 s34, {LOG2E}
    s_mov_b32 s35, {INV2PI}
    """)
    m = arow_map()
    c(f"v_and_b32 v{U+1}, 31, v1\nv_lshrrev_b32 v{U+2}, 2, v{U+1}\nv_and_b32 v{U+1}, 3, v{U+1}\nv_lshlrev_b32 v{U+1}, 3, v{U+1}")
    for q in range(8):
        w = sum(m[4*q+k] << (8*k) for k in range(4))
        if q == 0: c(f"v_mov_b32 v{VA}, {w}")
        else: c(f"v_cmp_eq_u32 vcc, {q}, v{U+2}\nv_mov_b32 v{U+3}, {w}\nv_cndmask_b32 v{VA}, v{VA}, v{U+3}, vcc")
    c(f"v_bfe_u32 v{VA}, v{VA}, v{U+1}, 8\nv_mul_u32_u24 v{VA}, 272, v{VA}\nv_add_u32 v{VA}, v{VA}, v{U}")
    keys = ['r2q0', 'r2q1', None, 'r2q3', 'r3e', 'r3o', 'sp']
    for k, key in enumerate(keys):
        if key is None: continue
        if key == 'sp': mk = 3 << 12
        else: co, w, sh = cm.BANDS[key]; mk = ((1 << (2*w+1)) - 1) << (co + sh - w)
        c(f"v_mov_b32 v{U}, {mk}\nv_lshlrev_b32 v{U}, v5, v{U}\nv_lshrrev_b32 v{U}, v7, v{U}")
        c(f"v_and_b32 v{U}, 0xff, v{U}\nv_mul_u32_u24 v{U}, 0x8001, v{U}")
        for w in range(4):
            d = BND + 4*k + w
            if w: c(f"v_lshrrev_b32 v{U}, 2, v{U}")
            c(f"v_and_b32 v{d}, 0x10001, v{U}")
            if key != 'sp': c(f"v_mul_u32_u24 v{d}, 0x3f80, v{d}")
    c(f"""
    s_mul_i32 s24, s20, 3072
    s_add_u32 s24, s24, {L_TAB}
    s_mul_i32 s30, s20, {HST}
    s_add_u32 s30, s30, {L_H}
    v_lshlrev_b32 v{VH}, 5, v5
    v_lshl_add_u32 v{VH}, v6, 4, v{VH}
    v_add_u32 v{VH}, s30, v{VH}
    v_lshl_add_u32 v106, v1, 3, s30
    v_and_b32 v{U}, 1, v5
    v_mul_u32_u24 v{U}, {2*((cm.CH_O*8+7) - (cm.CH_E*8+8))}, v{U}
    v_sub_u32 v{VTD}, v7, v5
    v_lshl_add_u32 v{VTD}, v{VTD}, 1, v{U}
    v_add_u32 v{VTD}, {2*(cm.CH_E*8+8-16-32*16)}, v{VTD}
    v_add_u32 v{VTD}, s24, v{VTD}
    v_add_u32 v{VTD0}, 1024, v{VTD}
    v_lshlrev_b32 v{U}, 2, v6
    v_sub_u32 v{U}, v{U}, v5                    ; 4g - col
    v_lshl_add_u32 v{VT2}, v{U}, 3, s24
    v_lshl_add_u32 v{VT3}, v{U}, 2, s24
    v_add_u32 v{VT3}, {2*(cm.CH_T3*8+256-2-32*7)}, v{VT3}
    s_mul_i32 s30, s20, {XST}
    s_add_u32 s30, s30, {L_XT}
    v_lshlrev_b32 v{VXD}, 5, v5
    v_add3_u32 v{VXD}, v{VXD}, v7, s30
    v_lshlrev_b32 v{VW}, 4, v0
    v_add_u32 v{VW}, {L_H}, v{VW}
    v_lshlrev_b32 v{U}, 4, v1
    v_sub_u32 v{TB}, s24, v{U}
    v_lshlrev_b32 v{U}, 2, v1
    v_sub_u32 v{T2A}, s24, v{U}
    v_lshlrev_b32 v{U}, 1, v1
    v_sub_u32 v{T3A}, s24, v{U}
    v_and_b32 v{TS}, 31, v1
    v_mov_b32 v{U}, v{TS}
    """)
    prev = 0
    for k in range(1, 32):
        step = SPECIAL[k] - k
        if step != prev:
            c(f"v_cmp_le_u32 vcc, {k}, v{U}\nv_mov_b32 v{U+1}, {step-prev}\nv_cndmask_b32 v{U+1}, 0, v{U+1}, vcc\nv_add_u32 v{TS}, v{TS}, v{U+1}"); prev = step
    c(f"v_lshl_add_u32 v{TS}, v{TS}, 4, s24")
    for r in range(4): c(f"v_mov_b32 v{SPC+r}, 0")
    c(f"""
    s_lshl_b32 s31, s20, 12
    s_lshl_b32 s30, s20, 9
    s_add_u32 s30, s30, s100
    v_lshl_add_u32 v{VPA}, v1, 4, s30
    v_lshl_add_u32 v{VST}, v1, 4, s31
    s_mul_i32 s30, s21, {XRS}
    s_add_u32 s30, s30, {XR}
    v_add_u32 v{VXR}, s30, v{VST}
    v_add_u32 v{VST}, {STAT}, v{VST}
    v_bfe_u32 v{U}, v1, 2, 2                    ; ks
    v_and_b32 v{U+1}, 1, v6
    v_mul_u32_u24 v{U}, 30720, v{U}
    v_mul_u32_u24 v{VMD}, 5120, v6
    s_mov_b32 s56, -1
    s_mov_b32 s57, 0xffff
    s_add_u32 s58, s20, 32
    v_add_u32 v{VMD}, v{VMD}, v{U}
    v_and_b32 v{U}, 3, v1
    v_lshlrev_b32 v{U}, 3, v{U}
    s_lshl_b32 s30, s21, 5
    s_add_u32 s30, s30, {MODT}
    v_add3_u32 v{VMD}, v{VMD}, v{U}, s30
    v_cvt_f32_u32 v{MD+2}, v{U+1}
    """)
    cl = [i.text for i in c.ins]
    def deal(n):
        while cl and (n > 0 or 'vcc' in cl[0].split(',')[-1] or (len(cl) > 1 and cl[1].startswith('v_cndmask'))): a(cl.pop(0)); n -= 1
    deal(O['npre'])
    a("s_waitcnt lgkmcnt(0)")
    if stamp: stamp(a, 'ka')
    a("s_load_dword s27, s[16:17], s26\ns_load_dword s28, s[18:19], s26")
    p1 = [f"global_load_dword v{RAW+i}, v{T0}, s[{4+2*i}:{5+2*i}]" for i in range(6)]
    p2 = [f"global_load_ushort v{RAW+6+i}, v{T0+1}, s[{4+2*i}:{5+2*i}] offset:256" for i in range(6)]
    def rows(nyoung):
        a(f"s_cmp_ge_u32 s2, 128\ns_cbranch_scc1 u_norow\ns_waitcnt vmcnt({nyoung})")
        rows_process(a, stamp, [84, 88, 92, 96, 40])
        if O['go0']: a(f"s_or_b32 s44, s2, s20\ns_cmp_lg_u32 s44, 0\ns_cbranch_scc1 u_nocnt\nv_lshlrev_b32 v2, 7, v1\nv_add_u32 v2, {CNB}, v2\nglobal_store_dword v2, v{SPC}, s[22:23] sc1 ; untracked\nu_nocnt:")
        a(f"global_store_dwordx2 v{U+4}, {P(U+6)}, s[22:23] sc1\ns_waitcnt lgkmcnt(0)\nCLEARVM\nu_norow:")
        if stamp: stamp(a, 'row2')
    xf = O['xfirst']
    for l in ([] if xf else p1): a(l)
    a("s_cmp_ge_u32 s2, 128\ns_cbranch_scc1 u_noiss")
    rows_issue(a)
    a("CLEARVM\nu_noiss:")
    for l in (p1 if xf else []) + p2 + [EPOLD]: a(l)
    a("CLEARVM")
    if stamp: stamp(a, 'iss')
    if xf:
        deal(O['nmid']); rows(13)
    deal(999)
    addr = Asm(); ids(addr, VWF, U)
    addr(f"""
    s_lshr_b32 s4, s48, 1
    s_and_b32 s4, s4, 1
    s_lshr_b32 s5, s48, 2
    s_and_b32 s5, s5, 2
    s_or_b32 s4, s4, s5
    v_and_b32 v{VO}, 3, v5
    v_xor_b32 v{VO}, s4, v{VO}
    v_lshrrev_b32 v{U}, 1, v6
    v_lshl_add_u32 v{VO}, v{U}, 2, v{VO}
    v_and_b32 v{U}, 1, v6
    v_lshrrev_b32 v{U+1}, 2, v5
    v_lshl_add_u32 v{U}, v{U}, 2, v{U+1}
    v_mul_u32_u24 v{U}, 81920, v{U}
    v_lshl_add_u32 v{VO}, v{VO}, 4, v{U}
    s_lshl_b32 s4, s48, 7
    s_add_u32 s4, s4, {XT1}
    v_add_u32 v{VO}, s4, v{VO}
    s_mov_b32 s63, s21
    """)
    nad = len(addr.ins)
    addr = [i.text for i in addr.ins] + flag_addr(128, 45, 44, OPT['dense'] & 1) + ["s_and_b32 s4, s2, 7", "s_lshl_b32 s4, s4, 8", f"s_add_u32 s4, s4, {HER}", "v_lshl_add_u32 v108, v1, 2, s4", "s_lshl_b32 s5, s3, 2", "s_add_u32 s4, s4, s5", "v_mov_b32 v46, s4", "v_mov_b32 v47, 0", "v_add_u32 v243, 128, v46", "v_add_u32 v244, 128, v108"]
    if OPT['go0']:
        addr = addr[:nad] + [f"s_and_b32 s4, s2, {OPT['nsh']-1}", "s_lshl_b32 s4, s4, 7", f"s_add_u32 s5, s4, {CNB}", "v_mov_b32 v46, s5", "v_mov_b32 v47, 1", "v_mov_b32 v44, s65",
                             f"s_add_u32 s4, s4, {GOB + 128*128}"] + rep_addr(45, 4)
    for l in addr + wbase() + (q_addr(111) if O['qall'] else []):
        if 's65' not in l: a(l)
    if stamp and O.get('dg'):
        stamp(a, 'cst'); a("s_waitcnt lgkmcnt(0)"); stamp(a, 'sld')
        for k, n in enumerate((17, 15, 12)): a(f"s_waitcnt vmcnt({n}) ; untracked"); stamp(a, f'p{k}')
    a(f"s_waitcnt lgkmcnt(0)\ns_cmp_ge_u32 s2, 128\ns_cbranch_scc1 u_w0\ns_waitcnt vmcnt({14 if xf else 12})\ns_branch u_w1\nu_w0:\ns_waitcnt vmcnt(7)\nu_w1:")
    a(f"""
    ds_write_b64 v106, {P(SPC)}
    s_and_b32 s30, s48, 1
    s_lshl_b32 s30, s30, 4
    s_lshr_b32 s27, s27, s30
    s_lshl_b32 s27, s27, 16
    s_lshr_b32 s28, s28, s30
    s_lshl_b32 s28, s28, 16
    v_mov_b32 v{DT}, {LOG2E}
    v_mul_f32 v{DT}, s27, v{DT}
    v_exp_f32 v{DT}, v{DT}
    v_writelane_b32 v{DSK}, s28, 0
    v_cvt_pk_bf16_f32 v{DT}, v{DT}, v{DT}
    v_and_b32 v{DT}, 0xffff0000, v{DT}
    s_mov_b32 s14, 0x05040100
    s_mov_b32 s15, 0x07060302
    """)
    pollA = [M("0xffffffff", f"global_load_dword v{PLA}, v{VPA}, s[22:23] sc1")]
    chkA = [tagchk(PLA, "0xffffffff")]
    mdl = M("s[56:57]", f"global_load_dwordx2 {P(MD)}, v{VMD}, s[22:23] sc1")
    hl = []
    for j in range(4): hl += [f"global_load_dwordx4 {V4(X+4*j)}, v{VXR}, s[22:23] offset:{1024*j} sc1", f"global_load_dwordx4 {V4(S+4*j)}, v{VST}, s[22:23] offset:{1024*j} sc1"]
    def hook(pos):
        if pos == O['hrow'] and not xf: rows(7)
        if pos == O['hgo']:
            a("s_waitcnt vmcnt(0)"); nonce(a)
            a("v_mov_b32 v44, s65\ns_cmp_ge_u32 s2, 128\ns_cbranch_scc1 f_naa\ns_barrier")
            fs = flag_set('a', 246, ONE_V, dense=True)
            for l in fs[:-1] + [M(1, f"global_store_dword v243, v{ONE_V}, s[22:23] ; untracked")] + fs[-1:]: a(l)
            if stamp: stamp(a, 'flagA')
        if pos == O['hh1']: a(hfa)
        if pos == O['hh2']:
            a(f"{hca[0]}\ns_cbranch_vccnz u_hinta\nu_hinta_ok:")
            spin(a, late, "u_hinta", [hfa], hca, "u_hinta_ok", bound=24, slp=0)
            if stamp: stamp(a, 'hintA')
        if pos == O['hpoll']: a(pollA[0])
        if pos == O['hchk']:
            a(f"{chkA[0]}\ns_cbranch_vccnz u_spina\nu_oka:")
            spin(a, late, "u_spina", pollA, chkA, "u_oka")
            if stamp: stamp(a, 'pollA')
        if O['hchk'] <= pos < (3, 0):
            for _ in range(O['hr']):
                if hl: a(hl.pop(0))
    hfa = M("0xffff", f"global_load_dword v{PLA+1}, v244, s[22:23] sc1"); hca = [tagchk(PLA+1, "0xffff")]
    hl.insert(O['mdp'], mdl)
    assert O['hrow'] < O['hgo'] < (2, 0) and O['hgo'] <= O['hh1'] < O['hh2'] <= O['hpoll'] < O['hchk']
    pend = []; ard = []
    for rd in range(3):
        FB, FA = 64*(rd & 1), 64*(rd & 1) + 32
        s = []
        for i, d in enumerate((KR, KR + 1, BB, BB + 1, CC, CC + 1)):
            if rd == 0: s.append(f"v_lshlrev_b32 v{d}, 16, v{RAW+i}")
            elif rd == 1: s.append(f"v_and_b32 v{d}, 0xffff0000, v{RAW+i}")
            else: s.append(f"v_lshlrev_b32 v{d}, 16, v{RAW+6+i}")
        s.append(f"v_pk_mul_f32 {P(KR)}, {P(KR)}, {P(DT)} op_sel_hi:[1,0]")
        s.append(f"v_pk_mul_f32 {P(BB)}, {P(BB)}, {P(DT)} op_sel_hi:[1,0]")
        s.append(f"v_pk_mul_f32 {P(KR)}, {P(KR)}, s[34:35]")
        s += [f"v_mul_f32 v{XX}, 0x41000000, v{KR}", f"v_mul_f32 v{XX+1}, 0x41000000, v{KR+1}", f"v_exp_f32 v{XX}, v{XX}", f"v_fract_f32 v{XX+1}, v{XX+1}",
              f"v_cos_f32 v{F+2}, v{XX+1}", f"v_sin_f32 v{F+3}, v{XX+1}", f"v_exp_f32 v{XX+2}, v{KR}", f"v_fract_f32 v{XX+3}, v{KR+1}",
              f"v_cos_f32 v{E1}, v{XX+3}", f"v_sin_f32 v{E1+1}, v{XX+3}",
              f"v_pk_mul_f32 {P(F+2)}, {P(F+2)}, {P(XX)} op_sel_hi:[1,0] neg_hi:[1,0]", f"v_pk_mul_f32 {P(E1)}, {P(E1)}, {P(XX+2)} op_sel_hi:[1,0]"]
        if stamp: stamp(a, f'r{rd}')
        for l in s: a(l)
        vals = [([], None, 0), ([], F + 2, 1)]
        for j in range(2, 9): vals.append((cmul(F + 2*j, F + 2*(j-1), F + 2, T0), F + 2*j, j))
        for j in range(9, 32):
            z = F + 2*(j & 7)
            if j == 16:
                vals.append((cmul(F, G, G, T0) + [f"v_pk_mul_f32 {P(T0)}, {P(F)}, {P(F)} op_sel:[0,0] op_sel_hi:[0,1] neg_hi:[1,0]",
                             f"v_pk_fma_f32 {P(H)}, {P(F)}, {P(F)}, {P(T0)} op_sel:[1,1,0] op_sel_hi:[1,0,1] neg_lo:[1,0,0] neg_hi:[1,0,0]"], F, j))
            else: vals.append((cmul(z, z, G, T0), z, j))
        zr = {l: F + 2*k for k, l in enumerate(AROWS)}
        for l in AROWS:
            op = cmul(zr[0], CC, BB, T0) if l == 0 else cmul(zr[l], zr[l-1], E1, T0) if l <= 8 else cmul(zr[l], zr[l-256], H, T0)
            vals.append((op, zr[l], 32 + AROWS.index(l)))
        brd = [f"ds_read_b128 {A4(FB+4*ks)}, v{VB} offset:{32*ks}" for ks in range(8)]
        for gi in range(14):
            hook((rd, gi))
            grp = vals[4*gi:4*gi+4]
            for v in grp:
                for l in v[0]: a(l)
            if pend and gi >= 5: a(pend.pop(0))
            for k, v in enumerate(grp):
                if v[1] is not None: a(f"v_cvt_pk_bf16_f32 v{PB+k}, v{v[1]}, v{v[1]+1}")
            rds = ard if gi < 8 else brd
            for _ in range(2):
                if rds: a(rds.pop(0))
            for k, v in enumerate(grp): a(f"ds_write_addtid_b32 v{PB+k if v[1] is not None else ONE} offset:{272*v[2]}")
        assert not pend and not brd and not ard
        ard = [f"ds_read_b128 {A4(FA+4*ks)}, v{VA} offset:{32*272 + 32*ks}" for ks in range(8)]
        pend = [f"v_mfma_f32_32x32x16_bf16 v[{ACK}:{ACK+15}], {A4(FA+4*ks)}, {A4(FB+4*ks)}, " + ("0" if rd == 0 and ks == 0 else f"v[{ACK}:{ACK+15}]") for ks in range(8)]
    for l in ard: a(l)
    hook((3, 0))
    if stamp: stamp(a, 'r3')
    for l in hl[:2] + interleave(pend, hl[2:]): a(l)
    V = ACK; E, O = PK, PK + 4
    a(f"v_add_f32 v{V}, v{V}, v{DSK}")
    for k in range(4): a(f"v_cvt_pk_bf16_f32 v{E+k}, v{V+8-2*k}, v{V+7-2*k}")
    for k in range(4): a(f"v_cvt_pk_bf16_f32 v{O+k}, v{V+7-2*k}, v{V+6-2*k}")
    a(f"ds_write_b128 v{TB}, {V4(E)} offset:{cm.CH_E*16}")
    a(f"v_cvt_pk_bf16_f32 v{PK+8}, v{V+10}, v{V+9}\nv_cvt_pk_bf16_f32 v{PK+9}, v{V+11}, v{V+12}")
    a(f"v_readlane_b32 s8, v{O+3}, 0\nv_readlane_b32 s9, v{E}, 63\nv_readlane_b32 s11, v{PK+8}, 63")
    a(f"ds_write_b128 v{TB}, {V4(O)} offset:{cm.CH_O*16}")
    a(f"s_lshr_b32 s8, s8, 16\ns_lshl_b32 s10, s9, 16\ns_and_b32 s11, s11, 0xffff")
    a(f"v_writelane_b32 v{SPC}, s8, {SPECIAL.index(cm.CH_E+1)}")
    a(f"v_writelane_b32 v{SPC+3}, s9, {SPECIAL.index(cm.CH_E-64)}")
    a(f"v_writelane_b32 v{SPC+2}, s10, {SPECIAL.index(cm.CH_O-64)}")
    a(f"v_writelane_b32 v{SPC+3}, s9, {SPECIAL.index(cm.CH_O-64)}")
    a(f"s_mov_b64 exec, 0xffffffff\nds_write_b128 v{TS}, {V4(SPC)}\ns_mov_b64 exec, -1")
    a(f"ds_write_b32 v{T2A}, v{PK+8} offset:{cm.CH_T2*16 + 2*(320-130)}")
    a(f"ds_write_b16 v{T3A}, v{PK+9} offset:{cm.CH_T3*16 + 2*(256-129)}")
    a(f"ds_write_b16_d16_hi v{T3A}, v{PK+9} offset:{cm.CH_T3*16 + 2*(256-193)}")
    NH = OPT['nh']
    TDO = [16, 0, 8] + [q for k in range(1, 8) for q in (k, k + 8)]
    HB = 256 - 4*NH; T3 = HB - 16; T2 = T3 - 24; TDB = T2 - 68
    td = lambda q: TDB + 4*TDO.index(q)
    def rd_td(q): return [f"ds_read2_b32 a[{td(q)+2*h}:{td(q)+2*h+1}], v{VTD} offset0:{16*(16-q)+2*h} offset1:{16*(16-q)+2*h+1}" if q else
                          f"ds_read2_b32 a[{td(q)+2*h}:{td(q)+2*h+1}], v{VTD0} offset0:{2*h} offset1:{2*h+1}" for h in range(2)]
    tabs = [None] + rd_td(0) + rd_td(8) + rd_td(16) + rd_td(1) + rd_td(9)
    for D in range(2, 5):
        for hh in range(2):
            off = 2*(cm.CH_T2*8 + 320 - 64*D - 4 + 8*hh)
            tabs += [f"ds_read_b64 a[{T2+8*(D-2)+4*hh+2*h}:{T2+8*(D-2)+4*hh+2*h+1}], v{VT2} offset:{off+8*h}" for h in range(2)]
    for D in range(4, 8):
        tabs += [f"ds_read2_b32 a[{T3+4*(D-4)+2*h}:{T3+4*(D-4)+2*h+1}], v{VT3} offset0:{16*(7-D)+2*h} offset1:{16*(7-D)+2*h+1}" for h in range(2)]
    ntab = OPT['ntab']
    if OPT['tord']:
        t2, t3 = tabs[11:23], tabs[23:]; tabs = tabs[:11]
        for q in range(2, 8): tabs += t2[2*(q-2):2*(q-1)] + rd_td(q) + rd_td(q + 8)
        tabs += t3
    else:
        for q in range(2, 8): tabs = tabs + rd_td(q) + rd_td(q + 8)
    for l in tabs[1:ntab]: a(l)
    for w in range(4): a(f"v_mul_u32_u24 v{SP+w}, s11, v{SP+w}")
    if stamp: stamp(a, 'tab')
    cmd = [tagchk(MD+1, "s[56:57]")]
    a(cmd[0] + "\ns_cbranch_vccnz u_spinmd\nu_okmd:")
    spin(a, late, "u_spinmd", [mdl], cmd, "u_okmd")
    a(f"""
    v_add_f32_dpp v{MD}, v{MD}, v{MD} row_ror:4 row_mask:0xf bank_mask:0xf
    v_add_f32_dpp v{MD}, v{MD}, v{MD} row_ror:8 row_mask:0xf bank_mask:0xf
    v_cvt_pk_bf16_f32 v{MD}, v{MD}, v{MD}
    v_and_b32 v{MD}, 0xffff0000, v{MD}
    v_add_f32 v{MD}, v{MD}, v{MD+2}
    v_cvt_pk_bf16_f32 v{MD}, v{MD}, v{MD}
    v_and_b32 v{MD}, 0xffff0000, v{MD}
    """)
    f = [f"v_readlane_b32 s{8+c}, v{MD}, {c}" for c in range(4)] + [f"v_readlane_b32 s{52+c}, v{MD}, {16+c}" for c in range(4)]
    f += [f"v_mov_b32 v{SA+c}, s{8+c}" for c in range(4)] + [f"v_readlane_b32 s50, v{MD}, s58"]
    for l in f: a(l)
    a('u_have:')
    UN = F
    for k in range(16):
        if k % 4 == 0:
            for q in range(k, k + 4): a(f"v_lshlrev_b32 v{UN+2*q}, 16, v{X+q}\nv_and_b32 v{UN+2*q+1}, 0xffff0000, v{X+q}")
        st = P(S + 2*(k >> 1))
        a(f"v_pk_fma_f32 {P(UN+2*k)}, {P(UN+2*k)}, {st}, {st} op_sel:[0,0,1] op_sel_hi:[1,0,1]")
    for cp in range(2):
        for k in range(cp, 16, 2): a(f"v_pk_fma_f32 {P(UN+2*k)}, {P(UN+2*k)}, s[{52+2*cp}:{53+2*cp}], {P(SA+2*cp)}")
        for c in (2*cp, 2*cp + 1):
            for tp in range(4): a(f"v_cvt_pk_bf16_f32 v{HP+4*c+tp}, v{UN+8*tp+c}, v{UN+8*tp+4+c}")
            a(f"ds_write_b128 v{VW}, {V4(HP+4*c)} offset:{HST*c + 512}")
    a("s_waitcnt lgkmcnt(0)\ns_barrier")
    if stamp: stamp(a, 'bar')
    XP = S
    ACC, Z3, Z2, SD, XD, XU, OUTR = 112, 144, 160, 208, 8, 24, 84
    ops = []
    first = set()
    def acc(n, A, B):
        ops.append((ACC+4*n, A, B, None if n in first else "0")); first.add(n)
    cvs = []; lastacc = {}; sdt = []
    nsd = [0]
    def sig0(n, what, rep=0):
        h, hs, sd = ('h', n, 32, rep), ('h', n, 48, rep), SD + 24*(nsd[0] & 1)
        r2, r3, dr = n < 6 and '2' in what, n < 4 and '3' in what, [j for j in range(3) if 'abc'[j] in what and n + j < 8]
        if r2 or r3: nsd[0] += 1; sdt.append(len(ops))
        if r2:
            for q in (1, 2, 3, 0): ops.append((sd+4*q, hs if q == 0 else h, V4(BND+4*(q if q != 2 else 0)), "0"))
        if r3: ops.append((sd+16, hs, V4(BND+16), "0")); ops.append((sd+20, h, V4(BND+20), "0"))
        p = len(ops)
        cv = []
        if r2:
            for hh in range(2):
                for w in range(4): cv.append(f"v_cvt_pk_bf16_f32 v{Z2+8*n+4*hh+w}, v{sd + 4*(2*(w&1)) + 2*hh + (w>>1)}, v{sd + 4*(2*(w&1)+1) + 2*hh + (w>>1)}")
        if r3: cv += [f"v_cvt_pk_bf16_f32 v{Z3+4*n+r}, v{sd+16+r}, v{sd+20+r}" for r in range(4)]
        cvs.extend((l, p + 2, p + 11, nsd[0]) for l in cv)
        for j in dr: acc(n+j, A4(td(8*j)), h)
        if r3: acc(n+4, V4(SP), h)
    far = []
    for n in range(6):
        for hh in range(2):
            for D in range(2, 5):
                if n + D < 8: far.append((n+D, V4(Z2+8*n+4*hh), A4(T2+8*(D-2)+4*hh), n))
    for n in range(4):
        for D in range(4, 8):
            if n + D < 8: far.append((n+D, V4(Z3+4*n), A4(T3+4*(D-4)), n))
    far1 = [x for x in far if x[0] < 4]; far2 = sorted((x for x in far if x[0] >= 4), key=lambda x: x[3] >= 4)
    k1 = OPT['far1']; far1 += far2[:k1]; far2 = far2[k1:]
    def phase(part, sig, fr, k):
        for n in range(4*part, 4*part + 4):
            h = ('h', n, 32 + 64*sig, 0)
            acc(n, A4(td(sig)), h); lastacc[n] = len(ops) - 1
            if n < 7: acc(n+1, A4(td(sig+8)), h)
            for _ in range((k*(n%4+1))//4 - (k*(n%4))//4): acc(*fr.pop(0)[:3])
    for n in range(4): sig0(n, '23abc' if not OPT['short'] else '2abc' if n < 2 else 'ab')
    for sig in range(1, 8): phase(0, sig, far1, -(-len(far1) // (7 - sig)) if sig < 7 else 0)
    assert not far1
    blocks = ([(2, '23c', 1), (3, '23c', 1), (0, '3', 1), (4, '23abc', 0), (1, '3', 1), (5, '23abc', 0)] if OPT['short'] else [(4, '23abc', 0), (5, '23abc', 0)])
    zdone = lambda A: all(p + 12 <= len(ops) for l, p, hi, k in cvs if int(re.search(r'v(\d+),', l).group(1)) // 4 * 4 == int(re.search(r'v\[(\d+):', A).group(1))) and any(f"v{re.search(r'v.(.+):', A).group(1)}," in l for l, p, hi, k in cvs)
    def spacer(k):
        for x in [x for x in far2 if zdone(x[1])][:k]: far2.remove(x); acc(*x[:3])
    sig = 1
    for _ in range(OPT['p2a']): phase(1, sig, [], 0); sig += 1
    sig0(6, 'ab'); sig0(7, 'a')
    for b in blocks:
        sig0(*b)
        if len(b[1]) > 1:
            if sig < 7: phase(1, sig, [], 0); sig += 1
            else: spacer(6)
    while sig < 7: phase(1, sig, [], 0); sig += 1
    phase(1, 7, [], 0)
    far2.sort(key=lambda x: x[0])
    while far2:
        n0 = len(far2); spacer(1); assert len(far2) < n0
    for n in range(8): lastacc[n] = max(k for k, o in enumerate(ops) if o[0] == ACC + 4*n)
    assert len(ops) == 202
    cvs = [(l, min(lo, hi2), hi2) for l, lo, hi, k in cvs for hi2 in [min(hi, sdt[k+1] - 1 if k + 1 < len(sdt) else 999)]]
    use = {}
    for i, o in enumerate(ops):
        for x in o[1:3]: use.setdefault(x, []).append(i)
    hs = [x for x in use if isinstance(x, tuple)]
    hreg = {}; hch = []; LEAD = OPT['lead']
    for k, x in enumerate(hs):
        hreg[x] = A4(HB + 4*(k % NH))
        lo = use[hs[k-NH]][-1] if k >= NH else -1
        hch.append((f"ds_read_b128 {hreg[x]}, v{VH} offset:{512 + 512*x[1] - x[2]}", lo, max(lo, use[x][0] - LEAD)))
    m = [mf(d, hreg.get(A, A), hreg.get(B, B), c) for d, A, B, c in ops]
    def treg(l):
        r = int(re.search(r'a\[(\d+):', l).group(1)); return A4(r - r % 4)
    rest = tabs[ntab:]
    tch = sorted(((l, 0, use[treg(l)][0] - LEAD) for l in rest), key=lambda x: x[2])
    def epi(n):
        r = ACC + 4*n; o = OUTR + 2*n
        e = [f"v_fma_f32 v{r+k}, v{r+k}, s50, v{XU+4*(n&3)+k}" for k in range(4)] + [f"v_cvt_pk_bf16_f32 v{o+h}, v{r+2*h}, v{r+2*h+1}" for h in range(2)]
        if n & 1:
            o -= 2
            e += [f"v_permlane16_swap_b32 v{o}, v{o+2}", f"v_permlane16_swap_b32 v{o+1}, v{o+3}"]
            x = [f"global_store_dwordx4 v{VO}, {V4(o)}, s[22:23]" + SC + f" ; tag=x1s{n}"] + ([f"v_add_u32 v{VO}, {8*81920}, v{VO}"] if n < 7 else [])
            if n < 4 or OPT['dst'] < 0: e += x
            else: DEFER.extend(U_(l) for l in x)
        return [(l, lastacc[n] + 3, lastacc[n] + OPT['e1d'] if n < 4 else 999) for l in e]
    def unp(p): return [(l, 0, lastacc[4*p]) for k in range(8) for l in (f"v_lshlrev_b32 v{XU+2*k}, 16, v{XD+8*p+k}", f"v_and_b32 v{XU+2*k+1}, 0xffff0000, v{XD+8*p+k}")]
    gb0 = OPT['xbar']
    xch = []
    for c in range(4):
        xch += [(f"v_perm_b32 v{XP+4*c+tp}, v{X+4*tp+2+(c>>1)}, v{X+4*tp+(c>>1)}, s{14+(c&1)}", -1, -1) for tp in range(4)]
    xch += [(f"ds_write_b128 v{VW}, {V4(XP+4*c)} offset:{L_XT - L_H + XST*c} ; xt", 0, gb0 - 12) for c in range(4)]
    xch += [(["WAITXT", "s_barrier"], gb0, gb0)] + [(f"ds_read_b64 {P(XD+2*n)}, v{VXD} offset:{512*n}", gb0, gb0 + 16) for n in range(4)]
    xch += [(unp(0)[0][0], gb0 + 18, 999)] + unp(0)[1:]
    for n in range(4): xch += epi(n)
    xch += [(f"ds_read_b64 {P(XD+2*n)}, v{VXD} offset:{512*n}", 0, 140) for n in range(4, 8)] + [(unp(1)[0][0], 148, 999)] + unp(1)[1:]
    for n in range(4, 8): xch += epi(n)
    wfl = M("0xfff", f"global_load_dword v{VWV}, v{VWF}, s[22:23] sc1")
    w0 = OPT['w0']; NE = OPT['NE']
    qch = [(l, OPT['qg'] + 3*k, OPT['qg'] + 3*k) for k, l in enumerate(q_issue(111))]
    qa, qb = q_process(2, 4, 76); qs = OPT['qs']
    qch += [(l, qs - 24, qs - 8) for l in qa] + [(qb[0], qs, qs + 2), (qb[1], qs + 4, qs + 6)]
    ach = [(wfl, w0 - OPT['wl'], w0 - OPT['wl'] + 2)]
    wchk = [tagchk(VWV, "0xfff")]
    ach += [([wchk[0], "s_cbranch_vccnz f_spinw", "f_okw:"], w0, w0)]
    spin(a, late, "f_spinw", [wfl], wchk, "f_okw")
    for q in range(NE):
        lo = w0 + 1 + (q*(200 - w0))//max(NE, 1)
        if 4*q >= TDB: lo = max(lo, use[A4(4*q)][-1] + 1)
        ach.append((wld(q), lo, lo + 2))
    ga1 = lastacc[3] + OPT['ba1']; ga2 = min(200, ga1 + OPT['ba2'])
    bch = [(["WAITVM x1s3", "s_barrier"] + flag_set('b0', 45, 44, dense=OPT['dense'] & 1), ga1, ga1)]
    if OPT['her']:
        bch += [(["s_cmp_lg_u32 s20, 0", "s_cbranch_scc1 f_nahe", M(1, "global_store_dword v46, v44, s[22:23] ; untracked"), "f_nahe:"], ga2, ga2), (HFL, max(ga2, OPT['hl']), max(ga2, OPT['hl']))]
    if OPT['go0']:
        pub = ["s_cmp_lg_u32 s20, 0", "s_cbranch_scc1 f_npb0", "WAITMARK b0"]
        publish(lambda t: pub.extend(t.split("\n")), "f_npb0", 47, 160 // OPT['nsh'], 45, 44)
        bch = [(["WAITVM x1s3", "s_barrier", "s_cmp_lg_u32 s20, 0", "s_cbranch_scc1 f_nab0", M(1, "global_atomic_add v47, v46, v47, s[22:23] sc0 sc1 ; untracked"), "f_nab0:", "VMMARK b0"], ga1, ga1),
               (pub + ["f_npb0:"], ga2, ga2)]
    out = listsched(m, [hch, tch, sorted(cvs, key=lambda x: x[1]), xch, ach, bch] + ([qch] if OPT['qall'] else []))
    assert max(k for k, l in enumerate(out) if 'tag=x1s3' in l) < out.index("WAITVM x1s3")
    i = out.index("WAITXT"); j = max(k for k, l in enumerate(out) if l.endswith('; xt'))
    out[i] = f"s_waitcnt lgkmcnt({min(15, sum(l.startswith('ds_') for l in out[j+1:i]))})"
    nm = 0
    for l in out:
        if stamp and l.startswith('v_mfma'):
            if nm % 40 == 0 and nm: stamp(a, f'c{nm}')
            nm += 1
        a(l)
        if stamp and l == 'f_nab0:': stamp(a, 'arr0')
        if stamp and l == 'f_npb0:': stamp(a, 'pub0')
    if stamp: stamp(a, 'done')
    if OPT['her']: hint(a, late, "u_hint1")
L_CV, L_MS, L_WD = 40960, 43008, 98304
def mod_addr(a, r, vaddr):
    a(f"""
    s_add_u32 s26, s3, {96*r}
    s_cmp_ge_u32 s26, 240
    s_cselect_b32 s27, 48, 0
    s_sub_u32 s26, s26, s27
    s_lshr_b32 s27, s26, 2
    s_mul_i32 s28, s27, 6554
    s_lshr_b32 s28, s28, 16
    s_mul_i32 s29, s28, 10
    s_sub_u32 s27, s27, s29
    s_lshl_b32 s28, s28, 2
    s_lshr_b32 s28, {OPT['morder']}, s28
    s_and_b32 s28, s28, 7
    s_mul_i32 s28, s28, 10
    s_add_u32 s27, s27, s28            ; slab
    s_lshl_b32 s28, s27, 7
    v_add_u32 v{vaddr}, s28, v51
    s_lshl_b32 s27, s27, 8
    s_mul_i32 s28, s13, 15360
    s_add_u32 s27, s27, s28
    s_add_u32 s{50+2*r}, s27, {MODP}
    """)
def mod_issue(vaddr, W):
    r = []
    for j in range(5):
        r.append(f"global_load_dwordx4 {V4(W+4*j)}, v{vaddr}, s[10:11]")
        if j < 4: r.append(f"v_add_u32 v{vaddr}, {32*7680}, v{vaddr}")
    return r
def mod_process(a, r, W, pre='', post=None, slot=None, fill=()):
    slot = r if slot is None else slot
    A = 238; C = 56
    d = [f"v_dot2_f32_bf16 v{A+e}, v{W+4*j+e//2}, v{C+(5 if e&1 else 0)+j}, " + ("0" if j == 0 else f"v{A+e}") for j in range(5) for e in range(8)]
    for l in interleave(d, list(fill), start=8): a(l)
    for i in range(4): a(f"v_permlane32_swap_b32 v{A+i}, v{A+4+i}")
    for i in range(4): a(f"v_add_f32 v{A+i}, v{A+i}, v{A+4+i}")
    for i in range(2): a(f"v_permlane16_swap_b32 v{A+i}, v{A+2+i}")
    for i in range(2): a(f"v_add_f32 v{A+i}, v{A+i}, v{A+2+i}")
    for i in range(2): a(f"v_add_f32_dpp v{A+i}, v{A+i}, v{A+i} row_ror:8 row_mask:0xf bank_mask:0xf")
    a(f"""
    ds_write_b64 v53, {P(A)} offset:{L_MS + 1024*slot}
    v_add_u32 v{A+4}, s{50+2*r}, v55
    v_lshlrev_b32 v{A+5}, 1, v{A+4}
    v_add_u32 v{A+5}, {MODT - 2*MODP}, v{A+5}
    {pre}
    s_waitcnt lgkmcnt(0)
    s_barrier
    ds_read_b32 v{A}, v54 offset:{L_MS + 1024*slot}
    """)
    if post: post()
    a(f"""
    v_mov_b32 v{A+1}, v{A}
    v_permlane32_swap_b32 v{A}, v{A+1}
    v_add_f32 v{A}, v{A}, v{A+1}
    v_mov_b32 v{A+1}, v{A}
    v_permlane16_swap_b32 v{A}, v{A+1}
    v_add_f32 v{A}, v{A}, v{A+1}
    """)
    a(f"v_mov_b32 v{A+1}, s65\ns_mov_b64 exec, 0xffff\nglobal_store_dwordx2 v{A+5}, {P(A)}, s[22:23] sc1\nglobal_store_dword v{A+4}, v{A}, s[22:23] sc1\ns_mov_b64 exec, -1")
def mod_flag(a, r): a(f"s_mov_b64 exec, 1\nWAITVM m{r}\nglobal_store_dword v{148+r}, v{ONE_V}, s[22:23] sc1\ns_mov_b64 exec, -1")
def role_prep(a, stamp, late):
    a(f"s_load_dwordx4 s[4:7], s[0:1], {KARG['wg']}\ns_load_dwordx4 s[8:11], s[0:1], {KARG['c']}")
    VDM = 52
    a(f"""
    s_sub_u32 s3, s2, 160
    s_lshr_b32 s12, s3, 2              ; G
    s_and_b32 s13, s3, 3               ; kq
    s_mul_i32 s16, s13, 160
    v_lshrrev_b32 v50, 3, v0
    v_add_u32 v50, s16, v50
    v_mul_u32_u24 v51, 7680, v50
    v_and_b32 v5, 7, v0
    v_lshl_add_u32 v51, v5, 4, v51
    v_lshlrev_b32 v50, 1, v50
    """)
    mod_addr(a, 0, 48)
    a("s_waitcnt lgkmcnt(0)")
    if stamp: stamp(a, 'ka')
    for j in range(5): a(f"global_load_ushort v{56+j}, v50, s[8:9] offset:{64*j}")
    W0, W1 = 68, 88
    for l in mod_issue(48, W0): a(l)
    a(EPOLD)
    if stamp: stamp(a, 'iss')
    mod_addr(a, 1, 49)
    a(f"""
    v_lshrrev_b32 v6, 4, v1
    v_lshlrev_b32 v53, 3, v6
    v_lshl_add_u32 v53, v5, 5, v53
    s_lshl_b32 s26, s20, 8
    v_add_u32 v53, s26, v53
    v_and_b32 v7, 15, v1
    s_lshl_b32 s26, s20, 6
    v_lshl_add_u32 v55, v7, 2, s26
    v_lshl_add_u32 v54, v6, 8, v55
    s_lshr_b32 s14, s20, 1             ; mat
    s_and_b32 s15, s20, 1
    v_lshrrev_b32 v{VDM}, 3, v1
    v_bfe_u32 v7, v1, 4, 1
    s_lshl_b32 s17, s20, 1
    v_or_b32 v7, s17, v7
    v_xor_b32 v7, v7, v5
    v_mul_u32_u24 v{VDM}, 3072, v{VDM}
    v_lshl_add_u32 v{VDM}, v7, 4, v{VDM}
    s_lshl_b32 s17, s15, 3
    s_add_u32 s17, s17, s16
    s_mul_i32 s17, s17, 3072
    s_lshl_b32 s18, s12, 7
    s_add_u32 s17, s17, s18
    v_add_u32 v{VDM}, s17, v{VDM}
    s_mul_i32 s18, s14, 20480
    s_lshl_b32 s19, s15, 10
    s_add_u32 s18, s18, s19
    s_cmp_eq_u32 s14, 0
    s_cselect_b32 s30, s4, s6
    s_cselect_b32 s31, s5, s7
    """)
    a(f"""
    v_min_u32 v5, 159, v0
    v_add_u32 v6, s16, v5
    v_lshlrev_b32 v6, 3, v6
    """)
    for j in range(4): a(f"v_add_u32 v{44+j}, {MODT + 3*5120 + 2560 + 30720*j}, v6")
    VT, VC, VS0, VU = 16, 18, 19, 21
    a(f"""
    v_lshrrev_b32 v6, 4, v1            ; g
    v_bfe_u32 v7, v1, 2, 2             ; r
    v_lshl_add_u32 v2, v6, 3, v7
    v_lshlrev_b32 v2, 7, v2            ; (8g + r) * 128
    v_bfe_u32 v3, v1, {0 if OPT['lin'] else 1}, 1             ; mat
    v_mul_u32_u24 v4, 20480, v3
    v_add_u32 v2, v2, v4
    v_bfe_u32 v4, v1, {1 if OPT['lin'] else 0}, 1
    v_lshl_add_u32 v2, v4, 3, v2
    v_lshrrev_b32 v7, 1, v7
    v_and_b32 v4, 1, v6
    v_lshl_add_u32 v7, v4, 1, v7
    v_lshl_add_u32 v7, v3, 2, v7       ; swizzle
    s_lshl_b32 s16, s20, 1
    v_xor_b32 v7, s16, v7
    v_lshl_add_u32 v{VT}, v7, 4, v2
    v_xor_b32 v7, 1, v7
    v_lshl_add_u32 v{VT+1}, v7, 4, v2
    v_lshlrev_b32 v{VC}, 4, v6
    v_bfe_u32 v2, v1, 1, 2
    v_lshlrev_b32 v2, 2, v2
    v_lshl_add_u32 v2, v6, 4, v2
    v_bfe_u32 v3, v1, 3, 1
    v_lshl_add_u32 v2, v3, 1, v2
    v_and_b32 v3, 1, v1
    v_add_u32 v2, v2, v3
    {"v_mov_b32 v2, v1" if OPT['lin'] else ""}
    s_lshl_b32 s24, s12, 3
    s_add_u32 s24, s24, s16
    """)
    for tl in range(2):
        a(f"""
        s_add_u32 s25, s24, {tl}
        s_mul_i32 s26, s25, 21846
        s_lshr_b32 s26, s26, 16            ; T/3
        s_mul_i32 s26, s26, 60
        s_add_u32 s26, s26, s25            ; 63*(T/3) + T%3
        s_lshl_b32 s26, s26, 10
        s_add_u32 s26, s26, {WP2}
        s_mul_i32 s27, s13, {15*1024}
        s_add_u32 s27, s27, s26
        v_lshl_add_u32 v{VS0+tl}, v2, 4, s27
        s_lshl_b32 s27, s13, 8
        s_add_u32 s27, s27, s26
        s_add_u32 s27, s27, {60*1024}
        v_lshl_add_u32 v{VU+tl}, v2, 4, s27
        """)
    a("v_lshlrev_b32 v5, 1, v5")
    a(f"s_lshl_b32 s4, s3, 7\ns_add_u32 s4, s4, {GOB + 32*128}\ns_mov_b32 s63, s2\n" + "\n".join(rep_addr(23, 4)))
    pmh = lambda h: [f"global_load_dwordx2 {P(208+2*j)}, v{44+j}, s[22:23] offset:{5120*h-2560} sc1" for j in range(4)]
    pm = pmh(1)
    cm_ = [f"v_xor_b32 v{209+2*k}, s65, v{209+2*k}" for k in range(4)] + ["v_or3_b32 v209, v209, v211, v213", "v_or_b32 v209, v209, v215", "v_cmp_ne_u32 vcc, 0, v209"]
    sum4 = "v_add_f32 v208, v208, v210\nv_add_f32 v212, v212, v214\nv_add_f32 v208, v208, v212\nv_cvt_pk_bf16_f32 v208, v208, v208"
    mod_addr(a, 2, 236)
    NQ = 1 if OPT['qall'] else 3
    for k in range(NQ):
        for l in (q_addr(250, dst=(40, 41)) if OPT['qall'] else q_addr(250 + k, f"s_add_u32 s4, s3, {96*k}\ns_cmp_ge_u32 s4, 240\ns_cselect_b32 s5, 48, 0\ns_sub_u32 s4, s4, s5", (40 + 2*k, 41 + 2*k))): a(l)
    C = 56
    if OPT['w1early']:
        for l in mod_issue(49, W1): a(l)
    for j in range(5): a(f"v_lshlrev_b32 v{C+j}, 16, v{C+j}\nv_mul_f32 v{C+5+j}, 0xbfb8aa3b, v{C+j}\nv_exp_f32 v{C+5+j}, v{C+5+j}")
    for j in range(5): a(f"v_add_f32 v{C+5+j}, 1.0, v{C+5+j}\nv_rcp_f32 v{C+5+j}, v{C+5+j}")
    for j in range(5): a(f"v_mul_f32 v{C+j}, v{C+j}, v{C+5+j}")
    for j in range(5): a(f"v_cvt_pk_bf16_f32 v{C+j}, v{C+j}, 0\nv_lshlrev_b32 v{C+5+j}, 16, v{C+j}")
    if not OPT['w1early'] and not OPT['wfirst']:
        for l in mod_issue(49, W1): a(l)
    def wdma(i): return [f"s_add_u32 m0, s18, {2048*i}", f"global_load_lds_dwordx4 v{VDM}, s[30:31] ; tag=w{i}"] + ([f"v_add_u32 v{VDM}, {16*3072}, v{VDM}"] if i < 9 else [])
    J = lambda lo, hi: ["\n".join(wdma(i)) for i in range(lo, hi)]
    mod_process(a, 0, W0, post=lambda: nonce(a), fill=J(0, OPT['aw0']))
    if stamp: stamp(a, 'flagA')
    for l in J(OPT['aw0'], OPT['aw1'] - OPT['ail']): a(l)
    if not OPT['wfirst']:
        mod_process(a, 1, W1, fill=J(OPT['aw1'] - OPT['ail'], OPT['aw1']))
        if stamp: stamp(a, 'r1')
    for l in pm: a(l)
    for i in range(OPT['aw1'], 10):
        for l in wdma(i): a(l)
    if OPT['wfirst']:
        W1 = 216
        for l in mod_issue(49, W1): a(l)
    W2 = 216
    for l in cm_: a(l)
    a("s_cbranch_vccnz u_spinm\nu_okm:")
    spin(a, late, "u_spinm", pm, cm_, "u_okm")
    if stamp: stamp(a, 'pollA')
    ONES = 24
    for w in range(4): a(f"v_mov_b32 v{ONES+w}, 0x3f803f80")
    a(f"""
    {sum4}
    v_and_b32 v12, 0xffff0000, v208
    v_add_f32 v12, 1.0, v12
    v_cvt_pk_bf16_f32 v12, v12, v12
    ds_write_b16 v5, v12 offset:{L_CV}
    WAITVM w{2*OPT['NA']-1}
    s_waitcnt lgkmcnt(0)
    s_barrier
    """)
    if stamp: stamp(a, 'bar')
    NA = OPT['NA']
    UU, CV, SV, ML, LO, OUT, D = 66, 108, 128, 8, 28, 148, 188
    def rds(s):
        a(f"ds_read_b128 {V4(CV+4*s)}, v{VC} offset:{L_CV + 64*s}")
        for tl in range(2):
            for hh in range(2): a(f"ds_read_b64_tr_b16 {P(UU+8*s+4*tl+2*hh)}, v{VT+tl} offset:{4096*s + 512*hh}")
    def pq(part=3):
        for l in mod_issue(236, W2): a(l)
        for k in range(NQ):
            for l in q_issue(250 + k, k): a(l)
    for s in range(NA): rds(s)
    if OPT['pq'] == 0: pq()
    for s in range(5):
        if s == NA:
            if OPT['wfirst']:
                mod_process(a, 1, W1)
                if stamp: stamp(a, 'r1')
            a("WAITVM w9")
            if stamp: stamp(a, 'r2')
            a("s_barrier")
            for q in range(NA, 5): rds(q)
            if OPT['pq'] == 1: pq()
        for w in range(4): a(f"v_and_b32 v{ML+2*w}, 0xffff, v{CV+4*s+w}\nv_and_b32 v{ML+2*w+1}, 0xffff0000, v{CV+4*s+w}")
        for tl in range(2):
            for w in range(4):
                for h in range(2): a(f"v_dot2_f32_bf16 v{LO+8*tl+2*w+h}, v{UU+8*s+4*tl+w}, v{ML+2*w+h}, 0")
        for tl in range(2):
            o = OUT + 8*s + 4*tl
            for w in range(4): a(f"v_cvt_pk_bf16_f32 v{o+w}, v{LO+8*tl+2*w}, v{LO+8*tl+2*w+1}")
            a(f"global_store_dwordx4 v{VS0+tl}, {V4(o)}, s[22:23]" + SC + " ; tag=wst")
            if s < 4: a(f"v_add_u32 v{VS0+tl}, 3072, v{VS0+tl}")
    if stamp: stamp(a, 'sts')
    if OPT['pq'] == 2: pq()
    for s in range(5):
        for tl in range(2):
            a(mf(D+8*tl, V4(ONES), V4(OUT+8*s+4*tl), "0" if s == 0 else None))
    def fw():
        for l in flag_set('fw', 23, ONE_V): a(l)
        if stamp: stamp(a, 'fw')
    ids(a, 10, 11)
    for l in wbase(): a(l)
    wfl = M("0xfff", "global_load_dword v11, v10, s[22:23] sc1"); wchk = [tagchk(11, "0xfff")]
    if OPT['pq'] >= 2:
        if stamp: stamp(a, 'pre')
        a("WAITVM wst\ns_barrier"); fw()
        if OPT['pq'] == 3: pq()
        mod_process(a, 2, W2, wfl if OPT['wfp'] == 0 else '', (lambda: a(wfl)) if OPT['wfp'] == 1 else None)
    else: mod_process(a, 2, W2, "WAITVM wst", fw)
    qb = []
    for k in range(NQ):
        x, y = q_process(28 + 2*k, 29 + 2*k, 148 + 8*k, k, (40 + 2*k, 41 + 2*k)); qb += y
        for l in x: a(l)
    if OPT['pq'] < 2 or OPT['wfp'] == 2: a(wfl)
    for l in qb: a(l)
    if stamp: stamp(a, 'done')
    a(f"{wchk[0]}\ns_cbranch_vccnz u_spinw\nu_okw:")
    spin(a, late, "u_spinw", [wfl], wchk, "u_okw")
    def ext(a):
        for l in cm_: a(l)
        a("s_cbranch_vccnz u_spins\nu_oks:")
        spin(a, late, "u_spins", pmh(0), cm_, "u_oks")
        a(f"{sum4}\nds_write_b16 v112, v208\ns_waitcnt lgkmcnt(0)\ns_barrier")
        for s in range(5): a(f"ds_read_b128 {V4(SV+4*s)}, v113 offset:{64*s}")
        for s in range(5):
            for tl in range(2): a(mf(D+8*tl+4, V4(SV+4*s), V4(UU+8*s+4*tl), "0" if s == 0 else None))
        E = 204
        for k in (0, 2, 1, 3):
            u = D + 4*k; e = E + 2*k
            a(f"v_cvt_pk_bf16_f32 v{e}, v{u}, v{u}\nv_and_b32 v{u+1}, 0xffff0000, v{e}\nv_sub_f32 v{u}, v{u}, v{u+1}\nv_cvt_pk_bf16_f32 v{e+1}, v{u}, v{u}")
        a(M("0xffff", "\n".join(f"global_store_dwordx4 v{114+tl}, {V4(E+4*tl)}, s[22:23] sc1 ; untracked" for tl in range(2))))
    L_SV = 90112
    a(f"v_add_u32 v112, {L_SV}, v5\nv_add_u32 v113, {L_SV}, v{VC}\nv_mov_b32 v114, v{VU}\nv_mov_b32 v115, v{VU+1}\ns_lshl_b32 s4, s2, 9\ns_lshl_b32 s5, s20, 7\ns_add_u32 s4, s4, s5\ns_add_u32 s4, s4, {HER + 0x10000}\nv_mov_b32 v107, s4")
    a(f"s_and_b32 s4, s2, 7\ns_lshl_b32 s4, s4, 8\ns_add_u32 s4, s4, {HER}\nv_lshl_add_u32 v108, v1, 2, s4")
    for q in range(OPT['NE'] + 1):
        if q < OPT['NE']:
            for l in wld(q): a(l)
    for l in pmh(0): a(l)
    if not OPT['xl']: ext(a)
    if OPT['her']: a(HFL); hint(a, late, "u_hint2")
    a("s_waitcnt lgkmcnt(0)\ns_barrier\nCLEARVM")
    if stamp: stamp(a, 'her')
    EXT.append(ext if OPT['xl'] else lambda a: a(M(1, "global_store_dword v107, v107, s[22:23] ; untracked\nglobal_store_dword v107, v107, s[22:23] ; untracked")))
def gemm(a, stamp, late):
    O = OPT
    VX, VW, VO, VP, VB, VSL, VSS, VG, VRW, VRR, VF = 2, 3, 4, 5, 8, 12, 14, 15, 16, 17, 18
    wq = [0]
    def wnext(n):
        r = []
        for _ in range(n):
            if wq[0] < 63: r += wld(wq[0]) if wq[0] < O.get('x_w', 63) else ['s_nop 0']; wq[0] += 1
        return r
    wnext(O['NE'])
    c0 = -2*math.sqrt(2/math.pi)*math.log2(math.e)
    VH, VPC = 26, 30; nd = 32 // O['g2']
    ad = Asm()
    ad(f"""
    v_and_b32 v6, 15, v1
    v_lshrrev_b32 v7, 4, v1
    v_lshrrev_b32 v21, 2, v1
    v_and_b32 v20, 3, v1
    v_lshl_add_u32 v20, v21, 4, v20
    s_lshl_b32 s4, s20, 2
    v_add_u32 v20, s4, v20
    s_mul_i32 s4, s60, 10
    s_sub_u32 s4, s4, 40
    v_min_u32 v21, 49, v1
    v_add_u32 v21, s4, v21
    v_cmp_gt_u32 vcc, 40, v1
    s_add_u32 s4, s100, {320*128}
    v_lshl_add_u32 v25, v20, 7, s4
    v_cndmask_b32 v20, v21, v20, vcc
    s_add_u32 s4, s100, {128*128}
    v_lshl_add_u32 v{VP}, v20, 7, s4
    """)
    if O['go0']: ad(f"v_lshl_add_u32 v{VP}, v1, 7, s4")
    elif O['dense'] & 1: ad(f"v_bfe_u32 v21, v20, 2, 2\nv_lshrrev_b32 v22, 4, v20\nv_lshl_add_u32 v21, v21, 4, v22\nv_and_b32 v20, 3, v20\nv_lshl_add_u32 v20, v21, 2, v20\nv_lshl_add_u32 v{VP}, v20, 4, s4")
    if O['dense'] & 2: ad(f"s_add_u32 s4, s100, {320*128}\nv_lshl_add_u32 v25, v0, 4, s4")
    n_poll = len(ad.ins)
    ad(f"""
    s_mul_i32 s4, s61, {81920*O['TA']}
    s_lshl_b32 s30, s20, 11
    s_add_u32 s5, s4, s30
    s_add_u32 s5, s5, {XT1}
    v_lshl_add_u32 v{VX}, v1, 4, s5
    s_mov_b32 m0, s30
    v_bfe_u32 v20, v1, 2, 2            ; r
    v_lshl_add_u32 v21, v7, 3, v20
    v_lshlrev_b32 v21, 7, v21
    v_bfe_u32 v22, v1, 1, 1
    v_lshl_add_u32 v21, v22, 6, v21
    v_and_b32 v22, 1, v1
    v_lshl_add_u32 v21, v22, 3, v21
    v_lshrrev_b32 v20, 1, v20
    v_and_b32 v22, 1, v7
    v_lshl_add_u32 v20, v22, 1, v20    ; swizzle
    """)
    for t in range(4): ad(f"v_xor_b32 v22, {t}, v20\nv_lshl_add_u32 v{VB+t}, v22, 4, v21")
    ad(f"""
    s_mul_i32 s6, s60, {40*128}
    s_add_u32 s5, s4, s6
    s_and_b32 s6, s20, 1
    s_lshl_b32 s6, s6, 6
    s_add_u32 s5, s5, s6
    s_add_u32 s5, s5, {XT1 + 2048}
    v_lshrrev_b32 v20, 3, v1
    v_lshl_add_u32 v20, v20, 7, s5
    v_and_b32 v21, 3, v1
    v_lshl_add_u32 v20, v21, 2, v20
    v_bfe_u32 v21, v1, 2, 1
    v_bfe_u32 v22, v1, 4, 1
    v_xor_b32 v21, v21, v22
    s_lshl_b32 s6, s60, 1
    s_xor_b32 s6, s6, s20
    s_and_b32 s6, s6, 2
    v_xor_b32 v21, s6, v21
    v_lshl_add_u32 v{VSL}, v21, 4, v20
    v_xor_b32 v21, 2, v21
    v_lshl_add_u32 v{VSL+1}, v21, 4, v20
    """)
    n_urgent = len(ad.ins)
    for l in flag_addr(320, 245, 244, O['dense'] & 2): ad(l)
    ad(f"""
    v_mov_b32 v{VF+1}, s65
    s_lshl_b32 s5, s61, 14
    s_add_u32 s5, s5, {PST}
    s_lshl_b32 s6, s60, 10
    s_add_u32 s6, s6, s5
    s_lshr_b32 s7, s20, 1
    s_lshl_b32 s7, s7, 8
    s_add_u32 s6, s6, s7
    s_and_b32 s7, s20, 1
    s_lshl_b32 s7, s7, 6
    s_add_u32 s6, s6, s7
    v_bfe_u32 v20, v1, 2, 1
    v_and_b32 v21, 3, v1
    v_lshlrev_b32 v20, 4, v20
    v_lshl_add_u32 v20, v21, 1, v20
    v_lshrrev_b32 v22, 5, v1
    v_add_u32 v20, v20, v22
    v_lshl_add_u32 v{VSS}, v20, 3, s6
    s_mov_b32 s36, 0xff
    s_mov_b32 s37, 0xff
    """)
    n_mid = len(ad.ins)
    ad(f"""
    v_lshrrev_b32 v22, 5, v1
    s_lshl_b32 s6, s20, 7
    s_add_u32 s5, s5, s6
    v_lshrrev_b32 v20, 3, v1
    v_lshlrev_b32 v20, 11, v20
    v_and_b32 v21, 7, v1
    v_lshl_add_u32 v20, v21, 4, v20
    v_add_u32 v{VG}, s5, v20
    v_lshl_add_u32 v20, v21, 1, v22
    s_lshl_b32 s6, s20, 9
    v_lshl_add_u32 v{VRW}, v20, 5, s6
    v_lshlrev_b32 v{VRR}, 5, v6
    s_mul_i32 s5, s61, {2*196608}
    s_mul_i32 s6, s62, 3072
    s_add_u32 s5, s5, s6
    s_add_u32 s5, s5, {HH}
    v_lshl_add_u32 v{VO}, v1, 4, s5
    s_lshl_b32 s5, s61, 4
    s_add_u32 s5, s5, s60
    s_lshl_b32 s5, s5, 8
    s_add_u32 s5, s5, {UF_C2}
    v_lshl_add_u32 v{VF}, v1, 2, s5
    s_lshr_b32 s4, s60, {O['pb']+1}
    s_lshl_b32 s4, s4, {O['pb']}
    s_and_b32 s32, s60, {(1 << O['pb'])-1}
    s_add_u32 s32, s32, s4
    s_bfe_u32 s4, s60, {0x10000 + O['pb']}
    s_lshl_b32 s33, s61, 1
    s_add_u32 s33, s33, s4
    s_min_u32 s5, s32, 1
    s_xor_b32 s5, s5, 1
    s_lshl_b32 s5, s5, 14
    v_add_u32 v{VRW}, s5, v{VRW}
    v_add_u32 v{VRR}, s5, v{VRR}
    s_lshl_b32 s4, s4, 1
    s_and_b32 s5, s20, 1
    s_add_u32 s16, s4, s5
    v_bfe_u32 v20, v1, 3, 1
    v_lshrrev_b32 v21, 5, v1
    v_lshl_add_u32 v20, v21, 1, v20
    v_xor_b32 v20, s16, v20
    v_bfe_u32 v21, v1, 1, 1
    v_lshl_add_u32 v20, v21, 2, v20
    v_lshlrev_b32 v20, 4, v20
    v_and_b32 v21, 1, v1
    v_lshl_add_u32 v20, v21, 3, v20
    v_lshrrev_b32 v21, 2, v1
    v_lshl_add_u32 v20, v21, 7, v20
    s_lshr_b32 s4, s20, 1
    s_mul_i32 s4, s4, 81920
    s_mul_i32 s5, s32, 10240
    s_add_u32 s4, s4, s5
    v_add_u32 v31, s4, v20
    s_lshl_b32 s34, s32, 2
    s_add_u32 s34, s34, s20
    s_mul_i32 s34, s34, 61440
    s_add_u32 s34, s34, {WD + 4096}
    s_lshr_b32 s35, s33, 1
    s_lshl_b32 s4, s35, 4
    s_lshl_b32 s5, s20, 2
    s_add_u32 s4, s4, s5
    s_lshl_b32 s4, s4, 8
    s_add_u32 s4, s4, {UF_C2}
    v_and_b32 v20, 3, v1
    v_lshl_add_u32 v{VPC}, v20, 8, s4
    v_lshlrev_b32 v20, 10, v7
    v_lshl_add_u32 v20, v6, 4, v20
    s_mul_i32 s4, s35, {2*196608}
    s_mul_i32 s5, s20, 49152
    s_add_u32 s4, s4, s5
    s_and_b32 s5, s33, 1
    s_lshl_b32 s5, s5, 9
    s_add_u32 s4, s4, s5
    s_add_u32 s4, s4, {HH + 4096}
    s_and_b32 s5, s20, 1
    s_lshl_b32 s5, s5, 8
    s_xor_b32 s6, s5, 256
    s_add_u32 s6, s6, s4
    s_add_u32 s5, s5, s4
    v_add_u32 v{VH}, s6, v20
    v_add_u32 v{VH+1}, s5, v20
    v_add_u32 v{VH+2}, 196608, v{VH}
    v_add_u32 v{VH+3}, 196608, v{VH+1}
    """)
    ad = [i.text for i in ad.ins]
    PL = 24
    poll = [f"global_load_dword v{PL}, v{VP}, s[22:23] sc1"]
    chk = [f"v_cmp_ne_u32 vcc, s65, v{PL}"]
    mk0 = hex((1 << O['nsh']) - 1)
    poll0, chk0 = ([M(mk0, poll[0])], [tagchk(PL, mk0)]) if O['go0'] else (poll, chk)
    w1 = wnext(O['N1'])
    for l in (interleave(w1, ad[:n_poll]) if w1 else ad[:n_poll]): a(l)
    a(poll0[0])
    for l in interleave(wnext(O['N2']), ad[n_poll:n_urgent]): a(l)
    assert wq[0] <= 60
    for l in chk0: a(l)
    a("s_cbranch_vccnz f_spinb\nf_okb:")
    spin(a, late, "f_spinb", poll0, chk0, "f_okb")
    if stamp: stamp(a, 'pollB')
    def dma(G):
        if G >= 20: return []
        r = [f"global_load_lds_dwordx4 v{VX}, s[22:23]" + SC, f"global_load_lds_dwordx4 v{VX}, s[22:23] offset:1024" + SC + f" ; tag=x{G}"]
        if G < 19: r += [f"s_add_u32 m0, s30, {8192*(G+1)}", f"v_add_u32 v{VX}, {8192 + (81920*(O['TB']-1) if G == 9 else 0)}, v{VX}"]
        return r
    ACC, BF, EX, SL, SQ, T, GL, R = 32, 128, 192, 248, 20, 254, 224, 232
    def sld(h):
        r = [f"global_load_dword v{SL+i}, v{VSL+(i&1)}, s[22:23] offset:{1024*i-2048} sc1" for i in range(O.get('x_sl', 5))]
        return r + ([f"v_add_u32 v{VSL+k}, {81920*O['TB']}, v{VSL+k}" for k in range(2)] if h == 0 else [])
    for G in range(O['xd']):
        for l in dma(G): a(l)
        if G == O['sat']:
            for l in sld(0): a(l)
        if G == O['dst']:
            a("s_cmp_ge_u32 s2, 160\ns_cbranch_scc1 f_nodst\n" + "\n".join(DEFER) + "\ns_branch f_dst\nf_nodst:")
            EXT[0](a)
            a("f_dst:")
            a("TRACK global_store_dword v107, v107, s[22:23]\nTRACK global_store_dword v107, v107, s[22:23] ; tag=x1e")
    for l in ad[n_urgent:n_mid if O['adl'] else None] + [f"v_mov_b32 v{VP}, v25"]: a(l)
    def rdb(G): return [f"ds_read_b64_tr_b16 {P(BF+32*(G&1)+16*sl+4*t+2*hh)}, v{VB+t} offset:{8192*(G&7) + 4096*sl + 512*hh}" for sl in range(2) for t in range(4) for hh in range(2)]
    a("WAITVM x0\ns_barrier")
    fb1 = flag_set('b1', 245, 244, dense=O['dense'] & 2)
    for l in (fb1 if O['dst'] < 0 else []) + rdb(0): a(l)
    def st(h):
        r = []
        for i in range(5):
            r += [f"v_lshlrev_b32 v{T}, 16, v{SL+i%O.get('x_sl', 5)}", f"v_and_b32 v{T+1}, 0xffff0000, v{SL+i%O.get('x_sl', 5)}"]
            for e in range(2):
                if i == 0: r += [f"v_mov_b32 v{SQ+2*e}, v{T+e}", f"v_mul_f32 v{SQ+2*e+1}, v{T+e}, v{T+e}"]
                else: r += [f"v_add_f32 v{SQ+2*e}, v{SQ+2*e}, v{T+e}", f"v_fmac_f32 v{SQ+2*e+1}, v{T+e}, v{T+e}"]
        return r + red(SQ) + [M("s[36:37]", f"global_store_dwordx2 v{VSS}, {P(SQ)}, s[22:23] offset:{512*h} sc1")]
    def red(b):
        r = [f"v_permlane32_swap_b32 v{b+k}, v{b+2+k}" for k in range(2)] + [f"v_add_f32 v{b+k}, v{b+k}, v{b+2+k}" for k in range(2)]
        r += [f"v_add_f32_dpp v{b+k}, v{b+k}, v{b+k} row_ror:8 row_mask:0xf bank_mask:0xf" for k in range(2)]
        r += [f"v_mov_b32 v{b+2+k}, v{b+k}" for k in range(2)] + [f"v_permlane16_swap_b32 v{b+k}, v{b+2+k}" for k in range(2)]
        return r + [f"v_add_f32 v{b+k}, v{b+k}, v{b+2+k}" for k in range(2)]
    gat = lambda h: [f"global_load_dwordx4 {V4(GL+4*i)}, v{VG}, s[22:23] offset:{1024*i + 512*h} sc1" for i in range(2)]
    gchk = [f"v_min3_f32 v{R}, v{GL+1}, v{GL+3}, v{GL+5}", f"v_min_f32 v{R}, v{R}, v{GL+7}", f"v_cmp_gt_f32 vcc, 0, v{R}"]
    fin = [f"v_add_f32 v{GL+k}, v{GL+k}, v{GL+4+k}" for k in range(4)] + red(GL)
    fin += [f"v_mul_f32 v{GL}, 0xbacccccd, v{GL}", f"v_mul_f32 v{GL+1}, 0x3acccccd, v{GL+1}",
            f"v_fma_f32 v{GL+1}, -v{GL}, v{GL}, v{GL+1}", f"v_cvt_pk_bf16_f32 v{GL+2}, v{GL}, v{GL}", f"v_max_f32 v{GL+1}, 0, v{GL+1}",
            f"v_and_b32 v{GL+2}, 0xffff0000, v{GL+2}", f"v_add_f32 v{R+6}, 0x3727c5ac, v{GL+1}", f"v_sub_f32 v{GL+3}, v{GL}, v{GL+2}",
            f"v_rsq_f32 v{GL+4}, v{R+6}", f"v_sqrt_f32 v{GL+5}, v{R+6}", f"v_cvt_pk_bf16_f32 v{R}, v{GL+2}, v{GL+3}",
            f"v_mul_f32 v{R+5}, {f2u(c0)}, v{GL+4}", f"v_cvt_pk_bf16_f32 v{GL+6}, v{GL+5}, v{GL+5}", f"v_mul_f32 v{GL+4}, v{GL+4}, v{GL+4}",
            f"v_and_b32 v{GL+6}, 0xffff0000, v{GL+6}", f"v_mul_f32 v{GL+4}, {f2u(0.044715)}, v{GL+4}", f"v_sub_f32 v{GL+7}, v{GL+5}, v{GL+6}",
            f"v_mul_f32 v{R+4}, v{GL+4}, v{R+5}", f"v_cvt_pk_bf16_f32 v{R+2}, v{GL+6}, v{GL+7}", f"v_mov_b32 v{R+1}, v{R}", f"v_mov_b32 v{R+3}, v{R+2}",
            f"v_mov_b32 v{R+7}, v{R+6}", ]
    finh = lambda h: fin + [f"ds_write_b128 v{VRW}, {V4(R)} offset:{2048*h}", f"ds_write_b128 v{VRW}, {V4(R+4)} offset:{2048*h+16}"]
    dq = [0]
    def dnext(n, lim=60):
        r = []
        for _ in range(n):
            q = dq[0]
            if q >= min(lim, O.get('x_wd', 60)): break
            if q == 0: r.append(f"v_lshl_add_u32 v{VW}, v1, 4, s34")
            r.append(f"global_load_dwordx4 {A4(4*q)}, v{VW}, s[22:23] offset:{1024*(q&7)-4096}" + SC)
            if q & 7 == 7: r.append(f"v_add_u32 v{VW}, 8192, v{VW}")
            dq[0] += 1
        return r
    RR, TM = 224, 236
    def rdex(hb): return [f"ds_read_b128 {V4(EX+8*t+4*k)}, v{VRR} offset:{512*(4*hb+t)+16*k}" for k in range(2) for t in range(4)]
    def flagc(hb): return [f"WAITVM hh{hb}"] + ["s_waitcnt lgkmcnt(0)"]*hb + ["s_barrier"] + flag_set(f'c{hb}', VF, VF+1, True, 128*hb)
    def pollc(hb): return [M(15, f"global_load_dword v{PL}, v{VPC}, s[22:23] offset:{128*hb} sc1")]
    def checkc(hb):
        if O.get('x_c'): return
        a(chk[0] + f"\ns_cbranch_vccnz f_spinc{hb}\nf_okc{hb}:")
        spin(a, late, f"f_spinc{hb}", pollc(hb), chk, f"f_okc{hb}")
    def epilogue(hb, fill, mid=None):
        m = [mf(ACC+48*hb+12*t+4*j, A4(240+4*j), V4(EX+8*t)) for j in range(3) for t in range(4)]
        for l in interleave(m, fill(2)): a(l)
        if mid: mid()
        sts = []
        for j in range(3):
            r = RR + 4*j; ts = range(4)
            g = lambda t: ACC + 48*hb + 12*t + 4*j
            tm = lambda t: TM + 2*t
            e = []
            for t in ts: e.append(f"v_pk_mul_f32 {P(tm(t))}, {P(g(t))}, {P(g(t))}")
            for t in ts: e.append(f"v_pk_fma_f32 {P(tm(t))}, {P(tm(t))}, {P(EX+8*t+4)}, {P(EX+8*t+4)} op_sel:[0,0,1] op_sel_hi:[1,0,1]")
            for t in ts: e.append(f"v_pk_mul_f32 {P(tm(t))}, {P(tm(t))}, {P(g(t))}")
            for t in ts: e += [f"v_exp_f32 v{tm(t)}, v{tm(t)}", f"v_exp_f32 v{tm(t)+1}, v{tm(t)+1}", f"v_pk_mul_f32 {P(g(t))}, {P(g(t))}, {P(g(t)+2)}"]
            for t in ts: e.append(f"v_pk_fma_f32 {P(tm(t))}, {P(tm(t))}, {P(EX+8*t+6)}, {P(EX+8*t+6)}")
            for t in ts: e += [f"v_rcp_f32 v{tm(t)}, v{tm(t)}", f"v_rcp_f32 v{tm(t)+1}, v{tm(t)+1}"]
            for t in ts: e.append(f"v_pk_mul_f32 {P(g(t))}, {P(g(t))}, {P(tm(t))}")
            for t in (0, 2, 1, 3): e.append(f"v_cvt_pk_bf16_f32 v{r+t}, v{g(t)}, v{g(t)+1}")
            for l in interleave(e, fill(O['edr'])): a(l)
            a(f"v_permlane32_swap_b32 v{r}, v{r+2}\nv_permlane32_swap_b32 v{r+1}, v{r+3}\nv_permlane16_swap_b32 v{r}, v{r+1}\nv_permlane16_swap_b32 v{r+2}, v{r+3}")
            sts.append(f"global_store_dwordx4 v{VO}, {V4(r)}, s[22:23] offset:{1024*j}" + SC + f" ; tag=hh{hb}")
            if not (O['late'] >> hb & 1) or j == 2:
                for l in sts: a(l)
                sts = []
        if hb == 0: a(f"v_add_u32 v{VO}, 196608, v{VO}")
    A2, HB, NHB, RD, GB, RT = 80, 32, 12, 160, 220, 244
    seq = []
    for k in range(48):
        t, sl = divmod(k, 12); r = HB + 4*(k % NHB) + (96 if 12 <= k < 24 else 0)
        if k < 24 and O['pair']: sl, t = divmod(k, 2)
        ins = [f"global_load_dwordx4 {V4(r)}, v{VH+t}, s[22:23] offset:{4096*(sl&1)-4096}" + SC]
        if sl & 1 and sl < 11: ins.append(f"v_add_u32 v{VH+t}, 8192, v{VH+t}")
        seq.append((ins, [mf(A2+20*t+4*jj, A4(20*sl+4*jj), V4(r), "0" if sl == 0 else None) for jj in range(5)]))
    W = O['win']; W0 = O['win0']; assert W < NHB and W0 <= 24
    hq = [0]; okc = [0]
    def hnext(n, lim):
        r = []
        while n > 0 and hq[0] < min(lim, 48): r += seq[hq[0]][0]; hq[0] += 1; n -= 1
        return r
    valu = []
    wrate = -(-(60 - wq[0]) // O['wspan'])
    xs = [O['xd']]; covered = 0; GM = O['GM']; xt = [-1]*xs[0]
    def xnext(n, G):
        r = []
        while n > 0 and xs[0] < (20 if G >= O['b1c'] else 10): r += dma(xs[0]); xs[0] += 1; xt.append(G); n -= 1
        return r
    for G in range(20):
        h, Gl = divmod(G, 10); bf = BF + 32*(G & 1)
        m = [mf(ACC+48*h+12*t+4*j, A4(12*(2*Gl+sl)+4*j), V4(bf+16*sl+4*t), "0" if Gl == 0 and sl == 0 else None) for sl in range(2) for t in range(4) for j in range(3)]
        for k in range(2):
            if G == O['gcheck'][k]:
                for l in gchk: a(l)
                a(f"s_cbranch_vccnz f_sping{k}\nf_okg{k}:")
                spin(a, late, f"f_sping{k}", gat(k), gchk, f"f_okg{k}")
                valu += finh(k)
        if G == O['b1c']:
            a(chk[0] + "\ns_cbranch_vccnz f_spinb1\nf_okb1:")
            spin(a, late, "f_spinb1", poll, chk, "f_okb1")
            if stamp: stamp(a, 'pollB1')
        if G == O['cc0']: checkc(0); okc[0] = 1; stamp and stamp(a, 'pollC')
        if G == GM:
            if stamp: stamp(a, 'm0')
            def fill0(n):
                r = xnext(n // 2, G - 1); n -= sum(l.startswith('global') for l in r)
                return r + dnext(n, 6*Gl)
            epilogue(0, fill0)
        if stamp: stamp(a, f'g{G}')
        a("s_waitcnt lgkmcnt(0)")
        head = []; lds = []
        if G < 19:
            if G + 1 > covered:
                assert G + 1 < len(xt)
                covered = min(19, max([G + 1] + [k for k in range(len(xt)) if xt[k] <= G - O['xtl']]))
                head = [f"WAITVM x{covered}", "s_barrier"]
            lds = rdb(G+1)
        for k, g in enumerate((GM - 1, 19)):
            if G == g:
                assert not any(l.startswith('ds_write') for l in valu) and G > O['gcheck'][k]
                if not head: head = ["s_barrier"]
                lds = rdex(k) + lds + ([f"ds_read_b64_tr_b16 {P(RT+2*jj)}, v31 offset:{2048*jj}" for jj in range(5)] if k else [])
        if G == O['b1f'] and O['dst'] >= 0: head = ["WAITVM x1e"] + [x for x in head if x != 's_barrier'] + ["s_barrier"] + fb1
        if G == GM + O['cf0']: head = [x for x in head if x != 's_barrier'] + flagc(0)
        if G == O['b1c']:
            if not head: head = ["s_barrier"]
            head += ["s_cmp_lg_u32 s2, 0", "s_cbranch_scc1 u_noepo", f"v_mov_b32 v244, {EPO}", "s_mov_b64 exec, 1", f"global_store_dword v244, v{VF+1}, s[22:23] sc1 ; untracked", "s_mov_b64 exec, -1", "u_noepo:"]
        ld = []
        if G == O['cp0']: ld += pollc(0)
        if G == O['b1i']: ld += poll
        ld += xnext(O['xrate'][G] if G < len(O['xrate']) else 1, G)
        ld += wnext(min(wrate, 60 - wq[0])) if wq[0] < 60 else wnext(3) if G >= O['b1c'] else []
        if G == O['sat1']: ld += sld(1)
        if G == O['pfg'] and O['sen']:
            ld += [f"v_add_u32 v246, {196608 if G < GM else 0}, v{VO}\n" + "\n".join(f"v_mov_b32 v{240+k}, -1" for k in range(4))] + [f"global_store_dwordx4 v246, {V4(240)}, s[22:23] offset:{1024*j} sc1 ; tag=hh0" for j in range(3)]
            assert G < GM + O['cf0'] and G > O['b1f']
        for k in range(2):
            if G == O['gissue'][k]: assert k or len(valu) < len(ad) - n_mid - 12; ld += gat(k)
            if G == O['gstat'][k]: valu += st(k) + (ad[n_mid:] if k == 0 and O['adl'] else [])
        if G > 10: assert wq[0] == 63; ld += dnext(O['wdrate'], 6*Gl)
        if okc[0]: ld += hnext(O['hrate'], min(W0, 12))
        out, valu = slots(m, head, lds, vmgroups(ld), valu, vm_cost=O['vmc'], spread=O['spread'])
        if (G + 2) % 8 == 0: out += [f"v_add_u32 v{VB+i}, 65536, v{VB+i}" for i in range(4)]
        for l in out: a(l)
    assert wq[0] == 63
    if stamp: stamp(a, 'g20')
    def fill1(n):
        r = dnext(n, O['dlim']); n -= sum(l.startswith('global') for l in r)
        return r + (hnext(n, W0) if okc[0] else [])
    def mid1():
        if not okc[0]: checkc(0); okc[0] = 1; stamp and stamp(a, 'pollC')
    epilogue(1, fill1, mid1)
    ldp(a, 24, 'out')
    for l in dnext(60, O['dlim']): a(l)
    dq0 = dq[0]; drest = vmgroups(dnext(60))
    if stamp: stamp(a, 'epi')
    VR, VGB, VXW, VXR, VST, VOUT, SRD, VTR = 2, 5, 8, 12, 13, 14, 20, 17
    L_EX = 5120; L_ST = L_EX + 4*3*5*1024; L_RES = 81920
    ad = Asm()
    ad(f"""
    s_lshr_b32 s8, s20, 1
    s_and_b32 s9, s20, 1
    s_mul_i32 s10, s35, {O['TA']}
    s_mul_i32 s11, s8, {O['TB']}
    s_add_u32 s14, s10, s11
    s_mul_i32 s10, s32, 320
    s_add_u32 s10, s10, {MODP + 5*2560}
    v_lshl_add_u32 v{VGB}, v1, 4, s10
    s_lshl_b32 s10, s20, 10
    s_add_u32 s10, s10, {L_RES}
    v_lshl_add_u32 v{VR}, v1, 4, s10
    v_lshl_add_u32 v{VTR}, v7, 4, s10
    """)
    for lam in range(4):
        ad(f"s_xor_b32 s10, s9, {2*(lam>>1) + ((lam&1)^1)}\ns_xor_b32 s11, s10, s20\ns_mul_i32 s10, s10, 15360\ns_mul_i32 s11, s11, 5120\ns_add_u32 s10, s10, s11\nv_lshl_add_u32 v{VXW+lam}, v1, 4, s10")
    n_early = len(ad.ins)
    ad(f"""
    s_mul_i32 s10, s20, 15360
    v_lshl_add_u32 v{VXR}, v1, 4, s10
    s_mul_i32 s10, s20, {16*176}
    s_add_u32 s10, s10, {L_ST}
    v_mul_u32_u24 v4, 176, v6
    v_lshl_add_u32 v4, v7, 3, v4
    v_add_u32 v{VST}, s10, v4
    s_lshl_b32 s11, s14, 2
    s_add_u32 s11, s11, s16
    s_mul_i32 s11, s11, {16*1280}
    s_mul_i32 s12, s32, 160
    s_add_u32 s11, s11, s12
    """)
    for i in range(3):
        ad(f"v_add_u32 v4, {64*i}, v1\nv_min_u32 v4, 159, v4\nv_mul_u32_u24 v31, 6554, v4\nv_lshrrev_b32 v31, 16, v31")
        ad(f"v_add_u32 v{SRD+i}, v4, v31\nv_lshl_add_u32 v{SRD+i}, v{SRD+i}, 4, s10")
        ad(f"v_mul_u32_u24 v31, {1280-160}, v31\nv_lshl_add_u32 v31, v4, 4, v31\nv_add_u32 v{VOUT+i}, s11, v31")
    ad = [i.text for i in ad.ins]
    def wr(t): return [f"ds_write_b128 v{VXW+t}, {V4(A2+20*t+4*jj)} offset:{L_EX - 5120 + 1024*jj + 5120*0}" for jj in range(5 if not O.get('x_wr') else 0)]
    gbl = [M("0xfffff", "\n".join(f"global_load_dwordx4 {V4(GB+4*k)}, v{VGB}, s[22:23] sc1\nv_add_u32 v{VGB}, 15360, v{VGB}" for k in (2*j, 2*j+1))) for j in range(2)]
    gb = [f"v_add_f32 v{GB+k}, v{GB+k}, v{GB+8+k}" for k in range(8)] + [f"v_add_f32 v{GB+k}, v{GB+k}, v{GB+4+k}" for k in range(4)]
    for k in range(2): gb += [f"v_cvt_pk_bf16_f32 v31, v{GB+2*k}, v{GB+2*k+1}", f"v_lshlrev_b32 v{GB+2*k}, 16, v31", f"v_and_b32 v{GB+2*k+1}, 0xffff0000, v31"]
    gb += [f"ds_write_b128 v{VR}, {V4(GB)}"] + [f"ds_read_b128 {V4(GB+4*jj)}, v{VTR} offset:{64*jj}" for jj in range(5)]
    def rdp(ps): return [f"ds_read_b128 {V4(RD+20*p+4*jj)}, v{VXR} offset:{L_EX + 5120*p + 1024*jj}" for jj in range(5) for p in ps]
    XU = A2
    unp = []
    for k in range(10): unp += [f"v_lshlrev_b32 v{XU+2*k}, 16, v{RT+k}", f"v_and_b32 v{XU+2*k+1}, 0xffff0000, v{RT+k}"]
    add = lambda d, x: [f"v_add_f32 v{d+k}, v{d+k}, v{x+k}" for k in range(20)]
    def outst():
        r = [f"ds_read_b128 {V4(RD+4*i)}, v{SRD+i}" for i in range(3)]
        for i in range(3):
            if i == 2: r += ["s_waitcnt lgkmcnt(0)", "s_mov_b64 exec, 0xffffffff"]
            r.append(f"global_store_dwordx4 v{VOUT+i}, {V4(RD+4*i)}, s[24:25]")
        return r + ["s_mov_b64 exec, -1"]
    BAR = ["s_waitcnt lgkmcnt(0)", "s_barrier"]
    mm = [l for x in seq for l in x[1]]
    f1, pI, pc = 5*O['fC1'], 5*O['pI'], 5*O['pc']
    if not O['sen']: spin(a, late, "f_spinc1", pollc(1), chk, "f_okc1")
    hreg = lambda k: HB + 4*(k % NHB)
    def sch(p):
        r = []
        for k in range(24, 48):
            g = 5*(k - 24) - 1
            r += [(f"v_cmp_eq_u32 vcc, -1, v{hreg(k)}", max(-1, g - 1), max(-1, g - 1)), ([f"s_cbranch_vccnz f_re{k} ; nosnap", f"f_ok{p}{k}:"], g, g)]
        return r if O['sen'] else []
    if O['sen']:
        SPINS.append('f_re')
        for k in range(24, 48):
            ld = lambda q: f"v_add_u32 v4, {4096*(q % 12)}, v{(23, 25)[q//12 - 2]}\nglobal_load_dwordx4 {V4(hreg(q))}, v4, s[22:23] offset:-4096 sc1"
            late.append(f"f_re{k}:\n" + (f"s_or_b32 s101, s101, {1 << (len(SPINS)-1)}\n" if DIAG[0] else "") + f"s_mov_b32 s64, 0\nf_re{k}_l:\ns_waitcnt vmcnt(0)\ns_sleep 1\n{ld(k)}\ns_waitcnt vmcnt(0)\n"
                        f"v_cmp_eq_u32 vcc, -1, v{hreg(k)}\ns_add_u32 s64, s64, 1\ns_cmp_ge_u32 s64, 0x40000\ns_cbranch_scc1 f_re{k}_x\ns_cbranch_vccnz f_re{k}_l\nf_re{k}_x:\n"
                        + "\n".join(ld(q) for q in range(k + 1, min(k + O['rel'], 47) + 1)) + f"\ns_waitcnt vmcnt(0)\ns_cmp_ge_u32 s20, 2\ns_cbranch_scc1 f_okb{k}\ns_branch f_oka{k}")
    hch = []
    for k in range(hq[0], 48):
        if k == 24 and not O['sen']: hch.append(([chk[0], "s_cbranch_vccnz f_spinc1", "f_okc1:"], pc, pc))
        lo = max(5*(k - (12 if k >= 36 else 24)) + 4, 5*(k - W), pc) if k >= 24 else max(-1, 5*(k - W0))
        hi = min(5*k - 1, lo + O['hsl']) if k >= 24 else max(lo, 5*(k - W))
        hch.append((seq[k][0] if not O.get('x_h') else ['s_nop 0'], lo, hi))
    T_ = lambda l, lo, hi=999: [(x, lo, hi) for x in l]
    ach = T_(ad[:12], 0, 8) + T_(ad[12:n_early], 0, 60) + T_(ad[n_early:], 0, min(118, O['gbp'] + 54))
    vch = [(flagc(1) if not O['sen'] else BAR, f1, f1)] + [(gbl[0], O['gbp'], O['gbp']), (gbl[1], O['gbp'] + 5, O['gbp'] + 5)]
    pch = [(pollc(1), pI, pI)] if not O['sen'] else [(f"v_mov_b32 v23, v{VH+2}", 0, 2), (f"v_mov_b32 v25, v{VH+3}", 0, 2)]
    dch = [(g, -1, max(-1, (10 if O['pair'] else 5)*((dq0 + k)//5) - 5*W)) for k, g in enumerate(drest)]
    wch = T_(wr(0), max(63, f1 + 6), 118) if not O['pair'] else []
    w0l = wr(0) if O['pair'] else []
    gch = T_(gb, O['gbp'] + 55)
    rsv = lambda g: 1 if g % 5 == 4 else 0
    rsv2 = (lambda g: 1 if g % 5 == 3 else 0) if O['sen'] else rsv
    def emit(out, base):
        n = base
        for l in out:
            if stamp and l.startswith('v_mfma'):
                if n % 60 == 5: stamp(a, f'q{n//5}')
                n += 1
            a(l)
            if stamp and l == 'f_okc1:': stamp(a, 'pollC1')
    out, rest = listsched(mm[:120], [hch, ach, vch, pch, wch, gch, dch], vmgap=O['vg'], reserve=rsv, flush=False)
    emit(out, 0)
    assert not (rest[1] or rest[2] or rest[3] or rest[4] or rest[6])
    sh = lambda c: [(t, lo - 120, hi - 120) for t, lo, hi in c]
    a("s_cmp_ge_u32 s20, 2\ns_cbranch_scc1 f_pathb")
    b2, b3 = O['b2'], O['b3']
    c = A2 + 20
    fa = add(RD, RD+20) + add(c, RD+40) + unp + add(c, RD)
    for jj in range(5):
        fa += [f"v_fma_f32 v{c+4*jj+k}, v{c+4*jj+k}, v{GB+4*jj+k}, v{XU+4*jj+k}" for k in range(4)]
        fa += [f"v_cvt_pk_bf16_f32 v{c+4*jj+h}, v{c+4*jj+2*h}, v{c+4*jj+2*h+1}" for h in range(2)] + [f"ds_write_b64 v{VST}, {P(c+4*jj)} offset:{32*jj}"]
    lch = T_(w0l, 0, b2 - 4) + [(BAR, b2, b2)] + T_(rdp((0, 1)) + rdp((2,)), b2, b2 + 18) + T_(wr(2), 63, b3 - 4) + [(BAR, b3, b3)]
    out, r2 = listsched(mm[120:], [sh(rest[0]), lch, sh(rest[5]) + T_(fa, b2 + 20), sch('a')], vmgap=O['vg'], reserve=rsv2, flush=False)
    emit(out, 120)
    assert not (r2[0] or r2[1])
    left = [x[0] for x in r2[2]]
    for l in left[:6] + wr(3) + BAR + left[6:] + outst(): a(l)
    if stamp: stamp(a, 'q48')
    a("s_branch f_done\nf_pathb:")
    c = A2 + 60
    lch = T_(w0l, 0, b2 - 4) + T_(wr(1), 3, b2 - 4) + [(BAR, b2, b2)] + T_(wr(2), 63, b3 - 4) + [(BAR, b3, b3)] + T_(rdp((0, 2)), b3, b3 + 12)
    emit(listsched(mm[120:], [sh(rest[0]), lch, sh(rest[5]) + T_(unp, b2 + 1) + T_(add(RD, RD+40), b3 + 16), sch('b')], vmgap=O['vg'], reserve=rsv2), 120)
    for jj in range(5):
        for h in range(2): a(f"v_pk_add_f32 {P(c+4*jj+2*h)}, {P(c+4*jj+2*h)}, {P(RD+4*jj+2*h)}")
    a("s_barrier")
    if stamp: stamp(a, 'q48')
    for l in rdp((1,)): a(l)
    for jj in range(5):
        r = c + 4*jj
        for h in range(2): a(f"v_pk_add_f32 {P(r+2*h)}, {P(r+2*h)}, {P(RD+20+4*jj+2*h)}")
        for h in range(2): a(f"v_pk_fma_f32 {P(r+2*h)}, {P(r+2*h)}, {P(GB+4*jj+2*h)}, {P(XU+4*jj+2*h)}")
        for h in range(2): a(f"v_cvt_pk_bf16_f32 v{r+h}, v{r+2*h}, v{r+2*h+1}")
        a(f"ds_write_b64 v{VST}, {P(r)} offset:{32*jj}")
    for l in outst(): a(l)
    a("f_done:")
def kf(stamp=None):
    a = Asm(); late = []; del SPINS[:]; del DEFER[:]; del EXT[:]; assert OPT['dst'] >= 0; DIAG[0] = bool(stamp)
    if stamp: a("s_mov_b32 s101, 0")
    a(f"""
    s_cmp_ge_u32 s2, 256
    s_cbranch_scc1 f_end
    """)
    ldp(a, 22, 'ws'); ldp(a, 36, 'x'); ldp(a, 38, 'wd')
    if stamp: stamp(a, 0)
    a(f"""
    v_lshrrev_b32 v1, 6, v0
    s_getpc_b64 s[40:41]
u_pc:
    v_readfirstlane_b32 s20, v1
    s_lshr_b32 s42, s2, 3
    s_lshl_b32 s42, s42, 11
    v_and_b32 v2, 3, v0
    v_lshl_add_u32 v2, v1, 2, v2
    v_lshl_add_u32 v2, v2, 7, s42
    v_min_u32 v2, code_end-u_pc-4, v2
    v_mov_b32 v3, s41
    v_add_co_u32 v2, vcc, s40, v2
    v_addc_co_u32 v3, vcc, 0, v3, vcc
    s_mov_b64 exec, 15
    PFLOAD
    s_mov_b64 exec, -1
    v_and_b32 v1, 63, v0
    """)
    for k, i in enumerate(a.ins):
        if i.text == 'PFLOAD': a.ins[k] = I("global_load_dword v255, v[2:3], off")
    a(f"v_mov_b32 v247, {EPO}\ns_and_b32 s100, s2, 7\ns_mul_i32 s100, s100, {GOS}\ns_add_u32 s100, s100, {GOB}")
    a("s_cmp_lt_u32 s2, 160\ns_cbranch_scc1 f_conv")
    role_prep(a, stamp, late)
    a("s_branch f_join\nf_conv:")
    role_conv(a, stamp, late)
    for r in (44, 45, 46, 47, 114, 115): pass
    a("CLEARVM\nf_join:")
    gemm(a, stamp, late)
    if stamp: stamp(a, 'end')
    a("f_end:\ns_endpgm")
    for l in late: a(l)
    return a
```

```python
import sys, gen, gen_u
from gen import *
def mkjit(mask, units, per_wave):
    n = [0]
    def jit(a, k):
        if k in ('end', 0): return
        n[0] += 1; L = f"jit{n[0]}"
        a(f"s_memtime s[70:71]\ns_waitcnt lgkmcnt(0)\ns_lshr_b32 s70, s70, {4 if per_wave else 12}\ns_mul_i32 s72, s2, {37 + 2*n[0]}\ns_add_u32 s70, s70, s72\ns_mul_i32 s70, s70, 0x9e3779b1\ns_lshr_b32 s72, s70, 30\ns_cmp_lg_u32 s72, 0\ns_cbranch_scc1 {L}_x ; nosnap\n"
          f"s_lshr_b32 s70, s70, 20\ns_and_b32 s70, s70, {mask}\n{L}:\ns_sleep {units}\ns_sub_u32 s70, s70, 1\ns_cmp_ge_i32 s70, 0\ns_cbranch_scc1 {L} ; nosnap\n{L}_x:")
    return jit
for i, (m, u, pw) in enumerate(((7, 8, 1), (31, 16, 0), (3, 2, 1))):
    p = parts()[0]
    build([(p[0], (lambda st, j=mkjit(m, u, pw): gen_u.kf(j)),) + p[2:]], f'j_{i}.s')
```

```python
import re, copy
TRANS = ('v_exp_f32','v_log_f32','v_rcp_f32','v_rsq_f32','v_sqrt_f32','v_sin_f32','v_cos_f32')
def regs_of(op):
    op = op.strip()
    op = re.sub(r'^-', '', op); op = re.sub(r'^abs\((.*)\)$', r'\1', op); op = op.strip('|')
    m = re.fullmatch(r'([vas])(\d+)', op)
    if m: return [(m.group(1), int(m.group(2)))]
    m = re.fullmatch(r'([vas])\[(\d+):(\d+)\]', op)
    if m: return [(m.group(1), i) for i in range(int(m.group(2)), int(m.group(3)) + 1)]
    if op == 'vcc': return [('s', 106), ('s', 107)]
    if op == 'vcc_lo': return [('s', 106)]
    if op == 'vcc_hi': return [('s', 107)]
    if op == 'm0': return [('s', 124)]
    if op == 'exec': return [('s', 126), ('s', 127)]
    return []
class I:
    def __init__(s, text):
        s.text = text
        t = text.split(';')[0].strip()
        s.label = None; s.mn = ''; s.ops = []; s.mods = ''
        if t.endswith(':'): s.label = t[:-1]; return
        if t.startswith('.'): s.mn = '.dir'; return
        if t.startswith('TRACK'): s.mn = 'TRACK'; return
        p = t.split(None, 1); s.mn = p[0]
        rest = p[1] if len(p) > 1 else ''
        ops = []; depth = 0; cur = ''
        for ch in rest:
            if ch in '[(': depth += 1
            if ch in '])': depth -= 1
            if ch == ',' and depth == 0: ops.append(cur.strip()); cur = ''
            else: cur += ch
        if cur.strip():
            q = cur.strip().split(None, 1); ops.append(q[0]); s.mods = q[1] if len(q) > 1 else ''
        s.ops = ops
        mn = re.sub(r'_(e32|e64|dpp|sdwa)$', '', s.mn); s.base = mn
        R = [regs_of(o) for o in ops]
        flat = lambda l: [x for y in l for x in y]
        s.mfma = mn.startswith('v_mfma'); s.valu = mn.startswith('v_') and not s.mfma
        s.ds = mn.startswith('ds_'); s.vm = mn.startswith(('global_', 'buffer_')); s.smem = mn.startswith(('s_load', 's_memtime', 's_memrealtime', 's_buffer_load'))
        s.salu = mn.startswith('s_') and not s.smem
        s.trans = mn in TRANS; s.dot = mn.startswith('v_dot')
        s.dpp = any(k in s.mods for k in ('row_', 'quad_perm', 'wave_')) or s.mn.endswith('_dpp')
        s.perml = mn.startswith('v_permlane'); s.rdl = mn in ('v_readlane_b32', 'v_readfirstlane_b32')
        s.m0use = False; s.wide = []
        d, u = [], []
        if s.mfma:
            d = R[0]; u = flat(R[1:]); s.A = R[1]; s.B = R[2]; s.C = R[3]
            s.passes = 8 if '32x32' in mn else 4
        elif s.perml: d = flat(R); u = flat(R)
        elif s.valu:
            nd = 2 if mn in ('v_add_co_u32', 'v_addc_co_u32', 'v_sub_co_u32', 'v_mad_u64_u32') else 1
            d = flat(R[:nd]); u = flat(R[nd:])
            if mn in ('v_fmac_f32', 'v_dot2c_f32_bf16', 'v_writelane_b32') or s.dpp: u = u + R[0]
        elif s.ds:
            if mn.startswith(('ds_read', 'ds_bpermute', 'ds_permute', 'ds_swizzle')):
                d = R[0]; u = flat(R[1:])
                if 'd16' in mn: u = u + R[0]
            else: u = flat(R)
            s.m0use = 'addtid' in mn
        elif s.vm:
            if mn.startswith(('buffer_wbl2', 'buffer_inv')): pass
            elif '_load_lds' in mn or (mn.startswith('buffer_load') and re.search(r'\blds\b', s.mods)): u = flat(R); s.m0use = True
            elif '_load' in mn:
                d = R[0]; u = flat(R[1:])
                if 'd16' in mn: u = u + R[0]
            elif '_atomic' in mn and 'sc0' in s.mods: d = R[0]; u = flat(R[1:])
            else:
                u = flat(R)
                if mn.endswith(('x3', 'x4')): s.wide = R[1] if mn.startswith('global') else R[0]
        elif s.smem: d = R[0]; u = flat(R[1:])
        elif s.salu:
            if mn.startswith(('s_cmp', 's_cbranch', 's_branch', 's_waitcnt', 's_nop', 's_barrier', 's_endpgm', 's_sleep', 's_setprio', 's_bitcmp')): u = flat(R)
            else:
                d = R[0]; u = flat(R[1:])
                if 'saveexec' in mn: d = d + regs_of('exec')
        s.d = set(d); s.u = set(u)
class State:
    def __init__(s):
        s.vm = []; s.lg = []
        s.ev = {}; s.t = 0
    def step(s, n): s.t += n
    def snap(s):
        c = State(); c.vm = s.vm[:]; c.lg = s.lg[:]; c.t = s.t
        c.ev = {k: v for k, v in s.ev.items() if s.t - v[0] < 24}
        return c
    def merge(s, o):
        for k, v in o.ev.items():
            tt = s.t - (o.t - v[0])
            if k not in s.ev or tt > s.ev[k][0]: s.ev[k] = (tt, v[1])
        def mq(x, y, what):
            if x == y or not y: return x
            if not x: return y[:]
            assert not any(e[0] for e in x + y), f"merge with pending {what} loads"
            r = (x if len(x) <= len(y) else y)[:]
            if any(e[1] == 's' for e in x + y) and not any(e[1] == 's' for e in r): r = [(set(), 's')] + r
            return r
        s.vm = mq(s.vm, o.vm, 'vm'); s.lg = mq(s.lg, o.lg, 'lgkm')
class Asm:
    AGE = 150
    def __init__(s): s.ins = []; s.lgt = {}; s.clock = 0; s.nvm = 0; s.marks = {}
    def __call__(s, text):
        for l in text.split('\n'):
            if l.split(';')[0].strip(): s.ins.append(I(l.strip()))
    def need(s, st, i):
        n = 0
        def chk(kind, regs, dist):
            nonlocal n
            for r in regs:
                e = st.ev.get((kind, r))
                if e is not None:
                    dd = dist(e[1]) if callable(dist) else dist
                    n = max(n, dd - (st.t - e[0]))
        big = lambda inf: 12 if inf[0] == 8 else 8
        if i.mfma:
            chk('vw', i.u, 2); chk('dw', i.u | i.d, 3)
            chk('mw', set(i.A) | set(i.B), big)
            key = (i.passes, tuple(i.C))
            chk('mw', i.C, lambda inf: 0 if inf == key else (10 if inf[0] == 8 else 6))
            if not i.C or tuple(i.C) != tuple(sorted(i.d)): chk('mw', i.d, lambda inf: 10 if inf[0] == 8 else 6)
        if i.valu:
            chk('mw', i.u | i.d, big); chk('mc', i.d, lambda p: 7 if p == 8 else 3)
            if not i.trans: chk('tw', i.u, 1)
            if i.dot:
                ab = set(regs_of(i.ops[1])) | set(regs_of(i.ops[2]))
                chk('dw', ab, 3); chk('dw', (i.u | i.d) - ab, lambda op: 0 if op == i.base else 3)
            else: chk('dw', i.u | i.d, 3)
            if i.rdl: chk('vw', i.u, 1)
            if i.perml or i.dpp: chk('vw', i.u, 2)
            chk('sw', i.u, 2)
            if i.base in ('v_readlane_b32', 'v_writelane_b32'): chk('sw', regs_of(i.ops[2]), 4)
            chk('st', i.d, 2)
        if i.ds or i.vm:
            chk('mw', i.u | i.d, big); chk('dw', i.u | i.d, 3); chk('tw', i.u, 1)
            chk('st', i.d, 1)
            if i.vm: chk('sw', i.u, 5)
            if i.m0use: chk('m0', [('s', 124)], 1)
        if i.salu or i.smem: chk('sw', i.u, 1)
        return n
    def record(s, st, i):
        st.step(1); s.clock += (4*i.passes if i.mfma else 2)
        for r in i.d:
            for k in ('vw', 'tw', 'dw', 'mw'): st.ev.pop((k, r), None)
        if i.mfma:
            for r in i.d: st.ev[('mw', r)] = (st.t, (i.passes, tuple(sorted(i.d))))
            for r in i.C: st.ev[('mc', r)] = (st.t, i.passes)
        elif i.valu:
            for r in i.d:
                if r[0] == 's': st.ev[('sw', r)] = (st.t, None)
                else:
                    st.ev[('vw', r)] = (st.t, None)
                    if i.trans: st.ev[('tw', r)] = (st.t, None)
                    if i.dot: st.ev[('dw', r)] = (st.t, i.base)
        elif i.salu and ('s', 124) in i.d: st.ev[('m0', ('s', 124))] = (st.t, None)
        for r in i.wide: st.ev[('st', r)] = (st.t, None)
        if i.vm and 'untracked' not in i.text:
            s.nvm += 1
            m = re.search(r'tag=(\w+)', i.text); st.vm.append((set(i.d), m.group(1) if m else 'v'))
        if i.ds: st.lg.append((set(i.d), 'l')); s.lgt[id(st.lg[-1][0])] = s.clock
        if i.smem: st.lg.append((set() if 'time' in i.mn else set(i.d), 's'))
    def final(s):
        snaps = {}
        for it in range(3):
            out = []; st = State(); live = True; new = {}; s.nnop = 0; s.nwait = 0
            for i in s.ins:
                if i.label:
                    srcs = [x for x in (new.get(i.label), snaps.get(i.label)) if x is not None]
                    if not live:
                        st = srcs[0].snap() if srcs else State(); srcs = srcs[1:]
                    for x in srcs: st.merge(x)
                    live = True; out.append(i.text); continue
                if i.mn == '.dir': out.append(i.text); continue
                if i.mn == 'TRACK':
                    j = I(i.text.split(None, 1)[1]); m = re.search(r'tag=(\w+)', j.text); st.vm.append((set(j.d), m.group(1) if m else 'v')); s.nvm += 1; continue
                if i.mn == 'VMMARK': s.marks[i.ops[0]] = s.nvm; continue
                if i.mn == 'WAITMARK':
                    out.append(f'  s_waitcnt vmcnt({min(63, s.nvm - s.marks[i.ops[0]])})'); st.step(1); continue
                if i.mn == 'CLEARVM':
                    st.vm = []; continue
                if i.mn == 'WAITVM':
                    idx = [k for k, x in enumerate(st.vm) if x[1] == i.ops[0]]
                    if idx:
                        n = min(len(st.vm) - 1 - max(idx), 63); st.vm = st.vm[len(st.vm) - n:] if n else []
                        out.append(f'  s_waitcnt vmcnt({n})'); st.step(1)
                    continue
                if i.mn == 's_waitcnt' and 'untracked' in i.text:
                    out.append('  ' + i.text); st.step(1); continue
                if i.mn == 's_waitcnt':
                    t = i.text.split(';')[0]
                    m = re.search(r'vmcnt\((\d+)\)', t)
                    if m: k = int(m.group(1)); st.vm = st.vm[len(st.vm) - k:] if k < len(st.vm) else st.vm; st.vm = st.vm if k else []
                    m = re.search(r'lgkmcnt\((\d+)\)', t)
                    if m:
                        k = int(m.group(1))
                        if k == 0: st.lg = []
                        elif not any(x[1] == 's' for x in st.lg) and k < len(st.lg): st.lg = st.lg[len(st.lg) - k:]
                    out.append('  ' + i.text); st.step(1); continue
                touch = i.d | i.u
                w = []
                idx = [k for k, x in enumerate(st.vm) if x[0] & touch]
                if idx:
                    n = min(len(st.vm) - 1 - max(idx), 63); w.append(f'vmcnt({n})'); st.vm = st.vm[len(st.vm) - n:] if n else []
                idx = [k for k, x in enumerate(st.lg) if x[0] & touch]
                if idx:
                    idx += [k for k, x in enumerate(st.lg) if s.clock - s.lgt.get(id(x[0]), s.clock) >= s.AGE]
                    n = 0 if any(x[1] == 's' for x in st.lg) else min(len(st.lg) - 1 - max(idx), 15)
                    w.append(f'lgkmcnt({n})'); st.lg = st.lg[len(st.lg) - n:] if n else []
                if w: out.append('  s_waitcnt ' + ' '.join(w)); st.step(1); s.nwait += 1
                n = s.need(st, i)
                while n > 0:
                    k = min(n, 16); out.append(f'  s_nop {k-1}'); st.step(k); n -= k; s.nnop += k
                out.append('  ' + i.text)
                if i.mn == 's_nop': st.step(int(i.ops[0]) + 1); continue
                s.record(st, i)
                if i.mn.startswith(('s_cbranch', 's_branch')):
                    tg = i.ops[0]
                    if 'nosnap' in i.text: pass
                    elif tg in new: new[tg].merge(st)
                    else: new[tg] = st.snap()
                    if i.mn == 's_branch': live = False
                if i.mn == 's_endpgm': live = False
            snaps = new
        return '\n'.join(out) + '\n'
def interleave(main, fill, ratio=None, start=0, end=None):
    end = len(main) if end is None else end
    n = end - start; out = list(main[:start]); k = 0
    for j in range(n):
        out.append(main[start + j])
        tgt = (len(fill) * (j + 1) + n - 1) // n if ratio is None else min(len(fill), ratio * (j + 1))
        while k < tgt: out.append(fill[k]); k += 1
    out += fill[k:]; out += main[end:]
    return out

def cost(l):
    if '\n' in l: return sum(cost(x) for x in l.split('\n'))
    mn = l.split()[0]
    if mn in TRANS or mn.startswith('v_permlane'): return 2
    if mn == 'VMMARK' or l.endswith(':'): return 0
    return 1
def slots(mf, head, lds, vm, valu, vm_cost=1, cap=2, tailroom=1, spread=True):
    n = len(mf); gap = [[] for _ in range(n)]; used = [0]*n
    used[n-1] += tailroom
    gap[0] += head; used[0] += len(head)
    g0 = 1 if head else 0
    for k, l in enumerate(lds):
        g = g0 + k if g0 + k < n else n - 1
        gap[g].append(l); used[g] += 1
    free = [g for g in range(g0 + len(lds), n)]
    if len(vm) <= len(free) and not spread: pos = [free[(k*len(free))//len(vm)] for k in range(len(vm))] if vm else []
    else: pos = [min(n - 1, g0 + ((2*k+1)*(n - g0))//(2*len(vm))) for k in range(len(vm))]
    for g, grp in zip(pos, vm):
        gap[g] += grp; used[g] += sum(cost(x) for x in grp) - 1 + vm_cost
    k = 0
    for g in range(n):
        while k < len(valu) and used[g] + cost(valu[k]) <= max(cap, cost(valu[k]) if used[g] <= 1 and cost(valu[k]) == 2 and False else cap):
            gap[g].append(valu[k]); used[g] += cost(valu[k]); k += 1
        if k < len(valu) and cost(valu[k]) > 2 and used[g] <= 1:
            gap[g].append(valu[k]); used[g] += cost(valu[k]); k += 1
        if k < len(valu) and cost(valu[k]) == 2 and used[g] == 1 and g + 1 < n and used[g+1] >= 1:
            gap[g].append(valu[k]); used[g] += 2; k += 1
    out = []
    for g in range(n): out += [mf[g]] + gap[g]
    return out, valu[k:]
def vmgroups(ins):
    r = []
    for l in ins:
        if 'global_' in l and (not r or any('global_' in x for x in r[-1])): r.append([l])
        elif r: r[-1].append(l)
        else: r.append([l])
    return r

import subprocess, os, tempfile
def sizes(body):
    src = '.amdgcn_target "amdgcn-amd-amdhsa--gfx950"\n.text\n' + body + '\ncode_end:\n'
    d = tempfile.mkdtemp(); open(d + '/a.s', 'w').write(src)
    r = subprocess.run(['clang', '-x', 'assembler', '-target', 'amdgcn-amd-amdhsa', '-mcpu=gfx950', '-c', d + '/a.s', '-o', d + '/a.o'], capture_output=True, text=True)
    assert r.returncode == 0, r.stderr
    o = subprocess.run(['llvm-objdump', '-d', '--mcpu=gfx950', d + '/a.o'], capture_output=True, text=True).stdout
    return [4*len(m.group(1).split()) for m in re.finditer(r'// [0-9A-F]+: ([0-9A-F ]+)', o)]
NOPROMO = ('v_readfirstlane', 'v_permlane', 'v_accvgpr', 'v_nop', 'v_dot2c', 'v_fmamk', 'v_fmaak', 'v_cmp', 'v_cndmask', 'v_add_co', 'v_addc_co')
def align_pass(body, minrun=5):
    lines = body.rstrip('\n').split('\n')
    idx = [k for k, l in enumerate(lines) if not l.split(';')[0].strip().endswith(':') and not l.strip().startswith('.')]
    al = [k for k, l in enumerate(lines) if l.strip() == '.p2align 12']
    sz = sizes('\n'.join(l for l in lines if l.strip() != '.p2align 12') + ''.join(f'\nwarm{k}:' for k in range(4) if al)); assert len(sz) == len(idx), (len(sz), len(idx))
    off = 0; lastfix = -1; k = 0; nprom = nnop = 0; pads = []; nextpage = None
    mn = [lines[i].split()[0] for i in idx]
    while k < len(idx):
        if al and nextpage is None and idx[k] > al[0]:
            assert off <= 3200 or 's_memtime' in body or 's_memrealtime' in body, off
            off = 0; nextpage = 0; lastfix = k - 1
        if nextpage is not None and off >= nextpage:
            pads.append(idx[k]); off += 4; nextpage += 4096; lastfix = k - 1
        if sz[k] == 8 and (k == 0 or sz[k-1] != 8 or (pads and pads[-1] == idx[k])):
            e = k
            while e < len(idx) and sz[e] == 8: e += 1
            dense = best = 0
            for q in range(k, e):
                dense = dense + 1 if mn[q].startswith('v_') and not mn[q].startswith('v_mfma') else 0; best = max(best, dense)
            if best >= minrun:
                if off % 8:
                    c = [q for q in range(lastfix + 1, k) if sz[q] == 4 and mn[q].startswith('v_') and not mn[q].startswith(NOPROMO)]
                    if c: q = c[-1]; lines[idx[q]] = lines[idx[q]].replace(mn[q], mn[q] + '_e64', 1); nprom += 1
                    else: lines[idx[k]] = '  s_nop 0\n' + lines[idx[k]]; nnop += 1
                    off += 4
                lastfix = max(lastfix, e - 1)
        off += sz[k]; k += 1
    for n, i in enumerate(pads):
        lines[i] = f"warm{n}:\n  s_cbranch_execz {'warm%d' % (n+4) if n + 4 < len(pads) else 'warm_back'}\n" + lines[i]
    return '\n'.join(lines) + '\n', nprom, nnop
def listsched(mf, chains, cap=2, vmgap=0, reserve=None, flush=True):
    pos = [0]*len(chains); out = []; ldsfree = -99; vmlast = -99
    for c in chains:
        for k in range(len(c) - 2, -1, -1):
            if c[k][2] > c[k+1][2]: c[k] = (c[k][0], c[k][1], c[k+1][2])
    for g in range(-1, len(mf)):
        if g >= 0: out.append(mf[g])
        used = reserve(g) if reserve else 0
        while True:
            best = None
            for ci, c in enumerate(chains):
                if pos[ci] >= len(c): continue
                t, lo, hi = c[pos[ci]]
                if lo > g and (g < len(mf) - 1 or not flush): continue
                tl = [t] if isinstance(t, str) else t
                forced = hi <= g or (g == len(mf) - 1 and flush)
                if not forced:
                    if g < 0 or used + min(cap, sum(cost(x) for x in tl)) > cap: continue
                    if tl[0].startswith('ds_') and ldsfree > g: continue
                    if tl[0].startswith('global') and g - vmlast < vmgap: continue
                if best is None or hi < best[0]: best = (hi, ci, tl)
            if best is None: break
            hi, ci, tl = best
            out += tl; pos[ci] += 1; used += sum(cost(x) for x in tl)
            if tl[0].startswith('global'): vmlast = g
            if tl[0].startswith('ds_'): ldsfree = max(ldsfree, g) + (3 if tl[0].startswith('ds_write_b128') else 1)
    if not flush: return out, [c[p:] for c, p in zip(chains, pos)]
    return out
```

```python
from asmlib import *
from layout import *
import conv_model as cm
from gen_k1 import ldp, P, cmul, AROWS, arow_map, SPECIAL, LOG2E, INV2PI
from gen_k2 import V4, A4, mf, round_pair
import struct, math
F_LDS = 163840; F_ACC = 256; F_VGPR = 512
HST, XST = 4608, 4160
KGS = 54*272
L_KG = 0; L_H = 81920; L_XT = L_H + 4*HST; L_TAB = L_XT + 4*XST; L_XS = L_TAB + 4*3072
OPT = dict(qall=1, qs=135, qg=2, p2a=2, e1d=14, lin=0, xl=0, hl=180, tord=1, go0=0, nsh=16, qlate=1, ail=0, adl=1, rel=5, sen=0, pfg=3, her=0, wl=36, sbq=6, gather=1, htouch=(0, 4), hstat=(1, 2), hgat=((1,0),(1,4),(1,8),(1,12),(2,2),(2,6),(2,10),(3,0)), hsl2=(2, 12), dst=3, b1f=2, short=0, dense=2, pair=0, win0=9, dlim=60, late=0, pb=2, gbp=50, ba1=44, ba2=40, b1i=3, b1c=5, sat1=6, cc0=17, hrate=2, hsl=10, b2=24, b3=84, sat=1, xtl=3, vg=4, NX=0, pq=2, hwd=((0, 6), (0, 12), (1, 4)), hwd2=(1, 13), wfirst=0, nh=10, far1=8, lead=8, xbar=56, w0=170, NE=0, TA=1, TB=16, g2=8, GM=11, cf0=2, cp0=15, fC1=8, pI=14, pc=19, edr=4, NA=3, w1early=0, N0b=4, aw0=0, aw1=5, morder=0x532104, pf=1, gopos=2, hrow1=(0, 4), hrow2=(0, 5), nd1=12, hgo=(1, 0), hgo2=(1, 7), hpoll=(2, 0), hchk=((2, 7), (3, 0)), ntab=23, npre=70, nmid1=40, nmid2=90, cpf=0, hpf=(0, 0), spread=1, wspan=8, xrate=[1,1,1,1,1,1,2,2,2,2], xlag=2, xall=12, vmc=1, gstat=(0, 10), N0=6, N1=10, N2=6, xd=3, M0=2, M1=60, win=11, rbx=8, gissue=(5, 14), gcheck=(7, 16), wdrate=6)
OPT.update(N1=8,b1i=5,b1c=7,sat1=8,cp0=18,cc0=20,NE=16,w0=120,fC1=8,pI=16,pc=21,gstat=(0,10),xrate=[2,2,1,1,1,1,2,2,2,2,2],ba2=25,vg=3,gissue=(6,15),gcheck=(8,16),GM=12,win=9,xtl=4,xd=4)
OPT.update(cf0=3,b1i=5,b1c=7,sat1=7,gstat=(0,9),gissue=(6,13),gcheck=(8,16),GM=12,hpoll=(2,7),hchk=((3,0),),cp0=17,cc0=19,xrate=[2,1,1,1,1,1,2,2,1,1,1,1],NA=4,dense=3,lead=6,vg=4,hgo=(0,12),hgo2=(1,4),hrate=1,win=9,ntab=31)
OPT.update(xfirst=0, nmid=130, hrow=(0, 10), hgo=(1, 8), hpoll=(2, 7), hchk=((3, 0),))
OPT.update(cp0=18,cc0=20,aw0=0,aw1=7,cf0=2,hpoll=(2,5),gissue=(6,14),gcheck=(8,16))
OPT.update(far1=0)
OPT.update(short=1,far1=0,xbar=38,ba1=40,ntab=31,lead=10,her=1,ba2=10,N1=0,N2=4,NE=27,w0=110,xl=1,hl=170,dst=1,b1f=1,hrow=(0,8),hgo=(1,6),b3=90,npre=100,fC1=7,pI=15,pc=20,vg=3)
OPT.update(hh1=(1, 12), hh2=(2, 3), hpoll=(2, 4), hchk=(2, 11), hr=2, mdp=0)
OPT.update(hr=1, wfp=2)
OPT.update(pq=2, wfp=2, w0=110, lead=8)
OPT.update(warm=1, npre=20, nw=250, nb=0, wa=0, wc=None)
SPINS = []; DIAG = [0]; DEFER = []; EXT = []
SC = " sc1"
def f2u(x): return hex(struct.unpack('<I', struct.pack('<f', x))[0])
VWV = 106
VWF = 110
L_Q = 155648
def q_addr(r, first='s_min_u32 s4, s2, 239', dst=(59, 51)):
    x = [first, "s_mul_i32 s5, s4, 13108", "s_lshr_b32 s5, s5, 16", "s_mul_i32 s6, s5, 5", "s_sub_u32 s4, s4, s6", "s_lshl_b32 s4, s4, 2", "s_add_u32 s4, s4, s20",
         f"s_mul_i32 s6, s5, {32*1280}", "s_lshl_b32 s7, s4, 6", "s_add_u32 s6, s6, s7",
         f"v_lshrrev_b32 v{r}, 2, v1", f"v_mul_u32_u24 v{r}, {1280-64}, v{r}", f"v_lshl_add_u32 v{r}, v1, 4, v{r}", f"v_add_u32 v{r}, s6, v{r}",
         "s_mul_i32 s5, s5, 5", "s_lshl_b32 s4, s4, 1"]
    for d in dst:
        x += ["s_mul_i32 s6, s4, 13108", "s_lshr_b32 s6, s6, 16", "s_mul_i32 s6, s6, 235", "s_add_u32 s6, s6, s4", "s_add_u32 s6, s6, s5", "s_lshl_b32 s6, s6, 10", f"s_add_u32 s{d}, s6, {WD}", "s_add_u32 s4, s4, 1"]
    return x
def q_issue(r, k=0):
    return [f"s_lshl_b32 s4, s20, 11\ns_add_u32 m0, s4, {L_Q - 8192*k}\nglobal_load_lds_dwordx4 v{r}, s[38:39]", f"v_add_u32 v{r}, {16*1280 - 1024}, v{r}", f"global_load_lds_dwordx4 v{r}, s[38:39] offset:1024 ; tag=wd"]
def q_process(A, B, D, k=0, dst=(59, 51)):
    x = [f"v_bfe_u32 v{A}, v1, 2, 2", f"v_lshrrev_b32 v{B}, 4, v1", f"v_lshl_add_u32 v{A}, v{B}, 3, v{A}", f"v_and_b32 v{B}, 3, v1", f"v_lshlrev_b32 v{B}, 3, v{B}", f"v_lshl_add_u32 v{A}, v{A}, 6, v{B}",
         "s_lshl_b32 s7, s20, 11", f"s_add_u32 s7, s7, {L_Q - 8192*k}", f"v_add_u32 v{A}, s7, v{A}", "WAITVM wd"]
    x += [f"ds_read_b64_tr_b16 {P(D+4*t+2*hh)}, v{A} offset:{32*t + 256*hh}" for t in range(2) for hh in range(2)]
    x += [f"v_lshl_add_u32 v{(A, B)[t]}, v1, 4, s{dst[t]}" for t in range(2)]
    return x, [f"global_store_dwordx4 v{(A, B)[t]}, {V4(D+4*t)}, s[22:23] sc1" for t in range(2)]
def wbase():
    r = [f"s_mul_i32 s4, s62, {WPS}", f"s_add_u32 s4, s4, {WP2 + 4096}"]
    if not OPT['lin']: return r + ["v_lshl_add_u32 v3, v1, 4, s4"]
    return r + ["v_lshrrev_b32 v3, 1, v1", "v_xor_b32 v3, v3, v1", "v_and_b32 v3, 2, v3", "v_mul_u32_u24 v3, 3, v3", "v_xor_b32 v3, v3, v1", "v_lshl_add_u32 v3, v3, 4, s4"]
def wld(q):
    r = [f"global_load_dwordx4 {A4(4*q)}, v3, s[22:23] offset:{1024*(q&7)-4096}" + SC]
    if q & 7 == 7: r.append(f"v_add_u32 v3, 8192, v3")
    return r
def ids(a, VWF=VWF, VWV=VWV):
    rbx = OPT['rbx']; cbx = 32 // rbx; gx = 16 // cbx
    a(f"""
    s_and_b32 s4, s2, 7
    s_lshr_b32 s5, s2, 3
    s_and_b32 s60, s4, {gx-1}
    s_mul_i32 s60, s60, {cbx}
    s_and_b32 s6, s5, {cbx-1}
    s_add_u32 s60, s60, s6
    s_lshr_b32 s61, s4, {gx.bit_length()-1}
    s_mul_i32 s61, s61, {rbx}
    s_lshr_b32 s6, s5, {cbx.bit_length()-1}
    s_add_u32 s61, s61, s6
    s_lshl_b32 s62, s60, 2
    s_add_u32 s62, s62, s20
    s_mul_i32 s6, s62, 3
    v_bfe_u32 v{VWF}, v1, 2, 2
    v_min_u32 v{VWF}, 2, v{VWF}
    v_add_u32 v{VWF}, s6, v{VWF}                 ; tile T
    v_lshrrev_b32 v{VWF}, 3, v{VWF}              ; G
    v_lshlrev_b32 v{VWF}, 9, v{VWF}
    v_and_b32 v{VWV}, 3, v1
    v_lshl_add_u32 v{VWF}, v{VWV}, 7, v{VWF}
    s_add_u32 s6, s100, {32*128}
    v_add_u32 v{VWF}, s6, v{VWF}
    """)
def spin(a, late, name, loads, chk, back, bound=0x40000, slp=2):
    SPINS.append(name)
    late.append(f"{name}:\n" + (f"s_or_b32 s101, s101, {1 << (len(SPINS)-1)}\n" if DIAG[0] else "") + f"s_mov_b32 s64, 0\n{name}_l:\ns_waitcnt vmcnt(0)\ns_sleep {slp}\n" + "\n".join(loads) + "\ns_waitcnt vmcnt(0)\n" + "\n".join(chk) +
                f"\ns_add_u32 s64, s64, 1\ns_cmp_ge_u32 s64, {bound}\ns_cbranch_scc1 {back}\ns_cbranch_vccnz {name}_l\ns_branch {back}")
ONE_V = 248
def chk4(r, n=4):
    c = [f"v_xor_b32 v{r+k}, s65, v{r+k}" for k in range(n)]
    c += [f"v_or3_b32 v{r}, v{r}, v{r+1}, v{r+2}", f"v_or_b32 v{r}, v{r}, v{r+3}"] if n == 4 else []
    return c + [f"v_cmp_ne_u32 vcc, 0, v{r}"]
def M(mask, ins): return f"s_mov_b64 exec, {mask}\n{ins}\ns_mov_b64 exec, -1"
def tagchk(r, mask): return f"v_cmp_ne_u32 vcc, s65, v{r}\ns_and_b64 vcc, vcc, {mask}"
def U_(l): return "\n".join(x + " ; untracked" if x.startswith('global') else x for x in l.split("\n"))
HFL = M("0xfffff", "global_load_dword v109, v108, s[22:23] sc1"); HCHK = [tagchk(109, "0xfffff")]
def hint(a, late, name):
    a(f"{HCHK[0]}\ns_cbranch_vccnz {name}\n{name}_ok:")
    spin(a, late, name, [HFL], HCHK, name + "_ok", bound=24, slp=0)
def warm(a, role):
    if OPT['warm']:
        a("s_mov_b64 exec, 0")
        for w in range(3): a(f"s_cmp_eq_u32 s20, {w}\ns_cbranch_scc1 warm{w} ; nosnap")
        a(f"s_cbranch_execz warm3 ; nosnap")
    a(f"warm_{role}:\ns_mov_b64 exec, -1")
def split(a, role): a(f"s_branch body_{role}\nSPLIT\nbody_{role}:")
def nonce(a):
    a(f"v_readfirstlane_b32 s65, v{ONE_V}\ns_mul_i32 s65, s65, 0x9e3779b5\ns_add_u32 s65, s65, 0x7f4a7c15\nv_mov_b32 v{ONE_V}, s65")
EPOLD = M(1, f"global_load_dword v{ONE_V}, v247, s[22:23] sc1")
def publish(a, name, old, n, vaddr, vval):
    a(f"v_readfirstlane_b32 s4, v{old}\ns_cmp_lg_u32 s4, {n-1}\ns_cbranch_scc1 {name}\nglobal_store_dwordx4 v{vaddr}, {V4(vval)}, s[22:23] sc1 ; untracked")
def rep_addr(r, sb):
    return [f"v_lshrrev_b32 v{r}, 3, v1", f"v_mul_u32_u24 v{r}, {GOS - 128}, v{r}", f"v_lshl_add_u32 v{r}, v1, 4, v{r}", f"v_add_u32 v{r}, s{sb}, v{r}"]
def flag_addr(line0, r, val, dense=False):
    if dense:
        return ["s_bfe_u32 s4, s63, 0x20002", "s_lshl_b32 s4, s4, 4", "s_lshr_b32 s5, s63, 4", "s_add_u32 s4, s4, s5", "s_lshl_b32 s4, s4, 2", "s_and_b32 s5, s63, 3",
                "s_add_u32 s4, s4, s5", "s_lshl_b32 s4, s4, 4", f"s_add_u32 s4, s4, {GOB + 128*line0}", f"v_mul_u32_u24 v{r}, {GOS}, v1", f"v_add_u32 v{r}, s4, v{r}", f"v_mov_b32 v{val}, s65"]
    return ["s_lshl_b32 s4, s63, 7", f"s_add_u32 s4, s4, {GOB + 128*line0}"] + rep_addr(r, 4) + [f"v_mov_b32 v{val}, s65"]
def flag_set(tag, r, val, single=False, off=0, dense=False):
    st = [M("0xffffffff", f"global_store_dword v{r}, v{val}, s[22:23] offset:{off} sc1 ; untracked")] if single else [f"global_store_dwordx4 v{r}, {V4(val)}, s[22:23] sc1 ; untracked"]
    if dense: st = [M("0xff", st[0])]
    return ["s_cmp_lg_u32 s20, 0", f"s_cbranch_scc1 f_na{tag}"] + st + [f"f_na{tag}:"]
def rows_addr(a):
    a(f"""
    s_and_b32 s40, s2, 3               ; j
    s_bfe_u32 s41, s2, 0x50002         ; uo
    s_lshl_b32 s42, s41, 5
    s_lshl_b32 s43, s20, 3
    s_add_u32 s42, s42, s43
    s_add_u32 s42, s42, s40
    s_mul_i32 s42, s42, 2560
    v_lshrrev_b32 v3, 1, v6
    v_and_b32 v4, 1, v6
    v_lshl_add_u32 v2, v3, 3, v4
    v_mul_u32_u24 v2, 1280, v2
    v_lshl_add_u32 v2, v5, 4, v2
    v_add_u32 v2, s42, v2
    """)
def rows_issue(a):
    for i in range(5): a(f"global_load_dwordx4 {V4(8+4*i)}, v2, s[36:37] offset:{256*i}")
def rows_addr2(a):
    a(f"""
    s_lshl_b32 s42, s20, 5
    s_add_u32 s43, s42, {L_XS}
    v_mul_u32_u24 v28, 144, v5
    v_add3_u32 v28, v28, v7, s43
    s_lshr_b32 s43, s41, 3
    s_lshl_b32 s43, s43, 12
    s_lshl_b32 s44, s40, 10
    s_add_u32 s43, s43, s44
    s_and_b32 s44, s41, 7
    s_lshl_b32 s44, s44, 7
    s_add_u32 s43, s43, s44
    s_add_u32 s44, s43, s42
    s_add_u32 s44, s44, {STAT}
    v_add_u32 v31, s44, v7
    s_and_b32 s44, s20, 1
    s_mul_i32 s44, s44, 40
    v_lshrrev_b32 v3, 3, v1
    v_add_u32 v3, s44, v3              ; chunk
    v_and_b32 v4, 7, v1
    v_lshlrev_b32 v4, 4, v4
    v_mul_u32_u24 v29, 144, v3
    s_lshr_b32 s44, s20, 1
    s_mul_i32 s42, s44, {80*144}
    s_add_u32 s42, s42, {L_XS}
    v_add3_u32 v29, v29, v4, s42
    v_mul_u32_u24 v30, {2*XRS}, v3
    s_mul_i32 s44, s44, {XRS}
    s_add_u32 s43, s43, s44
    s_add_u32 s43, s43, {XR}
    v_add3_u32 v30, v30, v4, s43
    s_lshl_b32 s44, s2, 4
    s_add_u32 s44, s44, {GOB}
    v_mul_u32_u24 v246, {GOS}, v1
    v_add_u32 v246, s44, v246
    s_and_b32 s44, s2, 7
    s_lshl_b32 s44, s44, 8
    s_lshl_b32 s43, s3, 2
    s_add_u32 s44, s44, s43
    s_add_u32 s44, s44, {HER + 128}
    v_mov_b32 v243, s44
    s_mov_b32 s45, 0x3f803f80
    s_mov_b32 s46, 0x00010001
    s_mov_b32 s47, 0x00010001
    """)
def rows_process(a, stamp, RB):
    for i in range(5):
        for h in range(2): a(f"ds_write_b64 v28, {P(8+4*i+2*h)} offset:{16*144*i + 80*144*h}")
    d = []
    for k in range(20):
        d += [f"v_dot2_f32_bf16 v{32+(k&1)}, v{8+k}, s45, " + ("0" if k < 2 else f"v{32+(k&1)}"),
              f"v_dot2_f32_bf16 v{34+(k&1)}, v{8+k}, v{8+k}, " + ("0" if k < 2 else f"v{34+(k&1)}")]
    nd = OPT['nd1']
    for l in d[:nd]: a(l)
    a("s_waitcnt lgkmcnt(0)\ns_barrier")
    for k in range(5): a(f"ds_read_b128 {V4(RB[k])}, v29 offset:{8*144*k}")
    for l in d[nd:nd+16]: a(l)
    f = d[nd+16:] + ["s_nop 1", "v_add_f32 v32, v32, v33", "v_add_f32 v33, v34, v35"]
    for r in (8, 4, 2, 1): f += [f"v_add_f32_dpp v{32+k}, v{32+k}, v{32+k} row_ror:{r} row_mask:0xf bank_mask:0xf" for k in range(2)]
    st = []
    for k in range(5): st += [f"global_store_dwordx4 v30, {V4(RB[k])}, s[22:23] sc1"] + ([f"v_add_u32 v30, {16*XRS}, v30"] if k < 4 else [])
    for l in interleave(st, f): a(l)
    a(f"""
    v_mul_f32 v32, 0x3acccccd, v32
    v_mul_f32 v33, 0x3acccccd, v33
    v_fma_f32 v33, -v32, v32, v33
    v_max_f32 v33, 0, v33
    v_add_f32 v33, 0x3727c5ac, v33
    v_rsq_f32 v34, v33
    s_mov_b64 exec, s[46:47]
    v_mul_f32 v35, -v32, v34
    global_store_dwordx2 v31, v[34:35], s[22:23] sc1
    s_mov_b64 exec, -1
    """)
def role_conv(a, stamp, late):
    O = OPT
    X, S, SA, CA, BND, SP, U, HP = 8, 24, 40, 44, 48, 72, 76, 84
    a(f"s_load_dwordx16 s[4:19], s[0:1], {KARG['are']}")
    B = 112
    RAW, VB, VA, DT, ONE, KR, BB, CC, E1, H, T0, XX, PB, F, ZZ, ACK = (B, B+12, B+13, B+14, B+15, B+16, B+18, B+20, B+22, B+24, B+26, B+28, B+32, B+36, B+54, B+92)
    G = F + 16; PK = ZZ + 14
    TB, TS, T2A, T3A, DSK, SPC, VPA, VMD, VXR, VST, VPF = 220, 221, 222, 223, 224, 228, 225, 227, 232, 233, 234
    PLA, MD = 236, 240
    VH, VTD, VT2, VT3, VXD, VW, VO, GA, VTD0 = 100, 101, 102, 103, 104, 105, 107, 108, 109
    a(f"""
    s_and_b32 s21, s2, 7
    s_mul_i32 s21, s21, 20
    s_lshr_b32 s3, s2, 3
    s_add_u32 s21, s21, s3             ; cg
    s_lshl_b32 s48, s21, 2
    s_add_u32 s48, s48, s20            ; channel
    s_mul_i32 s25, s48, 384
    v_lshl_add_u32 v{T0}, v1, 2, s25
    v_lshl_add_u32 v{T0+1}, v1, 1, s25
    s_lshr_b32 s26, s48, 1
    s_lshl_b32 s26, s26, 2
    v_and_b32 v5, 15, v1
    v_lshrrev_b32 v6, 4, v1
    v_lshlrev_b32 v7, 3, v6
    """)
    rows_addr(a)
    c = Asm()
    rows_addr2(c)
    nrow = len(c.ins)
    c(f"""
    s_min_u32 s30, s2, 127
    s_lshl_b32 s30, s30, 11
    s_add_u32 s30, s30, {PST}
    v_lshl_add_u32 v{U+4}, v0, 3, s30
    v_mov_b32 v{U+6}, -1.0
    v_mov_b32 v{U+7}, -1.0
    s_mul_i32 s29, s20, {KGS}
    s_mov_b32 m0, s29
    v_and_b32 v{VB}, 31, v1
    v_mul_u32_u24 v{VB}, 272, v{VB}
    v_lshrrev_b32 v{U}, 5, v1
    v_lshl_add_u32 v{U}, v{U}, 4, s29
    v_add_u32 v{VB}, v{VB}, v{U}
    v_mov_b32 v{ONE}, 0x3f80
    v_mov_b32 v{DSK}, 0
    s_mov_b32 s34, {LOG2E}
    s_mov_b32 s35, {INV2PI}
    """)
    m = arow_map()
    c(f"v_and_b32 v{U+1}, 31, v1\nv_lshrrev_b32 v{U+2}, 2, v{U+1}\nv_and_b32 v{U+1}, 3, v{U+1}\nv_lshlrev_b32 v{U+1}, 3, v{U+1}")
    for q in range(8):
        w = sum(m[4*q+k] << (8*k) for k in range(4))
        if q == 0: c(f"v_mov_b32 v{VA}, {w}")
        else: c(f"v_cmp_eq_u32 vcc, {q}, v{U+2}\nv_mov_b32 v{U+3}, {w}\nv_cndmask_b32 v{VA}, v{VA}, v{U+3}, vcc")
    c(f"v_bfe_u32 v{VA}, v{VA}, v{U+1}, 8\nv_mul_u32_u24 v{VA}, 272, v{VA}\nv_add_u32 v{VA}, v{VA}, v{U}")
    nurg = len(c.ins)
    keys = ['r2q0', 'r2q1', None, 'r2q3', 'r3e', 'r3o', 'sp']
    for k, key in enumerate(keys):
        if key is None: continue
        if key == 'sp': mk = 3 << 12
        else: co, w, sh = cm.BANDS[key]; mk = ((1 << (2*w+1)) - 1) << (co + sh - w)
        c(f"v_mov_b32 v{U}, {mk}\nv_lshlrev_b32 v{U}, v5, v{U}\nv_lshrrev_b32 v{U}, v7, v{U}")
        c(f"v_and_b32 v{U}, 0xff, v{U}\nv_mul_u32_u24 v{U}, 0x8001, v{U}")
        for w in range(4):
            d = BND + 4*k + w
            if w: c(f"v_lshrrev_b32 v{U}, 2, v{U}")
            c(f"v_and_b32 v{d}, 0x10001, v{U}")
            if key != 'sp': c(f"v_mul_u32_u24 v{d}, 0x3f80, v{d}")
    c(f"""
    s_mul_i32 s24, s20, 3072
    s_add_u32 s24, s24, {L_TAB}
    s_mul_i32 s30, s20, {HST}
    s_add_u32 s30, s30, {L_H}
    v_lshlrev_b32 v{VH}, 5, v5
    v_lshl_add_u32 v{VH}, v6, 4, v{VH}
    v_add_u32 v{VH}, s30, v{VH}
    v_lshl_add_u32 v106, v1, 3, s30
    v_and_b32 v{U}, 1, v5
    v_mul_u32_u24 v{U}, {2*((cm.CH_O*8+7) - (cm.CH_E*8+8))}, v{U}
    v_sub_u32 v{VTD}, v7, v5
    v_lshl_add_u32 v{VTD}, v{VTD}, 1, v{U}
    v_add_u32 v{VTD}, {2*(cm.CH_E*8+8-16-32*16)}, v{VTD}
    v_add_u32 v{VTD}, s24, v{VTD}
    v_add_u32 v{VTD0}, 1024, v{VTD}
    v_lshlrev_b32 v{U}, 2, v6
    v_sub_u32 v{U}, v{U}, v5                    ; 4g - col
    v_lshl_add_u32 v{VT2}, v{U}, 3, s24
    v_lshl_add_u32 v{VT3}, v{U}, 2, s24
    v_add_u32 v{VT3}, {2*(cm.CH_T3*8+256-2-32*7)}, v{VT3}
    s_mul_i32 s30, s20, {XST}
    s_add_u32 s30, s30, {L_XT}
    v_lshlrev_b32 v{VXD}, 5, v5
    v_add3_u32 v{VXD}, v{VXD}, v7, s30
    v_lshlrev_b32 v{VW}, 4, v0
    v_add_u32 v{VW}, {L_H}, v{VW}
    v_lshlrev_b32 v{U}, 4, v1
    v_sub_u32 v{TB}, s24, v{U}
    v_lshlrev_b32 v{U}, 2, v1
    v_sub_u32 v{T2A}, s24, v{U}
    v_lshlrev_b32 v{U}, 1, v1
    v_sub_u32 v{T3A}, s24, v{U}
    v_and_b32 v{TS}, 31, v1
    v_mov_b32 v{U}, v{TS}
    """)
    prev = 0
    for k in range(1, 32):
        step = SPECIAL[k] - k
        if step != prev:
            c(f"v_cmp_le_u32 vcc, {k}, v{U}\nv_mov_b32 v{U+1}, {step-prev}\nv_cndmask_b32 v{U+1}, 0, v{U+1}, vcc\nv_add_u32 v{TS}, v{TS}, v{U+1}"); prev = step
    c(f"v_lshl_add_u32 v{TS}, v{TS}, 4, s24")
    for r in range(4): c(f"v_mov_b32 v{SPC+r}, 0")
    c(f"""
    s_lshl_b32 s31, s20, 12
    s_lshl_b32 s30, s20, 9
    s_add_u32 s30, s30, s100
    v_lshl_add_u32 v{VPA}, v1, 4, s30
    v_lshl_add_u32 v{VST}, v1, 4, s31
    s_mul_i32 s30, s21, {XRS}
    s_add_u32 s30, s30, {XR}
    v_add_u32 v{VXR}, s30, v{VST}
    v_add_u32 v{VST}, {STAT}, v{VST}
    v_bfe_u32 v{U}, v1, 2, 2                    ; ks
    v_and_b32 v{U+1}, 1, v6
    v_mul_u32_u24 v{U}, 30720, v{U}
    v_mul_u32_u24 v{VMD}, 5120, v6
    s_mov_b32 s56, -1
    s_mov_b32 s57, 0xffff
    s_add_u32 s58, s20, 32
    v_add_u32 v{VMD}, v{VMD}, v{U}
    v_and_b32 v{U}, 3, v1
    v_lshlrev_b32 v{U}, 3, v{U}
    s_lshl_b32 s30, s21, 5
    s_add_u32 s30, s30, {MODT}
    v_add3_u32 v{VMD}, v{VMD}, v{U}, s30
    v_cvt_f32_u32 v{MD+2}, v{U+1}
    """)
    addr = Asm(); ids(addr, VWF, U)
    addr(f"""
    s_lshr_b32 s4, s48, 1
    s_and_b32 s4, s4, 1
    s_lshr_b32 s5, s48, 2
    s_and_b32 s5, s5, 2
    s_or_b32 s4, s4, s5
    v_and_b32 v{VO}, 3, v5
    v_xor_b32 v{VO}, s4, v{VO}
    v_lshrrev_b32 v{U}, 1, v6
    v_lshl_add_u32 v{VO}, v{U}, 2, v{VO}
    v_and_b32 v{U}, 1, v6
    v_lshrrev_b32 v{U+1}, 2, v5
    v_lshl_add_u32 v{U}, v{U}, 2, v{U+1}
    v_mul_u32_u24 v{U}, 81920, v{U}
    v_lshl_add_u32 v{VO}, v{VO}, 4, v{U}
    s_lshl_b32 s4, s48, 7
    s_add_u32 s4, s4, {XT1}
    v_add_u32 v{VO}, s4, v{VO}
    s_mov_b32 s63, s21
    """)
    nad = len(addr.ins)
    addr = [i.text for i in addr.ins] + flag_addr(128, 45, 44, OPT['dense'] & 1) + ["s_and_b32 s4, s2, 7", "s_lshl_b32 s4, s4, 8", f"s_add_u32 s4, s4, {HER}", "v_lshl_add_u32 v108, v1, 2, s4", "s_lshl_b32 s5, s3, 2", "s_add_u32 s4, s4, s5", "v_mov_b32 v46, s4", "v_mov_b32 v47, 0", "v_add_u32 v244, 128, v108"]
    if OPT['go0']:
        addr = addr[:nad] + [f"s_and_b32 s4, s2, {OPT['nsh']-1}", "s_lshl_b32 s4, s4, 7", f"s_add_u32 s5, s4, {CNB}", "v_mov_b32 v46, s5", "v_mov_b32 v47, 1", "v_mov_b32 v44, s65",
                             f"s_add_u32 s4, s4, {GOB + 128*128}"] + rep_addr(45, 4)
    for l in addr + wbase() + (q_addr(111) if O['qall'] else []):
        if 's65' not in l: c(l)
    c(f"ds_write_b64 v106, {P(SPC)}")
    cl = [i.text for i in c.ins]
    def deal(n):
        while cl and (n > 0 or 'vcc' in cl[0].split(',')[-1] or (len(cl) > 1 and cl[1].startswith('v_cndmask'))): a(cl.pop(0)); n -= 1
    deal(O['npre'])
    a("s_waitcnt lgkmcnt(0)")
    if stamp: stamp(a, 'ka')
    a("s_load_dword s27, s[16:17], s26\ns_load_dword s28, s[18:19], s26")
    p1 = [f"global_load_dword v{RAW+i}, v{T0}, s[{4+2*i}:{5+2*i}]" for i in range(6)]
    p2 = [f"global_load_ushort v{RAW+6+i}, v{T0+1}, s[{4+2*i}:{5+2*i}] offset:256" for i in range(6)]
    def rows(nyoung):
        a(f"s_cmp_ge_u32 s2, 128\ns_cbranch_scc1 u_norow\ns_waitcnt vmcnt({nyoung})")
        rows_process(a, stamp, [84, 88, 92, 96, 40])
        if O['go0']: a(f"s_or_b32 s44, s2, s20\ns_cmp_lg_u32 s44, 0\ns_cbranch_scc1 u_nocnt\nv_lshlrev_b32 v2, 7, v1\nv_add_u32 v2, {CNB}, v2\nglobal_store_dword v2, v{SPC}, s[22:23] sc1 ; untracked\nu_nocnt:")
        a(f"global_store_dwordx2 v{U+4}, {P(U+6)}, s[22:23] sc1\ns_waitcnt lgkmcnt(0)\nCLEARVM\nu_norow:")
        if stamp: stamp(a, 'row2')
    xf = O['xfirst']
    for l in ([] if xf else p1): a(l)
    a("s_cmp_ge_u32 s2, 128\ns_cbranch_scc1 u_noiss")
    rows_issue(a)
    a("CLEARVM\nu_noiss:")
    for l in (p1 if xf else []) + p2 + [EPOLD]: a(l)
    a("CLEARVM")
    if stamp: stamp(a, 'iss')
    deal(O['nw'])
    if O['wc'] is None: warm(a, 'conv')
    split(a, 'conv')
    if stamp: stamp(a, 'hop')
    if xf: rows(13)
    deal(O['nb']); assert O['npre'] + O['nw'] + O['nb'] >= nurg and O['npre'] < nurg
    if stamp and O.get('dg'):
        stamp(a, 'cst'); a("s_waitcnt lgkmcnt(0)"); stamp(a, 'sld')
        for k, n in enumerate((17, 15, 12)): a(f"s_waitcnt vmcnt({n}) ; untracked"); stamp(a, f'p{k}')
    a(f"s_waitcnt lgkmcnt(0)\ns_cmp_ge_u32 s2, 128\ns_cbranch_scc1 u_w0\ns_waitcnt vmcnt({14 if xf else 12})\ns_branch u_w1\nu_w0:\ns_waitcnt vmcnt(7)\nu_w1:")
    a(f"""
    s_and_b32 s33, s48, 1
    s_lshl_b32 s33, s33, 4
    s_lshr_b32 s27, s27, s33
    s_lshl_b32 s27, s27, 16
    s_lshr_b32 s28, s28, s33
    s_lshl_b32 s28, s28, 16
    v_mov_b32 v{DT}, {LOG2E}
    v_mul_f32 v{DT}, s27, v{DT}
    v_exp_f32 v{DT}, v{DT}
    v_writelane_b32 v{DSK}, s28, 0
    v_cvt_pk_bf16_f32 v{DT}, v{DT}, v{DT}
    v_and_b32 v{DT}, 0xffff0000, v{DT}
    s_mov_b32 s14, 0x05040100
    s_mov_b32 s15, 0x07060302
    """)
    pollA = [M("0xffffffff", f"global_load_dword v{PLA}, v{VPA}, s[22:23] sc1")]
    chkA = [tagchk(PLA, "0xffffffff")]
    mdl = M("s[56:57]", f"global_load_dwordx2 {P(MD)}, v{VMD}, s[22:23] sc1")
    hl = []
    for j in range(4): hl += [f"global_load_dwordx4 {V4(X+4*j)}, v{VXR}, s[22:23] offset:{1024*j} sc1", f"global_load_dwordx4 {V4(S+4*j)}, v{VST}, s[22:23] offset:{1024*j} sc1"]
    def hook(pos):
        if pos == O['wc']: warm(a, 'conv')
        if pos == O['hrow'] and not xf: rows(7)
        if pos == O['hgo']:
            a("s_waitcnt vmcnt(0)"); nonce(a)
            a("v_mov_b32 v44, s65\ns_cmp_ge_u32 s2, 128\ns_cbranch_scc1 f_naa\ns_barrier")
            fs = flag_set('a', 246, ONE_V, dense=True)
            for l in fs[:-1] + [M(1, f"global_store_dword v243, v{ONE_V}, s[22:23] ; untracked")] + fs[-1:]: a(l)
            if stamp: stamp(a, 'flagA')
            deal(999)
        if pos == O['hh1']: a(hfa)
        if pos == O['hh2']:
            a(f"{hca[0]}\ns_cbranch_vccnz u_hinta\nu_hinta_ok:")
            spin(a, late, "u_hinta", [hfa], hca, "u_hinta_ok", bound=24, slp=0)
            if stamp: stamp(a, 'hintA')
        if pos == O['hpoll']: a(pollA[0])
        if pos == O['hchk']:
            a(f"{chkA[0]}\ns_cbranch_vccnz u_spina\nu_oka:")
            spin(a, late, "u_spina", pollA, chkA, "u_oka")
            if stamp: stamp(a, 'pollA')
        if O['hchk'] <= pos < (3, 0):
            for _ in range(O['hr']):
                if hl: a(hl.pop(0))
    hfa = M("0xffff", f"global_load_dword v{PLA+1}, v244, s[22:23] sc1"); hca = [tagchk(PLA+1, "0xffff")]
    hl.insert(O['mdp'], mdl)
    assert O['hrow'] < O['hgo'] < (2, 0) and O['hgo'] <= O['hh1'] < O['hh2'] <= O['hpoll'] < O['hchk']
    pend = []; ard = []
    for rd in range(3):
        FB, FA = 64*(rd & 1), 64*(rd & 1) + 32
        s = []
        for i, d in enumerate((KR, KR + 1, BB, BB + 1, CC, CC + 1)):
            if rd == 0: s.append(f"v_lshlrev_b32 v{d}, 16, v{RAW+i}")
            elif rd == 1: s.append(f"v_and_b32 v{d}, 0xffff0000, v{RAW+i}")
            else: s.append(f"v_lshlrev_b32 v{d}, 16, v{RAW+6+i}")
        s.append(f"v_pk_mul_f32 {P(KR)}, {P(KR)}, {P(DT)} op_sel_hi:[1,0]")
        s.append(f"v_pk_mul_f32 {P(BB)}, {P(BB)}, {P(DT)} op_sel_hi:[1,0]")
        s.append(f"v_pk_mul_f32 {P(KR)}, {P(KR)}, s[34:35]")
        s += [f"v_mul_f32 v{XX}, 0x41000000, v{KR}", f"v_mul_f32 v{XX+1}, 0x41000000, v{KR+1}", f"v_exp_f32 v{XX}, v{XX}", f"v_fract_f32 v{XX+1}, v{XX+1}",
              f"v_cos_f32 v{F+2}, v{XX+1}", f"v_sin_f32 v{F+3}, v{XX+1}", f"v_exp_f32 v{XX+2}, v{KR}", f"v_fract_f32 v{XX+3}, v{KR+1}",
              f"v_cos_f32 v{E1}, v{XX+3}", f"v_sin_f32 v{E1+1}, v{XX+3}",
              f"v_pk_mul_f32 {P(F+2)}, {P(F+2)}, {P(XX)} op_sel_hi:[1,0] neg_hi:[1,0]", f"v_pk_mul_f32 {P(E1)}, {P(E1)}, {P(XX+2)} op_sel_hi:[1,0]"]
        if stamp: stamp(a, f'r{rd}')
        for l in s: a(l)
        vals = [([], None, 0), ([], F + 2, 1)]
        for j in range(2, 9): vals.append((cmul(F + 2*j, F + 2*(j-1), F + 2, T0), F + 2*j, j))
        for j in range(9, 32):
            z = F + 2*(j & 7)
            if j == 16:
                vals.append((cmul(F, G, G, T0) + [f"v_pk_mul_f32 {P(T0)}, {P(F)}, {P(F)} op_sel:[0,0] op_sel_hi:[0,1] neg_hi:[1,0]",
                             f"v_pk_fma_f32 {P(H)}, {P(F)}, {P(F)}, {P(T0)} op_sel:[1,1,0] op_sel_hi:[1,0,1] neg_lo:[1,0,0] neg_hi:[1,0,0]"], F, j))
            else: vals.append((cmul(z, z, G, T0), z, j))
        zr = {l: F + 2*k for k, l in enumerate(AROWS)}
        for l in AROWS:
            op = cmul(zr[0], CC, BB, T0) if l == 0 else cmul(zr[l], zr[l-1], E1, T0) if l <= 8 else cmul(zr[l], zr[l-256], H, T0)
            vals.append((op, zr[l], 32 + AROWS.index(l)))
        brd = [f"ds_read_b128 {A4(FB+4*ks)}, v{VB} offset:{32*ks}" for ks in range(8)]
        for gi in range(14):
            hook((rd, gi))
            grp = vals[4*gi:4*gi+4]
            for v in grp:
                for l in v[0]: a(l)
            if pend and gi >= 5: a(pend.pop(0))
            for k, v in enumerate(grp):
                if v[1] is not None: a(f"v_cvt_pk_bf16_f32 v{PB+k}, v{v[1]}, v{v[1]+1}")
            rds = ard if gi < 8 else brd
            for _ in range(2):
                if rds: a(rds.pop(0))
            for k, v in enumerate(grp): a(f"ds_write_addtid_b32 v{PB+k if v[1] is not None else ONE} offset:{272*v[2]}")
        assert not pend and not brd and not ard
        ard = [f"ds_read_b128 {A4(FA+4*ks)}, v{VA} offset:{32*272 + 32*ks}" for ks in range(8)]
        pend = [f"v_mfma_f32_32x32x16_bf16 v[{ACK}:{ACK+15}], {A4(FA+4*ks)}, {A4(FB+4*ks)}, " + ("0" if rd == 0 and ks == 0 else f"v[{ACK}:{ACK+15}]") for ks in range(8)]
    for l in ard: a(l)
    hook((3, 0))
    if stamp: stamp(a, 'r3')
    for l in hl[:2] + interleave(pend, hl[2:]): a(l)
    V = ACK; E, O = PK, PK + 4
    a(f"v_add_f32 v{V}, v{V}, v{DSK}")
    for k in range(4): a(f"v_cvt_pk_bf16_f32 v{E+k}, v{V+8-2*k}, v{V+7-2*k}")
    for k in range(4): a(f"v_cvt_pk_bf16_f32 v{O+k}, v{V+7-2*k}, v{V+6-2*k}")
    a(f"ds_write_b128 v{TB}, {V4(E)} offset:{cm.CH_E*16}")
    a(f"v_cvt_pk_bf16_f32 v{PK+8}, v{V+10}, v{V+9}\nv_cvt_pk_bf16_f32 v{PK+9}, v{V+11}, v{V+12}")
    a(f"v_readlane_b32 s8, v{O+3}, 0\nv_readlane_b32 s9, v{E}, 63\nv_readlane_b32 s11, v{PK+8}, 63")
    a(f"ds_write_b128 v{TB}, {V4(O)} offset:{cm.CH_O*16}")
    a(f"s_lshr_b32 s8, s8, 16\ns_lshl_b32 s10, s9, 16\ns_and_b32 s11, s11, 0xffff")
    a(f"v_writelane_b32 v{SPC}, s8, {SPECIAL.index(cm.CH_E+1)}")
    a(f"v_writelane_b32 v{SPC+3}, s9, {SPECIAL.index(cm.CH_E-64)}")
    a(f"v_writelane_b32 v{SPC+2}, s10, {SPECIAL.index(cm.CH_O-64)}")
    a(f"v_writelane_b32 v{SPC+3}, s9, {SPECIAL.index(cm.CH_O-64)}")
    a(f"s_mov_b64 exec, 0xffffffff\nds_write_b128 v{TS}, {V4(SPC)}\ns_mov_b64 exec, -1")
    a(f"ds_write_b32 v{T2A}, v{PK+8} offset:{cm.CH_T2*16 + 2*(320-130)}")
    a(f"ds_write_b16 v{T3A}, v{PK+9} offset:{cm.CH_T3*16 + 2*(256-129)}")
    a(f"ds_write_b16_d16_hi v{T3A}, v{PK+9} offset:{cm.CH_T3*16 + 2*(256-193)}")
    NH = OPT['nh']
    TDO = [16, 0, 8] + [q for k in range(1, 8) for q in (k, k + 8)]
    HB = 256 - 4*NH; T3 = HB - 16; T2 = T3 - 24; TDB = T2 - 68
    td = lambda q: TDB + 4*TDO.index(q)
    def rd_td(q): return [f"ds_read2_b32 a[{td(q)+2*h}:{td(q)+2*h+1}], v{VTD} offset0:{16*(16-q)+2*h} offset1:{16*(16-q)+2*h+1}" if q else
                          f"ds_read2_b32 a[{td(q)+2*h}:{td(q)+2*h+1}], v{VTD0} offset0:{2*h} offset1:{2*h+1}" for h in range(2)]
    tabs = [None] + rd_td(0) + rd_td(8) + rd_td(16) + rd_td(1) + rd_td(9)
    for D in range(2, 5):
        for hh in range(2):
            off = 2*(cm.CH_T2*8 + 320 - 64*D - 4 + 8*hh)
            tabs += [f"ds_read_b64 a[{T2+8*(D-2)+4*hh+2*h}:{T2+8*(D-2)+4*hh+2*h+1}], v{VT2} offset:{off+8*h}" for h in range(2)]
    for D in range(4, 8):
        tabs += [f"ds_read2_b32 a[{T3+4*(D-4)+2*h}:{T3+4*(D-4)+2*h+1}], v{VT3} offset0:{16*(7-D)+2*h} offset1:{16*(7-D)+2*h+1}" for h in range(2)]
    ntab = OPT['ntab']
    if OPT['tord']:
        t2, t3 = tabs[11:23], tabs[23:]; tabs = tabs[:11]
        for q in range(2, 8): tabs += t2[2*(q-2):2*(q-1)] + rd_td(q) + rd_td(q + 8)
        tabs += t3
    else:
        for q in range(2, 8): tabs = tabs + rd_td(q) + rd_td(q + 8)
    for l in tabs[1:ntab]: a(l)
    for w in range(4): a(f"v_mul_u32_u24 v{SP+w}, s11, v{SP+w}")
    if stamp: stamp(a, 'tab')
    cmd = [tagchk(MD+1, "s[56:57]")]
    a(cmd[0] + "\ns_cbranch_vccnz u_spinmd\nu_okmd:")
    spin(a, late, "u_spinmd", [mdl], cmd, "u_okmd")
    a(f"""
    v_add_f32_dpp v{MD}, v{MD}, v{MD} row_ror:4 row_mask:0xf bank_mask:0xf
    v_add_f32_dpp v{MD}, v{MD}, v{MD} row_ror:8 row_mask:0xf bank_mask:0xf
    v_cvt_pk_bf16_f32 v{MD}, v{MD}, v{MD}
    v_and_b32 v{MD}, 0xffff0000, v{MD}
    v_add_f32 v{MD}, v{MD}, v{MD+2}
    v_cvt_pk_bf16_f32 v{MD}, v{MD}, v{MD}
    v_and_b32 v{MD}, 0xffff0000, v{MD}
    """)
    f = [f"v_readlane_b32 s{8+c}, v{MD}, {c}" for c in range(4)] + [f"v_readlane_b32 s{52+c}, v{MD}, {16+c}" for c in range(4)]
    f += [f"v_mov_b32 v{SA+c}, s{8+c}" for c in range(4)] + [f"v_readlane_b32 s50, v{MD}, s58"]
    for l in f: a(l)
    a('u_have:')
    UN = F
    for k in range(16):
        if k % 4 == 0:
            for q in range(k, k + 4): a(f"v_lshlrev_b32 v{UN+2*q}, 16, v{X+q}\nv_and_b32 v{UN+2*q+1}, 0xffff0000, v{X+q}")
        st = P(S + 2*(k >> 1))
        a(f"v_pk_fma_f32 {P(UN+2*k)}, {P(UN+2*k)}, {st}, {st} op_sel:[0,0,1] op_sel_hi:[1,0,1]")
    for cp in range(2):
        for k in range(cp, 16, 2): a(f"v_pk_fma_f32 {P(UN+2*k)}, {P(UN+2*k)}, s[{52+2*cp}:{53+2*cp}], {P(SA+2*cp)}")
        for c in (2*cp, 2*cp + 1):
            for tp in range(4): a(f"v_cvt_pk_bf16_f32 v{HP+4*c+tp}, v{UN+8*tp+c}, v{UN+8*tp+4+c}")
            a(f"ds_write_b128 v{VW}, {V4(HP+4*c)} offset:{HST*c + 512}")
    a("s_waitcnt lgkmcnt(0)\ns_barrier")
    if stamp: stamp(a, 'bar')
    XP = S
    ACC, Z3, Z2, SD, XD, XU, OUTR = 112, 144, 160, 208, 8, 24, 84
    ops = []
    first = set()
    def acc(n, A, B):
        ops.append((ACC+4*n, A, B, None if n in first else "0")); first.add(n)
    cvs = []; lastacc = {}; sdt = []
    nsd = [0]
    def sig0(n, what, rep=0):
        h, hs, sd = ('h', n, 32, rep), ('h', n, 48, rep), SD + 24*(nsd[0] & 1)
        r2, r3, dr = n < 6 and '2' in what, n < 4 and '3' in what, [j for j in range(3) if 'abc'[j] in what and n + j < 8]
        if r2 or r3: nsd[0] += 1; sdt.append(len(ops))
        if r2:
            for q in (1, 2, 3, 0): ops.append((sd+4*q, hs if q == 0 else h, V4(BND+4*(q if q != 2 else 0)), "0"))
        if r3: ops.append((sd+16, hs, V4(BND+16), "0")); ops.append((sd+20, h, V4(BND+20), "0"))
        p = len(ops)
        cv = []
        if r2:
            for hh in range(2):
                for w in range(4): cv.append(f"v_cvt_pk_bf16_f32 v{Z2+8*n+4*hh+w}, v{sd + 4*(2*(w&1)) + 2*hh + (w>>1)}, v{sd + 4*(2*(w&1)+1) + 2*hh + (w>>1)}")
        if r3: cv += [f"v_cvt_pk_bf16_f32 v{Z3+4*n+r}, v{sd+16+r}, v{sd+20+r}" for r in range(4)]
        cvs.extend((l, p + 2, p + 11, nsd[0]) for l in cv)
        for j in dr: acc(n+j, A4(td(8*j)), h)
        if r3: acc(n+4, V4(SP), h)
    far = []
    for n in range(6):
        for hh in range(2):
            for D in range(2, 5):
                if n + D < 8: far.append((n+D, V4(Z2+8*n+4*hh), A4(T2+8*(D-2)+4*hh), n))
    for n in range(4):
        for D in range(4, 8):
            if n + D < 8: far.append((n+D, V4(Z3+4*n), A4(T3+4*(D-4)), n))
    far1 = [x for x in far if x[0] < 4]; far2 = sorted((x for x in far if x[0] >= 4), key=lambda x: x[3] >= 4)
    k1 = OPT['far1']; far1 += far2[:k1]; far2 = far2[k1:]
    def phase(part, sig, fr, k):
        for n in range(4*part, 4*part + 4):
            h = ('h', n, 32 + 64*sig, 0)
            acc(n, A4(td(sig)), h); lastacc[n] = len(ops) - 1
            if n < 7: acc(n+1, A4(td(sig+8)), h)
            for _ in range((k*(n%4+1))//4 - (k*(n%4))//4): acc(*fr.pop(0)[:3])
    for n in range(4): sig0(n, '23abc' if not OPT['short'] else '2abc' if n < 2 else 'ab')
    for sig in range(1, 8): phase(0, sig, far1, -(-len(far1) // (7 - sig)) if sig < 7 else 0)
    assert not far1
    blocks = ([(2, '23c', 1), (3, '23c', 1), (0, '3', 1), (4, '23abc', 0), (1, '3', 1), (5, '23abc', 0)] if OPT['short'] else [(4, '23abc', 0), (5, '23abc', 0)])
    zdone = lambda A: all(p + 12 <= len(ops) for l, p, hi, k in cvs if int(re.search(r'v(\d+),', l).group(1)) // 4 * 4 == int(re.search(r'v\[(\d+):', A).group(1))) and any(f"v{re.search(r'v.(.+):', A).group(1)}," in l for l, p, hi, k in cvs)
    def spacer(k):
        for x in [x for x in far2 if zdone(x[1])][:k]: far2.remove(x); acc(*x[:3])
    sig = 1
    for _ in range(OPT['p2a']): phase(1, sig, [], 0); sig += 1
    sig0(6, 'ab'); sig0(7, 'a')
    for b in blocks:
        sig0(*b)
        if len(b[1]) > 1:
            if sig < 7: phase(1, sig, [], 0); sig += 1
            else: spacer(6)
    while sig < 7: phase(1, sig, [], 0); sig += 1
    phase(1, 7, [], 0)
    far2.sort(key=lambda x: x[0])
    while far2:
        n0 = len(far2); spacer(1); assert len(far2) < n0
    for n in range(8): lastacc[n] = max(k for k, o in enumerate(ops) if o[0] == ACC + 4*n)
    assert len(ops) == 202
    cvs = [(l, min(lo, hi2), hi2) for l, lo, hi, k in cvs for hi2 in [min(hi, sdt[k+1] - 1 if k + 1 < len(sdt) else 999)]]
    use = {}
    for i, o in enumerate(ops):
        for x in o[1:3]: use.setdefault(x, []).append(i)
    hs = [x for x in use if isinstance(x, tuple)]
    hreg = {}; hch = []; LEAD = OPT['lead']
    for k, x in enumerate(hs):
        hreg[x] = A4(HB + 4*(k % NH))
        lo = use[hs[k-NH]][-1] if k >= NH else -1
        hch.append((f"ds_read_b128 {hreg[x]}, v{VH} offset:{512 + 512*x[1] - x[2]}", lo, max(lo, use[x][0] - LEAD)))
    m = [mf(d, hreg.get(A, A), hreg.get(B, B), c) for d, A, B, c in ops]
    def treg(l):
        r = int(re.search(r'a\[(\d+):', l).group(1)); return A4(r - r % 4)
    rest = tabs[ntab:]
    tch = sorted(((l, 0, use[treg(l)][0] - LEAD) for l in rest), key=lambda x: x[2])
    def epi(n):
        r = ACC + 4*n; o = OUTR + 2*n
        e = [f"v_fma_f32 v{r+k}, v{r+k}, s50, v{XU+4*(n&3)+k}" for k in range(4)] + [f"v_cvt_pk_bf16_f32 v{o+h}, v{r+2*h}, v{r+2*h+1}" for h in range(2)]
        if n & 1:
            o -= 2
            e += [f"v_permlane16_swap_b32 v{o}, v{o+2}", f"v_permlane16_swap_b32 v{o+1}, v{o+3}"]
            x = [f"global_store_dwordx4 v{VO}, {V4(o)}, s[22:23]" + SC + f" ; tag=x1s{n}"] + ([f"v_add_u32 v{VO}, {8*81920}, v{VO}"] if n < 7 else [])
            if n < 4 or OPT['dst'] < 0: e += x
            else: DEFER.extend(U_(l) for l in x)
        return [(l, lastacc[n] + 3, lastacc[n] + OPT['e1d'] if n < 4 else 999) for l in e]
    def unp(p): return [(l, 0, lastacc[4*p]) for k in range(8) for l in (f"v_lshlrev_b32 v{XU+2*k}, 16, v{XD+8*p+k}", f"v_and_b32 v{XU+2*k+1}, 0xffff0000, v{XD+8*p+k}")]
    gb0 = OPT['xbar']
    xch = []
    for c in range(4):
        xch += [(f"v_perm_b32 v{XP+4*c+tp}, v{X+4*tp+2+(c>>1)}, v{X+4*tp+(c>>1)}, s{14+(c&1)}", -1, -1) for tp in range(4)]
    xch += [(f"ds_write_b128 v{VW}, {V4(XP+4*c)} offset:{L_XT - L_H + XST*c} ; xt", 0, gb0 - 12) for c in range(4)]
    xch += [(["WAITXT", "s_barrier"], gb0, gb0)] + [(f"ds_read_b64 {P(XD+2*n)}, v{VXD} offset:{512*n}", gb0, gb0 + 16) for n in range(4)]
    xch += [(unp(0)[0][0], gb0 + 18, 999)] + unp(0)[1:]
    for n in range(4): xch += epi(n)
    xch += [(f"ds_read_b64 {P(XD+2*n)}, v{VXD} offset:{512*n}", 0, 140) for n in range(4, 8)] + [(unp(1)[0][0], 148, 999)] + unp(1)[1:]
    for n in range(4, 8): xch += epi(n)
    wfl = M("0xfff", f"global_load_dword v{VWV}, v{VWF}, s[22:23] sc1")
    w0 = OPT['w0']; NE = OPT['NE']
    qch = [(l, OPT['qg'] + 3*k, OPT['qg'] + 3*k) for k, l in enumerate(q_issue(111))]
    qa, qb = q_process(2, 4, 76); qs = OPT['qs']
    qch += [(l, qs - 24, qs - 8) for l in qa] + [(qb[0], qs, qs + 2), (qb[1], qs + 4, qs + 6)]
    ach = [(wfl, w0 - OPT['wl'], w0 - OPT['wl'] + 2)]
    wchk = [tagchk(VWV, "0xfff")]
    ach += [([wchk[0], "s_cbranch_vccnz f_spinw", "f_okw:"], w0, w0)]
    spin(a, late, "f_spinw", [wfl], wchk, "f_okw")
    for q in range(NE):
        lo = w0 + 1 + (q*(200 - w0))//max(NE, 1)
        if 4*q >= TDB: lo = max(lo, use[A4(4*q)][-1] + 1)
        ach.append((wld(q), lo, lo + 2))
    ga1 = lastacc[3] + OPT['ba1']; ga2 = min(200, ga1 + OPT['ba2'])
    bch = [(["WAITVM x1s3", "s_barrier"] + flag_set('b0', 45, 44, dense=OPT['dense'] & 1), ga1, ga1)]
    if OPT['her']:
        bch += [(["s_cmp_lg_u32 s20, 0", "s_cbranch_scc1 f_nahe", M(1, "global_store_dword v46, v44, s[22:23] ; untracked"), "f_nahe:"], ga2, ga2), (HFL, max(ga2, OPT['hl']), max(ga2, OPT['hl']))]
    if OPT['go0']:
        pub = ["s_cmp_lg_u32 s20, 0", "s_cbranch_scc1 f_npb0", "WAITMARK b0"]
        publish(lambda t: pub.extend(t.split("\n")), "f_npb0", 47, 160 // OPT['nsh'], 45, 44)
        bch = [(["WAITVM x1s3", "s_barrier", "s_cmp_lg_u32 s20, 0", "s_cbranch_scc1 f_nab0", M(1, "global_atomic_add v47, v46, v47, s[22:23] sc0 sc1 ; untracked"), "f_nab0:", "VMMARK b0"], ga1, ga1),
               (pub + ["f_npb0:"], ga2, ga2)]
    out = listsched(m, [hch, tch, sorted(cvs, key=lambda x: x[1]), xch, ach, bch] + ([qch] if OPT['qall'] else []))
    assert max(k for k, l in enumerate(out) if 'tag=x1s3' in l) < out.index("WAITVM x1s3")
    i = out.index("WAITXT"); j = max(k for k, l in enumerate(out) if l.endswith('; xt'))
    out[i] = f"s_waitcnt lgkmcnt({min(15, sum(l.startswith('ds_') for l in out[j+1:i]))})"
    nm = 0
    for l in out:
        if stamp and l.startswith('v_mfma'):
            if nm % 40 == 0 and nm: stamp(a, f'c{nm}')
            nm += 1
        a(l)
        if stamp and l == 'f_nab0:': stamp(a, 'arr0')
        if stamp and l == 'f_npb0:': stamp(a, 'pub0')
    if stamp: stamp(a, 'done')
    if OPT['her']: hint(a, late, "u_hint1")
L_CV, L_MS, L_WD = 40960, 43008, 98304
def mod_addr(a, r, vaddr):
    a(f"""
    s_add_u32 s26, s3, {96*r}
    s_cmp_ge_u32 s26, 240
    s_cselect_b32 s27, 48, 0
    s_sub_u32 s26, s26, s27
    s_lshr_b32 s27, s26, 2
    s_mul_i32 s28, s27, 6554
    s_lshr_b32 s28, s28, 16
    s_mul_i32 s29, s28, 10
    s_sub_u32 s27, s27, s29
    s_lshl_b32 s28, s28, 2
    s_lshr_b32 s28, {OPT['morder']}, s28
    s_and_b32 s28, s28, 7
    s_mul_i32 s28, s28, 10
    s_add_u32 s27, s27, s28            ; slab
    s_lshl_b32 s28, s27, 7
    v_add_u32 v{vaddr}, s28, v51
    s_lshl_b32 s27, s27, 8
    s_mul_i32 s28, s13, 15360
    s_add_u32 s27, s27, s28
    s_add_u32 s{50+2*r}, s27, {MODP}
    """)
def mod_issue(vaddr, W):
    r = []
    for j in range(5):
        r.append(f"global_load_dwordx4 {V4(W+4*j)}, v{vaddr}, s[10:11]")
        if j < 4: r.append(f"v_add_u32 v{vaddr}, {32*7680}, v{vaddr}")
    return r
def mod_process(a, r, W, pre='', post=None, slot=None, fill=()):
    slot = r if slot is None else slot
    A = 238; C = 56
    d = [f"v_dot2_f32_bf16 v{A+e}, v{W+4*j+e//2}, v{C+(5 if e&1 else 0)+j}, " + ("0" if j == 0 else f"v{A+e}") for j in range(5) for e in range(8)]
    for l in interleave(d, list(fill), start=8): a(l)
    for i in range(4): a(f"v_permlane32_swap_b32 v{A+i}, v{A+4+i}")
    for i in range(4): a(f"v_add_f32 v{A+i}, v{A+i}, v{A+4+i}")
    for i in range(2): a(f"v_permlane16_swap_b32 v{A+i}, v{A+2+i}")
    for i in range(2): a(f"v_add_f32 v{A+i}, v{A+i}, v{A+2+i}")
    for i in range(2): a(f"v_add_f32_dpp v{A+i}, v{A+i}, v{A+i} row_ror:8 row_mask:0xf bank_mask:0xf")
    a(f"""
    ds_write_b64 v53, {P(A)} offset:{L_MS + 1024*slot}
    v_add_u32 v{A+4}, s{50+2*r}, v55
    v_lshlrev_b32 v{A+5}, 1, v{A+4}
    v_add_u32 v{A+5}, {MODT - 2*MODP}, v{A+5}
    {pre}
    s_waitcnt lgkmcnt(0)
    s_barrier
    ds_read_b32 v{A}, v54 offset:{L_MS + 1024*slot}
    """)
    if post: post()
    a(f"""
    v_mov_b32 v{A+1}, v{A}
    v_permlane32_swap_b32 v{A}, v{A+1}
    v_add_f32 v{A}, v{A}, v{A+1}
    v_mov_b32 v{A+1}, v{A}
    v_permlane16_swap_b32 v{A}, v{A+1}
    v_add_f32 v{A}, v{A}, v{A+1}
    """)
    a(f"v_mov_b32 v{A+1}, s65\ns_mov_b64 exec, 0xffff\nglobal_store_dwordx2 v{A+5}, {P(A)}, s[22:23] sc1\nglobal_store_dword v{A+4}, v{A}, s[22:23] sc1\ns_mov_b64 exec, -1")
def mod_flag(a, r): a(f"s_mov_b64 exec, 1\nWAITVM m{r}\nglobal_store_dword v{148+r}, v{ONE_V}, s[22:23] sc1\ns_mov_b64 exec, -1")
def role_prep(a, stamp, late):
    a(f"s_load_dwordx4 s[4:7], s[0:1], {KARG['wg']}\ns_load_dwordx4 s[8:11], s[0:1], {KARG['c']}")
    VDM = 52
    a(f"""
    s_sub_u32 s3, s2, 160
    s_lshr_b32 s12, s3, 2              ; G
    s_and_b32 s13, s3, 3               ; kq
    s_mul_i32 s16, s13, 160
    v_lshrrev_b32 v50, 3, v0
    v_add_u32 v50, s16, v50
    v_mul_u32_u24 v51, 7680, v50
    v_and_b32 v5, 7, v0
    v_lshl_add_u32 v51, v5, 4, v51
    v_lshlrev_b32 v50, 1, v50
    """)
    mod_addr(a, 0, 48)
    a("s_waitcnt lgkmcnt(0)")
    if stamp: stamp(a, 'ka')
    for j in range(5): a(f"global_load_ushort v{56+j}, v50, s[8:9] offset:{64*j}")
    W0, W1 = 68, 88
    for l in mod_issue(48, W0): a(l)
    a(EPOLD)
    if stamp: stamp(a, 'iss')
    if OPT['wa'] == 0: warm(a, 'aux')
    split(a, 'aux')
    mod_addr(a, 1, 49)
    a(f"""
    v_lshrrev_b32 v6, 4, v1
    v_lshlrev_b32 v53, 3, v6
    v_lshl_add_u32 v53, v5, 5, v53
    s_lshl_b32 s26, s20, 8
    v_add_u32 v53, s26, v53
    v_and_b32 v7, 15, v1
    s_lshl_b32 s26, s20, 6
    v_lshl_add_u32 v55, v7, 2, s26
    v_lshl_add_u32 v54, v6, 8, v55
    s_lshr_b32 s14, s20, 1             ; mat
    s_and_b32 s15, s20, 1
    v_lshrrev_b32 v{VDM}, 3, v1
    v_bfe_u32 v7, v1, 4, 1
    s_lshl_b32 s17, s20, 1
    v_or_b32 v7, s17, v7
    v_xor_b32 v7, v7, v5
    v_mul_u32_u24 v{VDM}, 3072, v{VDM}
    v_lshl_add_u32 v{VDM}, v7, 4, v{VDM}
    s_lshl_b32 s17, s15, 3
    s_add_u32 s17, s17, s16
    s_mul_i32 s17, s17, 3072
    s_lshl_b32 s18, s12, 7
    s_add_u32 s17, s17, s18
    v_add_u32 v{VDM}, s17, v{VDM}
    s_mul_i32 s18, s14, 20480
    s_lshl_b32 s19, s15, 10
    s_add_u32 s18, s18, s19
    s_cmp_eq_u32 s14, 0
    s_cselect_b32 s30, s4, s6
    s_cselect_b32 s31, s5, s7
    """)
    a(f"""
    v_min_u32 v5, 159, v0
    v_add_u32 v6, s16, v5
    v_lshlrev_b32 v6, 3, v6
    """)
    for j in range(4): a(f"v_add_u32 v{44+j}, {MODT + 3*5120 + 2560 + 30720*j}, v6")
    VT, VC, VS0, VU = 16, 18, 19, 21
    a(f"""
    v_lshrrev_b32 v6, 4, v1            ; g
    v_bfe_u32 v7, v1, 2, 2             ; r
    v_lshl_add_u32 v2, v6, 3, v7
    v_lshlrev_b32 v2, 7, v2            ; (8g + r) * 128
    v_bfe_u32 v3, v1, {0 if OPT['lin'] else 1}, 1             ; mat
    v_mul_u32_u24 v4, 20480, v3
    v_add_u32 v2, v2, v4
    v_bfe_u32 v4, v1, {1 if OPT['lin'] else 0}, 1
    v_lshl_add_u32 v2, v4, 3, v2
    v_lshrrev_b32 v7, 1, v7
    v_and_b32 v4, 1, v6
    v_lshl_add_u32 v7, v4, 1, v7
    v_lshl_add_u32 v7, v3, 2, v7       ; swizzle
    s_lshl_b32 s16, s20, 1
    v_xor_b32 v7, s16, v7
    v_lshl_add_u32 v{VT}, v7, 4, v2
    v_xor_b32 v7, 1, v7
    v_lshl_add_u32 v{VT+1}, v7, 4, v2
    v_lshlrev_b32 v{VC}, 4, v6
    v_bfe_u32 v2, v1, 1, 2
    v_lshlrev_b32 v2, 2, v2
    v_lshl_add_u32 v2, v6, 4, v2
    v_bfe_u32 v3, v1, 3, 1
    v_lshl_add_u32 v2, v3, 1, v2
    v_and_b32 v3, 1, v1
    v_add_u32 v2, v2, v3
    {"v_mov_b32 v2, v1" if OPT['lin'] else ""}
    s_lshl_b32 s24, s12, 3
    s_add_u32 s24, s24, s16
    """)
    for tl in range(2):
        a(f"""
        s_add_u32 s25, s24, {tl}
        s_mul_i32 s26, s25, 21846
        s_lshr_b32 s26, s26, 16            ; T/3
        s_mul_i32 s26, s26, 60
        s_add_u32 s26, s26, s25            ; 63*(T/3) + T%3
        s_lshl_b32 s26, s26, 10
        s_add_u32 s26, s26, {WP2}
        s_mul_i32 s27, s13, {15*1024}
        s_add_u32 s27, s27, s26
        v_lshl_add_u32 v{VS0+tl}, v2, 4, s27
        s_lshl_b32 s27, s13, 8
        s_add_u32 s27, s27, s26
        s_add_u32 s27, s27, {60*1024}
        v_lshl_add_u32 v{VU+tl}, v2, 4, s27
        """)
    a("v_lshlrev_b32 v5, 1, v5")
    a(f"s_lshl_b32 s4, s3, 7\ns_add_u32 s4, s4, {GOB + 32*128}\ns_mov_b32 s63, s2\n" + "\n".join(rep_addr(23, 4)))
    pmh = lambda h: [f"global_load_dwordx2 {P(208+2*j)}, v{44+j}, s[22:23] offset:{5120*h-2560} sc1" for j in range(4)]
    pm = pmh(1)
    cm_ = [f"v_xor_b32 v{209+2*k}, s65, v{209+2*k}" for k in range(4)] + ["v_or3_b32 v209, v209, v211, v213", "v_or_b32 v209, v209, v215", "v_cmp_ne_u32 vcc, 0, v209"]
    sum4 = "v_add_f32 v208, v208, v210\nv_add_f32 v212, v212, v214\nv_add_f32 v208, v208, v212\nv_cvt_pk_bf16_f32 v208, v208, v208"
    mod_addr(a, 2, 236)
    NQ = 1 if OPT['qall'] else 3
    for k in range(NQ):
        for l in (q_addr(250, dst=(40, 41)) if OPT['qall'] else q_addr(250 + k, f"s_add_u32 s4, s3, {96*k}\ns_cmp_ge_u32 s4, 240\ns_cselect_b32 s5, 48, 0\ns_sub_u32 s4, s4, s5", (40 + 2*k, 41 + 2*k))): a(l)
    C = 56
    if OPT['w1early']:
        for l in mod_issue(49, W1): a(l)
    for j in range(5): a(f"v_lshlrev_b32 v{C+j}, 16, v{C+j}\nv_mul_f32 v{C+5+j}, 0xbfb8aa3b, v{C+j}\nv_exp_f32 v{C+5+j}, v{C+5+j}")
    for j in range(5): a(f"v_add_f32 v{C+5+j}, 1.0, v{C+5+j}\nv_rcp_f32 v{C+5+j}, v{C+5+j}")
    for j in range(5): a(f"v_mul_f32 v{C+j}, v{C+j}, v{C+5+j}")
    for j in range(5): a(f"v_cvt_pk_bf16_f32 v{C+j}, v{C+j}, 0\nv_lshlrev_b32 v{C+5+j}, 16, v{C+j}")
    if not OPT['w1early'] and not OPT['wfirst']:
        for l in mod_issue(49, W1): a(l)
    def wdma(i): return [f"s_add_u32 m0, s18, {2048*i}", f"global_load_lds_dwordx4 v{VDM}, s[30:31] ; tag=w{i}"] + ([f"v_add_u32 v{VDM}, {16*3072}, v{VDM}"] if i < 9 else [])
    if OPT['wa'] == 1: warm(a, 'aux')
    J = lambda lo, hi: ["\n".join(wdma(i)) for i in range(lo, hi)]
    mod_process(a, 0, W0, post=lambda: nonce(a), fill=J(0, OPT['aw0']))
    if stamp: stamp(a, 'flagA')
    for l in J(OPT['aw0'], OPT['aw1'] - OPT['ail']): a(l)
    if not OPT['wfirst']:
        mod_process(a, 1, W1, fill=J(OPT['aw1'] - OPT['ail'], OPT['aw1']))
        if stamp: stamp(a, 'r1')
    for l in pm: a(l)
    for i in range(OPT['aw1'], 10):
        for l in wdma(i): a(l)
    if OPT['wfirst']:
        W1 = 216
        for l in mod_issue(49, W1): a(l)
    if OPT['wa'] == 2: warm(a, 'aux')
    W2 = 216
    for l in cm_: a(l)
    a("s_cbranch_vccnz u_spinm\nu_okm:")
    spin(a, late, "u_spinm", pm, cm_, "u_okm")
    if stamp: stamp(a, 'pollA')
    ONES = 24
    for w in range(4): a(f"v_mov_b32 v{ONES+w}, 0x3f803f80")
    a(f"""
    {sum4}
    v_and_b32 v12, 0xffff0000, v208
    v_add_f32 v12, 1.0, v12
    v_cvt_pk_bf16_f32 v12, v12, v12
    ds_write_b16 v5, v12 offset:{L_CV}
    WAITVM w{2*OPT['NA']-1}
    s_waitcnt lgkmcnt(0)
    s_barrier
    """)
    if stamp: stamp(a, 'bar')
    NA = OPT['NA']
    UU, CV, SV, ML, LO, OUT, D = 66, 108, 128, 8, 28, 148, 188
    def rds(s):
        a(f"ds_read_b128 {V4(CV+4*s)}, v{VC} offset:{L_CV + 64*s}")
        for tl in range(2):
            for hh in range(2): a(f"ds_read_b64_tr_b16 {P(UU+8*s+4*tl+2*hh)}, v{VT+tl} offset:{4096*s + 512*hh}")
    def pq(part=3):
        for l in mod_issue(236, W2): a(l)
        for k in range(NQ):
            for l in q_issue(250 + k, k): a(l)
    for s in range(NA): rds(s)
    if OPT['pq'] == 0: pq()
    for s in range(5):
        if s == NA:
            if OPT['wfirst']:
                mod_process(a, 1, W1)
                if stamp: stamp(a, 'r1')
            a("WAITVM w9")
            if stamp: stamp(a, 'r2')
            a("s_barrier")
            for q in range(NA, 5): rds(q)
            if OPT['pq'] == 1: pq()
        for w in range(4): a(f"v_and_b32 v{ML+2*w}, 0xffff, v{CV+4*s+w}\nv_and_b32 v{ML+2*w+1}, 0xffff0000, v{CV+4*s+w}")
        for tl in range(2):
            for w in range(4):
                for h in range(2): a(f"v_dot2_f32_bf16 v{LO+8*tl+2*w+h}, v{UU+8*s+4*tl+w}, v{ML+2*w+h}, 0")
        for tl in range(2):
            o = OUT + 8*s + 4*tl
            for w in range(4): a(f"v_cvt_pk_bf16_f32 v{o+w}, v{LO+8*tl+2*w}, v{LO+8*tl+2*w+1}")
            a(f"global_store_dwordx4 v{VS0+tl}, {V4(o)}, s[22:23]" + SC + " ; tag=wst")
            if s < 4: a(f"v_add_u32 v{VS0+tl}, 3072, v{VS0+tl}")
    if stamp: stamp(a, 'sts')
    if OPT['pq'] == 2: pq()
    for s in range(5):
        for tl in range(2):
            a(mf(D+8*tl, V4(ONES), V4(OUT+8*s+4*tl), "0" if s == 0 else None))
    def fw():
        for l in flag_set('fw', 23, ONE_V): a(l)
        if stamp: stamp(a, 'fw')
    ids(a, 10, 11)
    for l in wbase(): a(l)
    wfl = M("0xfff", "global_load_dword v11, v10, s[22:23] sc1"); wchk = [tagchk(11, "0xfff")]
    if OPT['pq'] >= 2:
        if stamp: stamp(a, 'pre')
        a("WAITVM wst\ns_barrier"); fw()
        if OPT['pq'] == 3: pq()
        mod_process(a, 2, W2, wfl if OPT['wfp'] == 0 else '', (lambda: a(wfl)) if OPT['wfp'] == 1 else None)
    else: mod_process(a, 2, W2, "WAITVM wst", fw)
    qb = []
    for k in range(NQ):
        x, y = q_process(28 + 2*k, 29 + 2*k, 148 + 8*k, k, (40 + 2*k, 41 + 2*k)); qb += y
        for l in x: a(l)
    if OPT['pq'] < 2 or OPT['wfp'] == 2: a(wfl)
    for l in qb: a(l)
    if stamp: stamp(a, 'done')
    a(f"{wchk[0]}\ns_cbranch_vccnz u_spinw\nu_okw:")
    spin(a, late, "u_spinw", [wfl], wchk, "u_okw")
    def ext(a):
        for l in cm_: a(l)
        a("s_cbranch_vccnz u_spins\nu_oks:")
        spin(a, late, "u_spins", pmh(0), cm_, "u_oks")
        a(f"{sum4}\nds_write_b16 v112, v208\ns_waitcnt lgkmcnt(0)\ns_barrier")
        for s in range(5): a(f"ds_read_b128 {V4(SV+4*s)}, v113 offset:{64*s}")
        for s in range(5):
            for tl in range(2): a(mf(D+8*tl+4, V4(SV+4*s), V4(UU+8*s+4*tl), "0" if s == 0 else None))
        E = 204
        for k in (0, 2, 1, 3):
            u = D + 4*k; e = E + 2*k
            a(f"v_cvt_pk_bf16_f32 v{e}, v{u}, v{u}\nv_and_b32 v{u+1}, 0xffff0000, v{e}\nv_sub_f32 v{u}, v{u}, v{u+1}\nv_cvt_pk_bf16_f32 v{e+1}, v{u}, v{u}")
        a(M("0xffff", "\n".join(f"global_store_dwordx4 v{114+tl}, {V4(E+4*tl)}, s[22:23] sc1 ; untracked" for tl in range(2))))
    L_SV = 90112
    a(f"v_add_u32 v112, {L_SV}, v5\nv_add_u32 v113, {L_SV}, v{VC}\nv_mov_b32 v114, v{VU}\nv_mov_b32 v115, v{VU+1}\ns_lshl_b32 s4, s2, 9\ns_lshl_b32 s5, s20, 7\ns_add_u32 s4, s4, s5\ns_add_u32 s4, s4, {HER + 0x10000}\nv_mov_b32 v107, s4")
    a(f"s_and_b32 s4, s2, 7\ns_lshl_b32 s4, s4, 8\ns_add_u32 s4, s4, {HER}\nv_lshl_add_u32 v108, v1, 2, s4")
    for q in range(OPT['NE'] + 1):
        if q < OPT['NE']:
            for l in wld(q): a(l)
    for l in pmh(0): a(l)
    if not OPT['xl']: ext(a)
    if OPT['her']: a(HFL); hint(a, late, "u_hint2")
    a("s_waitcnt lgkmcnt(0)\ns_barrier\nCLEARVM")
    if stamp: stamp(a, 'her')
    EXT.append(ext if OPT['xl'] else lambda a: a(M(1, "global_store_dword v107, v107, s[22:23] ; untracked\nglobal_store_dword v107, v107, s[22:23] ; untracked")))
def gemm(a, stamp, late):
    O = OPT
    VX, VW, VO, VP, VB, VSL, VSS, VG, VRW, VRR, VF = 2, 3, 4, 5, 8, 12, 14, 15, 16, 17, 18
    wq = [0]
    def wnext(n):
        r = []
        for _ in range(n):
            if wq[0] < 63: r += wld(wq[0]) if wq[0] < O.get('x_w', 63) else ['s_nop 0']; wq[0] += 1
        return r
    wnext(O['NE'])
    c0 = -2*math.sqrt(2/math.pi)*math.log2(math.e)
    VH, VPC = 26, 30; nd = 32 // O['g2']
    ad = Asm()
    ad(f"""
    v_and_b32 v6, 15, v1
    v_lshrrev_b32 v7, 4, v1
    v_lshrrev_b32 v21, 2, v1
    v_and_b32 v20, 3, v1
    v_lshl_add_u32 v20, v21, 4, v20
    s_lshl_b32 s4, s20, 2
    v_add_u32 v20, s4, v20
    s_mul_i32 s4, s60, 10
    s_sub_u32 s4, s4, 40
    v_min_u32 v21, 49, v1
    v_add_u32 v21, s4, v21
    v_cmp_gt_u32 vcc, 40, v1
    s_add_u32 s4, s100, {320*128}
    v_lshl_add_u32 v25, v20, 7, s4
    v_cndmask_b32 v20, v21, v20, vcc
    s_add_u32 s4, s100, {128*128}
    v_lshl_add_u32 v{VP}, v20, 7, s4
    """)
    if O['go0']: ad(f"v_lshl_add_u32 v{VP}, v1, 7, s4")
    elif O['dense'] & 1: ad(f"v_bfe_u32 v21, v20, 2, 2\nv_lshrrev_b32 v22, 4, v20\nv_lshl_add_u32 v21, v21, 4, v22\nv_and_b32 v20, 3, v20\nv_lshl_add_u32 v20, v21, 2, v20\nv_lshl_add_u32 v{VP}, v20, 4, s4")
    if O['dense'] & 2: ad(f"s_add_u32 s4, s100, {320*128}\nv_lshl_add_u32 v25, v0, 4, s4")
    n_poll = len(ad.ins)
    ad(f"""
    s_mul_i32 s4, s61, {81920*O['TA']}
    s_lshl_b32 s30, s20, 11
    s_add_u32 s5, s4, s30
    s_add_u32 s5, s5, {XT1}
    v_lshl_add_u32 v{VX}, v1, 4, s5
    s_mov_b32 m0, s30
    v_bfe_u32 v20, v1, 2, 2            ; r
    v_lshl_add_u32 v21, v7, 3, v20
    v_lshlrev_b32 v21, 7, v21
    v_bfe_u32 v22, v1, 1, 1
    v_lshl_add_u32 v21, v22, 6, v21
    v_and_b32 v22, 1, v1
    v_lshl_add_u32 v21, v22, 3, v21
    v_lshrrev_b32 v20, 1, v20
    v_and_b32 v22, 1, v7
    v_lshl_add_u32 v20, v22, 1, v20    ; swizzle
    """)
    for t in range(4): ad(f"v_xor_b32 v22, {t}, v20\nv_lshl_add_u32 v{VB+t}, v22, 4, v21")
    ad(f"""
    s_mul_i32 s6, s60, {40*128}
    s_add_u32 s5, s4, s6
    s_and_b32 s6, s20, 1
    s_lshl_b32 s6, s6, 6
    s_add_u32 s5, s5, s6
    s_add_u32 s5, s5, {XT1 + 2048}
    v_lshrrev_b32 v20, 3, v1
    v_lshl_add_u32 v20, v20, 7, s5
    v_and_b32 v21, 3, v1
    v_lshl_add_u32 v20, v21, 2, v20
    v_bfe_u32 v21, v1, 2, 1
    v_bfe_u32 v22, v1, 4, 1
    v_xor_b32 v21, v21, v22
    s_lshl_b32 s6, s60, 1
    s_xor_b32 s6, s6, s20
    s_and_b32 s6, s6, 2
    v_xor_b32 v21, s6, v21
    v_lshl_add_u32 v{VSL}, v21, 4, v20
    v_xor_b32 v21, 2, v21
    v_lshl_add_u32 v{VSL+1}, v21, 4, v20
    """)
    n_urgent = len(ad.ins)
    for l in flag_addr(320, 245, 244, O['dense'] & 2): ad(l)
    ad(f"""
    v_mov_b32 v{VF+1}, s65
    s_lshl_b32 s5, s61, 14
    s_add_u32 s5, s5, {PST}
    s_lshl_b32 s6, s60, 10
    s_add_u32 s6, s6, s5
    s_lshr_b32 s7, s20, 1
    s_lshl_b32 s7, s7, 8
    s_add_u32 s6, s6, s7
    s_and_b32 s7, s20, 1
    s_lshl_b32 s7, s7, 6
    s_add_u32 s6, s6, s7
    v_bfe_u32 v20, v1, 2, 1
    v_and_b32 v21, 3, v1
    v_lshlrev_b32 v20, 4, v20
    v_lshl_add_u32 v20, v21, 1, v20
    v_lshrrev_b32 v22, 5, v1
    v_add_u32 v20, v20, v22
    v_lshl_add_u32 v{VSS}, v20, 3, s6
    s_mov_b32 s36, 0xff
    s_mov_b32 s37, 0xff
    """)
    n_mid = len(ad.ins)
    ad(f"""
    v_lshrrev_b32 v22, 5, v1
    s_lshl_b32 s6, s20, 7
    s_add_u32 s5, s5, s6
    v_lshrrev_b32 v20, 3, v1
    v_lshlrev_b32 v20, 11, v20
    v_and_b32 v21, 7, v1
    v_lshl_add_u32 v20, v21, 4, v20
    v_add_u32 v{VG}, s5, v20
    v_lshl_add_u32 v20, v21, 1, v22
    s_lshl_b32 s6, s20, 9
    v_lshl_add_u32 v{VRW}, v20, 5, s6
    v_lshlrev_b32 v{VRR}, 5, v6
    s_mul_i32 s5, s61, {2*196608}
    s_mul_i32 s6, s62, 3072
    s_add_u32 s5, s5, s6
    s_add_u32 s5, s5, {HH}
    v_lshl_add_u32 v{VO}, v1, 4, s5
    s_lshl_b32 s5, s61, 4
    s_add_u32 s5, s5, s60
    s_lshl_b32 s5, s5, 8
    s_add_u32 s5, s5, {UF_C2}
    v_lshl_add_u32 v{VF}, v1, 2, s5
    s_lshr_b32 s4, s60, {O['pb']+1}
    s_lshl_b32 s4, s4, {O['pb']}
    s_and_b32 s32, s60, {(1 << O['pb'])-1}
    s_add_u32 s32, s32, s4
    s_bfe_u32 s4, s60, {0x10000 + O['pb']}
    s_lshl_b32 s33, s61, 1
    s_add_u32 s33, s33, s4
    s_min_u32 s5, s32, 1
    s_xor_b32 s5, s5, 1
    s_lshl_b32 s5, s5, 14
    v_add_u32 v{VRW}, s5, v{VRW}
    v_add_u32 v{VRR}, s5, v{VRR}
    s_lshl_b32 s4, s4, 1
    s_and_b32 s5, s20, 1
    s_add_u32 s16, s4, s5
    v_bfe_u32 v20, v1, 3, 1
    v_lshrrev_b32 v21, 5, v1
    v_lshl_add_u32 v20, v21, 1, v20
    v_xor_b32 v20, s16, v20
    v_bfe_u32 v21, v1, 1, 1
    v_lshl_add_u32 v20, v21, 2, v20
    v_lshlrev_b32 v20, 4, v20
    v_and_b32 v21, 1, v1
    v_lshl_add_u32 v20, v21, 3, v20
    v_lshrrev_b32 v21, 2, v1
    v_lshl_add_u32 v20, v21, 7, v20
    s_lshr_b32 s4, s20, 1
    s_mul_i32 s4, s4, 81920
    s_mul_i32 s5, s32, 10240
    s_add_u32 s4, s4, s5
    v_add_u32 v31, s4, v20
    s_lshl_b32 s34, s32, 2
    s_add_u32 s34, s34, s20
    s_mul_i32 s34, s34, 61440
    s_add_u32 s34, s34, {WD + 4096}
    s_lshr_b32 s35, s33, 1
    s_lshl_b32 s4, s35, 4
    s_lshl_b32 s5, s20, 2
    s_add_u32 s4, s4, s5
    s_lshl_b32 s4, s4, 8
    s_add_u32 s4, s4, {UF_C2}
    v_and_b32 v20, 3, v1
    v_lshl_add_u32 v{VPC}, v20, 8, s4
    v_lshlrev_b32 v20, 10, v7
    v_lshl_add_u32 v20, v6, 4, v20
    s_mul_i32 s4, s35, {2*196608}
    s_mul_i32 s5, s20, 49152
    s_add_u32 s4, s4, s5
    s_and_b32 s5, s33, 1
    s_lshl_b32 s5, s5, 9
    s_add_u32 s4, s4, s5
    s_add_u32 s4, s4, {HH + 4096}
    s_and_b32 s5, s20, 1
    s_lshl_b32 s5, s5, 8
    s_xor_b32 s6, s5, 256
    s_add_u32 s6, s6, s4
    s_add_u32 s5, s5, s4
    v_add_u32 v{VH}, s6, v20
    v_add_u32 v{VH+1}, s5, v20
    v_add_u32 v{VH+2}, 196608, v{VH}
    v_add_u32 v{VH+3}, 196608, v{VH+1}
    """)
    ad = [i.text for i in ad.ins]
    PL = 24
    poll = [f"global_load_dword v{PL}, v{VP}, s[22:23] sc1"]
    chk = [f"v_cmp_ne_u32 vcc, s65, v{PL}"]
    mk0 = hex((1 << O['nsh']) - 1)
    poll0, chk0 = ([M(mk0, poll[0])], [tagchk(PL, mk0)]) if O['go0'] else (poll, chk)
    w1 = wnext(O['N1'])
    for l in (interleave(w1, ad[:n_poll]) if w1 else ad[:n_poll]): a(l)
    a(poll0[0])
    for l in interleave(wnext(O['N2']), ad[n_poll:n_urgent]): a(l)
    assert wq[0] <= 60
    for l in chk0: a(l)
    a("s_cbranch_vccnz f_spinb\nf_okb:")
    spin(a, late, "f_spinb", poll0, chk0, "f_okb")
    if stamp: stamp(a, 'pollB')
    def dma(G):
        if G >= 20: return []
        r = [f"global_load_lds_dwordx4 v{VX}, s[22:23]" + SC, f"global_load_lds_dwordx4 v{VX}, s[22:23] offset:1024" + SC + f" ; tag=x{G}"]
        if G < 19: r += [f"s_add_u32 m0, s30, {8192*(G+1)}", f"v_add_u32 v{VX}, {8192 + (81920*(O['TB']-1) if G == 9 else 0)}, v{VX}"]
        return r
    ACC, BF, EX, SL, SQ, T, GL, R = 32, 128, 192, 248, 20, 254, 224, 232
    def sld(h):
        r = [f"global_load_dword v{SL+i}, v{VSL+(i&1)}, s[22:23] offset:{1024*i-2048} sc1" for i in range(O.get('x_sl', 5))]
        return r + ([f"v_add_u32 v{VSL+k}, {81920*O['TB']}, v{VSL+k}" for k in range(2)] if h == 0 else [])
    for G in range(O['xd']):
        for l in dma(G): a(l)
        if G == O['sat']:
            for l in sld(0): a(l)
        if G == O['dst']:
            a("s_cmp_lg_u32 s49, 0\ns_cbranch_scc1 f_nodst\n" + "\n".join(DEFER) + "\ns_branch f_dst\nf_nodst:")
            EXT[0](a)
            a("f_dst:")
            a("TRACK global_store_dword v107, v107, s[22:23]\nTRACK global_store_dword v107, v107, s[22:23] ; tag=x1e")
    for l in ad[n_urgent:n_mid if O['adl'] else None] + [f"v_mov_b32 v{VP}, v25"]: a(l)
    def rdb(G): return [f"ds_read_b64_tr_b16 {P(BF+32*(G&1)+16*sl+4*t+2*hh)}, v{VB+t} offset:{8192*(G&7) + 4096*sl + 512*hh}" for sl in range(2) for t in range(4) for hh in range(2)]
    a("WAITVM x0\ns_barrier")
    fb1 = flag_set('b1', 245, 244, dense=O['dense'] & 2)
    for l in (fb1 if O['dst'] < 0 else []) + rdb(0): a(l)
    def st(h):
        r = []
        for i in range(5):
            r += [f"v_lshlrev_b32 v{T}, 16, v{SL+i%O.get('x_sl', 5)}", f"v_and_b32 v{T+1}, 0xffff0000, v{SL+i%O.get('x_sl', 5)}"]
            for e in range(2):
                if i == 0: r += [f"v_mov_b32 v{SQ+2*e}, v{T+e}", f"v_mul_f32 v{SQ+2*e+1}, v{T+e}, v{T+e}"]
                else: r += [f"v_add_f32 v{SQ+2*e}, v{SQ+2*e}, v{T+e}", f"v_fmac_f32 v{SQ+2*e+1}, v{T+e}, v{T+e}"]
        return r + red(SQ) + [M("s[36:37]", f"global_store_dwordx2 v{VSS}, {P(SQ)}, s[22:23] offset:{512*h} sc1")]
    def red(b):
        r = [f"v_permlane32_swap_b32 v{b+k}, v{b+2+k}" for k in range(2)] + [f"v_add_f32 v{b+k}, v{b+k}, v{b+2+k}" for k in range(2)]
        r += [f"v_add_f32_dpp v{b+k}, v{b+k}, v{b+k} row_ror:8 row_mask:0xf bank_mask:0xf" for k in range(2)]
        r += [f"v_mov_b32 v{b+2+k}, v{b+k}" for k in range(2)] + [f"v_permlane16_swap_b32 v{b+k}, v{b+2+k}" for k in range(2)]
        return r + [f"v_add_f32 v{b+k}, v{b+k}, v{b+2+k}" for k in range(2)]
    gat = lambda h: [f"global_load_dwordx4 {V4(GL+4*i)}, v{VG}, s[22:23] offset:{1024*i + 512*h} sc1" for i in range(2)]
    gchk = [f"v_min3_f32 v{R}, v{GL+1}, v{GL+3}, v{GL+5}", f"v_min_f32 v{R}, v{R}, v{GL+7}", f"v_cmp_gt_f32 vcc, 0, v{R}"]
    fin = [f"v_add_f32 v{GL+k}, v{GL+k}, v{GL+4+k}" for k in range(4)] + red(GL)
    fin += [f"v_mul_f32 v{GL}, 0xbacccccd, v{GL}", f"v_mul_f32 v{GL+1}, 0x3acccccd, v{GL+1}",
            f"v_fma_f32 v{GL+1}, -v{GL}, v{GL}, v{GL+1}", f"v_cvt_pk_bf16_f32 v{GL+2}, v{GL}, v{GL}", f"v_max_f32 v{GL+1}, 0, v{GL+1}",
            f"v_and_b32 v{GL+2}, 0xffff0000, v{GL+2}", f"v_add_f32 v{R+6}, 0x3727c5ac, v{GL+1}", f"v_sub_f32 v{GL+3}, v{GL}, v{GL+2}",
            f"v_rsq_f32 v{GL+4}, v{R+6}", f"v_sqrt_f32 v{GL+5}, v{R+6}", f"v_cvt_pk_bf16_f32 v{R}, v{GL+2}, v{GL+3}",
            f"v_mul_f32 v{R+5}, {f2u(c0)}, v{GL+4}", f"v_cvt_pk_bf16_f32 v{GL+6}, v{GL+5}, v{GL+5}", f"v_mul_f32 v{GL+4}, v{GL+4}, v{GL+4}",
            f"v_and_b32 v{GL+6}, 0xffff0000, v{GL+6}", f"v_mul_f32 v{GL+4}, {f2u(0.044715)}, v{GL+4}", f"v_sub_f32 v{GL+7}, v{GL+5}, v{GL+6}",
            f"v_mul_f32 v{R+4}, v{GL+4}, v{R+5}", f"v_cvt_pk_bf16_f32 v{R+2}, v{GL+6}, v{GL+7}", f"v_mov_b32 v{R+1}, v{R}", f"v_mov_b32 v{R+3}, v{R+2}",
            f"v_mov_b32 v{R+7}, v{R+6}", ]
    finh = lambda h: fin + [f"ds_write_b128 v{VRW}, {V4(R)} offset:{2048*h}", f"ds_write_b128 v{VRW}, {V4(R+4)} offset:{2048*h+16}"]
    dq = [0]
    def dnext(n, lim=60):
        r = []
        for _ in range(n):
            q = dq[0]
            if q >= min(lim, O.get('x_wd', 60)): break
            if q == 0: r.append(f"v_lshl_add_u32 v{VW}, v1, 4, s34")
            r.append(f"global_load_dwordx4 {A4(4*q)}, v{VW}, s[22:23] offset:{1024*(q&7)-4096}" + SC)
            if q & 7 == 7: r.append(f"v_add_u32 v{VW}, 8192, v{VW}")
            dq[0] += 1
        return r
    RR, TM = 224, 236
    def rdex(hb): return [f"ds_read_b128 {V4(EX+8*t+4*k)}, v{VRR} offset:{512*(4*hb+t)+16*k}" for k in range(2) for t in range(4)]
    def flagc(hb): return [f"WAITVM hh{hb}"] + ["s_waitcnt lgkmcnt(0)"]*hb + ["s_barrier"] + flag_set(f'c{hb}', VF, VF+1, True, 128*hb)
    def pollc(hb): return [M(15, f"global_load_dword v{PL}, v{VPC}, s[22:23] offset:{128*hb} sc1")]
    def checkc(hb):
        if O.get('x_c'): return
        a(chk[0] + f"\ns_cbranch_vccnz f_spinc{hb}\nf_okc{hb}:")
        spin(a, late, f"f_spinc{hb}", pollc(hb), chk, f"f_okc{hb}")
    def epilogue(hb, fill, mid=None):
        m = [mf(ACC+48*hb+12*t+4*j, A4(240+4*j), V4(EX+8*t)) for j in range(3) for t in range(4)]
        for l in interleave(m, fill(2)): a(l)
        if mid: mid()
        sts = []
        for j in range(3):
            r = RR + 4*j; ts = range(4)
            g = lambda t: ACC + 48*hb + 12*t + 4*j
            tm = lambda t: TM + 2*t
            e = []
            for t in ts: e.append(f"v_pk_mul_f32 {P(tm(t))}, {P(g(t))}, {P(g(t))}")
            for t in ts: e.append(f"v_pk_fma_f32 {P(tm(t))}, {P(tm(t))}, {P(EX+8*t+4)}, {P(EX+8*t+4)} op_sel:[0,0,1] op_sel_hi:[1,0,1]")
            for t in ts: e.append(f"v_pk_mul_f32 {P(tm(t))}, {P(tm(t))}, {P(g(t))}")
            for t in ts: e += [f"v_exp_f32 v{tm(t)}, v{tm(t)}", f"v_exp_f32 v{tm(t)+1}, v{tm(t)+1}", f"v_pk_mul_f32 {P(g(t))}, {P(g(t))}, {P(g(t)+2)}"]
            for t in ts: e.append(f"v_pk_fma_f32 {P(tm(t))}, {P(tm(t))}, {P(EX+8*t+6)}, {P(EX+8*t+6)}")
            for t in ts: e += [f"v_rcp_f32 v{tm(t)}, v{tm(t)}", f"v_rcp_f32 v{tm(t)+1}, v{tm(t)+1}"]
            for t in ts: e.append(f"v_pk_mul_f32 {P(g(t))}, {P(g(t))}, {P(tm(t))}")
            for t in (0, 2, 1, 3): e.append(f"v_cvt_pk_bf16_f32 v{r+t}, v{g(t)}, v{g(t)+1}")
            for l in interleave(e, fill(O['edr'])): a(l)
            a(f"v_permlane32_swap_b32 v{r}, v{r+2}\nv_permlane32_swap_b32 v{r+1}, v{r+3}\nv_permlane16_swap_b32 v{r}, v{r+1}\nv_permlane16_swap_b32 v{r+2}, v{r+3}")
            sts.append(f"global_store_dwordx4 v{VO}, {V4(r)}, s[22:23] offset:{1024*j}" + SC + f" ; tag=hh{hb}")
            if not (O['late'] >> hb & 1) or j == 2:
                for l in sts: a(l)
                sts = []
        if hb == 0: a(f"v_add_u32 v{VO}, 196608, v{VO}")
    A2, HB, NHB, RD, GB, RT = 80, 32, 12, 160, 220, 244
    seq = []
    for k in range(48):
        t, sl = divmod(k, 12); r = HB + 4*(k % NHB) + (96 if 12 <= k < 24 else 0)
        if k < 24 and O['pair']: sl, t = divmod(k, 2)
        ins = [f"global_load_dwordx4 {V4(r)}, v{VH+t}, s[22:23] offset:{4096*(sl&1)-4096}" + SC]
        if sl & 1 and sl < 11: ins.append(f"v_add_u32 v{VH+t}, 8192, v{VH+t}")
        seq.append((ins, [mf(A2+20*t+4*jj, A4(20*sl+4*jj), V4(r), "0" if sl == 0 else None) for jj in range(5)]))
    W = O['win']; W0 = O['win0']; assert W < NHB and W0 <= 24
    hq = [0]; okc = [0]
    def hnext(n, lim):
        r = []
        while n > 0 and hq[0] < min(lim, 48): r += seq[hq[0]][0]; hq[0] += 1; n -= 1
        return r
    valu = []
    wrate = -(-(60 - wq[0]) // O['wspan'])
    xs = [O['xd']]; covered = 0; GM = O['GM']; xt = [-1]*xs[0]
    def xnext(n, G):
        r = []
        while n > 0 and xs[0] < (20 if G >= O['b1c'] else 10): r += dma(xs[0]); xs[0] += 1; xt.append(G); n -= 1
        return r
    for G in range(20):
        h, Gl = divmod(G, 10); bf = BF + 32*(G & 1)
        m = [mf(ACC+48*h+12*t+4*j, A4(12*(2*Gl+sl)+4*j), V4(bf+16*sl+4*t), "0" if Gl == 0 and sl == 0 else None) for sl in range(2) for t in range(4) for j in range(3)]
        for k in range(2):
            if G == O['gcheck'][k]:
                for l in gchk: a(l)
                a(f"s_cbranch_vccnz f_sping{k}\nf_okg{k}:")
                spin(a, late, f"f_sping{k}", gat(k), gchk, f"f_okg{k}")
                valu += finh(k)
        if G == O['b1c']:
            a(chk[0] + "\ns_cbranch_vccnz f_spinb1\nf_okb1:")
            spin(a, late, "f_spinb1", poll, chk, "f_okb1")
            if stamp: stamp(a, 'pollB1')
        if G == O['cc0']: checkc(0); okc[0] = 1; stamp and stamp(a, 'pollC')
        if G == GM:
            if stamp: stamp(a, 'm0')
            def fill0(n):
                r = xnext(n // 2, G - 1); n -= sum(l.startswith('global') for l in r)
                return r + dnext(n, 6*Gl)
            epilogue(0, fill0)
        if stamp: stamp(a, f'g{G}')
        a("s_waitcnt lgkmcnt(0)")
        head = []; lds = []
        if G < 19:
            if G + 1 > covered:
                assert G + 1 < len(xt)
                covered = min(19, max([G + 1] + [k for k in range(len(xt)) if xt[k] <= G - O['xtl']]))
                head = [f"WAITVM x{covered}", "s_barrier"]
            lds = rdb(G+1)
        for k, g in enumerate((GM - 1, 19)):
            if G == g:
                assert not any(l.startswith('ds_write') for l in valu) and G > O['gcheck'][k]
                if not head: head = ["s_barrier"]
                lds = rdex(k) + lds + ([f"ds_read_b64_tr_b16 {P(RT+2*jj)}, v31 offset:{2048*jj}" for jj in range(5)] if k else [])
        if G == O['b1f'] and O['dst'] >= 0: head = ["WAITVM x1e"] + [x for x in head if x != 's_barrier'] + ["s_barrier"] + fb1
        if G == GM + O['cf0']: head = [x for x in head if x != 's_barrier'] + flagc(0)
        if G == O['b1c']:
            if not head: head = ["s_barrier"]
            head += ["s_cmp_lg_u32 s2, 0", "s_cbranch_scc1 u_noepo", f"v_mov_b32 v244, {EPO}", "s_mov_b64 exec, 1", f"global_store_dword v244, v{VF+1}, s[22:23] sc1 ; untracked", "s_mov_b64 exec, -1", "u_noepo:"]
        ld = []
        if G == O['cp0']: ld += pollc(0)
        if G == O['b1i']: ld += poll
        ld += xnext(O['xrate'][G] if G < len(O['xrate']) else 1, G)
        ld += wnext(min(wrate, 60 - wq[0])) if wq[0] < 60 else wnext(3) if G >= O['b1c'] else []
        if G == O['sat1']: ld += sld(1)
        if G == O['pfg'] and O['sen']:
            ld += [f"v_add_u32 v246, {196608 if G < GM else 0}, v{VO}\n" + "\n".join(f"v_mov_b32 v{240+k}, -1" for k in range(4))] + [f"global_store_dwordx4 v246, {V4(240)}, s[22:23] offset:{1024*j} sc1 ; tag=hh0" for j in range(3)]
            assert G < GM + O['cf0'] and G > O['b1f']
        for k in range(2):
            if G == O['gissue'][k]: assert k or len(valu) < len(ad) - n_mid - 12; ld += gat(k)
            if G == O['gstat'][k]: valu += st(k) + (ad[n_mid:] if k == 0 and O['adl'] else [])
        if G > 10: assert wq[0] == 63; ld += dnext(O['wdrate'], 6*Gl)
        if okc[0]: ld += hnext(O['hrate'], min(W0, 12))
        out, valu = slots(m, head, lds, vmgroups(ld), valu, vm_cost=O['vmc'], spread=O['spread'])
        if (G + 2) % 8 == 0: out += [f"v_add_u32 v{VB+i}, 65536, v{VB+i}" for i in range(4)]
        for l in out: a(l)
    assert wq[0] == 63
    if stamp: stamp(a, 'g20')
    def fill1(n):
        r = dnext(n, O['dlim']); n -= sum(l.startswith('global') for l in r)
        return r + (hnext(n, W0) if okc[0] else [])
    def mid1():
        if not okc[0]: checkc(0); okc[0] = 1; stamp and stamp(a, 'pollC')
    epilogue(1, fill1, mid1)
    ldp(a, 24, 'out')
    for l in dnext(60, O['dlim']): a(l)
    dq0 = dq[0]; drest = vmgroups(dnext(60))
    if stamp: stamp(a, 'epi')
    VR, VGB, VXW, VXR, VST, VOUT, SRD, VTR = 2, 5, 8, 12, 13, 14, 20, 17
    L_EX = 5120; L_ST = L_EX + 4*3*5*1024; L_RES = 81920
    ad = Asm()
    ad(f"""
    s_lshr_b32 s8, s20, 1
    s_and_b32 s9, s20, 1
    s_mul_i32 s10, s35, {O['TA']}
    s_mul_i32 s11, s8, {O['TB']}
    s_add_u32 s14, s10, s11
    s_mul_i32 s10, s32, 320
    s_add_u32 s10, s10, {MODP + 5*2560}
    v_lshl_add_u32 v{VGB}, v1, 4, s10
    s_lshl_b32 s10, s20, 10
    s_add_u32 s10, s10, {L_RES}
    v_lshl_add_u32 v{VR}, v1, 4, s10
    v_lshl_add_u32 v{VTR}, v7, 4, s10
    """)
    for lam in range(4):
        ad(f"s_xor_b32 s10, s9, {2*(lam>>1) + ((lam&1)^1)}\ns_xor_b32 s11, s10, s20\ns_mul_i32 s10, s10, 15360\ns_mul_i32 s11, s11, 5120\ns_add_u32 s10, s10, s11\nv_lshl_add_u32 v{VXW+lam}, v1, 4, s10")
    n_early = len(ad.ins)
    ad(f"""
    s_mul_i32 s10, s20, 15360
    v_lshl_add_u32 v{VXR}, v1, 4, s10
    s_mul_i32 s10, s20, {16*176}
    s_add_u32 s10, s10, {L_ST}
    v_mul_u32_u24 v4, 176, v6
    v_lshl_add_u32 v4, v7, 3, v4
    v_add_u32 v{VST}, s10, v4
    s_lshl_b32 s11, s14, 2
    s_add_u32 s11, s11, s16
    s_mul_i32 s11, s11, {16*1280}
    s_mul_i32 s12, s32, 160
    s_add_u32 s11, s11, s12
    """)
    for i in range(3):
        ad(f"v_add_u32 v4, {64*i}, v1\nv_min_u32 v4, 159, v4\nv_mul_u32_u24 v31, 6554, v4\nv_lshrrev_b32 v31, 16, v31")
        ad(f"v_add_u32 v{SRD+i}, v4, v31\nv_lshl_add_u32 v{SRD+i}, v{SRD+i}, 4, s10")
        ad(f"v_mul_u32_u24 v31, {1280-160}, v31\nv_lshl_add_u32 v31, v4, 4, v31\nv_add_u32 v{VOUT+i}, s11, v31")
    ad = [i.text for i in ad.ins]
    def wr(t): return [f"ds_write_b128 v{VXW+t}, {V4(A2+20*t+4*jj)} offset:{L_EX - 5120 + 1024*jj + 5120*0}" for jj in range(5 if not O.get('x_wr') else 0)]
    gbl = [M("0xfffff", "\n".join(f"global_load_dwordx4 {V4(GB+4*k)}, v{VGB}, s[22:23] sc1\nv_add_u32 v{VGB}, 15360, v{VGB}" for k in (2*j, 2*j+1))) for j in range(2)]
    gb = [f"v_add_f32 v{GB+k}, v{GB+k}, v{GB+8+k}" for k in range(8)] + [f"v_add_f32 v{GB+k}, v{GB+k}, v{GB+4+k}" for k in range(4)]
    for k in range(2): gb += [f"v_cvt_pk_bf16_f32 v31, v{GB+2*k}, v{GB+2*k+1}", f"v_lshlrev_b32 v{GB+2*k}, 16, v31", f"v_and_b32 v{GB+2*k+1}, 0xffff0000, v31"]
    gb += [f"ds_write_b128 v{VR}, {V4(GB)}"] + [f"ds_read_b128 {V4(GB+4*jj)}, v{VTR} offset:{64*jj}" for jj in range(5)]
    def rdp(ps): return [f"ds_read_b128 {V4(RD+20*p+4*jj)}, v{VXR} offset:{L_EX + 5120*p + 1024*jj}" for jj in range(5) for p in ps]
    XU = A2
    unp = []
    for k in range(10): unp += [f"v_lshlrev_b32 v{XU+2*k}, 16, v{RT+k}", f"v_and_b32 v{XU+2*k+1}, 0xffff0000, v{RT+k}"]
    add = lambda d, x: [f"v_add_f32 v{d+k}, v{d+k}, v{x+k}" for k in range(20)]
    def outst():
        r = [f"ds_read_b128 {V4(RD+4*i)}, v{SRD+i}" for i in range(3)]
        for i in range(3):
            if i == 2: r += ["s_waitcnt lgkmcnt(0)", "s_mov_b64 exec, 0xffffffff"]
            r.append(f"global_store_dwordx4 v{VOUT+i}, {V4(RD+4*i)}, s[24:25]")
        return r + ["s_mov_b64 exec, -1"]
    BAR = ["s_waitcnt lgkmcnt(0)", "s_barrier"]
    mm = [l for x in seq for l in x[1]]
    f1, pI, pc = 5*O['fC1'], 5*O['pI'], 5*O['pc']
    if not O['sen']: spin(a, late, "f_spinc1", pollc(1), chk, "f_okc1")
    hreg = lambda k: HB + 4*(k % NHB)
    def sch(p):
        r = []
        for k in range(24, 48):
            g = 5*(k - 24) - 1
            r += [(f"v_cmp_eq_u32 vcc, -1, v{hreg(k)}", max(-1, g - 1), max(-1, g - 1)), ([f"s_cbranch_vccnz f_re{k} ; nosnap", f"f_ok{p}{k}:"], g, g)]
        return r if O['sen'] else []
    if O['sen']:
        SPINS.append('f_re')
        for k in range(24, 48):
            ld = lambda q: f"v_add_u32 v4, {4096*(q % 12)}, v{(23, 25)[q//12 - 2]}\nglobal_load_dwordx4 {V4(hreg(q))}, v4, s[22:23] offset:-4096 sc1"
            late.append(f"f_re{k}:\n" + (f"s_or_b32 s101, s101, {1 << (len(SPINS)-1)}\n" if DIAG[0] else "") + f"s_mov_b32 s64, 0\nf_re{k}_l:\ns_waitcnt vmcnt(0)\ns_sleep 1\n{ld(k)}\ns_waitcnt vmcnt(0)\n"
                        f"v_cmp_eq_u32 vcc, -1, v{hreg(k)}\ns_add_u32 s64, s64, 1\ns_cmp_ge_u32 s64, 0x40000\ns_cbranch_scc1 f_re{k}_x\ns_cbranch_vccnz f_re{k}_l\nf_re{k}_x:\n"
                        + "\n".join(ld(q) for q in range(k + 1, min(k + O['rel'], 47) + 1)) + f"\ns_waitcnt vmcnt(0)\ns_cmp_ge_u32 s20, 2\ns_cbranch_scc1 f_okb{k}\ns_branch f_oka{k}")
    hch = []
    for k in range(hq[0], 48):
        if k == 24 and not O['sen']: hch.append(([chk[0], "s_cbranch_vccnz f_spinc1", "f_okc1:"], pc, pc))
        lo = max(5*(k - (12 if k >= 36 else 24)) + 4, 5*(k - W), pc) if k >= 24 else max(-1, 5*(k - W0))
        hi = min(5*k - 1, lo + O['hsl']) if k >= 24 else max(lo, 5*(k - W))
        hch.append((seq[k][0] if not O.get('x_h') else ['s_nop 0'], lo, hi))
    T_ = lambda l, lo, hi=999: [(x, lo, hi) for x in l]
    ach = T_(ad[:12], 0, 8) + T_(ad[12:n_early], 0, 60) + T_(ad[n_early:], 0, min(118, O['gbp'] + 54))
    vch = [(flagc(1) if not O['sen'] else BAR, f1, f1)] + [(gbl[0], O['gbp'], O['gbp']), (gbl[1], O['gbp'] + 5, O['gbp'] + 5)]
    pch = [(pollc(1), pI, pI)] if not O['sen'] else [(f"v_mov_b32 v23, v{VH+2}", 0, 2), (f"v_mov_b32 v25, v{VH+3}", 0, 2)]
    dch = [(g, -1, max(-1, (10 if O['pair'] else 5)*((dq0 + k)//5) - 5*W)) for k, g in enumerate(drest)]
    wch = T_(wr(0), max(63, f1 + 6), 118) if not O['pair'] else []
    w0l = wr(0) if O['pair'] else []
    gch = T_(gb, O['gbp'] + 55)
    rsv = lambda g: 1 if g % 5 == 4 else 0
    rsv2 = (lambda g: 1 if g % 5 == 3 else 0) if O['sen'] else rsv
    def emit(out, base):
        n = base
        for l in out:
            if stamp and l.startswith('v_mfma'):
                if n % 60 == 5: stamp(a, f'q{n//5}')
                n += 1
            a(l)
            if stamp and l == 'f_okc1:': stamp(a, 'pollC1')
    out, rest = listsched(mm[:120], [hch, ach, vch, pch, wch, gch, dch], vmgap=O['vg'], reserve=rsv, flush=False)
    emit(out, 0)
    assert not (rest[1] or rest[2] or rest[3] or rest[4] or rest[6])
    sh = lambda c: [(t, lo - 120, hi - 120) for t, lo, hi in c]
    a("s_cmp_ge_u32 s20, 2\ns_cbranch_scc1 f_pathb")
    b2, b3 = O['b2'], O['b3']
    c = A2 + 20
    fa = add(RD, RD+20) + add(c, RD+40) + unp + add(c, RD)
    for jj in range(5):
        fa += [f"v_fma_f32 v{c+4*jj+k}, v{c+4*jj+k}, v{GB+4*jj+k}, v{XU+4*jj+k}" for k in range(4)]
        fa += [f"v_cvt_pk_bf16_f32 v{c+4*jj+h}, v{c+4*jj+2*h}, v{c+4*jj+2*h+1}" for h in range(2)] + [f"ds_write_b64 v{VST}, {P(c+4*jj)} offset:{32*jj}"]
    lch = T_(w0l, 0, b2 - 4) + [(BAR, b2, b2)] + T_(rdp((0, 1)) + rdp((2,)), b2, b2 + 18) + T_(wr(2), 63, b3 - 4) + [(BAR, b3, b3)]
    out, r2 = listsched(mm[120:], [sh(rest[0]), lch, sh(rest[5]) + T_(fa, b2 + 20), sch('a')], vmgap=O['vg'], reserve=rsv2, flush=False)
    emit(out, 120)
    assert not (r2[0] or r2[1])
    left = [x[0] for x in r2[2]]
    for l in left[:6] + wr(3) + BAR + left[6:] + outst(): a(l)
    if stamp: stamp(a, 'q48')
    a("s_branch f_done\nf_pathb:")
    c = A2 + 60
    lch = T_(w0l, 0, b2 - 4) + T_(wr(1), 3, b2 - 4) + [(BAR, b2, b2)] + T_(wr(2), 63, b3 - 4) + [(BAR, b3, b3)] + T_(rdp((0, 2)), b3, b3 + 12)
    emit(listsched(mm[120:], [sh(rest[0]), lch, sh(rest[5]) + T_(unp, b2 + 1) + T_(add(RD, RD+40), b3 + 16), sch('b')], vmgap=O['vg'], reserve=rsv2), 120)
    for jj in range(5):
        for h in range(2): a(f"v_pk_add_f32 {P(c+4*jj+2*h)}, {P(c+4*jj+2*h)}, {P(RD+4*jj+2*h)}")
    a("s_barrier")
    if stamp: stamp(a, 'q48')
    for l in rdp((1,)): a(l)
    for jj in range(5):
        r = c + 4*jj
        for h in range(2): a(f"v_pk_add_f32 {P(r+2*h)}, {P(r+2*h)}, {P(RD+20+4*jj+2*h)}")
        for h in range(2): a(f"v_pk_fma_f32 {P(r+2*h)}, {P(r+2*h)}, {P(GB+4*jj+2*h)}, {P(XU+4*jj+2*h)}")
        for h in range(2): a(f"v_cvt_pk_bf16_f32 v{r+h}, v{r+2*h}, v{r+2*h+1}")
        a(f"ds_write_b64 v{VST}, {P(r)} offset:{32*jj}")
    for l in outst(): a(l)
    a("f_done:")
def kf(stamp=None):
    a = Asm(); late = []; del SPINS[:]; del DEFER[:]; del EXT[:]; assert OPT['dst'] >= 0; DIAG[0] = bool(stamp)
    if stamp: a("s_mov_b32 s101, 0")
    a(f"""
    s_cmp_ge_u32 s2, 256
    s_cbranch_scc1 f_end
    """)
    ldp(a, 22, 'ws'); ldp(a, 36, 'x'); ldp(a, 38, 'wd')
    if stamp: stamp(a, 0)
    a(f"""
    v_lshrrev_b32 v1, 6, v0
    s_getpc_b64 s[40:41]
u_pc:
    v_readfirstlane_b32 s20, v1
    s_lshr_b32 s42, s2, 3
    s_lshl_b32 s42, s42, 11
    v_and_b32 v2, 3, v0
    v_lshl_add_u32 v2, v1, 2, v2
    v_lshl_add_u32 v2, v2, 7, s42
    v_min_u32 v2, code_end-u_pc-4, v2
    v_mov_b32 v3, s41
    v_add_co_u32 v2, vcc, s40, v2
    v_addc_co_u32 v3, vcc, 0, v3, vcc
    s_mov_b64 exec, 15
    PFLOAD
    s_mov_b64 exec, -1
    v_and_b32 v1, 63, v0
    """)
    for k, i in enumerate(a.ins):
        if i.text == 'PFLOAD': a.ins[k] = I("global_load_dword v255, v[2:3], off")
    a(f"v_mov_b32 v247, {EPO}\ns_and_b32 s100, s2, 7\ns_mul_i32 s100, s100, {GOS}\ns_add_u32 s100, s100, {GOB}")
    a("s_mov_b32 s49, 0\ns_cmp_lt_u32 s2, 160\ns_cbranch_scc1 f_conv\ns_mov_b32 s49, 1")
    role_prep(a, stamp, late)
    a("s_branch f_join\nSPLIT\nf_conv:")
    role_conv(a, stamp, late)
    p = [k for k, i in enumerate(a.ins) if i.text == 'SPLIT']
    mid = Asm(); mid("warm_back:\ns_cmp_eq_u32 s49, 0\ns_cbranch_scc1 warm_conv ; nosnap\ns_branch warm_aux ; nosnap\n.p2align 12")
    a.ins = a.ins[:p[0]] + a.ins[p[1]+1:p[2]] + mid.ins + a.ins[p[0]+1:p[1]] + a.ins[p[2]+1:]
    a("CLEARVM\nf_join:")
    gemm(a, stamp, late)
    if stamp: stamp(a, 'end')
    a("f_end:\ns_endpgm")
    for l in late: a(l)
    return a
```

```python
import re, copy
TRANS = ('v_exp_f32','v_log_f32','v_rcp_f32','v_rsq_f32','v_sqrt_f32','v_sin_f32','v_cos_f32')
def regs_of(op):
    op = op.strip()
    op = re.sub(r'^-', '', op); op = re.sub(r'^abs\((.*)\)$', r'\1', op); op = op.strip('|')
    m = re.fullmatch(r'([vas])(\d+)', op)
    if m: return [(m.group(1), int(m.group(2)))]
    m = re.fullmatch(r'([vas])\[(\d+):(\d+)\]', op)
    if m: return [(m.group(1), i) for i in range(int(m.group(2)), int(m.group(3)) + 1)]
    if op == 'vcc': return [('s', 106), ('s', 107)]
    if op == 'vcc_lo': return [('s', 106)]
    if op == 'vcc_hi': return [('s', 107)]
    if op == 'm0': return [('s', 124)]
    if op == 'exec': return [('s', 126), ('s', 127)]
    return []
class I:
    def __init__(s, text):
        s.text = text
        t = text.split(';')[0].strip()
        s.label = None; s.mn = ''; s.ops = []; s.mods = ''
        if t.endswith(':'): s.label = t[:-1]; return
        if t.startswith('.'): s.mn = '.dir'; return
        if t.startswith('TRACK'): s.mn = 'TRACK'; return
        p = t.split(None, 1); s.mn = p[0]
        rest = p[1] if len(p) > 1 else ''
        ops = []; depth = 0; cur = ''
        for ch in rest:
            if ch in '[(': depth += 1
            if ch in '])': depth -= 1
            if ch == ',' and depth == 0: ops.append(cur.strip()); cur = ''
            else: cur += ch
        if cur.strip():
            q = cur.strip().split(None, 1); ops.append(q[0]); s.mods = q[1] if len(q) > 1 else ''
        s.ops = ops
        mn = re.sub(r'_(e32|e64|dpp|sdwa)$', '', s.mn); s.base = mn
        R = [regs_of(o) for o in ops]
        flat = lambda l: [x for y in l for x in y]
        s.mfma = mn.startswith('v_mfma'); s.valu = mn.startswith('v_') and not s.mfma
        s.ds = mn.startswith('ds_'); s.vm = mn.startswith(('global_', 'buffer_')); s.smem = mn.startswith(('s_load', 's_memtime', 's_memrealtime', 's_buffer_load'))
        s.salu = mn.startswith('s_') and not s.smem
        s.trans = mn in TRANS; s.dot = mn.startswith('v_dot')
        s.dpp = any(k in s.mods for k in ('row_', 'quad_perm', 'wave_')) or s.mn.endswith('_dpp')
        s.perml = mn.startswith('v_permlane'); s.rdl = mn in ('v_readlane_b32', 'v_readfirstlane_b32')
        s.m0use = False; s.wide = []
        d, u = [], []
        if s.mfma:
            d = R[0]; u = flat(R[1:]); s.A = R[1]; s.B = R[2]; s.C = R[3]
            s.passes = 8 if '32x32' in mn else 4
        elif s.perml: d = flat(R); u = flat(R)
        elif s.valu:
            nd = 2 if mn in ('v_add_co_u32', 'v_addc_co_u32', 'v_sub_co_u32', 'v_mad_u64_u32') else 1
            d = flat(R[:nd]); u = flat(R[nd:])
            if mn in ('v_fmac_f32', 'v_dot2c_f32_bf16', 'v_writelane_b32') or s.dpp: u = u + R[0]
        elif s.ds:
            if mn.startswith(('ds_read', 'ds_bpermute', 'ds_permute', 'ds_swizzle')):
                d = R[0]; u = flat(R[1:])
                if 'd16' in mn: u = u + R[0]
            else: u = flat(R)
            s.m0use = 'addtid' in mn
        elif s.vm:
            if mn.startswith(('buffer_wbl2', 'buffer_inv')): pass
            elif '_load_lds' in mn or (mn.startswith('buffer_load') and re.search(r'\blds\b', s.mods)): u = flat(R); s.m0use = True
            elif '_load' in mn:
                d = R[0]; u = flat(R[1:])
                if 'd16' in mn: u = u + R[0]
            elif '_atomic' in mn and 'sc0' in s.mods: d = R[0]; u = flat(R[1:])
            else:
                u = flat(R)
                if mn.endswith(('x3', 'x4')): s.wide = R[1] if mn.startswith('global') else R[0]
        elif s.smem: d = R[0]; u = flat(R[1:])
        elif s.salu:
            if mn.startswith(('s_cmp', 's_cbranch', 's_branch', 's_waitcnt', 's_nop', 's_barrier', 's_endpgm', 's_sleep', 's_setprio', 's_bitcmp')): u = flat(R)
            else:
                d = R[0]; u = flat(R[1:])
                if 'saveexec' in mn: d = d + regs_of('exec')
        s.d = set(d); s.u = set(u)
class State:
    def __init__(s):
        s.vm = []; s.lg = []
        s.ev = {}; s.t = 0
    def step(s, n): s.t += n
    def snap(s):
        c = State(); c.vm = s.vm[:]; c.lg = s.lg[:]; c.t = s.t
        c.ev = {k: v for k, v in s.ev.items() if s.t - v[0] < 24}
        return c
    def merge(s, o):
        for k, v in o.ev.items():
            tt = s.t - (o.t - v[0])
            if k not in s.ev or tt > s.ev[k][0]: s.ev[k] = (tt, v[1])
        def mq(x, y, what):
            if x == y or not y: return x
            if not x: return y[:]
            assert not any(e[0] for e in x + y), f"merge with pending {what} loads"
            r = (x if len(x) <= len(y) else y)[:]
            if any(e[1] == 's' for e in x + y) and not any(e[1] == 's' for e in r): r = [(set(), 's')] + r
            return r
        s.vm = mq(s.vm, o.vm, 'vm'); s.lg = mq(s.lg, o.lg, 'lgkm')
class Asm:
    AGE = 150
    def __init__(s): s.ins = []; s.lgt = {}; s.clock = 0; s.nvm = 0; s.marks = {}
    def __call__(s, text):
        for l in text.split('\n'):
            if l.split(';')[0].strip(): s.ins.append(I(l.strip()))
    def need(s, st, i):
        n = 0
        def chk(kind, regs, dist):
            nonlocal n
            for r in regs:
                e = st.ev.get((kind, r))
                if e is not None:
                    dd = dist(e[1]) if callable(dist) else dist
                    n = max(n, dd - (st.t - e[0]))
        big = lambda inf: 12 if inf[0] == 8 else 8
        if i.mfma:
            chk('vw', i.u, 2); chk('dw', i.u | i.d, 3)
            chk('mw', set(i.A) | set(i.B), big)
            key = (i.passes, tuple(i.C))
            chk('mw', i.C, lambda inf: 0 if inf == key else (10 if inf[0] == 8 else 6))
            if not i.C or tuple(i.C) != tuple(sorted(i.d)): chk('mw', i.d, lambda inf: 10 if inf[0] == 8 else 6)
        if i.valu:
            chk('mw', i.u | i.d, big); chk('mc', i.d, lambda p: 7 if p == 8 else 3)
            if not i.trans: chk('tw', i.u, 1)
            if i.dot:
                ab = set(regs_of(i.ops[1])) | set(regs_of(i.ops[2]))
                chk('dw', ab, 3); chk('dw', (i.u | i.d) - ab, lambda op: 0 if op == i.base else 3)
            else: chk('dw', i.u | i.d, 3)
            if i.rdl: chk('vw', i.u, 1)
            if i.perml or i.dpp: chk('vw', i.u, 2)
            chk('sw', i.u, 2)
            if i.base in ('v_readlane_b32', 'v_writelane_b32'): chk('sw', regs_of(i.ops[2]), 4)
            chk('st', i.d, 2)
        if i.ds or i.vm:
            chk('mw', i.u | i.d, big); chk('dw', i.u | i.d, 3); chk('tw', i.u, 1)
            chk('st', i.d, 1)
            if i.vm: chk('sw', i.u, 5)
            if i.m0use: chk('m0', [('s', 124)], 1)
        if i.salu or i.smem: chk('sw', i.u, 1)
        return n
    def record(s, st, i):
        st.step(1); s.clock += (4*i.passes if i.mfma else 2)
        for r in i.d:
            for k in ('vw', 'tw', 'dw', 'mw'): st.ev.pop((k, r), None)
        if i.mfma:
            for r in i.d: st.ev[('mw', r)] = (st.t, (i.passes, tuple(sorted(i.d))))
            for r in i.C: st.ev[('mc', r)] = (st.t, i.passes)
        elif i.valu:
            for r in i.d:
                if r[0] == 's': st.ev[('sw', r)] = (st.t, None)
                else:
                    st.ev[('vw', r)] = (st.t, None)
                    if i.trans: st.ev[('tw', r)] = (st.t, None)
                    if i.dot: st.ev[('dw', r)] = (st.t, i.base)
        elif i.salu and ('s', 124) in i.d: st.ev[('m0', ('s', 124))] = (st.t, None)
        for r in i.wide: st.ev[('st', r)] = (st.t, None)
        if i.vm and 'untracked' not in i.text:
            s.nvm += 1
            m = re.search(r'tag=(\w+)', i.text); st.vm.append((set(i.d), m.group(1) if m else 'v'))
        if i.ds: st.lg.append((set(i.d), 'l')); s.lgt[id(st.lg[-1][0])] = s.clock
        if i.smem: st.lg.append((set() if 'time' in i.mn else set(i.d), 's'))
    def final(s):
        snaps = {}
        for it in range(3):
            out = []; st = State(); live = True; new = {}; s.nnop = 0; s.nwait = 0
            for i in s.ins:
                if i.label:
                    srcs = [x for x in (new.get(i.label), snaps.get(i.label)) if x is not None]
                    if not live:
                        st = srcs[0].snap() if srcs else State(); srcs = srcs[1:]
                    for x in srcs: st.merge(x)
                    live = True; out.append(i.text); continue
                if i.mn == '.dir': out.append(i.text); continue
                if i.mn == 'TRACK':
                    j = I(i.text.split(None, 1)[1]); m = re.search(r'tag=(\w+)', j.text); st.vm.append((set(j.d), m.group(1) if m else 'v')); s.nvm += 1; continue
                if i.mn == 'VMMARK': s.marks[i.ops[0]] = s.nvm; continue
                if i.mn == 'WAITMARK':
                    out.append(f'  s_waitcnt vmcnt({min(63, s.nvm - s.marks[i.ops[0]])})'); st.step(1); continue
                if i.mn == 'CLEARVM':
                    st.vm = []; continue
                if i.mn == 'WAITVM':
                    idx = [k for k, x in enumerate(st.vm) if x[1] == i.ops[0]]
                    if idx:
                        n = min(len(st.vm) - 1 - max(idx), 63); st.vm = st.vm[len(st.vm) - n:] if n else []
                        out.append(f'  s_waitcnt vmcnt({n})'); st.step(1)
                    continue
                if i.mn == 's_waitcnt' and 'untracked' in i.text:
                    out.append('  ' + i.text); st.step(1); continue
                if i.mn == 's_waitcnt':
                    t = i.text.split(';')[0]
                    m = re.search(r'vmcnt\((\d+)\)', t)
                    if m: k = int(m.group(1)); st.vm = st.vm[len(st.vm) - k:] if k < len(st.vm) else st.vm; st.vm = st.vm if k else []
                    m = re.search(r'lgkmcnt\((\d+)\)', t)
                    if m:
                        k = int(m.group(1))
                        if k == 0: st.lg = []
                        elif not any(x[1] == 's' for x in st.lg) and k < len(st.lg): st.lg = st.lg[len(st.lg) - k:]
                    out.append('  ' + i.text); st.step(1); continue
                touch = i.d | i.u
                w = []
                idx = [k for k, x in enumerate(st.vm) if x[0] & touch]
                if idx:
                    n = min(len(st.vm) - 1 - max(idx), 63); w.append(f'vmcnt({n})'); st.vm = st.vm[len(st.vm) - n:] if n else []
                idx = [k for k, x in enumerate(st.lg) if x[0] & touch]
                if idx:
                    idx += [k for k, x in enumerate(st.lg) if s.clock - s.lgt.get(id(x[0]), s.clock) >= s.AGE]
                    n = 0 if any(x[1] == 's' for x in st.lg) else min(len(st.lg) - 1 - max(idx), 15)
                    w.append(f'lgkmcnt({n})'); st.lg = st.lg[len(st.lg) - n:] if n else []
                if w: out.append('  s_waitcnt ' + ' '.join(w)); st.step(1); s.nwait += 1
                n = s.need(st, i)
                while n > 0:
                    k = min(n, 16); out.append(f'  s_nop {k-1}'); st.step(k); n -= k; s.nnop += k
                out.append('  ' + i.text)
                if i.mn == 's_nop': st.step(int(i.ops[0]) + 1); continue
                s.record(st, i)
                if i.mn.startswith(('s_cbranch', 's_branch')):
                    tg = i.ops[0]
                    if 'nosnap' in i.text: pass
                    elif tg in new: new[tg].merge(st)
                    else: new[tg] = st.snap()
                    if i.mn == 's_branch': live = False
                if i.mn == 's_endpgm': live = False
            snaps = new
        return '\n'.join(out) + '\n'
def interleave(main, fill, ratio=None, start=0, end=None):
    end = len(main) if end is None else end
    n = end - start; out = list(main[:start]); k = 0
    for j in range(n):
        out.append(main[start + j])
        tgt = (len(fill) * (j + 1) + n - 1) // n if ratio is None else min(len(fill), ratio * (j + 1))
        while k < tgt: out.append(fill[k]); k += 1
    out += fill[k:]; out += main[end:]
    return out

def cost(l):
    if '\n' in l: return sum(cost(x) for x in l.split('\n'))
    mn = l.split()[0]
    if mn in TRANS or mn.startswith('v_permlane'): return 2
    if mn == 'VMMARK' or l.endswith(':'): return 0
    return 1
def slots(mf, head, lds, vm, valu, vm_cost=1, cap=2, tailroom=1, spread=True):
    n = len(mf); gap = [[] for _ in range(n)]; used = [0]*n
    used[n-1] += tailroom
    gap[0] += head; used[0] += len(head)
    g0 = 1 if head else 0
    for k, l in enumerate(lds):
        g = g0 + k if g0 + k < n else n - 1
        gap[g].append(l); used[g] += 1
    free = [g for g in range(g0 + len(lds), n)]
    if len(vm) <= len(free) and not spread: pos = [free[(k*len(free))//len(vm)] for k in range(len(vm))] if vm else []
    else: pos = [min(n - 1, g0 + ((2*k+1)*(n - g0))//(2*len(vm))) for k in range(len(vm))]
    for g, grp in zip(pos, vm):
        gap[g] += grp; used[g] += sum(cost(x) for x in grp) - 1 + vm_cost
    k = 0
    for g in range(n):
        while k < len(valu) and used[g] + cost(valu[k]) <= max(cap, cost(valu[k]) if used[g] <= 1 and cost(valu[k]) == 2 and False else cap):
            gap[g].append(valu[k]); used[g] += cost(valu[k]); k += 1
        if k < len(valu) and cost(valu[k]) > 2 and used[g] <= 1:
            gap[g].append(valu[k]); used[g] += cost(valu[k]); k += 1
        if k < len(valu) and cost(valu[k]) == 2 and used[g] == 1 and g + 1 < n and used[g+1] >= 1:
            gap[g].append(valu[k]); used[g] += 2; k += 1
    out = []
    for g in range(n): out += [mf[g]] + gap[g]
    return out, valu[k:]
def vmgroups(ins):
    r = []
    for l in ins:
        if 'global_' in l and (not r or any('global_' in x for x in r[-1])): r.append([l])
        elif r: r[-1].append(l)
        else: r.append([l])
    return r

import subprocess, os, tempfile
def sizes(body):
    src = '.amdgcn_target "amdgcn-amd-amdhsa--gfx950"\n.text\n' + body + '\ncode_end:\n'
    d = tempfile.mkdtemp(); open(d + '/a.s', 'w').write(src)
    r = subprocess.run(['clang', '-x', 'assembler', '-target', 'amdgcn-amd-amdhsa', '-mcpu=gfx950', '-c', d + '/a.s', '-o', d + '/a.o'], capture_output=True, text=True)
    assert r.returncode == 0, r.stderr
    o = subprocess.run(['llvm-objdump', '-d', '--mcpu=gfx950', d + '/a.o'], capture_output=True, text=True).stdout
    return [4*len(m.group(1).split()) for m in re.finditer(r'// [0-9A-F]+: ([0-9A-F ]+)', o)]
NOPROMO = ('v_readfirstlane', 'v_permlane', 'v_accvgpr', 'v_nop', 'v_dot2c', 'v_fmamk', 'v_fmaak', 'v_cmp', 'v_cndmask', 'v_add_co', 'v_addc_co')
def align_pass(body, minrun=5):
    lines = body.rstrip('\n').split('\n')
    idx = [k for k, l in enumerate(lines) if not l.split(';')[0].strip().endswith(':') and not l.strip().startswith('.')]
    al = [k for k, l in enumerate(lines) if l.strip() == '.p2align 12']
    sz = sizes('\n'.join(l for l in lines if l.strip() != '.p2align 12') + ''.join(f'\nwarm{k}:' for k in range(4) if al)); assert len(sz) == len(idx), (len(sz), len(idx))
    off = 0; lastfix = -1; k = 0; nprom = nnop = 0; pads = []; nextpage = None
    mn = [lines[i].split()[0] for i in idx]
    while k < len(idx):
        if al and nextpage is None and idx[k] > al[0]:
            assert off <= 3200 or 's_memtime' in body or 's_memrealtime' in body, off
            off = 0; nextpage = 0; lastfix = k - 1
        if nextpage is not None and off >= nextpage:
            pads.append(idx[k]); off += 4; nextpage += 4096; lastfix = k - 1
        if sz[k] == 8 and (k == 0 or sz[k-1] != 8 or (pads and pads[-1] == idx[k])):
            e = k
            while e < len(idx) and sz[e] == 8: e += 1
            dense = best = 0
            for q in range(k, e):
                dense = dense + 1 if mn[q].startswith('v_') and not mn[q].startswith('v_mfma') else 0; best = max(best, dense)
            if best >= minrun:
                if off % 8:
                    c = [q for q in range(lastfix + 1, k) if sz[q] == 4 and mn[q].startswith('v_') and not mn[q].startswith(NOPROMO)]
                    if c: q = c[-1]; lines[idx[q]] = lines[idx[q]].replace(mn[q], mn[q] + '_e64', 1); nprom += 1
                    else: lines[idx[k]] = '  s_nop 0\n' + lines[idx[k]]; nnop += 1
                    off += 4
                lastfix = max(lastfix, e - 1)
        off += sz[k]; k += 1
    for n, i in enumerate(pads):
        lines[i] = f"warm{n}:\n  s_cbranch_execz {'warm%d' % (n+4) if n + 4 < len(pads) else 'warm_back'}\n" + lines[i]
    return '\n'.join(lines) + '\n', nprom, nnop
def listsched(mf, chains, cap=2, vmgap=0, reserve=None, flush=True):
    pos = [0]*len(chains); out = []; ldsfree = -99; vmlast = -99; log = []
    for c in chains:
        for k in range(len(c) - 2, -1, -1):
            if c[k][2] > c[k+1][2]: c[k] = (c[k][0], c[k][1], c[k+1][2])
    for g in range(-1, len(mf)):
        if g >= 0: out.append(mf[g])
        used = reserve(g) if reserve else 0
        while True:
            best = None
            for ci, c in enumerate(chains):
                if pos[ci] >= len(c): continue
                t, lo, hi = c[pos[ci]]
                if lo > g and (g < len(mf) - 1 or not flush): continue
                tl = [t] if isinstance(t, str) else t
                forced = hi <= g or (g == len(mf) - 1 and flush)
                if not forced:
                    if g < 0 or used + min(cap, sum(cost(x) for x in tl)) > cap: continue
                    if tl[0].startswith('ds_') and ldsfree > g: continue
                    if tl[0].startswith('global') and g - vmlast < vmgap: continue
                if best is None or hi < best[0]: best = (hi, ci, tl)
            if best is None: break
            hi, ci, tl = best
            log.append((ci, tl)); out += tl; pos[ci] += 1; used += sum(cost(x) for x in tl)
            if tl[0].startswith('global'): vmlast = g
            if tl[0].startswith('ds_'): ldsfree = max(ldsfree, g) + (3 if tl[0].startswith('ds_write_b128') else 1)
    check_chains(log)
    if not flush: return out, [c[p:] for c, p in zip(chains, pos)]
    return out

def check_chains(log):
    last = {}
    for ci, tl in log:
        for t in tl:
            for l in t.split('\n'):
                i = I(l.strip())
                if i.label or not hasattr(i, 'd'): continue
                for r in i.u:
                    if r[0] == 's' and r[1] < 108: assert last.get(r, ci) == ci, f"s{r[1]} crosses chains at {l}"
                for r in i.d: last[r] = ci
```

```python
from asmlib import *
from layout import *
import conv_model as cm
from gen_k1 import ldp, P, cmul, AROWS, arow_map, SPECIAL, LOG2E, INV2PI
from gen_k2 import V4, A4, mf, round_pair
import struct, math
F_LDS = 163840; F_ACC = 256; F_VGPR = 512
HST, XST = 4608, 4160
KGS = 54*272
L_KG = 0; L_H = 81920; L_XT = L_H + 4*HST; L_TAB = L_XT + 4*XST; L_XS = L_TAB + 4*3072
OPT = dict(qall=1, qs=135, qg=2, p2a=2, e1d=14, lin=0, xl=0, hl=180, tord=1, go0=0, nsh=16, qlate=1, ail=0, adl=1, rel=5, sen=0, pfg=3, her=0, wl=36, sbq=6, gather=1, htouch=(0, 4), hstat=(1, 2), hgat=((1,0),(1,4),(1,8),(1,12),(2,2),(2,6),(2,10),(3,0)), hsl2=(2, 12), dst=3, b1f=2, short=0, dense=2, pair=0, win0=9, dlim=60, late=0, pb=2, gbp=50, ba1=44, ba2=40, b1i=3, b1c=5, sat1=6, cc0=17, hrate=2, hsl=10, b2=24, b3=84, sat=1, xtl=3, vg=4, NX=0, pq=2, hwd=((0, 6), (0, 12), (1, 4)), hwd2=(1, 13), wfirst=0, nh=10, far1=8, lead=8, xbar=56, w0=170, NE=0, TA=1, TB=16, g2=8, GM=11, cf0=2, cp0=15, fC1=8, pI=14, pc=19, edr=4, NA=3, w1early=0, N0b=4, aw0=0, aw1=5, morder=0x532104, pf=1, gopos=2, hrow1=(0, 4), hrow2=(0, 5), nd1=12, hgo=(1, 0), hgo2=(1, 7), hpoll=(2, 0), hchk=((2, 7), (3, 0)), ntab=23, npre=70, nmid1=40, nmid2=90, cpf=0, hpf=(0, 0), spread=1, wspan=8, xrate=[1,1,1,1,1,1,2,2,2,2], xlag=2, xall=12, vmc=1, gstat=(0, 10), N0=6, N1=10, N2=6, xd=3, M0=2, M1=60, win=11, rbx=8, gissue=(5, 14), gcheck=(7, 16), wdrate=6)
OPT.update(N1=8,b1i=5,b1c=7,sat1=8,cp0=18,cc0=20,NE=16,w0=120,fC1=8,pI=16,pc=21,gstat=(0,10),xrate=[2,2,1,1,1,1,2,2,2,2,2],ba2=25,vg=3,gissue=(6,15),gcheck=(8,16),GM=12,win=9,xtl=4,xd=4)
OPT.update(cf0=3,b1i=5,b1c=7,sat1=7,gstat=(0,9),gissue=(6,13),gcheck=(8,16),GM=12,hpoll=(2,7),hchk=((3,0),),cp0=17,cc0=19,xrate=[2,1,1,1,1,1,2,2,1,1,1,1],NA=4,dense=3,lead=6,vg=4,hgo=(0,12),hgo2=(1,4),hrate=1,win=9,ntab=31)
OPT.update(xfirst=0, nmid=130, hrow=(0, 10), hgo=(1, 8), hpoll=(2, 7), hchk=((3, 0),))
OPT.update(cp0=18,cc0=20,aw0=0,aw1=7,cf0=2,hpoll=(2,5),gissue=(6,14),gcheck=(8,16))
OPT.update(far1=0)
OPT.update(short=1,far1=0,xbar=38,ba1=40,ntab=31,lead=10,her=1,ba2=10,N1=0,N2=4,NE=27,w0=110,xl=1,hl=170,dst=1,b1f=1,hrow=(0,8),hgo=(1,6),b3=90,npre=100,fC1=7,pI=15,pc=20,vg=3)
OPT.update(hh1=(1, 12), hh2=(2, 3), hpoll=(2, 4), hchk=(2, 11), hr=2, mdp=0)
OPT.update(hr=2, wfp=2)
OPT.update(pq=2, wfp=2, w0=110, lead=8)
OPT.update(spad=0, ord=0, wsp=(0, 0, 0), ail2=1, nt0=5, tlb=0, tc=(0, 13), warm=1, npre=20, nw=270, nb=0, wa=0, wc=None)
OPT.update(ail2=0, nt0=31, nw=250, hr=1, ord=2, lateb=1, hrow=(0,10), hgo=(1,8), npre=0, w1early=3, sdma=0)
SPINS = []; DIAG = [0]; DEFER = []; EXT = []
SC = " sc1"
def f2u(x): return hex(struct.unpack('<I', struct.pack('<f', x))[0])
VWV = 106
VWF = 110
L_Q = 155648
def q_addr(r, first='s_min_u32 s4, s2, 239', dst=(59, 51)):
    x = [first, "s_mul_i32 s5, s4, 13108", "s_lshr_b32 s5, s5, 16", "s_mul_i32 s6, s5, 5", "s_sub_u32 s4, s4, s6", "s_lshl_b32 s4, s4, 2", "s_add_u32 s4, s4, s20",
         f"s_mul_i32 s6, s5, {32*1280}", "s_lshl_b32 s7, s4, 6", "s_add_u32 s6, s6, s7",
         f"v_lshrrev_b32 v{r}, 2, v1", f"v_mul_u32_u24 v{r}, {1280-64}, v{r}", f"v_lshl_add_u32 v{r}, v1, 4, v{r}", f"v_add_u32 v{r}, s6, v{r}",
         "s_mul_i32 s5, s5, 5", "s_lshl_b32 s4, s4, 1"]
    for d in dst:
        x += ["s_mul_i32 s6, s4, 13108", "s_lshr_b32 s6, s6, 16", "s_mul_i32 s6, s6, 235", "s_add_u32 s6, s6, s4", "s_add_u32 s6, s6, s5", "s_lshl_b32 s6, s6, 10", f"s_add_u32 s{d}, s6, {WD}", "s_add_u32 s4, s4, 1"]
    return x
def q_issue(r, k=0):
    return [f"s_lshl_b32 s7, s20, 11\ns_add_u32 m0, s7, {L_Q - 8192*k}\nglobal_load_lds_dwordx4 v{r}, s[38:39]", f"v_add_u32 v{r}, {16*1280 - 1024}, v{r}", f"global_load_lds_dwordx4 v{r}, s[38:39] offset:1024 ; tag=wd"]
def q_process(A, B, D, k=0, dst=(59, 51)):
    x = [f"v_bfe_u32 v{A}, v1, 2, 2", f"v_lshrrev_b32 v{B}, 4, v1", f"v_lshl_add_u32 v{A}, v{B}, 3, v{A}", f"v_and_b32 v{B}, 3, v1", f"v_lshlrev_b32 v{B}, 3, v{B}", f"v_lshl_add_u32 v{A}, v{A}, 6, v{B}",
         "s_lshl_b32 s7, s20, 11", f"s_add_u32 s7, s7, {L_Q - 8192*k}", f"v_add_u32 v{A}, s7, v{A}", "WAITVM wd"]
    x += [f"ds_read_b64_tr_b16 {P(D+4*t+2*hh)}, v{A} offset:{32*t + 256*hh}" for t in range(2) for hh in range(2)]
    x += [f"v_lshl_add_u32 v{(A, B)[t]}, v1, 4, s{dst[t]}" for t in range(2)]
    return x, [f"global_store_dwordx4 v{(A, B)[t]}, {V4(D+4*t)}, s[22:23] sc1" for t in range(2)]
def wbase():
    r = [f"s_mul_i32 s4, s62, {WPS}", f"s_add_u32 s4, s4, {WP2 + 4096}"]
    if not OPT['lin']: return r + ["v_lshl_add_u32 v3, v1, 4, s4"]
    return r + ["v_lshrrev_b32 v3, 1, v1", "v_xor_b32 v3, v3, v1", "v_and_b32 v3, 2, v3", "v_mul_u32_u24 v3, 3, v3", "v_xor_b32 v3, v3, v1", "v_lshl_add_u32 v3, v3, 4, s4"]
def wld(q):
    r = [f"global_load_dwordx4 {A4(4*q)}, v3, s[22:23] offset:{1024*(q&7)-4096}" + SC]
    if q & 7 == 7: r.append(f"v_add_u32 v3, 8192, v3")
    return r
def ids(a, VWF=VWF, VWV=VWV):
    rbx = OPT['rbx']; cbx = 32 // rbx; gx = 16 // cbx
    a(f"""
    s_and_b32 s4, s2, 7
    s_lshr_b32 s5, s2, 3
    s_and_b32 s60, s4, {gx-1}
    s_mul_i32 s60, s60, {cbx}
    s_and_b32 s6, s5, {cbx-1}
    s_add_u32 s60, s60, s6
    s_lshr_b32 s61, s4, {gx.bit_length()-1}
    s_mul_i32 s61, s61, {rbx}
    s_lshr_b32 s6, s5, {cbx.bit_length()-1}
    s_add_u32 s61, s61, s6
    s_lshl_b32 s62, s60, 2
    s_add_u32 s62, s62, s20
    s_mul_i32 s6, s62, 3
    v_bfe_u32 v{VWF}, v1, 2, 2
    v_min_u32 v{VWF}, 2, v{VWF}
    v_add_u32 v{VWF}, s6, v{VWF}                 ; tile T
    v_lshrrev_b32 v{VWF}, 3, v{VWF}              ; G
    v_lshlrev_b32 v{VWF}, 9, v{VWF}
    v_and_b32 v{VWV}, 3, v1
    v_lshl_add_u32 v{VWF}, v{VWV}, 7, v{VWF}
    s_add_u32 s6, s100, {32*128}
    v_add_u32 v{VWF}, s6, v{VWF}
    """)
def spin(a, late, name, loads, chk, back, bound=0x40000, slp=2):
    SPINS.append(name)
    late.append(f"{name}:\n" + (f"s_or_b32 s101, s101, {1 << (len(SPINS)-1)}\n" if DIAG[0] else "") + f"s_mov_b32 s64, 0\n{name}_l:\ns_waitcnt vmcnt(0)\ns_sleep {slp}\n" + "\n".join(loads) + "\ns_waitcnt vmcnt(0)\n" + "\n".join(chk) +
                f"\ns_add_u32 s64, s64, 1\ns_cmp_ge_u32 s64, {bound}\ns_cbranch_scc1 {back}\ns_cbranch_vccnz {name}_l\ns_branch {back}")
ONE_V = 248
def chk4(r, n=4):
    c = [f"v_xor_b32 v{r+k}, s65, v{r+k}" for k in range(n)]
    c += [f"v_or3_b32 v{r}, v{r}, v{r+1}, v{r+2}", f"v_or_b32 v{r}, v{r}, v{r+3}"] if n == 4 else []
    return c + [f"v_cmp_ne_u32 vcc, 0, v{r}"]
def M(mask, ins): return f"s_mov_b64 exec, {mask}\n{ins}\ns_mov_b64 exec, -1"
def tagchk(r, mask): return f"v_cmp_ne_u32 vcc, s65, v{r}\ns_and_b64 vcc, vcc, {mask}"
def U_(l): return "\n".join(x + " ; untracked" if x.startswith('global') else x for x in l.split("\n"))
HFL = M("0xfffff", "global_load_dword v109, v108, s[22:23] sc1"); HCHK = [tagchk(109, "0xfffff")]
def hint(a, late, name):
    a(f"{HCHK[0]}\ns_cbranch_vccnz {name}\n{name}_ok:")
    spin(a, late, name, [HFL], HCHK, name + "_ok", bound=24, slp=0)
def warm(a, role):
    if OPT['warm']:
        a("s_mov_b64 exec, 0")
        for w in range(3): a(f"s_cmp_eq_u32 s20, {w}\ns_cbranch_scc1 warm{w} ; nosnap")
        a(f"s_cbranch_execz warm3 ; nosnap")
    a(f"warm_{role}:\ns_mov_b64 exec, -1")
def tlb(a, r):
    if not OPT['tlb']: return
    a(f"v_lshlrev_b32 v{r}, 21, v1\nv_add_u32 v{r}, 0x1ff000, v{r}")
    a(M("0x3fff", f"global_load_dword v{r+1}, v{r}, s[22:23]"))
    if OPT['tlb'] > 1: a(f"v_lshlrev_b32 v{r}, 21, v1\n" + M(3, f"global_load_dword v{r+2}, v{r}, s[66:67]"))
def split(a, role): a(f"s_branch body_{role}\nSPLIT\nbody_{role}:")
def nonce(a):
    a(f"v_readfirstlane_b32 s65, v{ONE_V}\ns_mul_i32 s65, s65, 0x9e3779b5\ns_add_u32 s65, s65, 0x7f4a7c15\nv_mov_b32 v{ONE_V}, s65")
EPOLD = M(1, f"global_load_dword v{ONE_V}, v247, s[22:23] sc1")
def publish(a, name, old, n, vaddr, vval):
    a(f"v_readfirstlane_b32 s4, v{old}\ns_cmp_lg_u32 s4, {n-1}\ns_cbranch_scc1 {name}\nglobal_store_dwordx4 v{vaddr}, {V4(vval)}, s[22:23] sc1 ; untracked")
def rep_addr(r, sb):
    return [f"v_lshrrev_b32 v{r}, 3, v1", f"v_mul_u32_u24 v{r}, {GOS - 128}, v{r}", f"v_lshl_add_u32 v{r}, v1, 4, v{r}", f"v_add_u32 v{r}, s{sb}, v{r}"]
def flag_addr(line0, r, val, dense=False):
    if dense:
        return ["s_bfe_u32 s4, s63, 0x20002", "s_lshl_b32 s4, s4, 4", "s_lshr_b32 s5, s63, 4", "s_add_u32 s4, s4, s5", "s_lshl_b32 s4, s4, 2", "s_and_b32 s5, s63, 3",
                "s_add_u32 s4, s4, s5", "s_lshl_b32 s4, s4, 4", f"s_add_u32 s4, s4, {GOB + 128*line0}", f"v_mul_u32_u24 v{r}, {GOS}, v1", f"v_add_u32 v{r}, s4, v{r}", f"v_mov_b32 v{val}, s65"]
    return ["s_lshl_b32 s4, s63, 7", f"s_add_u32 s4, s4, {GOB + 128*line0}"] + rep_addr(r, 4) + [f"v_mov_b32 v{val}, s65"]
def flag_set(tag, r, val, single=False, off=0, dense=False):
    st = [M("0xffffffff", f"global_store_dword v{r}, v{val}, s[22:23] offset:{off} sc1 ; untracked")] if single else [f"global_store_dwordx4 v{r}, {V4(val)}, s[22:23] sc1 ; untracked"]
    if dense: st = [M("0xff", st[0])]
    return ["s_cmp_lg_u32 s20, 0", f"s_cbranch_scc1 f_na{tag}"] + st + [f"f_na{tag}:"]
def rows_addr(a):
    a(f"""
    s_and_b32 s40, s2, 3               ; j
    s_bfe_u32 s41, s2, 0x50002         ; uo
    s_lshl_b32 s42, s41, 5
    s_lshl_b32 s43, s20, 3
    s_add_u32 s42, s42, s43
    s_add_u32 s42, s42, s40
    s_mul_i32 s42, s42, 2560
    v_lshrrev_b32 v3, 1, v6
    v_and_b32 v4, 1, v6
    v_lshl_add_u32 v2, v3, 3, v4
    v_mul_u32_u24 v2, 1280, v2
    v_lshl_add_u32 v2, v5, 4, v2
    v_add_u32 v2, s42, v2
    """)
def rows_issue(a):
    for i in range(5): a(f"global_load_dwordx4 {V4(8+4*i)}, v2, s[36:37] offset:{256*i}")
def rows_addr2(a):
    a(f"""
    s_lshl_b32 s42, s20, 5
    s_add_u32 s43, s42, {L_XS}
    v_mul_u32_u24 v28, 144, v5
    v_add3_u32 v28, v28, v7, s43
    s_lshr_b32 s43, s41, 3
    s_lshl_b32 s43, s43, 12
    s_lshl_b32 s44, s40, 10
    s_add_u32 s43, s43, s44
    s_and_b32 s44, s41, 7
    s_lshl_b32 s44, s44, 7
    s_add_u32 s43, s43, s44
    s_add_u32 s44, s43, s42
    s_add_u32 s44, s44, {STAT}
    v_add_u32 v31, s44, v7
    s_and_b32 s44, s20, 1
    s_mul_i32 s44, s44, 40
    v_lshrrev_b32 v3, 3, v1
    v_add_u32 v3, s44, v3              ; chunk
    v_and_b32 v4, 7, v1
    v_lshlrev_b32 v4, 4, v4
    v_mul_u32_u24 v29, 144, v3
    s_lshr_b32 s44, s20, 1
    s_mul_i32 s42, s44, {80*144}
    s_add_u32 s42, s42, {L_XS}
    v_add3_u32 v29, v29, v4, s42
    v_mul_u32_u24 v30, {2*XRS}, v3
    s_mul_i32 s44, s44, {XRS}
    s_add_u32 s43, s43, s44
    s_add_u32 s43, s43, {XR}
    v_add3_u32 v30, v30, v4, s43
    s_lshl_b32 s44, s2, 4
    s_add_u32 s44, s44, {GOB}
    v_mul_u32_u24 v246, {GOS}, v1
    v_add_u32 v246, s44, v246
    s_and_b32 s44, s2, 7
    s_lshl_b32 s44, s44, 8
    s_add_u32 s44, s44, {HER + 128}
    v_lshl_add_u32 v244, v1, 2, s44
    s_lshl_b32 s43, s3, 2
    s_add_u32 s44, s44, s43
    v_mov_b32 v243, s44
    s_mov_b32 s45, 0x3f803f80
    s_mov_b32 s46, 0x00010001
    s_mov_b32 s47, 0x00010001
    """)
def rows_process(a, stamp, RB):
    for i in range(5):
        for h in range(2): a(f"ds_write_b64 v28, {P(8+4*i+2*h)} offset:{16*144*i + 80*144*h}")
    d = []
    for k in range(20):
        d += [f"v_dot2_f32_bf16 v{32+(k&1)}, v{8+k}, s45, " + ("0" if k < 2 else f"v{32+(k&1)}"),
              f"v_dot2_f32_bf16 v{34+(k&1)}, v{8+k}, v{8+k}, " + ("0" if k < 2 else f"v{34+(k&1)}")]
    nd = OPT['nd1']
    for l in d[:nd]: a(l)
    a("s_waitcnt lgkmcnt(0)\ns_barrier")
    for k in range(5): a(f"ds_read_b128 {V4(RB[k])}, v29 offset:{8*144*k}")
    for l in d[nd:nd+16]: a(l)
    f = d[nd+16:] + ["s_nop 1", "v_add_f32 v32, v32, v33", "v_add_f32 v33, v34, v35"]
    for r in (8, 4, 2, 1): f += [f"v_add_f32_dpp v{32+k}, v{32+k}, v{32+k} row_ror:{r} row_mask:0xf bank_mask:0xf" for k in range(2)]
    st = []
    for k in range(5): st += [f"global_store_dwordx4 v30, {V4(RB[k])}, s[22:23] sc1"] + ([f"v_add_u32 v30, {16*XRS}, v30"] if k < 4 else [])
    for l in interleave(st, f): a(l)
    a(f"""
    v_mul_f32 v32, 0x3acccccd, v32
    v_mul_f32 v33, 0x3acccccd, v33
    v_fma_f32 v33, -v32, v32, v33
    v_max_f32 v33, 0, v33
    v_add_f32 v33, 0x3727c5ac, v33
    v_rsq_f32 v34, v33
    s_mov_b64 exec, s[46:47]
    v_mul_f32 v35, -v32, v34
    global_store_dwordx2 v31, v[34:35], s[22:23] sc1
    s_mov_b64 exec, -1
    """)
def role_conv(a, stamp, late):
    O = OPT
    X, S, SA, CA, BND, SP, U, HP = 8, 24, 40, 44, 48, 72, 76, 84
    B = 112
    RAW, VB, VA, DT, ONE, KR, BB, CC, E1, H, T0, XX, PB, F, ZZ, ACK = (B, B+12, B+13, B+14, B+15, B+16, B+18, B+20, B+22, B+24, B+26, B+28, B+32, B+36, B+54, B+92)
    G = F + 16; PK = ZZ + 14
    TB, TS, T2A, T3A, DSK, SPC, VPA, VMD, VXR, VST, VPF = 220, 221, 222, 223, 224, 228, 225, 227, 232, 233, 234
    PLA, MD = 236, 240
    VH, VTD, VT2, VT3, VXD, VW, VO, GA, VTD0 = 100, 101, 102, 103, 104, 105, 107, 108, 109
    a(f"""
    s_and_b32 s21, s2, 7
    s_mul_i32 s21, s21, 20
    s_lshr_b32 s3, s2, 3
    s_add_u32 s21, s21, s3             ; cg
    s_lshl_b32 s48, s21, 2
    s_add_u32 s48, s48, s20            ; channel
    s_mul_i32 s25, s48, 384
    v_lshl_add_u32 v{T0}, v1, 2, s25
    v_lshl_add_u32 v{T0+1}, v1, 1, s25
    s_lshr_b32 s26, s48, 1
    s_lshl_b32 s26, s26, 2
    v_and_b32 v5, 15, v1
    v_lshrrev_b32 v6, 4, v1
    v_lshlrev_b32 v7, 3, v6
    """)
    rows_addr(a)
    c = Asm()
    rows_addr2(c)
    nrow = len(c.ins)
    c(f"""
    s_min_u32 s30, s2, 127
    s_lshl_b32 s30, s30, 11
    s_add_u32 s30, s30, {PST}
    v_lshl_add_u32 v{U+4}, v0, 3, s30
    v_mov_b32 v{U+6}, -1.0
    v_mov_b32 v{U+7}, -1.0
    s_mul_i32 s29, s20, {KGS}
    s_mov_b32 m0, s29
    v_and_b32 v{VB}, 31, v1
    v_mul_u32_u24 v{VB}, 272, v{VB}
    v_lshrrev_b32 v{U}, 5, v1
    v_lshl_add_u32 v{U}, v{U}, 4, s29
    v_add_u32 v{VB}, v{VB}, v{U}
    v_mov_b32 v{ONE}, 0x3f80
    v_mov_b32 v{DSK}, 0
    s_mov_b32 s34, {LOG2E}
    s_mov_b32 s35, {INV2PI}
    """)
    m = arow_map()
    c(f"v_and_b32 v{U+1}, 31, v1\nv_lshrrev_b32 v{U+2}, 2, v{U+1}\nv_and_b32 v{U+1}, 3, v{U+1}\nv_lshlrev_b32 v{U+1}, 3, v{U+1}")
    for q in range(8):
        w = sum(m[4*q+k] << (8*k) for k in range(4))
        if q == 0: c(f"v_mov_b32 v{VA}, {w}")
        else: c(f"v_cmp_eq_u32 vcc, {q}, v{U+2}\nv_mov_b32 v{U+3}, {w}\nv_cndmask_b32 v{VA}, v{VA}, v{U+3}, vcc")
    c(f"v_bfe_u32 v{VA}, v{VA}, v{U+1}, 8\nv_mul_u32_u24 v{VA}, 272, v{VA}\nv_add_u32 v{VA}, v{VA}, v{U}")
    nurg = len(c.ins)
    keys = ['r2q0', 'r2q1', None, 'r2q3', 'r3e', 'r3o', 'sp']
    for k, key in enumerate(keys):
        if key is None: continue
        if key == 'sp': mk = 3 << 12
        else: co, w, sh = cm.BANDS[key]; mk = ((1 << (2*w+1)) - 1) << (co + sh - w)
        c(f"v_mov_b32 v{U}, {mk}\nv_lshlrev_b32 v{U}, v5, v{U}\nv_lshrrev_b32 v{U}, v7, v{U}")
        c(f"v_and_b32 v{U}, 0xff, v{U}\nv_mul_u32_u24 v{U}, 0x8001, v{U}")
        for w in range(4):
            d = BND + 4*k + w
            if w: c(f"v_lshrrev_b32 v{U}, 2, v{U}")
            c(f"v_and_b32 v{d}, 0x10001, v{U}")
            if key != 'sp': c(f"v_mul_u32_u24 v{d}, 0x3f80, v{d}")
    c(f"""
    s_mul_i32 s24, s20, 3072
    s_add_u32 s24, s24, {L_TAB}
    s_mul_i32 s30, s20, {HST}
    s_add_u32 s30, s30, {L_H}
    v_lshlrev_b32 v{VH}, 5, v5
    v_lshl_add_u32 v{VH}, v6, 4, v{VH}
    v_add_u32 v{VH}, s30, v{VH}
    v_lshl_add_u32 v106, v1, 3, s30
    v_and_b32 v{U}, 1, v5
    v_mul_u32_u24 v{U}, {2*((cm.CH_O*8+7) - (cm.CH_E*8+8))}, v{U}
    v_sub_u32 v{VTD}, v7, v5
    v_lshl_add_u32 v{VTD}, v{VTD}, 1, v{U}
    v_add_u32 v{VTD}, {2*(cm.CH_E*8+8-16-32*16)}, v{VTD}
    v_add_u32 v{VTD}, s24, v{VTD}
    v_add_u32 v{VTD0}, 1024, v{VTD}
    v_lshlrev_b32 v{U}, 2, v6
    v_sub_u32 v{U}, v{U}, v5                    ; 4g - col
    v_lshl_add_u32 v{VT2}, v{U}, 3, s24
    v_lshl_add_u32 v{VT3}, v{U}, 2, s24
    v_add_u32 v{VT3}, {2*(cm.CH_T3*8+256-2-32*7)}, v{VT3}
    s_mul_i32 s30, s20, {XST}
    s_add_u32 s30, s30, {L_XT}
    v_lshlrev_b32 v{VXD}, 5, v5
    v_add3_u32 v{VXD}, v{VXD}, v7, s30
    v_lshlrev_b32 v{VW}, 4, v0
    v_add_u32 v{VW}, {L_H}, v{VW}
    v_lshlrev_b32 v{U}, 4, v1
    v_sub_u32 v{TB}, s24, v{U}
    v_lshlrev_b32 v{U}, 2, v1
    v_sub_u32 v{T2A}, s24, v{U}
    v_lshlrev_b32 v{U}, 1, v1
    v_sub_u32 v{T3A}, s24, v{U}
    v_and_b32 v{TS}, 31, v1
    v_mov_b32 v{U}, v{TS}
    """)
    prev = 0
    for k in range(1, 32):
        step = SPECIAL[k] - k
        if step != prev:
            c(f"v_cmp_le_u32 vcc, {k}, v{U}\nv_mov_b32 v{U+1}, {step-prev}\nv_cndmask_b32 v{U+1}, 0, v{U+1}, vcc\nv_add_u32 v{TS}, v{TS}, v{U+1}"); prev = step
    c(f"v_lshl_add_u32 v{TS}, v{TS}, 4, s24")
    for r in range(4): c(f"v_mov_b32 v{SPC+r}, 0")
    c(f"""
    s_lshl_b32 s31, s20, 12
    s_lshl_b32 s30, s20, 9
    s_add_u32 s30, s30, s100
    v_lshl_add_u32 v{VPA}, v1, 4, s30
    v_lshl_add_u32 v{VST}, v1, 4, s31
    s_mul_i32 s30, s21, {XRS}
    s_add_u32 s30, s30, {XR}
    v_add_u32 v{VXR}, s30, v{VST}
    v_add_u32 v{VST}, {STAT}, v{VST}
    v_bfe_u32 v{U}, v1, 2, 2                    ; ks
    v_and_b32 v{U+1}, 1, v6
    v_mul_u32_u24 v{U}, 30720, v{U}
    v_mul_u32_u24 v{VMD}, 5120, v6
    s_mov_b32 s56, -1
    s_mov_b32 s57, 0xffff
    s_add_u32 s58, s20, 32
    v_add_u32 v{VMD}, v{VMD}, v{U}
    v_and_b32 v{U}, 3, v1
    v_lshlrev_b32 v{U}, 3, v{U}
    s_lshl_b32 s30, s21, 5
    s_add_u32 s30, s30, {MODT}
    v_add3_u32 v{VMD}, v{VMD}, v{U}, s30
    v_cvt_f32_u32 v{MD+2}, v{U+1}
    """)
    addr = Asm(); ids(addr, VWF, U)
    addr(f"""
    s_lshr_b32 s4, s48, 1
    s_and_b32 s4, s4, 1
    s_lshr_b32 s5, s48, 2
    s_and_b32 s5, s5, 2
    s_or_b32 s4, s4, s5
    v_and_b32 v{VO}, 3, v5
    v_xor_b32 v{VO}, s4, v{VO}
    v_lshrrev_b32 v{U}, 1, v6
    v_lshl_add_u32 v{VO}, v{U}, 2, v{VO}
    v_and_b32 v{U}, 1, v6
    v_lshrrev_b32 v{U+1}, 2, v5
    v_lshl_add_u32 v{U}, v{U}, 2, v{U+1}
    v_mul_u32_u24 v{U}, 81920, v{U}
    v_lshl_add_u32 v{VO}, v{VO}, 4, v{U}
    s_lshl_b32 s4, s48, 7
    s_add_u32 s4, s4, {XT1}
    v_add_u32 v{VO}, s4, v{VO}
    s_mov_b32 s63, s21
    """)
    nad = len(addr.ins)
    addr = [i.text for i in addr.ins] + flag_addr(128, 45, 44, OPT['dense'] & 1) + ["s_and_b32 s4, s2, 7", "s_lshl_b32 s4, s4, 8", f"s_add_u32 s4, s4, {HER}", "v_lshl_add_u32 v108, v1, 2, s4", "s_lshl_b32 s5, s3, 2", "s_add_u32 s4, s4, s5", "v_mov_b32 v46, s4", "v_mov_b32 v47, 0"]
    if OPT['go0']:
        addr = addr[:nad] + [f"s_and_b32 s4, s2, {OPT['nsh']-1}", "s_lshl_b32 s4, s4, 7", f"s_add_u32 s5, s4, {CNB}", "v_mov_b32 v46, s5", "v_mov_b32 v47, 1", "v_mov_b32 v44, s65",
                             f"s_add_u32 s4, s4, {GOB + 128*128}"] + rep_addr(45, 4)
    addr = [l for l in (q_addr(111) if O['qall'] else []) + addr + wbase() if 's65' not in l]
    if not O['ail2']:
        for l in addr: c(l)
        addr = []
    c(f"ds_write_b64 v106, {P(SPC)}")
    cl = [i.text for i in c.ins]
    def deal(n):
        while cl and (n > 0 or 'vcc' in cl[0].split(',')[-1] or (len(cl) > 1 and cl[1].startswith('v_cndmask'))): a(cl.pop(0)); n -= 1
    deal(O['npre'])
    a("s_waitcnt lgkmcnt(0)")
    if stamp: stamp(a, 'ka')
    a("s_load_dword s27, s[16:17], s26\ns_load_dword s28, s[18:19], s26")
    p1 = [f"global_load_dword v{RAW+i}, v{T0}, s[{4+2*i}:{5+2*i}]" for i in range(6)]
    p2 = [f"global_load_ushort v{RAW+6+i}, v{T0+1}, s[{4+2*i}:{5+2*i}] offset:256" for i in range(6)]
    def rows(nyoung):
        a(f"s_cmp_ge_u32 s2, 128\ns_cbranch_scc1 u_norow\ns_waitcnt vmcnt({nyoung})")
        rows_process(a, stamp, [84, 88, 92, 96, 40])
        if O['go0']: a(f"s_or_b32 s44, s2, s20\ns_cmp_lg_u32 s44, 0\ns_cbranch_scc1 u_nocnt\nv_lshlrev_b32 v2, 7, v1\nv_add_u32 v2, {CNB}, v2\nglobal_store_dword v2, v{SPC}, s[22:23] sc1 ; untracked\nu_nocnt:")
        a(f"global_store_dwordx2 v{U+4}, {P(U+6)}, s[22:23] sc1\ns_waitcnt lgkmcnt(0)\nCLEARVM\nu_norow:")
        if stamp: stamp(a, 'row2')
    xf = O['xfirst']
    for l in ([] if xf else p1): a(l)
    a("s_cmp_ge_u32 s2, 128\ns_cbranch_scc1 u_noiss")
    rows_issue(a)
    a("CLEARVM\nu_noiss:")
    for l in (p1 if xf else []) + p2 + [EPOLD]: a(l)
    a("CLEARVM")
    if stamp: stamp(a, 'iss')
    deal(O['nw'])
    if O['wc'] is None: warm(a, 'conv')
    split(a, 'conv')
    if stamp: stamp(a, 'hop')
    if xf: rows(13)
    deal(O['nb']); assert O['npre'] + O['nw'] + O['nb'] >= nurg and O['npre'] < nurg
    if stamp and O.get('dg'):
        stamp(a, 'cst'); a("s_waitcnt lgkmcnt(0)"); stamp(a, 'sld')
        for k, n in enumerate((17, 15, 12)): a(f"s_waitcnt vmcnt({n}) ; untracked"); stamp(a, f'p{k}')
    a(f"s_waitcnt lgkmcnt(0)\ns_cmp_ge_u32 s2, 128\ns_cbranch_scc1 u_w0\ns_waitcnt vmcnt({(14 if xf else 12) + 4*O['lateb']})\ns_branch u_w1\nu_w0:\ns_waitcnt vmcnt({7 + 4*O['lateb']})\nu_w1:")
    a(f"""
    s_and_b32 s33, s48, 1
    s_lshl_b32 s33, s33, 4
    s_lshr_b32 s27, s27, s33
    s_lshl_b32 s27, s27, 16
    s_lshr_b32 s28, s28, s33
    s_lshl_b32 s28, s28, 16
    v_mov_b32 v{DT}, {LOG2E}
    v_mul_f32 v{DT}, s27, v{DT}
    v_exp_f32 v{DT}, v{DT}
    v_writelane_b32 v{DSK}, s28, 0
    v_cvt_pk_bf16_f32 v{DT}, v{DT}, v{DT}
    v_and_b32 v{DT}, 0xffff0000, v{DT}
    s_mov_b32 s14, 0x05040100
    s_mov_b32 s15, 0x07060302
    """)
    pollA = [M("0xffffffff", f"global_load_dword v{PLA}, v{VPA}, s[22:23] sc1")]
    chkA = [tagchk(PLA, "0xffffffff")]
    mdl = M("s[56:57]", f"global_load_dwordx2 {P(MD)}, v{VMD}, s[22:23] sc1")
    hl = []
    for j in range(4): hl += [f"global_load_dwordx4 {V4(X+4*j)}, v{VXR}, s[22:23] offset:{1024*j} sc1", f"global_load_dwordx4 {V4(S+4*j)}, v{VST}, s[22:23] offset:{1024*j} sc1"]
    def hook(pos):
        if pos == O['wc']: warm(a, 'conv')
        if pos == O['tc']: tlb(a, 252); a('CLEARVM')
        if pos == O['hrow'] and not xf: rows(7)
        if pos == O['hgo']:
            a("s_waitcnt vmcnt(0)"); nonce(a)
            a("v_mov_b32 v44, s65\ns_cmp_ge_u32 s2, 128\ns_cbranch_scc1 f_naa\ns_barrier")
            fs = flag_set('a', 246, ONE_V, dense=True)
            for l in fs[:-1] + [M(1, f"global_store_dword v243, v{ONE_V}, s[22:23] ; untracked")] + fs[-1:]: a(l)
            if stamp: stamp(a, 'flagA')
            deal(999)
        if pos == O['hh1']: a(hfa)
        if pos == O['hh2']:
            a(f"{hca[0]}\ns_cbranch_vccnz u_hinta\nu_hinta_ok:")
            spin(a, late, "u_hinta", [hfa], hca, "u_hinta_ok", bound=24, slp=0)
            if stamp: stamp(a, 'hintA')
        if pos == O['hpoll']: a(pollA[0])
        if pos == O['hchk']:
            a(f"{chkA[0]}\ns_cbranch_vccnz u_spina\nu_oka:")
            spin(a, late, "u_spina", pollA, chkA, "u_oka")
            if stamp: stamp(a, 'pollA')
        if O['hchk'] <= pos < (3, 0):
            for _ in range(O['hr']):
                if hl: a(hl.pop(0))
    hfa = M("0xffff", f"global_load_dword v{PLA+1}, v244, s[22:23] sc1"); hca = [tagchk(PLA+1, "0xffff")]
    hl.insert(O['mdp'], mdl)
    assert O['hrow'] < O['hgo'] < (2, 0) and O['hgo'] <= O['hh1'] < O['hh2'] <= O['hpoll'] < O['hchk']
    pend = []; ard = []
    for rd in range(3):
        FB, FA = 64*(rd & 1), 64*(rd & 1) + 32
        s = []
        for i, d in enumerate((KR, KR + 1, BB, BB + 1, CC, CC + 1)):
            if rd == 0: s.append(f"v_lshlrev_b32 v{d}, 16, v{RAW+i}")
            elif rd == 1: s.append(f"v_and_b32 v{d}, 0xffff0000, v{RAW+i}")
            else: s.append(f"v_lshlrev_b32 v{d}, 16, v{RAW+6+i}")
        s.append(f"v_pk_mul_f32 {P(KR)}, {P(KR)}, {P(DT)} op_sel_hi:[1,0]")
        s.append(f"v_pk_mul_f32 {P(BB)}, {P(BB)}, {P(DT)} op_sel_hi:[1,0]")
        s.append(f"v_pk_mul_f32 {P(KR)}, {P(KR)}, s[34:35]")
        s += [f"v_mul_f32 v{XX}, 0x41000000, v{KR}", f"v_mul_f32 v{XX+1}, 0x41000000, v{KR+1}", f"v_exp_f32 v{XX}, v{XX}", f"v_fract_f32 v{XX+1}, v{XX+1}",
              f"v_cos_f32 v{F+2}, v{XX+1}", f"v_sin_f32 v{F+3}, v{XX+1}", f"v_exp_f32 v{XX+2}, v{KR}", f"v_fract_f32 v{XX+3}, v{KR+1}",
              f"v_cos_f32 v{E1}, v{XX+3}", f"v_sin_f32 v{E1+1}, v{XX+3}",
              f"v_pk_mul_f32 {P(F+2)}, {P(F+2)}, {P(XX)} op_sel_hi:[1,0] neg_hi:[1,0]", f"v_pk_mul_f32 {P(E1)}, {P(E1)}, {P(XX+2)} op_sel_hi:[1,0]"]
        sb = [l for l in s if re.match(rf"v_\w+ v\[?({BB}|{BB+1}|{CC}|{CC+1})\b", l)] if O['lateb'] else []
        if stamp: stamp(a, f'r{rd}')
        for l in s:
            if l not in sb: a(l)
        vals = [([], None, 0), ([], F + 2, 1)]
        for j in range(2, 9): vals.append((cmul(F + 2*j, F + 2*(j-1), F + 2, T0), F + 2*j, j))
        for j in range(9, 32):
            z = F + 2*(j & 7)
            if j == 16:
                vals.append((cmul(F, G, G, T0) + [f"v_pk_mul_f32 {P(T0)}, {P(F)}, {P(F)} op_sel:[0,0] op_sel_hi:[0,1] neg_hi:[1,0]",
                             f"v_pk_fma_f32 {P(H)}, {P(F)}, {P(F)}, {P(T0)} op_sel:[1,1,0] op_sel_hi:[1,0,1] neg_lo:[1,0,0] neg_hi:[1,0,0]"], F, j))
            else: vals.append((cmul(z, z, G, T0), z, j))
        zr = {l: F + 2*k for k, l in enumerate(AROWS)}
        for l in AROWS:
            op = cmul(zr[0], CC, BB, T0) if l == 0 else cmul(zr[l], zr[l-1], E1, T0) if l <= 8 else cmul(zr[l], zr[l-256], H, T0)
            vals.append((op, zr[l], 32 + AROWS.index(l)))
        brd = [f"ds_read_b128 {A4(FB+4*ks)}, v{VB} offset:{32*ks}" for ks in range(8)]
        for gi in range(14):
            hook((rd, gi))
            if gi == 8:
                if rd == 0 and sb: a("s_cmp_ge_u32 s2, 128\ns_cbranch_scc1 u_w2\n" + ("s_waitcnt vmcnt(12)\n" if O['hrow'] > (0, 8) else "") + "s_branch u_w3\nu_w2:\ns_waitcnt vmcnt(7)\nu_w3:")
                for l in sb: a(l)
            grp = vals[4*gi:4*gi+4]
            for v in grp:
                for l in v[0]: a(l)
            if pend and gi >= 5: a(pend.pop(0))
            for k, v in enumerate(grp):
                if v[1] is not None: a(f"v_cvt_pk_bf16_f32 v{PB+k}, v{v[1]}, v{v[1]+1}")
            rds = ard if gi < 8 else brd
            for _ in range(2):
                if rds: a(rds.pop(0))
            for k, v in enumerate(grp): a(f"ds_write_addtid_b32 v{PB+k if v[1] is not None else ONE} offset:{272*v[2]}")
        assert not pend and not brd and not ard
        ard = [f"ds_read_b128 {A4(FA+4*ks)}, v{VA} offset:{32*272 + 32*ks}" for ks in range(8)]
        pend = [f"v_mfma_f32_32x32x16_bf16 v[{ACK}:{ACK+15}], {A4(FA+4*ks)}, {A4(FB+4*ks)}, " + ("0" if rd == 0 and ks == 0 else f"v[{ACK}:{ACK+15}]") for ks in range(8)]
    for l in ard: a(l)
    hook((3, 0))
    if stamp: stamp(a, 'r3')
    nsh = 44 - len(hl[2:])
    for l in hl[:2] + interleave(pend, interleave(addr[:nsh], hl[2:]) if addr else hl[2:]): a(l)
    addr = addr[nsh:]
    V = ACK; E, O = PK, PK + 4
    a(f"v_add_f32 v{V}, v{V}, v{DSK}")
    for k in range(4): a(f"v_cvt_pk_bf16_f32 v{E+k}, v{V+8-2*k}, v{V+7-2*k}")
    for k in range(4): a(f"v_cvt_pk_bf16_f32 v{O+k}, v{V+7-2*k}, v{V+6-2*k}")
    a(f"ds_write_b128 v{TB}, {V4(E)} offset:{cm.CH_E*16}")
    a(f"v_cvt_pk_bf16_f32 v{PK+8}, v{V+10}, v{V+9}\nv_cvt_pk_bf16_f32 v{PK+9}, v{V+11}, v{V+12}")
    a(f"v_readlane_b32 s8, v{O+3}, 0\nv_readlane_b32 s9, v{E}, 63\nv_readlane_b32 s11, v{PK+8}, 63")
    a(f"ds_write_b128 v{TB}, {V4(O)} offset:{cm.CH_O*16}")
    a(f"s_lshr_b32 s8, s8, 16\ns_lshl_b32 s10, s9, 16\ns_and_b32 s11, s11, 0xffff")
    a(f"v_writelane_b32 v{SPC}, s8, {SPECIAL.index(cm.CH_E+1)}")
    a(f"v_writelane_b32 v{SPC+3}, s9, {SPECIAL.index(cm.CH_E-64)}")
    a(f"v_writelane_b32 v{SPC+2}, s10, {SPECIAL.index(cm.CH_O-64)}")
    a(f"v_writelane_b32 v{SPC+3}, s9, {SPECIAL.index(cm.CH_O-64)}")
    a(f"s_mov_b64 exec, 0xffffffff\nds_write_b128 v{TS}, {V4(SPC)}\ns_mov_b64 exec, -1")
    a(f"ds_write_b32 v{T2A}, v{PK+8} offset:{cm.CH_T2*16 + 2*(320-130)}")
    a(f"ds_write_b16 v{T3A}, v{PK+9} offset:{cm.CH_T3*16 + 2*(256-129)}")
    a(f"ds_write_b16_d16_hi v{T3A}, v{PK+9} offset:{cm.CH_T3*16 + 2*(256-193)}")
    NH = OPT['nh']
    TDO = [16, 0, 8] + [q for k in range(1, 8) for q in (k, k + 8)]
    HB = 256 - 4*NH; T3 = HB - 16; T2 = T3 - 24; TDB = T2 - 68
    td = lambda q: TDB + 4*TDO.index(q)
    def rd_td(q): return [f"ds_read2_b32 a[{td(q)+2*h}:{td(q)+2*h+1}], v{VTD} offset0:{16*(16-q)+2*h} offset1:{16*(16-q)+2*h+1}" if q else
                          f"ds_read2_b32 a[{td(q)+2*h}:{td(q)+2*h+1}], v{VTD0} offset0:{2*h} offset1:{2*h+1}" for h in range(2)]
    tabs = [None] + rd_td(0) + rd_td(8) + rd_td(16) + rd_td(1) + rd_td(9)
    for D in range(2, 5):
        for hh in range(2):
            off = 2*(cm.CH_T2*8 + 320 - 64*D - 4 + 8*hh)
            tabs += [f"ds_read_b64 a[{T2+8*(D-2)+4*hh+2*h}:{T2+8*(D-2)+4*hh+2*h+1}], v{VT2} offset:{off+8*h}" for h in range(2)]
    for D in range(4, 8):
        tabs += [f"ds_read2_b32 a[{T3+4*(D-4)+2*h}:{T3+4*(D-4)+2*h+1}], v{VT3} offset0:{16*(7-D)+2*h} offset1:{16*(7-D)+2*h+1}" for h in range(2)]
    ntab = OPT['ntab']
    if OPT['tord']:
        t2, t3 = tabs[11:23], tabs[23:]; tabs = tabs[:11]
        for q in range(2, 8): tabs += t2[2*(q-2):2*(q-1)] + rd_td(q) + rd_td(q + 8)
        tabs += t3
    else:
        for q in range(2, 8): tabs = tabs + rd_td(q) + rd_td(q + 8)
    for l in tabs[1:OPT['nt0']]: a(l)
    n0 = len(a.ins)
    for w in range(4): a(f"v_mul_u32_u24 v{SP+w}, s11, v{SP+w}")
    if stamp: stamp(a, 'tab')
    cmd = [tagchk(MD+1, "s[56:57]")]
    a(cmd[0] + "\ns_cbranch_vccnz u_spinmd\nu_okmd:")
    spin(a, late, "u_spinmd", [mdl], cmd, "u_okmd")
    a(f"""
    v_add_f32_dpp v{MD}, v{MD}, v{MD} row_ror:4 row_mask:0xf bank_mask:0xf
    v_add_f32_dpp v{MD}, v{MD}, v{MD} row_ror:8 row_mask:0xf bank_mask:0xf
    v_cvt_pk_bf16_f32 v{MD}, v{MD}, v{MD}
    v_and_b32 v{MD}, 0xffff0000, v{MD}
    v_add_f32 v{MD}, v{MD}, v{MD+2}
    v_cvt_pk_bf16_f32 v{MD}, v{MD}, v{MD}
    v_and_b32 v{MD}, 0xffff0000, v{MD}
    """)
    f = [f"v_readlane_b32 s{8+c}, v{MD}, {c}" for c in range(4)] + [f"v_readlane_b32 s{52+c}, v{MD}, {16+c}" for c in range(4)]
    f += [f"v_mov_b32 v{SA+c}, s{8+c}" for c in range(4)] + [f"v_readlane_b32 s50, v{MD}, s58"]
    for l in f: a(l)
    a('u_have:')
    UN = F
    for k in range(16):
        if k % 4 == 0:
            for q in range(k, k + 4): a(f"v_lshlrev_b32 v{UN+2*q}, 16, v{X+q}\nv_and_b32 v{UN+2*q+1}, 0xffff0000, v{X+q}")
        st = P(S + 2*(k >> 1))
        a(f"v_pk_fma_f32 {P(UN+2*k)}, {P(UN+2*k)}, {st}, {st} op_sel:[0,0,1] op_sel_hi:[1,0,1]")
    body = a.ins[n0:]; del a.ins[n0:]; rd = tabs[OPT['nt0']:ntab]; nv = 0; nval = sum(i.mn.startswith('v_') for i in body); k0 = 0
    for q, i in enumerate(body):
        a.ins.append(i)
        if i.mn.startswith('v_') and not i.mn.startswith('v_cmp'):
            nv += 1
            while k0 < len(rd)*nv//nval: a(rd[k0]); k0 += 1
    for l in rd[k0:]: a(l)
    for cp in range(2):
        for k in range(cp, 16, 2): a(f"v_pk_fma_f32 {P(UN+2*k)}, {P(UN+2*k)}, s[{52+2*cp}:{53+2*cp}], {P(SA+2*cp)}")
        for c in (2*cp, 2*cp + 1):
            for tp in range(4): a(f"v_cvt_pk_bf16_f32 v{HP+4*c+tp}, v{UN+8*tp+c}, v{UN+8*tp+4+c}")
            a(f"ds_write_b128 v{VW}, {V4(HP+4*c)} offset:{HST*c + 512}")
    a("s_waitcnt lgkmcnt(0)\ns_barrier")
    if stamp: stamp(a, 'bar')
    XP = S
    ACC, Z3, Z2, SD, XD, XU, OUTR = 112, 144, 160, 208, 8, 24, 84
    ops = []
    first = set()
    def acc(n, A, B):
        ops.append((ACC+4*n, A, B, None if n in first else "0")); first.add(n)
    cvs = []; lastacc = {}; sdt = []
    nsd = [0]
    def sig0(n, what, rep=0):
        h, hs, sd = ('h', n, 32, rep), ('h', n, 48, rep), SD + 24*(nsd[0] & 1)
        r2, r3, dr = n < 6 and '2' in what, n < 4 and '3' in what, [j for j in range(3) if 'abc'[j] in what and n + j < 8]
        if r2 or r3: nsd[0] += 1; sdt.append(len(ops))
        if r2:
            for q in (1, 2, 3, 0): ops.append((sd+4*q, hs if q == 0 else h, V4(BND+4*(q if q != 2 else 0)), "0"))
        if r3: ops.append((sd+16, hs, V4(BND+16), "0")); ops.append((sd+20, h, V4(BND+20), "0"))
        p = len(ops)
        cv = []
        if r2:
            for hh in range(2):
                for w in range(4): cv.append(f"v_cvt_pk_bf16_f32 v{Z2+8*n+4*hh+w}, v{sd + 4*(2*(w&1)) + 2*hh + (w>>1)}, v{sd + 4*(2*(w&1)+1) + 2*hh + (w>>1)}")
        if r3: cv += [f"v_cvt_pk_bf16_f32 v{Z3+4*n+r}, v{sd+16+r}, v{sd+20+r}" for r in range(4)]
        cvs.extend((l, p + 2, p + 11, nsd[0]) for l in cv)
        for j in dr: acc(n+j, A4(td(8*j)), h)
        if r3: acc(n+4, V4(SP), h)
    far = []
    for n in range(6):
        for hh in range(2):
            for D in range(2, 5):
                if n + D < 8: far.append((n+D, V4(Z2+8*n+4*hh), A4(T2+8*(D-2)+4*hh), n))
    for n in range(4):
        for D in range(4, 8):
            if n + D < 8: far.append((n+D, V4(Z3+4*n), A4(T3+4*(D-4)), n))
    far1 = [x for x in far if x[0] < 4]; far2 = sorted((x for x in far if x[0] >= 4), key=lambda x: x[3] >= 4)
    k1 = OPT['far1']; far1 += far2[:k1]; far2 = far2[k1:]
    def phase(part, sig, fr, k):
        for n in range(4*part, 4*part + 4):
            h = ('h', n, 32 + 64*sig, 0)
            acc(n, A4(td(sig)), h); lastacc[n] = len(ops) - 1
            if n < 7: acc(n+1, A4(td(sig+8)), h)
            for _ in range((k*(n%4+1))//4 - (k*(n%4))//4): acc(*fr.pop(0)[:3])
    for n in range(4): sig0(n, '23abc' if not OPT['short'] else '2abc' if n < 2 else 'ab')
    for sig in range(1, 8): phase(0, sig, far1, -(-len(far1) // (7 - sig)) if sig < 7 else 0)
    assert not far1
    blocks = ([(2, '23c', 1), (3, '23c', 1), (0, '3', 1), (4, '23abc', 0), (1, '3', 1), (5, '23abc', 0)] if OPT['short'] else [(4, '23abc', 0), (5, '23abc', 0)])
    zdone = lambda A: all(p + 12 <= len(ops) for l, p, hi, k in cvs if int(re.search(r'v(\d+),', l).group(1)) // 4 * 4 == int(re.search(r'v\[(\d+):', A).group(1))) and any(f"v{re.search(r'v.(.+):', A).group(1)}," in l for l, p, hi, k in cvs)
    def spacer(k):
        for x in [x for x in far2 if zdone(x[1])][:k]: far2.remove(x); acc(*x[:3])
    sig = 1
    for _ in range(OPT['p2a']): phase(1, sig, [], 0); sig += 1
    sig0(6, 'ab'); sig0(7, 'a')
    for b in blocks:
        sig0(*b)
        if len(b[1]) > 1:
            if sig < 7: phase(1, sig, [], 0); sig += 1
            else: spacer(6)
    while sig < 7: phase(1, sig, [], 0); sig += 1
    phase(1, 7, [], 0)
    far2.sort(key=lambda x: x[0])
    while far2:
        n0 = len(far2); spacer(1); assert len(far2) < n0
    for n in range(8): lastacc[n] = max(k for k, o in enumerate(ops) if o[0] == ACC + 4*n)
    assert len(ops) == 202
    cvs = [(l, min(lo, hi2), hi2) for l, lo, hi, k in cvs for hi2 in [min(hi, sdt[k+1] - 1 if k + 1 < len(sdt) else 999)]]
    use = {}
    for i, o in enumerate(ops):
        for x in o[1:3]: use.setdefault(x, []).append(i)
    hs = [x for x in use if isinstance(x, tuple)]
    hreg = {}; hch = []; LEAD = OPT['lead']
    for k, x in enumerate(hs):
        hreg[x] = A4(HB + 4*(k % NH))
        lo = use[hs[k-NH]][-1] if k >= NH else -1
        hch.append((f"ds_read_b128 {hreg[x]}, v{VH} offset:{512 + 512*x[1] - x[2]}", lo, max(lo, use[x][0] - LEAD)))
    m = [mf(d, hreg.get(A, A), hreg.get(B, B), c) for d, A, B, c in ops]
    def treg(l):
        r = int(re.search(r'a\[(\d+):', l).group(1)); return A4(r - r % 4)
    rest = tabs[ntab:]
    tch = sorted(((l, 0, use[treg(l)][0] - LEAD) for l in rest), key=lambda x: x[2])
    def epi(n):
        r = ACC + 4*n; o = OUTR + 2*n
        e = [f"v_fma_f32 v{r+k}, v{r+k}, s50, v{XU+4*(n&3)+k}" for k in range(4)] + [f"v_cvt_pk_bf16_f32 v{o+h}, v{r+2*h}, v{r+2*h+1}" for h in range(2)]
        if n & 1:
            o -= 2
            e += [f"v_permlane16_swap_b32 v{o}, v{o+2}", f"v_permlane16_swap_b32 v{o+1}, v{o+3}"]
            x = [f"global_store_dwordx4 v{VO}, {V4(o)}, s[22:23]" + SC + f" ; tag=x1s{n}"] + ([f"v_add_u32 v{VO}, {8*81920}, v{VO}"] if n < 7 else [])
            if n < 4 or OPT['dst'] < 0: e += x
            else: DEFER.extend(U_(l) for l in x)
        return [(l, lastacc[n] + 3, lastacc[n] + OPT['e1d'] if n < 4 else 999) for l in e]
    def unp(p): return [(l, 0, lastacc[4*p]) for k in range(8) for l in (f"v_lshlrev_b32 v{XU+2*k}, 16, v{XD+8*p+k}", f"v_and_b32 v{XU+2*k+1}, 0xffff0000, v{XD+8*p+k}")]
    gb0 = OPT['xbar']
    xch = []
    for c in range(4):
        xch += [(f"v_perm_b32 v{XP+4*c+tp}, v{X+4*tp+2+(c>>1)}, v{X+4*tp+(c>>1)}, s{14+(c&1)}", -1, -1) for tp in range(4)]
    xch += [(f"ds_write_b128 v{VW}, {V4(XP+4*c)} offset:{L_XT - L_H + XST*c} ; xt", 0, gb0 - 12) for c in range(4)]
    xch += [(["WAITXT", "s_barrier"], gb0, gb0)] + [(f"ds_read_b64 {P(XD+2*n)}, v{VXD} offset:{512*n}", gb0, gb0 + 16) for n in range(4)]
    xch += [(unp(0)[0][0], gb0 + 18, 999)] + unp(0)[1:]
    for n in range(4): xch += epi(n)
    xch += [(f"ds_read_b64 {P(XD+2*n)}, v{VXD} offset:{512*n}", 0, 140) for n in range(4, 8)] + [(unp(1)[0][0], 148, 999)] + unp(1)[1:]
    for n in range(4, 8): xch += epi(n)
    wfl = M("0xfff", f"global_load_dword v{VWV}, v{VWF}, s[22:23] sc1")
    w0 = OPT['w0']; NE = OPT['NE']
    qch = [(l, OPT['qg'] + 3*k, OPT['qg'] + 3*k) for k, l in enumerate(q_issue(111))]
    qa, qb = q_process(2, 4, 76); qs = OPT['qs']
    qch += [(l, qs - 24, qs - 8) for l in qa] + [(qb[0], qs, qs + 2), (qb[1], qs + 4, qs + 6)]
    ach = [(l, 9, min(70, w0 - OPT['wl'])) for l in addr] + [(wfl, w0 - OPT['wl'], w0 - OPT['wl'] + 2)]
    wchk = [tagchk(VWV, "0xfff")]
    ach += [([wchk[0], "s_cbranch_vccnz f_spinw", "f_okw:"], w0, w0)]
    spin(a, late, "f_spinw", [wfl], wchk, "f_okw")
    for q in range(NE):
        n1, e1, b2_ = OPT['wsp']
        lo = w0 + 1 + (q*(e1 - w0))//n1 if q < n1 else max(w0 + 1, b2_) + ((q - n1)*(200 - max(w0 + 1, b2_)))//max(NE - n1, 1)
        if 4*q >= TDB: lo = max(lo, use[A4(4*q)][-1] + 1)
        ach.append((wld(q), lo, lo + 2))
    ga1 = lastacc[3] + OPT['ba1']; ga2 = min(200, ga1 + OPT['ba2'])
    bch = [(["WAITVM x1s3", "s_barrier"] + flag_set('b0', 45, 44, dense=OPT['dense'] & 1), ga1, ga1)]
    if OPT['her']:
        bch += [(["s_cmp_lg_u32 s20, 0", "s_cbranch_scc1 f_nahe", M(1, "global_store_dword v46, v44, s[22:23] ; untracked"), "f_nahe:"], ga2, ga2), (HFL, max(ga2, OPT['hl']), max(ga2, OPT['hl']))]
    if OPT['go0']:
        pub = ["s_cmp_lg_u32 s20, 0", "s_cbranch_scc1 f_npb0", "WAITMARK b0"]
        publish(lambda t: pub.extend(t.split("\n")), "f_npb0", 47, 160 // OPT['nsh'], 45, 44)
        bch = [(["WAITVM x1s3", "s_barrier", "s_cmp_lg_u32 s20, 0", "s_cbranch_scc1 f_nab0", M(1, "global_atomic_add v47, v46, v47, s[22:23] sc0 sc1 ; untracked"), "f_nab0:", "VMMARK b0"], ga1, ga1),
               (pub + ["f_npb0:"], ga2, ga2)]
    out = listsched(m, [hch, tch, sorted(cvs, key=lambda x: x[1]), xch, ach, bch] + ([qch] if OPT['qall'] else []))
    assert max(k for k, l in enumerate(out) if 'tag=x1s3' in l) < out.index("WAITVM x1s3")
    i = out.index("WAITXT"); j = max(k for k, l in enumerate(out) if l.endswith('; xt'))
    out[i] = f"s_waitcnt lgkmcnt({min(15, sum(l.startswith('ds_') for l in out[j+1:i]))})"
    nm = 0
    for l in out:
        if stamp and l.startswith('v_mfma'):
            if nm % 40 == 0 and nm: stamp(a, f'c{nm}')
            nm += 1
        a(l)
        if stamp and l == 'f_nab0:': stamp(a, 'arr0')
        if stamp and l == 'f_okw:': stamp(a, 'okw')
        if stamp and l == 'f_npb0:': stamp(a, 'pub0')
    if stamp: stamp(a, 'done')
    if OPT['her']: hint(a, late, "u_hint1")
L_CV, L_MS, L_WD = 40960, 43008, 98304
def mod_addr(a, r, vaddr):
    a(f"""
    s_add_u32 s26, s3, {96*r}
    s_cmp_ge_u32 s26, 240
    s_cselect_b32 s27, 48, 0
    s_sub_u32 s26, s26, s27
    s_lshr_b32 s27, s26, 2
    s_mul_i32 s28, s27, 6554
    s_lshr_b32 s28, s28, 16
    s_mul_i32 s29, s28, 10
    s_sub_u32 s27, s27, s29
    s_lshl_b32 s28, s28, 2
    s_lshr_b32 s28, {OPT['morder']}, s28
    s_and_b32 s28, s28, 7
    s_mul_i32 s28, s28, 10
    s_add_u32 s27, s27, s28            ; slab
    s_lshl_b32 s28, s27, 7
    v_add_u32 v{vaddr}, s28, v51
    s_lshl_b32 s27, s27, 8
    s_mul_i32 s28, s13, 15360
    s_add_u32 s27, s27, s28
    s_add_u32 s{50+2*r}, s27, {MODP}
    """)
def mod_issue(vaddr, W):
    r = []
    for j in range(5):
        r.append(f"global_load_dwordx4 {V4(W+4*j)}, v{vaddr}, s[10:11]")
        if j < 4: r.append(f"v_add_u32 v{vaddr}, {32*7680}, v{vaddr}")
    return r
def mod_process(a, r, W, pre='', post=None, slot=None, fill=()):
    slot = r if slot is None else slot
    A = 238; C = 56
    d = [f"v_dot2_f32_bf16 v{A+e}, v{W+4*j+e//2}, v{C+(5 if e&1 else 0)+j}, " + ("0" if j == 0 else f"v{A+e}") for j in range(5) for e in range(8)]
    for l in interleave(d, list(fill), start=8): a(l)
    for i in range(4): a(f"v_permlane32_swap_b32 v{A+i}, v{A+4+i}")
    for i in range(4): a(f"v_add_f32 v{A+i}, v{A+i}, v{A+4+i}")
    for i in range(2): a(f"v_permlane16_swap_b32 v{A+i}, v{A+2+i}")
    for i in range(2): a(f"v_add_f32 v{A+i}, v{A+i}, v{A+2+i}")
    for i in range(2): a(f"v_add_f32_dpp v{A+i}, v{A+i}, v{A+i} row_ror:8 row_mask:0xf bank_mask:0xf")
    a(f"""
    ds_write_b64 v53, {P(A)} offset:{L_MS + 1024*slot}
    v_add_u32 v{A+4}, s{50+2*r}, v55
    v_lshlrev_b32 v{A+5}, 1, v{A+4}
    v_add_u32 v{A+5}, {MODT - 2*MODP}, v{A+5}
    {pre}
    s_waitcnt lgkmcnt(0)
    s_barrier
    ds_read_b32 v{A}, v54 offset:{L_MS + 1024*slot}
    """)
    if post: post()
    a(f"""
    v_mov_b32 v{A+1}, v{A}
    v_permlane32_swap_b32 v{A}, v{A+1}
    v_add_f32 v{A}, v{A}, v{A+1}
    v_mov_b32 v{A+1}, v{A}
    v_permlane16_swap_b32 v{A}, v{A+1}
    v_add_f32 v{A}, v{A}, v{A+1}
    """)
    a(f"v_mov_b32 v{A+1}, s65\ns_mov_b64 exec, 0xffff\nglobal_store_dwordx2 v{A+5}, {P(A)}, s[22:23] sc1\nglobal_store_dword v{A+4}, v{A}, s[22:23] sc1\ns_mov_b64 exec, -1")
def mod_flag(a, r): a(f"s_mov_b64 exec, 1\nWAITVM m{r}\nglobal_store_dword v{148+r}, v{ONE_V}, s[22:23] sc1\ns_mov_b64 exec, -1")
def role_prep(a, stamp, late):
    VDM = 52
    a(f"""
    s_sub_u32 s3, s2, 160
    s_lshr_b32 s12, s3, 2              ; G
    s_and_b32 s13, s3, 3               ; kq
    s_mul_i32 s16, s13, 160
    v_lshrrev_b32 v50, 3, v0
    v_add_u32 v50, s16, v50
    v_mul_u32_u24 v51, 7680, v50
    v_and_b32 v5, 7, v0
    v_lshl_add_u32 v51, v5, 4, v51
    v_lshlrev_b32 v50, 1, v50
    """)
    mod_addr(a, 0, 48)
    a("s_waitcnt lgkmcnt(0)")
    if stamp: stamp(a, 'ka')
    for j in range(5): a(f"global_load_ushort v{56+j}, v50, s[8:9] offset:{64*j}")
    W0, W1 = 68, 88
    for l in mod_issue(48, W0): a(l)
    a(EPOLD)
    if stamp: stamp(a, 'iss')
    if OPT['w1early'] == 2:
        mod_addr(a, 1, 49)
        for l in mod_issue(49, W1): a(l)
    if OPT['wa'] == 0: warm(a, 'aux')
    split(a, 'aux')
    if stamp: stamp(a, 'hop')
    if OPT['w1early'] != 2: mod_addr(a, 1, 49)
    if OPT['w1early'] == 3:
        for l in mod_issue(49, W1): a(l)
    a(f"""
    v_lshrrev_b32 v6, 4, v1
    v_lshlrev_b32 v53, 3, v6
    v_lshl_add_u32 v53, v5, 5, v53
    s_lshl_b32 s26, s20, 8
    v_add_u32 v53, s26, v53
    v_and_b32 v7, 15, v1
    s_lshl_b32 s26, s20, 6
    v_lshl_add_u32 v55, v7, 2, s26
    v_lshl_add_u32 v54, v6, 8, v55
    s_lshr_b32 s14, s20, 1             ; mat
    s_and_b32 s15, s20, 1
    v_lshrrev_b32 v{VDM}, 3, v1
    v_bfe_u32 v7, v1, 4, 1
    s_lshl_b32 s17, s20, 1
    v_or_b32 v7, s17, v7
    v_xor_b32 v7, v7, v5
    v_mul_u32_u24 v{VDM}, 3072, v{VDM}
    v_lshl_add_u32 v{VDM}, v7, 4, v{VDM}
    s_lshl_b32 s17, s15, 3
    s_add_u32 s17, s17, s16
    s_mul_i32 s17, s17, 3072
    s_lshl_b32 s18, s12, 7
    s_add_u32 s17, s17, s18
    v_add_u32 v{VDM}, s17, v{VDM}
    s_mul_i32 s18, s14, 20480
    s_lshl_b32 s19, s15, 10
    s_add_u32 s18, s18, s19
    s_cmp_eq_u32 s14, 0
    s_cselect_b32 s30, s4, s6
    s_cselect_b32 s31, s5, s7
    """)
    a(f"""
    v_min_u32 v5, 159, v0
    v_add_u32 v6, s16, v5
    v_lshlrev_b32 v6, 3, v6
    """)
    for j in range(4): a(f"v_add_u32 v{44+j}, {MODT + 3*5120 + 2560 + 30720*j}, v6")
    VT, VC, VS0, VU = 16, 18, 19, 21
    a(f"""
    v_lshrrev_b32 v6, 4, v1            ; g
    v_bfe_u32 v7, v1, 2, 2             ; r
    v_lshl_add_u32 v2, v6, 3, v7
    v_lshlrev_b32 v2, 7, v2            ; (8g + r) * 128
    v_bfe_u32 v3, v1, {0 if OPT['lin'] else 1}, 1             ; mat
    v_mul_u32_u24 v4, 20480, v3
    v_add_u32 v2, v2, v4
    v_bfe_u32 v4, v1, {1 if OPT['lin'] else 0}, 1
    v_lshl_add_u32 v2, v4, 3, v2
    v_lshrrev_b32 v7, 1, v7
    v_and_b32 v4, 1, v6
    v_lshl_add_u32 v7, v4, 1, v7
    v_lshl_add_u32 v7, v3, 2, v7       ; swizzle
    s_lshl_b32 s16, s20, 1
    v_xor_b32 v7, s16, v7
    v_lshl_add_u32 v{VT}, v7, 4, v2
    v_xor_b32 v7, 1, v7
    v_lshl_add_u32 v{VT+1}, v7, 4, v2
    v_lshlrev_b32 v{VC}, 4, v6
    v_bfe_u32 v2, v1, 1, 2
    v_lshlrev_b32 v2, 2, v2
    v_lshl_add_u32 v2, v6, 4, v2
    v_bfe_u32 v3, v1, 3, 1
    v_lshl_add_u32 v2, v3, 1, v2
    v_and_b32 v3, 1, v1
    v_add_u32 v2, v2, v3
    {"v_mov_b32 v2, v1" if OPT['lin'] else ""}
    s_lshl_b32 s24, s12, 3
    s_add_u32 s24, s24, s16
    """)
    for tl in range(2):
        a(f"""
        s_add_u32 s25, s24, {tl}
        s_mul_i32 s26, s25, 21846
        s_lshr_b32 s26, s26, 16            ; T/3
        s_mul_i32 s26, s26, 60
        s_add_u32 s26, s26, s25            ; 63*(T/3) + T%3
        s_lshl_b32 s26, s26, 10
        s_add_u32 s26, s26, {WP2}
        s_mul_i32 s27, s13, {15*1024}
        s_add_u32 s27, s27, s26
        v_lshl_add_u32 v{VS0+tl}, v2, 4, s27
        s_lshl_b32 s27, s13, 8
        s_add_u32 s27, s27, s26
        s_add_u32 s27, s27, {60*1024}
        v_lshl_add_u32 v{VU+tl}, v2, 4, s27
        """)
    a("v_lshlrev_b32 v5, 1, v5")
    a(f"s_lshl_b32 s4, s3, 7\ns_add_u32 s4, s4, {GOB + 32*128}\ns_mov_b32 s63, s2\n" + "\n".join(rep_addr(23, 4)))
    pmh = lambda h: [f"global_load_dwordx2 {P(208+2*j)}, v{44+j}, s[22:23] offset:{5120*h-2560} sc1" for j in range(4)]
    pm = pmh(1)
    cm_ = [f"v_xor_b32 v{209+2*k}, s65, v{209+2*k}" for k in range(4)] + ["v_or3_b32 v209, v209, v211, v213", "v_or_b32 v209, v209, v215", "v_cmp_ne_u32 vcc, 0, v209"]
    sum4 = "v_add_f32 v208, v208, v210\nv_add_f32 v212, v212, v214\nv_add_f32 v208, v208, v212\nv_cvt_pk_bf16_f32 v208, v208, v208"
    mod_addr(a, 2, 236)
    NQ = 1 if OPT['qall'] else 3
    for k in range(NQ):
        for l in (q_addr(250, dst=(40, 41)) if OPT['qall'] else q_addr(250 + k, f"s_add_u32 s4, s3, {96*k}\ns_cmp_ge_u32 s4, 240\ns_cselect_b32 s5, 48, 0\ns_sub_u32 s4, s4, s5", (40 + 2*k, 41 + 2*k))): a(l)
    if stamp: stamp(a, 'cst')
    C = 56
    if OPT['w1early'] == 1:
        for l in mod_issue(49, W1): a(l)
    for j in range(5): a(f"v_lshlrev_b32 v{C+j}, 16, v{C+j}\nv_mul_f32 v{C+5+j}, 0xbfb8aa3b, v{C+j}\nv_exp_f32 v{C+5+j}, v{C+5+j}")
    for j in range(5): a(f"v_add_f32 v{C+5+j}, 1.0, v{C+5+j}\nv_rcp_f32 v{C+5+j}, v{C+5+j}")
    for j in range(5): a(f"v_mul_f32 v{C+j}, v{C+j}, v{C+5+j}")
    for j in range(5): a(f"v_cvt_pk_bf16_f32 v{C+j}, v{C+j}, 0\nv_lshlrev_b32 v{C+5+j}, 16, v{C+j}")
    if not OPT['w1early'] and not OPT['wfirst']:
        for l in mod_issue(49, W1): a(l)
    def wdma(i): return [f"s_add_u32 m0, s18, {2048*i}", f"global_load_lds_dwordx4 v{VDM}, s[30:31] ; tag=w{i}"] + ([f"v_add_u32 v{VDM}, {16*3072}, v{VDM}"] if i < 9 else [])
    if OPT['wa'] == 1: warm(a, 'aux')
    if stamp: stamp(a, 'sil')
    if stamp and OPT.get('dg'): a('s_waitcnt vmcnt(6)'); stamp(a, 'w0')
    J = lambda lo, hi: ["\n".join(wdma(i)) for i in range(lo, hi)]
    mod_process(a, 0, W0, post=lambda: nonce(a), fill=J(0, OPT['aw0']))
    if stamp: stamp(a, 'flagA')
    for l in J(OPT['aw0'], OPT['aw1'] - OPT['ail']): a(l)
    if not OPT['wfirst']:
        mod_process(a, 1, W1, fill=J(OPT['aw1'] - OPT['ail'], OPT['aw1']))
        if stamp: stamp(a, 'r1')
    for l in pm: a(l)
    for i in range(OPT['aw1'], 10):
        for l in wdma(i): a(l)
    if OPT['wfirst']:
        W1 = 216
        for l in mod_issue(49, W1): a(l)
    if OPT['wa'] == 2: warm(a, 'aux')
    W2 = 216
    for l in cm_: a(l)
    a("s_cbranch_vccnz u_spinm\nu_okm:")
    spin(a, late, "u_spinm", pm, cm_, "u_okm")
    if stamp: stamp(a, 'pollA')
    ONES = 24
    for w in range(4): a(f"v_mov_b32 v{ONES+w}, 0x3f803f80")
    a(f"""
    {sum4}
    v_and_b32 v12, 0xffff0000, v208
    v_add_f32 v12, 1.0, v12
    v_cvt_pk_bf16_f32 v12, v12, v12
    ds_write_b16 v5, v12 offset:{L_CV}
    WAITVM w{2*OPT['NA']-1}
    s_waitcnt lgkmcnt(0)
    s_barrier
    """)
    if stamp: stamp(a, 'bar')
    NA = OPT['NA']
    UU, CV, SV, ML, LO, OUT, D = 66, 108, 128, 8, 28, 148, 188
    def rds(s):
        a(f"ds_read_b128 {V4(CV+4*s)}, v{VC} offset:{L_CV + 64*s}")
        for tl in range(2):
            for hh in range(2): a(f"ds_read_b64_tr_b16 {P(UU+8*s+4*tl+2*hh)}, v{VT+tl} offset:{4096*s + 512*hh}")
    def pq(part=3):
        for l in mod_issue(236, W2): a(l)
        for k in range(NQ):
            for l in q_issue(250 + k, k): a(l)
    for s in range(NA): rds(s)
    if OPT['pq'] == 0: pq()
    for s in range(5):
        if s == NA:
            if OPT['wfirst']:
                mod_process(a, 1, W1)
                if stamp: stamp(a, 'r1')
            a("WAITVM w9")
            if stamp: stamp(a, 'r2')
            a("s_barrier")
            for q in range(NA, 5): rds(q)
            if OPT['pq'] == 1: pq()
        for w in range(4): a(f"v_and_b32 v{ML+2*w}, 0xffff, v{CV+4*s+w}\nv_and_b32 v{ML+2*w+1}, 0xffff0000, v{CV+4*s+w}")
        for tl in range(2):
            for w in range(4):
                for h in range(2): a(f"v_dot2_f32_bf16 v{LO+8*tl+2*w+h}, v{UU+8*s+4*tl+w}, v{ML+2*w+h}, 0")
        for tl in range(2):
            o = OUT + 8*s + 4*tl
            for w in range(4): a(f"v_cvt_pk_bf16_f32 v{o+w}, v{LO+8*tl+2*w}, v{LO+8*tl+2*w+1}")
            a(f"global_store_dwordx4 v{VS0+tl}, {V4(o)}, s[22:23]" + SC + " ; tag=wst")
            if s < 4: a(f"v_add_u32 v{VS0+tl}, 3072, v{VS0+tl}")
    if stamp: stamp(a, 'sts')
    if OPT['pq'] == 2: pq()
    for s in range(5):
        for tl in range(2):
            a(mf(D+8*tl, V4(ONES), V4(OUT+8*s+4*tl), "0" if s == 0 else None))
    def fw():
        for l in flag_set('fw', 23, ONE_V): a(l)
        if stamp: stamp(a, 'fw')
    ids(a, 10, 11)
    for l in wbase(): a(l)
    wfl = M("0xfff", "global_load_dword v11, v10, s[22:23] sc1"); wchk = [tagchk(11, "0xfff")]
    if OPT['pq'] >= 2:
        if stamp: stamp(a, 'pre')
        a("WAITVM wst\ns_barrier"); fw()
        if OPT['pq'] == 3: pq()
        mod_process(a, 2, W2, wfl if OPT['wfp'] == 0 else '', (lambda: a(wfl)) if OPT['wfp'] == 1 else None)
    else: mod_process(a, 2, W2, "WAITVM wst", fw)
    qb = []
    for k in range(NQ):
        x, y = q_process(28 + 2*k, 29 + 2*k, 148 + 8*k, k, (40 + 2*k, 41 + 2*k)); qb += y
        for l in x: a(l)
    if OPT['pq'] < 2 or OPT['wfp'] == 2: a(wfl)
    for l in qb: a(l)
    if stamp: stamp(a, 'done')
    a(f"{wchk[0]}\ns_cbranch_vccnz u_spinw\nu_okw:")
    spin(a, late, "u_spinw", [wfl], wchk, "u_okw")
    def ext(a):
        for l in cm_: a(l)
        a("s_cbranch_vccnz u_spins\nu_oks:")
        spin(a, late, "u_spins", pmh(0), cm_, "u_oks")
        a(f"{sum4}\nds_write_b16 v112, v208\ns_waitcnt lgkmcnt(0)\ns_barrier")
        for s in range(5): a(f"ds_read_b128 {V4(SV+4*s)}, v113 offset:{64*s}")
        for s in range(5):
            for tl in range(2): a(mf(D+8*tl+4, V4(SV+4*s), V4(UU+8*s+4*tl), "0" if s == 0 else None))
        E = 204
        for k in (0, 2, 1, 3):
            u = D + 4*k; e = E + 2*k
            a(f"v_cvt_pk_bf16_f32 v{e}, v{u}, v{u}\nv_and_b32 v{u+1}, 0xffff0000, v{e}\nv_sub_f32 v{u}, v{u}, v{u+1}\nv_cvt_pk_bf16_f32 v{e+1}, v{u}, v{u}")
        a(M("0xffff", "\n".join(f"global_store_dwordx4 v{114+tl}, {V4(E+4*tl)}, s[22:23] sc1 ; untracked" for tl in range(2))))
    L_SV = 90112
    a(f"v_add_u32 v112, {L_SV}, v5\nv_add_u32 v113, {L_SV}, v{VC}\nv_mov_b32 v114, v{VU}\nv_mov_b32 v115, v{VU+1}\ns_lshl_b32 s4, s2, 9\ns_lshl_b32 s5, s20, 7\ns_add_u32 s4, s4, s5\ns_add_u32 s4, s4, {HER + 0x10000}\nv_mov_b32 v107, s4")
    a(f"s_and_b32 s4, s2, 7\ns_lshl_b32 s4, s4, 8\ns_add_u32 s4, s4, {HER}\nv_lshl_add_u32 v108, v1, 2, s4")
    for q in range(OPT['NE'] + 1):
        if q < OPT['NE']:
            for l in wld(q): a(l)
    for l in pmh(0): a(l)
    if not OPT['xl']: ext(a)
    if OPT['her']: a(HFL); hint(a, late, "u_hint2")
    a("s_waitcnt lgkmcnt(0)\ns_barrier\nCLEARVM")
    if stamp: stamp(a, 'her')
    EXT.append(ext if OPT['xl'] else lambda a: a(M(1, "global_store_dword v107, v107, s[22:23] ; untracked\nglobal_store_dword v107, v107, s[22:23] ; untracked")))
ORD = [[(t, j) for t in range(4) for j in range(3)], [(t, j) for j in range(3) for t in range(4)],
       [(t, j if t % 2 == 0 else 2 - j) for t in range(4) for j in range(3)], [(t if j % 2 == 0 else 3 - t, j) for j in range(3) for t in range(4)]]
def gemm(a, stamp, late):
    O = OPT
    VX, VW, VO, VP, VB, VSL, VSS, VG, VRW, VRR, VF = 2, 3, 4, 5, 8, 12, 14, 15, 16, 17, 18
    wq = [0]
    def wnext(n):
        r = []
        for _ in range(n):
            if wq[0] < 63: r += wld(wq[0]) if wq[0] < O.get('x_w', 63) else ['s_nop 0']; wq[0] += 1
        return r
    wnext(O['NE'])
    c0 = -2*math.sqrt(2/math.pi)*math.log2(math.e)
    VH, VPC = 26, 30; nd = 32 // O['g2']
    ad = Asm()
    ad(f"""
    v_and_b32 v6, 15, v1
    v_lshrrev_b32 v7, 4, v1
    v_lshrrev_b32 v21, 2, v1
    v_and_b32 v20, 3, v1
    v_lshl_add_u32 v20, v21, 4, v20
    s_lshl_b32 s4, s20, 2
    v_add_u32 v20, s4, v20
    s_mul_i32 s4, s60, 10
    s_sub_u32 s4, s4, 40
    v_min_u32 v21, 49, v1
    v_add_u32 v21, s4, v21
    v_cmp_gt_u32 vcc, 40, v1
    s_add_u32 s4, s100, {320*128}
    v_lshl_add_u32 v25, v20, 7, s4
    v_cndmask_b32 v20, v21, v20, vcc
    s_add_u32 s4, s100, {128*128}
    v_lshl_add_u32 v{VP}, v20, 7, s4
    """)
    if O['go0']: ad(f"v_lshl_add_u32 v{VP}, v1, 7, s4")
    elif O['dense'] & 1: ad(f"v_bfe_u32 v21, v20, 2, 2\nv_lshrrev_b32 v22, 4, v20\nv_lshl_add_u32 v21, v21, 4, v22\nv_and_b32 v20, 3, v20\nv_lshl_add_u32 v20, v21, 2, v20\nv_lshl_add_u32 v{VP}, v20, 4, s4")
    if O['dense'] & 2: ad(f"s_add_u32 s4, s100, {320*128}\nv_lshl_add_u32 v25, v0, 4, s4")
    n_poll = len(ad.ins)
    ad(f"""
    s_mul_i32 s4, s61, {81920*O['TA']}
    s_lshl_b32 s30, s20, 11
    s_add_u32 s5, s4, s30
    s_add_u32 s5, s5, {XT1}
    v_lshl_add_u32 v{VX}, v1, 4, s5
    s_mov_b32 m0, s30
    v_bfe_u32 v20, v1, 2, 2            ; r
    v_lshl_add_u32 v21, v7, 3, v20
    v_lshlrev_b32 v21, 7, v21
    v_bfe_u32 v22, v1, 1, 1
    v_lshl_add_u32 v21, v22, 6, v21
    v_and_b32 v22, 1, v1
    v_lshl_add_u32 v21, v22, 3, v21
    v_lshrrev_b32 v20, 1, v20
    v_and_b32 v22, 1, v7
    v_lshl_add_u32 v20, v22, 1, v20    ; swizzle
    """)
    for t in range(4): ad(f"v_xor_b32 v22, {t}, v20\nv_lshl_add_u32 v{VB+t}, v22, 4, v21")
    ad(f"""
    s_mul_i32 s6, s60, {40*128}
    s_add_u32 s5, s4, s6
    """)
    L_S0 = 139264
    if O['sdma']: ad(f"s_mul_i32 s31, s20, 1280\ns_add_u32 s5, s5, s31\ns_add_u32 s5, s5, {XT1}\nv_lshl_add_u32 v253, v1, 4, s5\ns_mov_b32 s5, 0\ns_add_u32 s31, s31, {L_S0}")
    ad(f"""
    s_and_b32 s6, s20, 1
    s_lshl_b32 s6, s6, 6
    s_add_u32 s5, s5, s6
    s_add_u32 s5, s5, {XT1 + 2048 if not O['sdma'] else L_S0}
    v_lshrrev_b32 v20, 3, v1
    v_lshl_add_u32 v20, v20, 7, s5
    v_and_b32 v21, 3, v1
    v_lshl_add_u32 v20, v21, 2, v20
    v_bfe_u32 v21, v1, 2, 1
    v_bfe_u32 v22, v1, 4, 1
    v_xor_b32 v21, v21, v22
    s_lshl_b32 s6, s60, 1
    s_xor_b32 s6, s6, s20
    s_and_b32 s6, s6, 2
    v_xor_b32 v21, s6, v21
    v_lshl_add_u32 v{VSL}, v21, 4, v20
    v_xor_b32 v21, 2, v21
    v_lshl_add_u32 v{VSL+1}, v21, 4, v20
    """)
    n_urgent = len(ad.ins)
    for l in flag_addr(320, 245, 244, O['dense'] & 2): ad(l)
    ad(f"""
    v_mov_b32 v{VF+1}, s65
    s_lshl_b32 s5, s61, 14
    s_add_u32 s5, s5, {PST}
    s_lshl_b32 s6, s60, 10
    s_add_u32 s6, s6, s5
    s_lshr_b32 s7, s20, 1
    s_lshl_b32 s7, s7, 8
    s_add_u32 s6, s6, s7
    s_and_b32 s7, s20, 1
    s_lshl_b32 s7, s7, 6
    s_add_u32 s6, s6, s7
    v_bfe_u32 v20, v1, 2, 1
    v_and_b32 v21, 3, v1
    v_lshlrev_b32 v20, 4, v20
    v_lshl_add_u32 v20, v21, 1, v20
    v_lshrrev_b32 v22, 5, v1
    v_add_u32 v20, v20, v22
    v_lshl_add_u32 v{VSS}, v20, 3, s6
    s_mov_b32 s36, 0xff
    s_mov_b32 s37, 0xff
    """)
    n_mid = len(ad.ins)
    ad(f"""
    v_lshrrev_b32 v22, 5, v1
    s_lshl_b32 s6, s20, 7
    s_add_u32 s5, s5, s6
    v_lshrrev_b32 v20, 3, v1
    v_lshlrev_b32 v20, 11, v20
    v_and_b32 v21, 7, v1
    v_lshl_add_u32 v20, v21, 4, v20
    v_add_u32 v{VG}, s5, v20
    v_lshl_add_u32 v20, v21, 1, v22
    s_lshl_b32 s6, s20, 9
    v_lshl_add_u32 v{VRW}, v20, 5, s6
    v_lshlrev_b32 v{VRR}, 5, v6
    s_mul_i32 s5, s61, {2*196608}
    s_mul_i32 s6, s62, 3072
    s_add_u32 s5, s5, s6
    s_add_u32 s5, s5, {HH}
    v_lshl_add_u32 v{VO}, v1, 4, s5
    s_lshl_b32 s5, s61, 4
    s_add_u32 s5, s5, s60
    s_lshl_b32 s5, s5, 8
    s_add_u32 s5, s5, {UF_C2}
    v_lshl_add_u32 v{VF}, v1, 2, s5
    s_lshr_b32 s4, s60, {O['pb']+1}
    s_lshl_b32 s4, s4, {O['pb']}
    s_and_b32 s32, s60, {(1 << O['pb'])-1}
    s_add_u32 s32, s32, s4
    s_bfe_u32 s4, s60, {0x10000 + O['pb']}
    s_lshl_b32 s33, s61, 1
    s_add_u32 s33, s33, s4
    s_min_u32 s5, s32, 1
    s_xor_b32 s5, s5, 1
    s_lshl_b32 s5, s5, 14
    v_add_u32 v{VRW}, s5, v{VRW}
    v_add_u32 v{VRR}, s5, v{VRR}
    s_add_u32 s5, s5, {(4096 - L_S0) & 0xffffffff}
    {f"s_add_u32 s31, s31, s5" + chr(10) + f"v_add_u32 v{VSL}, s5, v{VSL}" + chr(10) + f"v_add_u32 v{VSL+1}, s5, v{VSL+1}" if O['sdma'] else ""}
    s_lshl_b32 s4, s4, 1
    s_and_b32 s5, s20, 1
    s_add_u32 s16, s4, s5
    v_bfe_u32 v20, v1, 3, 1
    v_lshrrev_b32 v21, 5, v1
    v_lshl_add_u32 v20, v21, 1, v20
    v_xor_b32 v20, s16, v20
    v_bfe_u32 v21, v1, 1, 1
    v_lshl_add_u32 v20, v21, 2, v20
    v_lshlrev_b32 v20, 4, v20
    v_and_b32 v21, 1, v1
    v_lshl_add_u32 v20, v21, 3, v20
    v_lshrrev_b32 v21, 2, v1
    v_lshl_add_u32 v20, v21, 7, v20
    s_lshr_b32 s4, s20, 1
    s_mul_i32 s4, s4, 81920
    s_mul_i32 s5, s32, 10240
    s_add_u32 s4, s4, s5
    v_add_u32 v31, s4, v20
    s_lshl_b32 s34, s32, 2
    s_add_u32 s34, s34, s20
    s_mul_i32 s34, s34, 61440
    s_add_u32 s34, s34, {WD + 4096}
    s_lshr_b32 s35, s33, 1
    s_lshl_b32 s4, s35, 4
    s_lshl_b32 s5, s20, 2
    s_add_u32 s4, s4, s5
    s_lshl_b32 s4, s4, 8
    s_add_u32 s4, s4, {UF_C2}
    v_and_b32 v20, 3, v1
    v_lshl_add_u32 v{VPC}, v20, 8, s4
    v_lshlrev_b32 v20, 10, v7
    v_lshl_add_u32 v20, v6, 4, v20
    s_mul_i32 s4, s35, {2*196608}
    s_mul_i32 s5, s20, 49152
    s_add_u32 s4, s4, s5
    s_and_b32 s5, s33, 1
    s_lshl_b32 s5, s5, 9
    s_add_u32 s4, s4, s5
    s_add_u32 s4, s4, {HH + 4096}
    s_and_b32 s5, s20, 1
    s_lshl_b32 s5, s5, 8
    s_xor_b32 s6, s5, 256
    s_add_u32 s6, s6, s4
    s_add_u32 s5, s5, s4
    v_add_u32 v{VH}, s6, v20
    v_add_u32 v{VH+1}, s5, v20
    v_add_u32 v{VH+2}, 196608, v{VH}
    v_add_u32 v{VH+3}, 196608, v{VH+1}
    """)
    ad = [i.text for i in ad.ins]
    PL = 24
    poll = [f"global_load_dword v{PL}, v{VP}, s[22:23] sc1"]
    chk = [f"v_cmp_ne_u32 vcc, s65, v{PL}"]
    mk0 = hex((1 << O['nsh']) - 1)
    poll0, chk0 = ([M(mk0, poll[0])], [tagchk(PL, mk0)]) if O['go0'] else (poll, chk)
    w1 = wnext(O['N1'])
    for l in (interleave(w1, ad[:n_poll]) if w1 else ad[:n_poll]): a(l)
    a(poll0[0])
    for l in interleave(wnext(O['N2']), ad[n_poll:n_urgent]): a(l)
    assert wq[0] <= 60
    for l in chk0: a(l)
    a("s_cbranch_vccnz f_spinb\nf_okb:")
    spin(a, late, "f_spinb", poll0, chk0, "f_okb")
    if stamp: stamp(a, 'pollB')
    def dma(G):
        if G >= 20: return []
        r = [f"global_load_lds_dwordx4 v{VX}, s[22:23]" + SC, f"global_load_lds_dwordx4 v{VX}, s[22:23] offset:1024" + SC + f" ; tag=x{G}"]
        if G < 19: r += [f"s_add_u32 m0, s30, {8192*(G+1)}", f"v_add_u32 v{VX}, {8192 + (81920*(O['TB']-1) if G == 9 else 0)}, v{VX}"]
        return r
    ACC, BF, EX, SL, SQ, T, GL, R = 32, 128, 192, 248, 20, 254, 224, 232
    def sld(h, nxt):
        if O['sdma']:
            return ["s_mov_b32 m0, s31\nglobal_load_lds_dwordx4 v253, s[22:23] sc1\n" + M("0xffff", f"global_load_lds_dwordx4 v253, s[22:23] offset:1024 sc1 ; tag=sd{h}") + f"\ns_add_u32 m0, s30, {8192*nxt}"] + ([f"v_add_u32 v253, {81920*O['TB']}, v253"] if h == 0 else [])
        r = [f"global_load_dword v{SL+i}, v{VSL+(i&1)}, s[22:23] offset:{1024*i-2048} sc1" for i in range(O.get('x_sl', 5))]
        return r + ([f"v_add_u32 v{VSL+k}, {81920*O['TB']}, v{VSL+k}" for k in range(2)] if h == 0 else [])
    for G in range(O['xd']):
        for l in dma(G): a(l)
        if G == O['sat']:
            for l in sld(0, G + 1): a(l)
        if G == O['dst']:
            a("s_cmp_lg_u32 s49, 0\ns_cbranch_scc1 f_nodst\n" + "\n".join(DEFER) + "\ns_branch f_dst\nf_nodst:")
            EXT[0](a)
            a("f_dst:")
            a("TRACK global_store_dword v107, v107, s[22:23]\nTRACK global_store_dword v107, v107, s[22:23] ; tag=x1e")
    for l in ad[n_urgent:n_mid if O['adl'] else None] + [f"v_mov_b32 v{VP}, v25"]: a(l)
    def rdb(G): return [f"ds_read_b64_tr_b16 {P(BF+32*(G&1)+16*sl+4*t+2*hh)}, v{VB+t} offset:{8192*(G&7) + 4096*sl + 512*hh}" for sl in range(2) for t in range(4) for hh in range(2)]
    a("WAITVM x0\ns_barrier")
    fb1 = flag_set('b1', 245, 244, dense=O['dense'] & 2)
    for l in (fb1 if O['dst'] < 0 else []) + rdb(0): a(l)
    def st(h):
        r = [f"ds_read_b32 v{SL+i}, v{VSL+(i&1)} offset:{1024*i}" for i in range(5)] + ["s_nop 0"]*O['spad'] if O['sdma'] else []
        for i in range(5):
            r += [f"v_lshlrev_b32 v{T}, 16, v{SL+i%O.get('x_sl', 5)}", f"v_and_b32 v{T+1}, 0xffff0000, v{SL+i%O.get('x_sl', 5)}"]
            for e in range(2):
                if i == 0: r += [f"v_mov_b32 v{SQ+2*e}, v{T+e}", f"v_mul_f32 v{SQ+2*e+1}, v{T+e}, v{T+e}"]
                else: r += [f"v_add_f32 v{SQ+2*e}, v{SQ+2*e}, v{T+e}", f"v_fmac_f32 v{SQ+2*e+1}, v{T+e}, v{T+e}"]
        return r + red(SQ) + [M("s[36:37]", f"global_store_dwordx2 v{VSS}, {P(SQ)}, s[22:23] offset:{512*h} sc1")]
    def red(b):
        r = [f"v_permlane32_swap_b32 v{b+k}, v{b+2+k}" for k in range(2)] + [f"v_add_f32 v{b+k}, v{b+k}, v{b+2+k}" for k in range(2)]
        r += [f"v_add_f32_dpp v{b+k}, v{b+k}, v{b+k} row_ror:8 row_mask:0xf bank_mask:0xf" for k in range(2)]
        r += [f"v_mov_b32 v{b+2+k}, v{b+k}" for k in range(2)] + [f"v_permlane16_swap_b32 v{b+k}, v{b+2+k}" for k in range(2)]
        return r + [f"v_add_f32 v{b+k}, v{b+k}, v{b+2+k}" for k in range(2)]
    gat = lambda h: [f"global_load_dwordx4 {V4(GL+4*i)}, v{VG}, s[22:23] offset:{1024*i + 512*h} sc1" for i in range(2)]
    gchk = [f"v_min3_f32 v{R}, v{GL+1}, v{GL+3}, v{GL+5}", f"v_min_f32 v{R}, v{R}, v{GL+7}", f"v_cmp_gt_f32 vcc, 0, v{R}"]
    fin = [f"v_add_f32 v{GL+k}, v{GL+k}, v{GL+4+k}" for k in range(4)] + red(GL)
    fin += [f"v_mul_f32 v{GL}, 0xbacccccd, v{GL}", f"v_mul_f32 v{GL+1}, 0x3acccccd, v{GL+1}",
            f"v_fma_f32 v{GL+1}, -v{GL}, v{GL}, v{GL+1}", f"v_cvt_pk_bf16_f32 v{GL+2}, v{GL}, v{GL}", f"v_max_f32 v{GL+1}, 0, v{GL+1}",
            f"v_and_b32 v{GL+2}, 0xffff0000, v{GL+2}", f"v_add_f32 v{R+6}, 0x3727c5ac, v{GL+1}", f"v_sub_f32 v{GL+3}, v{GL}, v{GL+2}",
            f"v_rsq_f32 v{GL+4}, v{R+6}", f"v_sqrt_f32 v{GL+5}, v{R+6}", f"v_cvt_pk_bf16_f32 v{R}, v{GL+2}, v{GL+3}",
            f"v_mul_f32 v{R+5}, {f2u(c0)}, v{GL+4}", f"v_cvt_pk_bf16_f32 v{GL+6}, v{GL+5}, v{GL+5}", f"v_mul_f32 v{GL+4}, v{GL+4}, v{GL+4}",
            f"v_and_b32 v{GL+6}, 0xffff0000, v{GL+6}", f"v_mul_f32 v{GL+4}, {f2u(0.044715)}, v{GL+4}", f"v_sub_f32 v{GL+7}, v{GL+5}, v{GL+6}",
            f"v_mul_f32 v{R+4}, v{GL+4}, v{R+5}", f"v_cvt_pk_bf16_f32 v{R+2}, v{GL+6}, v{GL+7}", f"v_mov_b32 v{R+1}, v{R}", f"v_mov_b32 v{R+3}, v{R+2}",
            f"v_mov_b32 v{R+7}, v{R+6}", ]
    finh = lambda h: fin + [f"ds_write_b128 v{VRW}, {V4(R)} offset:{2048*h}", f"ds_write_b128 v{VRW}, {V4(R+4)} offset:{2048*h+16}"]
    dq = [0]
    def dnext(n, lim=60):
        r = []
        for _ in range(n):
            q = dq[0]
            if q >= min(lim, O.get('x_wd', 60)): break
            if q == 0: r.append(f"v_lshl_add_u32 v{VW}, v1, 4, s34")
            r.append(f"global_load_dwordx4 {A4(4*q)}, v{VW}, s[22:23] offset:{1024*(q&7)-4096}" + SC)
            if q & 7 == 7: r.append(f"v_add_u32 v{VW}, 8192, v{VW}")
            dq[0] += 1
        return r
    RR, TM = 224, 236
    def rdex(hb): return [f"ds_read_b128 {V4(EX+8*t+4*k)}, v{VRR} offset:{512*(4*hb+t)+16*k}" for k in range(2) for t in range(4)]
    def flagc(hb): return [f"WAITVM hh{hb}"] + ["s_waitcnt lgkmcnt(0)"]*hb + ["s_barrier"] + flag_set(f'c{hb}', VF, VF+1, True, 128*hb)
    def pollc(hb): return [M(15, f"global_load_dword v{PL}, v{VPC}, s[22:23] offset:{128*hb} sc1")]
    def checkc(hb):
        if O.get('x_c'): return
        a(chk[0] + f"\ns_cbranch_vccnz f_spinc{hb}\nf_okc{hb}:")
        spin(a, late, f"f_spinc{hb}", pollc(hb), chk, f"f_okc{hb}")
    def epilogue(hb, fill, mid=None):
        m = [mf(ACC+48*hb+12*t+4*j, A4(240+4*j), V4(EX+8*t)) for j in range(3) for t in range(4)]
        for l in interleave(m, fill(2)): a(l)
        if mid: mid()
        sts = []
        for j in range(3):
            r = RR + 4*j; ts = range(4)
            g = lambda t: ACC + 48*hb + 12*t + 4*j
            tm = lambda t: TM + 2*t
            e = []
            for t in ts: e.append(f"v_pk_mul_f32 {P(tm(t))}, {P(g(t))}, {P(g(t))}")
            for t in ts: e.append(f"v_pk_fma_f32 {P(tm(t))}, {P(tm(t))}, {P(EX+8*t+4)}, {P(EX+8*t+4)} op_sel:[0,0,1] op_sel_hi:[1,0,1]")
            for t in ts: e.append(f"v_pk_mul_f32 {P(tm(t))}, {P(tm(t))}, {P(g(t))}")
            for t in ts: e += [f"v_exp_f32 v{tm(t)}, v{tm(t)}", f"v_exp_f32 v{tm(t)+1}, v{tm(t)+1}", f"v_pk_mul_f32 {P(g(t))}, {P(g(t))}, {P(g(t)+2)}"]
            for t in ts: e.append(f"v_pk_fma_f32 {P(tm(t))}, {P(tm(t))}, {P(EX+8*t+6)}, {P(EX+8*t+6)}")
            for t in ts: e += [f"v_rcp_f32 v{tm(t)}, v{tm(t)}", f"v_rcp_f32 v{tm(t)+1}, v{tm(t)+1}"]
            for t in ts: e.append(f"v_pk_mul_f32 {P(g(t))}, {P(g(t))}, {P(tm(t))}")
            for t in (0, 2, 1, 3): e.append(f"v_cvt_pk_bf16_f32 v{r+t}, v{g(t)}, v{g(t)+1}")
            for l in interleave(e, fill(O['edr'])): a(l)
            a(f"v_permlane32_swap_b32 v{r}, v{r+2}\nv_permlane32_swap_b32 v{r+1}, v{r+3}\nv_permlane16_swap_b32 v{r}, v{r+1}\nv_permlane16_swap_b32 v{r+2}, v{r+3}")
            sts.append(f"global_store_dwordx4 v{VO}, {V4(r)}, s[22:23] offset:{1024*j}" + SC + f" ; tag=hh{hb}")
            if not (O['late'] >> hb & 1) or j == 2:
                for l in sts: a(l)
                sts = []
        if hb == 0: a(f"v_add_u32 v{VO}, 196608, v{VO}")
    A2, HB, NHB, RD, GB, RT = 80, 32, 12, 160, 220, 244
    seq = []
    for k in range(48):
        t, sl = divmod(k, 12); r = HB + 4*(k % NHB) + (96 if 12 <= k < 24 else 0)
        if k < 24 and O['pair']: sl, t = divmod(k, 2)
        ins = [f"global_load_dwordx4 {V4(r)}, v{VH+t}, s[22:23] offset:{4096*(sl&1)-4096}" + SC]
        if sl & 1 and sl < 11: ins.append(f"v_add_u32 v{VH+t}, 8192, v{VH+t}")
        seq.append((ins, [mf(A2+20*t+4*jj, A4(20*sl+4*jj), V4(r), "0" if sl == 0 else None) for jj in range(5)]))
    W = O['win']; W0 = O['win0']; assert W < NHB and W0 <= 24
    hq = [0]; okc = [0]
    def hnext(n, lim):
        r = []
        while n > 0 and hq[0] < min(lim, 48): r += seq[hq[0]][0]; hq[0] += 1; n -= 1
        return r
    valu = []
    wrate = -(-(60 - wq[0]) // O['wspan'])
    xs = [O['xd']]; covered = 0; GM = O['GM']; xt = [-1]*xs[0]
    def xnext(n, G):
        r = []
        while n > 0 and xs[0] < (20 if G >= O['b1c'] else 10): r += dma(xs[0]); xs[0] += 1; xt.append(G); n -= 1
        return r
    for G in range(20):
        h, Gl = divmod(G, 10); bf = BF + 32*(G & 1)
        m = [mf(ACC+48*h+12*t+4*j, A4(12*(2*Gl+sl)+4*j), V4(bf+16*sl+4*t), "0" if Gl == 0 and sl == 0 else None) for sl in range(2) for t, j in ORD[O['ord']]]
        for k in range(2):
            if G == O['gcheck'][k]:
                for l in gchk: a(l)
                a(f"s_cbranch_vccnz f_sping{k}\nf_okg{k}:")
                spin(a, late, f"f_sping{k}", gat(k), gchk, f"f_okg{k}")
                valu += finh(k)
        if G == O['b1c']:
            a(chk[0] + "\ns_cbranch_vccnz f_spinb1\nf_okb1:")
            spin(a, late, "f_spinb1", poll, chk, "f_okb1")
            if stamp: stamp(a, 'pollB1')
        if G == O['cc0']: checkc(0); okc[0] = 1; stamp and stamp(a, 'pollC')
        if G == GM:
            if stamp: stamp(a, 'm0')
            def fill0(n):
                r = xnext(n // 2, G - 1); n -= sum(l.startswith('global') for l in r)
                return r + dnext(n, 6*Gl)
            for l in valu: a(l)
            valu = []
            epilogue(0, fill0)
        if stamp: stamp(a, f'g{G}')
        a("s_waitcnt lgkmcnt(0)")
        head = []; lds = []
        if G < 19:
            if G + 1 > covered:
                assert G + 1 < len(xt)
                covered = min(19, max([G + 1] + [k for k in range(len(xt)) if xt[k] <= G - O['xtl']]))
                head = [f"WAITVM x{covered}", "s_barrier"]
            lds = rdb(G+1)
        for k, g in enumerate((GM - 1, 19)):
            if G == g:
                assert not any(l.startswith('ds_write') for l in valu) and G > O['gcheck'][k]
                if not head: head = ["s_barrier"]
                lds = rdex(k) + lds + ([f"ds_read_b64_tr_b16 {P(RT+2*jj)}, v31 offset:{2048*jj}" for jj in range(5)] if k else [])
        for k in range(2):
            if G == O['gstat'][k] and O['sdma']: assert O['adl']; head = [f"WAITVM sd{k}"] + [x for x in head if x != 's_barrier'] + ["s_barrier"]
        if G == O['b1f'] and O['dst'] >= 0: head = ["WAITVM x1e"] + [x for x in head if x != 's_barrier'] + ["s_barrier"] + fb1
        if G == GM + O['cf0']: head = [x for x in head if x != 's_barrier'] + flagc(0)
        if G == O['b1c']:
            if not head: head = ["s_barrier"]
            head += ["s_cmp_lg_u32 s2, 0", "s_cbranch_scc1 u_noepo", f"v_mov_b32 v244, {EPO}", "s_mov_b64 exec, 1", f"global_store_dword v244, v{VF+1}, s[22:23] sc1 ; untracked", "s_mov_b64 exec, -1", "u_noepo:"]
        ld = []
        if G == O['cp0']: ld += pollc(0)
        if G == O['b1i']: ld += poll
        ld += xnext(O['xrate'][G] if G < len(O['xrate']) else 1, G)
        ld += wnext(min(wrate, 60 - wq[0])) if wq[0] < 60 else wnext(3) if G >= O['b1c'] else []
        if G == O['sat1']: assert not any('s31' in l for l in valu); ld += sld(1, xs[0])
        if G == O['pfg'] and O['sen']:
            ld += [f"v_add_u32 v246, {196608 if G < GM else 0}, v{VO}\n" + "\n".join(f"v_mov_b32 v{240+k}, -1" for k in range(4))] + [f"global_store_dwordx4 v246, {V4(240)}, s[22:23] offset:{1024*j} sc1 ; tag=hh0" for j in range(3)]
            assert G < GM + O['cf0'] and G > O['b1f']
        for k in range(2):
            if G == O['gissue'][k]: assert k or len(valu) < len(ad) - n_mid - 12; ld += gat(k)
            if G == O['gstat'][k]: valu += st(k) + (ad[n_mid:] if k == 0 and O['adl'] else [])
        if G > 10: assert wq[0] == 63; ld += dnext(O['wdrate'], 6*Gl)
        if okc[0]: ld += hnext(O['hrate'], min(W0, 12))
        out, valu = slots(m, head, lds, vmgroups(ld), valu, vm_cost=O['vmc'], spread=O['spread'])
        if (G + 2) % 8 == 0: out += [f"v_add_u32 v{VB+i}, 65536, v{VB+i}" for i in range(4)]
        for l in out: a(l)
    assert wq[0] == 63
    if stamp: stamp(a, 'g20')
    def fill1(n):
        r = dnext(n, O['dlim']); n -= sum(l.startswith('global') for l in r)
        return r + (hnext(n, W0) if okc[0] else [])
    def mid1():
        if not okc[0]: checkc(0); okc[0] = 1; stamp and stamp(a, 'pollC')
    epilogue(1, fill1, mid1)
    for l in dnext(60, O['dlim']): a(l)
    dq0 = dq[0]; drest = vmgroups(dnext(60))
    if stamp: stamp(a, 'epi')
    VR, VGB, VXW, VXR, VST, VOUT, SRD, VTR = 2, 5, 8, 12, 13, 14, 20, 17
    L_EX = 5120; L_ST = L_EX + 4*3*5*1024; L_RES = 81920
    ad = Asm()
    ad(f"""
    s_lshr_b32 s8, s20, 1
    s_and_b32 s9, s20, 1
    s_mul_i32 s10, s35, {O['TA']}
    s_mul_i32 s11, s8, {O['TB']}
    s_add_u32 s14, s10, s11
    s_mul_i32 s10, s32, 320
    s_add_u32 s10, s10, {MODP + 5*2560}
    v_lshl_add_u32 v{VGB}, v1, 4, s10
    s_lshl_b32 s10, s20, 10
    s_add_u32 s10, s10, {L_RES}
    v_lshl_add_u32 v{VR}, v1, 4, s10
    v_lshl_add_u32 v{VTR}, v7, 4, s10
    """)
    for lam in range(4):
        ad(f"s_xor_b32 s10, s9, {2*(lam>>1) + ((lam&1)^1)}\ns_xor_b32 s11, s10, s20\ns_mul_i32 s10, s10, 15360\ns_mul_i32 s11, s11, 5120\ns_add_u32 s10, s10, s11\nv_lshl_add_u32 v{VXW+lam}, v1, 4, s10")
    n_early = len(ad.ins)
    ad(f"""
    s_mul_i32 s10, s20, 15360
    v_lshl_add_u32 v{VXR}, v1, 4, s10
    s_mul_i32 s10, s20, {16*176}
    s_add_u32 s10, s10, {L_ST}
    v_mul_u32_u24 v4, 176, v6
    v_lshl_add_u32 v4, v7, 3, v4
    v_add_u32 v{VST}, s10, v4
    s_lshl_b32 s11, s14, 2
    s_add_u32 s11, s11, s16
    s_mul_i32 s11, s11, {16*1280}
    s_mul_i32 s12, s32, 160
    s_add_u32 s11, s11, s12
    """)
    for i in range(3):
        ad(f"v_add_u32 v4, {64*i}, v1\nv_min_u32 v4, 159, v4\nv_mul_u32_u24 v31, 6554, v4\nv_lshrrev_b32 v31, 16, v31")
        ad(f"v_add_u32 v{SRD+i}, v4, v31\nv_lshl_add_u32 v{SRD+i}, v{SRD+i}, 4, s10")
        ad(f"v_mul_u32_u24 v31, {1280-160}, v31\nv_lshl_add_u32 v31, v4, 4, v31\nv_add_u32 v{VOUT+i}, s11, v31")
    ad = [i.text for i in ad.ins]
    def wr(t): return [f"ds_write_b128 v{VXW+t}, {V4(A2+20*t+4*jj)} offset:{L_EX - 5120 + 1024*jj + 5120*0}" for jj in range(5 if not O.get('x_wr') else 0)]
    gbl = [M("0xfffff", "\n".join(f"global_load_dwordx4 {V4(GB+4*k)}, v{VGB}, s[22:23] sc1\nv_add_u32 v{VGB}, 15360, v{VGB}" for k in (2*j, 2*j+1))) for j in range(2)]
    gb = [f"v_add_f32 v{GB+k}, v{GB+k}, v{GB+8+k}" for k in range(8)] + [f"v_add_f32 v{GB+k}, v{GB+k}, v{GB+4+k}" for k in range(4)]
    for k in range(2): gb += [f"v_cvt_pk_bf16_f32 v31, v{GB+2*k}, v{GB+2*k+1}", f"v_lshlrev_b32 v{GB+2*k}, 16, v31", f"v_and_b32 v{GB+2*k+1}, 0xffff0000, v31"]
    gb += [f"ds_write_b128 v{VR}, {V4(GB)}"] + [f"ds_read_b128 {V4(GB+4*jj)}, v{VTR} offset:{64*jj}" for jj in range(5)]
    def rdp(ps): return [f"ds_read_b128 {V4(RD+20*p+4*jj)}, v{VXR} offset:{L_EX + 5120*p + 1024*jj}" for jj in range(5) for p in ps]
    XU = A2
    unp = []
    for k in range(10): unp += [f"v_lshlrev_b32 v{XU+2*k}, 16, v{RT+k}", f"v_and_b32 v{XU+2*k+1}, 0xffff0000, v{RT+k}"]
    add = lambda d, x: [f"v_add_f32 v{d+k}, v{d+k}, v{x+k}" for k in range(20)]
    def outst():
        r = [f"ds_read_b128 {V4(RD+4*i)}, v{SRD+i}" for i in range(3)]
        for i in range(3):
            if i == 2: r += ["s_waitcnt lgkmcnt(0)", "s_mov_b64 exec, 0xffffffff"]
            r.append(f"global_store_dwordx4 v{VOUT+i}, {V4(RD+4*i)}, s[66:67]")
        return r + ["s_mov_b64 exec, -1"]
    BAR = ["s_waitcnt lgkmcnt(0)", "s_barrier"]
    mm = [l for x in seq for l in x[1]]
    f1, pI, pc = 5*O['fC1'], 5*O['pI'], 5*O['pc']
    if not O['sen']: spin(a, late, "f_spinc1", pollc(1), chk, "f_okc1")
    hreg = lambda k: HB + 4*(k % NHB)
    def sch(p):
        r = []
        for k in range(24, 48):
            g = 5*(k - 24) - 1
            r += [(f"v_cmp_eq_u32 vcc, -1, v{hreg(k)}", max(-1, g - 1), max(-1, g - 1)), ([f"s_cbranch_vccnz f_re{k} ; nosnap", f"f_ok{p}{k}:"], g, g)]
        return r if O['sen'] else []
    if O['sen']:
        SPINS.append('f_re')
        for k in range(24, 48):
            ld = lambda q: f"v_add_u32 v4, {4096*(q % 12)}, v{(23, 25)[q//12 - 2]}\nglobal_load_dwordx4 {V4(hreg(q))}, v4, s[22:23] offset:-4096 sc1"
            late.append(f"f_re{k}:\n" + (f"s_or_b32 s101, s101, {1 << (len(SPINS)-1)}\n" if DIAG[0] else "") + f"s_mov_b32 s64, 0\nf_re{k}_l:\ns_waitcnt vmcnt(0)\ns_sleep 1\n{ld(k)}\ns_waitcnt vmcnt(0)\n"
                        f"v_cmp_eq_u32 vcc, -1, v{hreg(k)}\ns_add_u32 s64, s64, 1\ns_cmp_ge_u32 s64, 0x40000\ns_cbranch_scc1 f_re{k}_x\ns_cbranch_vccnz f_re{k}_l\nf_re{k}_x:\n"
                        + "\n".join(ld(q) for q in range(k + 1, min(k + O['rel'], 47) + 1)) + f"\ns_waitcnt vmcnt(0)\ns_cmp_ge_u32 s20, 2\ns_cbranch_scc1 f_okb{k}\ns_branch f_oka{k}")
    hch = []
    for k in range(hq[0], 48):
        if k == 24 and not O['sen']: hch.append(([chk[0], "s_cbranch_vccnz f_spinc1", "f_okc1:"], pc, pc))
        lo = max(5*(k - (12 if k >= 36 else 24)) + 4, 5*(k - W), pc) if k >= 24 else max(-1, 5*(k - W0))
        hi = min(5*k - 1, lo + O['hsl']) if k >= 24 else max(lo, 5*(k - W))
        hch.append((seq[k][0] if not O.get('x_h') else ['s_nop 0'], lo, hi))
    T_ = lambda l, lo, hi=999: [(x, lo, hi) for x in l]
    ach = T_(ad[:12], 0, 8) + T_(ad[12:n_early], 0, 60) + T_(ad[n_early:], 0, min(118, O['gbp'] + 54))
    vch = [(flagc(1) if not O['sen'] else BAR, f1, f1)] + [(gbl[0], O['gbp'], O['gbp']), (gbl[1], O['gbp'] + 5, O['gbp'] + 5)]
    pch = [(pollc(1), pI, pI)] if not O['sen'] else [(f"v_mov_b32 v23, v{VH+2}", 0, 2), (f"v_mov_b32 v25, v{VH+3}", 0, 2)]
    dch = [(g, -1, max(-1, (10 if O['pair'] else 5)*((dq0 + k)//5) - 5*W)) for k, g in enumerate(drest)]
    wch = T_(wr(0), max(63, f1 + 6), 118) if not O['pair'] else []
    w0l = wr(0) if O['pair'] else []
    gch = T_(gb, O['gbp'] + 55)
    rsv = lambda g: 1 if g % 5 == 4 else 0
    rsv2 = (lambda g: 1 if g % 5 == 3 else 0) if O['sen'] else rsv
    def emit(out, base):
        n = base
        for l in out:
            if stamp and l.startswith('v_mfma'):
                if n % 60 == 5: stamp(a, f'q{n//5}')
                n += 1
            a(l)
            if stamp and l == 'f_okc1:': stamp(a, 'pollC1')
    out, rest = listsched(mm[:120], [hch, ach, vch, pch, wch, gch, dch], vmgap=O['vg'], reserve=rsv, flush=False)
    emit(out, 0)
    assert not (rest[1] or rest[2] or rest[3] or rest[4] or rest[6])
    sh = lambda c: [(t, lo - 120, hi - 120) for t, lo, hi in c]
    a("s_cmp_ge_u32 s20, 2\ns_cbranch_scc1 f_pathb")
    b2, b3 = O['b2'], O['b3']
    c = A2 + 20
    fa = add(RD, RD+20) + add(c, RD+40) + unp + add(c, RD)
    for jj in range(5):
        fa += [f"v_fma_f32 v{c+4*jj+k}, v{c+4*jj+k}, v{GB+4*jj+k}, v{XU+4*jj+k}" for k in range(4)]
        fa += [f"v_cvt_pk_bf16_f32 v{c+4*jj+h}, v{c+4*jj+2*h}, v{c+4*jj+2*h+1}" for h in range(2)] + [f"ds_write_b64 v{VST}, {P(c+4*jj)} offset:{32*jj}"]
    lch = T_(w0l, 0, b2 - 4) + [(BAR, b2, b2)] + T_(rdp((0, 1)) + rdp((2,)), b2, b2 + 18) + T_(wr(2), 63, b3 - 4) + [(BAR, b3, b3)]
    out, r2 = listsched(mm[120:], [sh(rest[0]), lch, sh(rest[5]) + T_(fa, b2 + 20), sch('a')], vmgap=O['vg'], reserve=rsv2, flush=False)
    emit(out, 120)
    assert not (r2[0] or r2[1])
    left = [x[0] for x in r2[2]]
    for l in left[:6] + wr(3) + BAR + left[6:] + outst(): a(l)
    if stamp: stamp(a, 'q48')
    a("s_branch f_done\nf_pathb:")
    c = A2 + 60
    lch = T_(w0l, 0, b2 - 4) + T_(wr(1), 3, b2 - 4) + [(BAR, b2, b2)] + T_(wr(2), 63, b3 - 4) + [(BAR, b3, b3)] + T_(rdp((0, 2)), b3, b3 + 12)
    emit(listsched(mm[120:], [sh(rest[0]), lch, sh(rest[5]) + T_(unp, b2 + 1) + T_(add(RD, RD+40), b3 + 16), sch('b')], vmgap=O['vg'], reserve=rsv2), 120)
    for jj in range(5):
        for h in range(2): a(f"v_pk_add_f32 {P(c+4*jj+2*h)}, {P(c+4*jj+2*h)}, {P(RD+4*jj+2*h)}")
    a("s_barrier")
    if stamp: stamp(a, 'q48')
    for l in rdp((1,)): a(l)
    for jj in range(5):
        r = c + 4*jj
        for h in range(2): a(f"v_pk_add_f32 {P(r+2*h)}, {P(r+2*h)}, {P(RD+20+4*jj+2*h)}")
        for h in range(2): a(f"v_pk_fma_f32 {P(r+2*h)}, {P(r+2*h)}, {P(GB+4*jj+2*h)}, {P(XU+4*jj+2*h)}")
        for h in range(2): a(f"v_cvt_pk_bf16_f32 v{r+h}, v{r+2*h}, v{r+2*h+1}")
        a(f"ds_write_b64 v{VST}, {P(r)} offset:{32*jj}")
    for l in outst(): a(l)
    a("f_done:")
def kf(stamp=None):
    a = Asm(); late = []; del SPINS[:]; del DEFER[:]; del EXT[:]; assert OPT['dst'] >= 0; DIAG[0] = bool(stamp)
    if stamp: a("s_mov_b32 s101, 0")
    a(f"""
    s_cmp_ge_u32 s2, 256
    s_cbranch_scc1 f_end
    """)
    a(f"s_cmp_ge_u32 s2, 160\ns_cbranch_scc1 u_e1\ns_load_dwordx16 s[4:19], s[0:1], {KARG['are']}\ns_mov_b32 s49, 0\ns_branch u_e2 ; nosnap\nu_e1:")
    a(f"s_load_dwordx4 s[4:7], s[0:1], {KARG['wg']}\ns_load_dwordx4 s[8:11], s[0:1], {KARG['c']}\ns_mov_b32 s49, 1\nu_e2:")
    ldp(a, 22, 'ws'); ldp(a, 36, 'x'); ldp(a, 38, 'wd'); ldp(a, 66, 'out')
    if stamp: stamp(a, 0)
    a(f"""
    v_lshrrev_b32 v1, 6, v0
    s_getpc_b64 s[40:41]
u_pc:
    v_readfirstlane_b32 s20, v1
    s_lshr_b32 s42, s2, 3
    s_lshl_b32 s42, s42, 11
    v_and_b32 v2, 3, v0
    v_lshl_add_u32 v2, v1, 2, v2
    v_lshl_add_u32 v2, v2, 7, s42
    v_min_u32 v2, code_end-u_pc-4, v2
    v_mov_b32 v3, s41
    v_add_co_u32 v2, vcc, s40, v2
    v_addc_co_u32 v3, vcc, 0, v3, vcc
    s_mov_b64 exec, 15
    PFLOAD
    s_mov_b64 exec, -1
    v_and_b32 v1, 63, v0
    """)
    for k, i in enumerate(a.ins):
        if i.text == 'PFLOAD': a.ins[k] = I("global_load_dword v255, v[2:3], off")
    a(f"v_mov_b32 v247, {EPO}\ns_and_b32 s100, s2, 7\ns_mul_i32 s100, s100, {GOS}\ns_add_u32 s100, s100, {GOB}")
    a("s_cmp_eq_u32 s49, 0\ns_cbranch_scc1 f_conv")
    role_prep(a, stamp, late)
    a("s_branch f_join\nSPLIT\nf_conv:")
    role_conv(a, stamp, late)
    p = [k for k, i in enumerate(a.ins) if i.text == 'SPLIT']
    mid = Asm(); mid("warm_back:\ns_cmp_eq_u32 s49, 0\ns_cbranch_scc1 warm_conv ; nosnap\ns_branch warm_aux ; nosnap\n.p2align 12")
    a.ins = a.ins[:p[0]] + a.ins[p[1]+1:p[2]] + mid.ins + a.ins[p[0]+1:p[1]] + a.ins[p[2]+1:]
    a("CLEARVM\nf_join:")
    gemm(a, stamp, late)
    if stamp: stamp(a, 'end')
    a("f_end:\ns_endpgm")
    for l in late: a(l)
    if OPT.get('plain'):
        for k, i in enumerate(a.ins):
            big = i.mn in ('global_load_dwordx4', 'global_load_lds_dwordx4') and ' sc1' in i.text and not re.search(r'v\[22[048]:|v\[23[26]:', i.text)
            kind = 1 if i.mn == 'global_load_lds_dwordx4' else 2 if 'a[' in i.text else 4
            if big and OPT['plain'] & kind: a.ins[k] = I(i.text.replace(' sc1', ''))
    return a
```
